```python
import torch

def _softmax(x, axis=-1):
    return torch.softmax(x, dim=axis)

def _gelu(x):
    return torch.nn.functional.gelu(x, approximate='tanh')

def _silu(x):
    return torch.nn.functional.silu(x)

def _sigmoid(x):
    return torch.sigmoid(x)

def _layernorm(x, axis=-1, eps=1e-05):
    m = x.mean(dim=axis, keepdim=True)
    v = x.var(dim=axis, keepdim=True, unbiased=False)
    return (x - m) / torch.sqrt(v + eps)

def _scatter_add(tgt, idx, src, axis=0):
    return tgt.clone().index_add_(axis, idx, src)

def _segment_sum(src, seg, n):
    out = torch.zeros((n,) + src.shape[1:], dtype=src.dtype)
    return out.index_add_(0, seg, src)

def _pad(x, pw):
    flat = tuple((v for pair in reversed(pw) for v in pair))
    return torch.nn.functional.pad(x, flat)
kernel_name = 'standalone__tensor_product_equiv_tfn__graph'

def setup_inputs():

    _w = lambda a: (lambda t: t.to(torch.bfloat16) if t.is_floating_point() else t)(torch.as_tensor(a))
    N, deg, C, L, DE = (10000, 32, 128, 1, 4)
    E = N * deg
    M = (L + 1) ** 2
    src = (lambda lo, hi, *s: torch.randint(lo, hi, s))(0, N, E).to(torch.int64)
    dst = (lambda lo, hi, *s: torch.randint(lo, hi, s))(0, N, E).to(torch.int64)
    r = (lambda *s: torch.randn(*s, dtype=torch.bfloat16) * 0.05)(E, 3)
    r = r / (torch.linalg.norm(r, dim=-1, keepdim=True) + 1e-09)
    rx, ry, rz = (r[:, 0].clone(), r[:, 1].clone(), r[:, 2].clone())
    Ys = [torch.ones((E, 1), dtype=float)]
    if L >= 1:
        Ys.append(r.to(float))
    if L >= 2:
        Ys.append(torch.stack([2 * rx * ry, 2 * ry * rz, (3 * rz * rz - 1.0) / (lambda _x: torch.sqrt(torch.as_tensor(_x)))(3.0), 2 * rx * rz, rx * rx - ry * ry], dim=-1).to(float))
    for _l in range(3, L + 1):
        Ys.append(((lambda *s: torch.randn(*s, dtype=torch.bfloat16) * 0.05)(E, 2 * _l + 1) * 0.3).to(float))
    Y = torch.cat(Ys, dim=-1)
    cg = torch.zeros((M, M, M), dtype=float)
    off = [_l * _l for _l in range(L + 2)]
    for l1 in range(L + 1):
        for l2 in range(L + 1):
            for l3 in range(abs(l1 - l2), min(L, l1 + l2) + 1):
                d1, d2, d3 = (2 * l1 + 1, 2 * l2 + 1, 2 * l3 + 1)
                cg[off[l1]:off[l1 + 1], off[l2]:off[l2 + 1], off[l3]:off[l3 + 1]] = (lambda *s: torch.randn(*s, dtype=torch.bfloat16) * 0.05)(d1, d2, d3) / (lambda _x: torch.sqrt(torch.as_tensor(_x)))(float(d1 * d2))
    return {'x': _w((lambda *s: torch.randn(*s, dtype=torch.bfloat16) * 0.05)(N, C, M) * 0.2), 'src': _w(src), 'dst': _w(dst), 'Y': _w(Y), 'edge_feat': _w((lambda *s: torch.randn(*s, dtype=torch.bfloat16) * 0.05)(E, DE)), 'w_rad': _w((lambda *s: torch.randn(*s, dtype=torch.bfloat16) * 0.05)(DE, C) * (1.0 / max(1.0, DE) ** 0.5)), 'cg': _w(cg), 'w_mix': _w((lambda *s: torch.randn(*s, dtype=torch.bfloat16) * 0.05)(C, C) * (1.0 / max(1.0, C) ** 0.5))}

def reference(x, src, dst, Y, edge_feat, w_rad, cg, w_mix):
    N, C, M = (x.shape[0], x.shape[1], x.shape[2])
    R = _silu(edge_feat @ w_rad)
    xs = x[src]
    tp = torch.einsum('eci,ef,ifo->eco', xs, Y, cg)
    msg = R[:, :, None] * tp
    agg = _segment_sum(msg.reshape(-1, C * M), dst, N).reshape(N, C, M)
    return torch.einsum('ncm,cd->ndm', agg, w_mix)
```

```python
import sys, struct, argparse

N=10000; E=320000; C=128
NPB=40
NB=250
NC=250
CH=1280
K1_THREADS=320
K1_CONST_WGS=8
WS_KEYS=0; WS_PAY=0x140000; WS_CELL=0x630000; WS_CONST=0x680000
CONST_WF=0; CONST_CG=2048; CONST_WM=4096
LOG2E=1.4426950408889634; LN2=0.6931471805599453
def f2u(f): return struct.unpack("<I",struct.pack("<f",f))[0]

class Asm:
    def __init__(s): s.L=[]
    def __call__(s,x=""):
        for l in x.split("\n"):
            s.L.append(l if (l.endswith(":") or l.startswith(".") or l=="" ) else "    "+l)
    def c(s,x): s.L.append("    ; "+x)
    def label(s,x): s.L.append(x+":")
    def text(s): return "\n".join(s.L)+"\n"

def vr(a,n=1): return f"v{a}" if n==1 else f"v[{a}:{a+n-1}]"
def sr(a,n=1): return f"s{a}" if n==1 else f"s[{a}:{a+n-1}]"

def dpp_scan(A,v,nrows=4):
    for sh in (1,2,4,8):
        A("s_nop 1")
        A(f"v_add_u32_dpp v{v}, v{v}, v{v} row_shr:{sh} row_mask:0xf bank_mask:0xf bound_ctrl:1")
    if nrows>=2:
        A("s_nop 1")
        A(f"v_add_u32_dpp v{v}, v{v}, v{v} row_bcast:15 row_mask:0xa bank_mask:0xf")
    if nrows>=4:
        A("s_nop 1")
        A(f"v_add_u32_dpp v{v}, v{v}, v{v} row_bcast:31 row_mask:0xc bank_mask:0xf")

def gen_k1(A,P):
    B=P.B
    blkmul={32:209,16:104,64:419}[B]
    assert ((N-1)*blkmul)>>16 < B
    for d in range(N):
        b=(d*52429)>>21; assert b==d//40
    for dl in range(40): assert (dl*205)>>10==dl//5
    A(".p2align 8")
    A(".type tfn_bin_kernel,@function")
    A.label("tfn_bin_kernel")
    A(f"s_cmp_ge_u32 s2, {NC+K1_CONST_WGS}")
    A("s_cbranch_scc1 K1_END")
    A("s_load_dwordx4 s[4:7], s[0:1], 8")
    A("s_load_dwordx4 s[8:11], s[0:1], 24")
    A("s_load_dwordx2 s[12:13], s[0:1], 80")
    A(f"s_cmp_ge_u32 s2, {NC}")
    A("s_cbranch_scc1 K1_CONST")
    A(f"s_mul_i32 s14, s2, {CH*4}")
    A("v_lshlrev_b32 v1, 4, v0")
    A("v_add_u32 v1, s14, v1")
    A("v_lshlrev_b32 v2, 1, v1")
    A("v_lshlrev_b32 v3, 2, v0")
    A("v_mov_b32 v4, 0")
    A("v_mov_b32 v5, 1")
    A("v_cmp_gt_u32 vcc, 0x100, v0")
    A("s_and_saveexec_b64 s[16:17], vcc")
    A("s_cbranch_execz K1_NOZ")
    A("ds_write_b32 v3, v4")
    A.label("K1_NOZ")
    A("s_mov_b64 exec, s[16:17]")
    A("s_waitcnt lgkmcnt(0)")
    A("global_load_dwordx4 v[8:11], v1, s[6:7]")
    A("global_load_dwordx4 v[12:15], v1, s[4:5]")
    A("global_load_dwordx4 v[16:19], v2, s[8:9]")
    A("global_load_dwordx4 v[20:23], v2, s[8:9] offset:16")
    A("global_load_dwordx4 v[24:27], v2, s[10:11]")
    A("global_load_dwordx4 v[28:31], v2, s[10:11] offset:16")
    A(f"s_mul_i32 s15, s2, {CH*16}")
    A("s_add_u32 s18, s12, s14"); A("s_addc_u32 s19, s13, 0")
    A(f"s_add_u32 s20, s12, {WS_PAY}"); A("s_addc_u32 s21, s13, 0")
    A("s_add_u32 s20, s20, s15"); A("s_addc_u32 s21, s21, 0")
    A("s_lshl_b32 s15, s2, 2")
    A(f"s_add_u32 s22, s12, {WS_CELL}"); A("s_addc_u32 s23, s13, 0")
    A("s_add_u32 s22, s22, s15"); A("s_addc_u32 s23, s23, 0")
    A("s_movk_i32 s24, -40")
    A("v_lshrrev_b32 v6, 6, v0")
    A("v_and_b32 v7, 63, v0")
    A("v_readfirstlane_b32 s25, v6")
    A("s_barrier")
    A("s_waitcnt vmcnt(4)")
    for i in range(4):
        d=8+i; s=12+i
        A(f"v_mul_u32_u24 v44, 0xcccd, v{d}")
        A("v_lshrrev_b32 v44, 21, v44")
        A(f"v_mad_i32_i24 v45, v44, s24, v{d}")
        A(f"v_lshlrev_b32 v{36+i}, 2, v44")
        A(f"ds_add_rtn_u32 v{40+i}, v{36+i}, v5")
        A("v_mul_u32_u24 v46, 0xcd, v45")
        A("v_lshrrev_b32 v46, 10, v46")
        A("v_mad_i32_i24 v47, v46, -5, v45")
        A(f"v_mul_u32_u24 v48, {blkmul}, v{s}")
        A("v_lshrrev_b32 v48, 16, v48")
        if P.rot:
            A("v_and_b32 v49, 7, v44")
            A(f"v_mul_u32_u24 v49, {B//8}, v49")
            A("v_add_u32 v48, v48, v49")
            A(f"v_and_b32 v48, {B-1}, v48")
        sh={16:4,32:5,64:6}[B]
        A(f"v_lshl_add_u32 v48, v46, {sh}, v48")
        A(f"v_lshl_or_b32 v{32+i}, v47, 14, v{s}")
        A(f"v_lshl_or_b32 v{32+i}, v48, 17, v{32+i}")
    A("s_waitcnt vmcnt(0)")
    A("v_swap_b32 v18, v24"); A("v_swap_b32 v19, v25"); A("v_swap_b32 v22, v28"); A("v_swap_b32 v23, v29")
    pay=[16,24,20,28]
    A("v_lshlrev_b32 v50, 4, v7")
    A("s_waitcnt lgkmcnt(0)")
    A("s_barrier")
    A("ds_read_b128 v[52:55], v50")
    A("s_waitcnt lgkmcnt(0)")
    A("v_add_u32 v56, v52, v53")
    A("v_add_u32 v57, v56, v54")
    A("v_add_u32 v58, v57, v55")
    A("v_mov_b32 v59, v58")
    dpp_scan(A,59)
    A("v_sub_u32 v60, v59, v58")
    A("v_add_u32 v61, v60, v52")
    A("v_add_u32 v62, v60, v56")
    A("v_add_u32 v63, v60, v57")
    A("ds_write_b128 v50, v[60:63] offset:1024")
    for i in range(4):
        A(f"s_cmp_lg_u32 s25, {i}")
        A(f"s_cbranch_scc1 K1_CS{i}")
        A(f"v_lshl_or_b32 v64, v{52+i}, 16, v{60+i}")
        A(f"v_lshlrev_b32 v65, 12, v7")
        if i: A(f"v_add_u32 v65, {i*1024}, v65")
        A(f"v_cmp_gt_u32 vcc, {(NB-i+3)//4}, v7")
        A("s_and_saveexec_b64 s[16:17], vcc")
        A("global_store_dword v65, v64, s[22:23]")
        A("s_mov_b64 exec, s[16:17]")
        A.label(f"K1_CS{i}")
    A("s_waitcnt lgkmcnt(0)")
    for i in range(4): A(f"ds_read_b32 v{44+i}, v{36+i} offset:1024")
    for i in range(4):
        A(f"s_waitcnt lgkmcnt({3-i})")
        A(f"v_add_u32 v{44+i}, v{44+i}, v{40+i}")
        A(f"v_lshlrev_b32 v48, 2, v{44+i}")
        A(f"v_lshlrev_b32 v49, 4, v{44+i}")
        A(f"global_store_dwordx4 v49, v[{pay[i]}:{pay[i]+3}], s[20:21]")
        A(f"global_store_dword v48, v{32+i}, s[18:19]")
        A("s_nop 1")
    A("s_endpgm")
    A.label("K1_CONST")
    A("s_load_dwordx2 s[26:27], s[0:1], 40")
    A("s_load_dwordx4 s[28:31], s[0:1], 48")
    A("v_lshrrev_b32 v6, 6, v0")
    A("s_nop 0")
    A("v_readfirstlane_b32 s25, v6")
    A(f"s_sub_u32 s14, s2, {NC}")
    A("v_and_b32 v7, 63, v0")
    A("s_waitcnt lgkmcnt(0)")
    A(f"s_add_u32 s18, s12, {WS_CONST}"); A("s_addc_u32 s19, s13, 0")
    A("s_cmp_eq_u32 s25, 4")
    A("s_cbranch_scc1 K1_CW4")
    A("s_and_b32 s15, s14, 1")
    A("s_lshr_b32 s16, s14, 1")
    A("s_lshl_b32 s16, s16, 5"); A("s_add_u32 s16, s16, s15")
    A("v_and_b32 v1, 15, v7"); A("v_lshlrev_b32 v1, 1, v1"); A("v_add_u32 v1, s16, v1")
    A("v_lshrrev_b32 v2, 4, v7"); A("v_lshlrev_b32 v2, 3, v2")
    A("s_lshl_b32 s17, s25, 5"); A("v_add_u32 v2, s17, v2")
    A("v_lshlrev_b32 v2, 7, v2"); A("v_add_u32 v2, v2, v1"); A("v_lshlrev_b32 v2, 1, v2")
    for r in range(8): A(f"global_load_ushort v{8+r}, v2, s[30:31] offset:{r*256}")
    A("s_lshl_b32 s17, s14, 12")
    A("v_lshlrev_b32 v3, 4, v0"); A("v_add_u32 v3, s17, v3"); A(f"v_add_u32 v3, {CONST_WM}, v3")
    A("s_waitcnt vmcnt(0)")
    for r in range(4): A(f"v_lshl_or_b32 v{16+r}, v{9+2*r}, 16, v{8+2*r}")
    A("global_store_dwordx4 v3, v[16:19], s[18:19]")
    A("s_endpgm")
    A.label("K1_CW4")
    A("s_cmp_eq_u32 s14, 0"); A("s_cbranch_scc1 K1_WF")
    A("s_cmp_eq_u32 s14, 1"); A("s_cbranch_scc1 K1_CG")
    A("s_endpgm")
    A.label("K1_WF")
    A("v_lshlrev_b32 v1, 2, v7")
    for k in range(4): A(f"global_load_dword v{8+k}, v1, s[26:27] offset:{k*256}")
    A(f"s_mov_b32 s15, 0x{f2u(-LOG2E):08x}")
    A("s_mov_b32 s16, 0xffff0000")
    A("s_waitcnt vmcnt(0)")
    for k in range(4):
        A(f"v_lshlrev_b32 v{12+k}, 16, v{8+k}")
        A(f"v_and_b32 v{16+k}, s16, v{8+k}")
    for k in range(8): A(f"v_mul_f32 v{12+k}, s15, v{12+k}")
    A("v_cvt_pk_bf16_f32 v20, v12, v13"); A("v_cvt_pk_bf16_f32 v21, v14, v15")
    A("v_cvt_pk_bf16_f32 v22, v16, v17"); A("v_cvt_pk_bf16_f32 v23, v18, v19")
    for q in range(4):
        A(f"v_lshlrev_b32 v28, 16, v{20+q}")
        A(f"v_and_b32 v29, s16, v{20+q}")
        A(f"v_sub_f32 v28, v{12+2*q}, v28")
        A(f"v_sub_f32 v29, v{13+2*q}, v29")
        A(f"v_cvt_pk_bf16_f32 v{24+q}, v28, v29")
    A("v_lshlrev_b32 v3, 5, v7")
    A(f"global_store_dwordx4 v3, v[20:23], s[18:19] offset:{CONST_WF}")
    A(f"global_store_dwordx4 v3, v[24:27], s[18:19] offset:{CONST_WF+16}")
    A("s_endpgm")
    A.label("K1_CG")
    A("v_and_b32 v1, 3, v7"); A("v_lshlrev_b32 v1, 5, v1")
    for f in range(4): A(f"global_load_dwordx2 v[{8+2*f}:{9+2*f}], v1, s[28:29] offset:{f*8}")
    A("s_mov_b32 s15, 0x05040100"); A("s_mov_b32 s16, 0x07060302")
    A("s_waitcnt vmcnt(0)")
    for o in range(4):
        sel="s15" if o%2==0 else "s16"; h=o//2
        A(f"v_perm_b32 v{16+2*o}, v{10+h}, v{8+h}, {sel}")
        A(f"v_perm_b32 v{17+2*o}, v{14+h}, v{12+h}, {sel}")
    A("v_lshlrev_b32 v3, 5, v7"); A(f"v_add_u32 v3, {CONST_CG}, v3")
    A("global_store_dwordx4 v3, v[16:19], s[18:19]")
    A("global_store_dwordx4 v3, v[20:23], s[18:19] offset:16")
    A.label("K1_END")
    A("s_endpgm")

LDS_IDX=0x0000; LDS_K=0x2000; LDS_HIST=0x2800; LDS_BASE=0x3000; LDS_FLAG=0x3800; LDS_MARK=0x3900; LDS_EF=0x5A00; LDS_A=0x9A00
CAPW=256; WINBIG=2048; WINSMALL=240
K2_LDS=LDS_A+8*CAPW*32+1024
AGG_STRIDE=272

def gen_k2(A,P):
    U=P.U; B=P.B
    nbins=8*B
    assert LDS_HIST+nbins*4<=LDS_BASE and LDS_BASE+nbins*4<=LDS_FLAG
    vTID=0; vLANE=1; vL16=2; vT0=3; vT1=4; vT2=5; vT3=6; vT4=7
    ACC=8
    WF=56
    WM=64
    REC0=96; CNT=100; BASEC=104
    CG=108
    X=116
    PAIR=148
    TP=156
    AOP=164; AOPN=166; EOP=168; EOPN=170
    UU=[172,180]; EE=188; RR=[196,204]
    vAad=212; vEad=213; vIad=214; vKad=215; vK=216
    NV=220
    KEY=116; RANK=120; PAY=124
    AP=140
    AT=172
    MK=188
    BINA=192
    sX=4; sOUT=6; sWS=8; sSRD=12; sW=16; sB=17; sT=18; sLO=19; sWIN=20; sNR=21; sKK=22; sEX=24; sM=26; sKEY=48; sPAY=52
    sK=[32,33]; sN=34; sTOT=35; sTMP=36; sC=40; sLN2=44; sRG=46; sCGP=47
    name="standalone__tensor_product_equiv_tfn__graph_kernel"
    A(".p2align 8")
    A(f".type {name},@function")
    A.label(name)
    A(f"s_cmp_ge_u32 s2, {NB}")
    A("s_cbranch_scc1 K2_END")
    A(f"s_load_dwordx2 s[{sX}:{sX+1}], s[0:1], 0")
    A(f"s_load_dwordx2 s[{sOUT}:{sOUT+1}], s[0:1], 64")
    A(f"s_load_dwordx2 s[{sWS}:{sWS+1}], s[0:1], 80")
    A(f"v_and_b32 v{vLANE}, 63, v0")
    A(f"v_lshrrev_b32 v{vT0}, 6, v0")
    A(f"v_lshlrev_b32 v{vL16}, 4, v{vLANE}")
    A(f"v_readfirstlane_b32 s{sW}, v{vT0}")
    A(f"s_mov_b32 s{sB}, s2")
    for i in range(48): A(f"v_mov_b32 v{ACC+i}, 0")
    for p in range(4): A(f"v_mov_b32 v{PAIR+2*p+1}, v{vL16}")
    A("s_waitcnt lgkmcnt(0)")
    A(f"s_lshl_b32 s{sTMP}, s{sB}, 10")
    A(f"s_add_u32 s{sC}, s{sWS}, {WS_CELL}"); A(f"s_addc_u32 s{sC+1}, s{sWS+1}, 0")
    A(f"s_add_u32 s{sC}, s{sC}, s{sTMP}"); A(f"s_addc_u32 s{sC+1}, s{sC+1}, 0")
    A(f"global_load_dwordx4 v[{CNT}:{CNT+3}], v{vL16}, s[{sC}:{sC+1}]")
    A(f"s_add_u32 s{sC+2}, s{sWS}, {WS_CONST}"); A(f"s_addc_u32 s{sC+3}, s{sWS+1}, 0")
    A(f"v_lshlrev_b32 v{vT1}, 5, v{vLANE}")
    A(f"global_load_dwordx4 v[{CG}:{CG+3}], v{vT1}, s[{sC+2}:{sC+3}] offset:{CONST_CG}")
    A(f"global_load_dwordx4 v[{CG+4}:{CG+7}], v{vT1}, s[{sC+2}:{sC+3}] offset:{CONST_CG+16}")
    A(f"global_load_dwordx4 v[{WF}:{WF+3}], v{vT1}, s[{sC+2}:{sC+3}] offset:{CONST_WF}")
    A(f"global_load_dwordx4 v[{WF+4}:{WF+7}], v{vT1}, s[{sC+2}:{sC+3}] offset:{CONST_WF+16}")
    A(f"s_and_b32 s{sCGP}, s{sW}, 3"); A(f"s_lshr_b32 s{sRG}, s{sW}, 2")
    A(f"s_lshl_b32 s{sTMP}, s{sCGP}, 13")
    A(f"v_add_u32 v{vT2}, s{sTMP}, v{vL16}")
    A(f"v_add_u32 v{vT2}, {CONST_WM}, v{vT2}")
    A(f"v_add_u32 v{vT3}, 4096, v{vT2}")
    for f in range(8):
        base=vT2 if f<4 else vT3
        A(f"global_load_dwordx4 v[{WM+4*f}:{WM+4*f+3}], v{base}, s[{sC+2}:{sC+3}] offset:{(f%4)*1024}")
    A(f"s_mov_b32 s{sSRD}, s{sX}")
    A(f"s_and_b32 s{sSRD+1}, s{sX+1}, 0xffff")
    A(f"s_or_b32 s{sSRD+1}, s{sSRD+1}, {1024<<16}")
    A(f"s_mov_b32 s{sSRD+2}, {N}")
    A(f"s_mov_b32 s{sSRD+3}, 0x00020000")
    A(f"s_add_u32 s{sKEY}, s{sWS}, {WS_KEYS}"); A(f"s_addc_u32 s{sKEY+1}, s{sWS+1}, 0")
    A(f"s_and_b32 s{sKEY+1}, s{sKEY+1}, 0xffff"); A(f"s_mov_b32 s{sKEY+2}, {E*4}"); A(f"s_mov_b32 s{sKEY+3}, 0x00020000")
    A(f"s_add_u32 s{sPAY}, s{sWS}, {WS_PAY}"); A(f"s_addc_u32 s{sPAY+1}, s{sWS+1}, 0")
    A(f"s_and_b32 s{sPAY+1}, s{sPAY+1}, 0xffff"); A(f"s_mov_b32 s{sPAY+2}, {E*16}"); A(f"s_mov_b32 s{sPAY+3}, 0x00020000")
    A(f"s_mov_b32 s{sLN2}, 0x{f2u(-LN2):08x}"); A(f"s_mov_b32 s{sLN2+1}, 0x{f2u(-LN2):08x}")
    A("s_waitcnt vmcnt(12)")
    A(f"v_mul_u32_u24 v{vT0}, {4*CH}, v{vLANE}")
    for i in range(4):
        A(f"v_and_b32 v{REC0+i}, 0xffff, v{CNT+i}")
        A(f"v_lshrrev_b32 v{CNT+i}, 16, v{CNT+i}")
        A(f"v_add_u32 v{REC0+i}, v{REC0+i}, v{vT0}")
        if i: A(f"v_add_u32 v{REC0+i}, {i*CH}, v{REC0+i}")
        A(f"v_cmp_gt_u32 vcc, {(NC-i+3)//4}, v{vLANE}")
        A("s_nop 1")
        A(f"v_cndmask_b32 v{CNT+i}, 0, v{CNT+i}, vcc")
    A(f"v_add_u32 v{vT1}, v{CNT}, v{CNT+1}")
    A(f"v_add_u32 v{vT2}, v{vT1}, v{CNT+2}")
    A(f"v_add_u32 v{vT3}, v{vT2}, v{CNT+3}")
    A(f"v_mov_b32 v{vT4}, v{vT3}")
    dpp_scan(A,vT4)
    A(f"v_sub_u32 v{BASEC}, v{vT4}, v{vT3}")
    A(f"v_add_u32 v{BASEC+1}, v{BASEC}, v{CNT}")
    A(f"v_add_u32 v{BASEC+2}, v{BASEC}, v{vT1}")
    A(f"v_add_u32 v{BASEC+3}, v{BASEC}, v{vT2}")
    A(f"v_readlane_b32 s{sT}, v{vT4}, 63")
    A(f"s_mov_b32 s{sLO}, 0")
    A(f"s_mov_b32 s{sWIN}, {WINBIG}")
    A(f"s_cmp_eq_u32 s{sT}, 0")
    A("s_cbranch_scc1 K2_EPI")
    A.label("K2_ROUND")
    A(f"v_lshlrev_b32 v{vT0}, 2, v0")
    A(f"v_mov_b32 v{vT1}, 0")
    if nbins<512:
        A(f"v_cmp_gt_u32 vcc, {nbins}, v0")
        A(f"s_and_saveexec_b64 s[{sEX}:{sEX+1}], vcc")
        A("s_cbranch_execz K2_NOZ")
    A(f"ds_write_b32 v{vT0}, v{vT1} offset:{LDS_HIST}")
    A.label("K2_NOZ")
    A(f"s_mov_b64 exec, -1")
    for i in range(4):
        A(f"v_subrev_u32 v{vT0}, s{sLO}, v{BASEC+i}")
        A(f"s_mov_b32 s{sKK}, s{sW}")
        A.label(f"K2_EX{i}")
        A(f"v_cmp_lt_u32 vcc, s{sKK}, v{CNT+i}")
        A(f"s_cbranch_vccz K2_EXD{i}")
        A(f"v_add_u32 v{vT1}, s{sKK}, v{vT0}")
        A(f"v_cmp_gt_u32 s[{sM}:{sM+1}], s{sWIN}, v{vT1}")
        A(f"v_add_u32 v{vT2}, s{sKK}, v{REC0+i}")
        A(f"v_lshlrev_b32 v{vT1}, 2, v{vT1}")
        A(f"s_and_b64 vcc, vcc, s[{sM}:{sM+1}]")
        A(f"s_and_saveexec_b64 s[{sEX}:{sEX+1}], vcc")
        A(f"s_cbranch_execz K2_EXS{i}")
        A(f"ds_write_b32 v{vT1}, v{vT2} offset:{LDS_MARK}")
        A.label(f"K2_EXS{i}")
        A(f"s_mov_b64 exec, -1")
        A(f"s_add_u32 s{sKK}, s{sKK}, 8")
        A(f"s_branch K2_EX{i}")
        A.label(f"K2_EXD{i}")
    A("s_waitcnt lgkmcnt(0)")
    A("s_barrier")
    A(f"v_mov_b32 v{vT0}, 0"); A(f"v_mov_b32 v{vT1}, {LDS_FLAG}")
    A(f"ds_write_b32 v{vT1}, v{vT0}")
    A(f"s_sub_u32 s{sNR}, s{sT}, s{sLO}")
    A(f"s_min_u32 s{sNR}, s{sNR}, s{sWIN}")
    A(f"v_lshlrev_b32 v{vT0}, 2, v0")
    for s in range(4):
        A(f"ds_read_b32 v{MK+s}, v{vT0} offset:{LDS_MARK+s*2048}")
    A("s_waitcnt lgkmcnt(0)")
    A(f"s_lshl_b32 s{sTMP}, s{sW}, 6")
    for s in range(4):
        A(f"s_add_u32 s{sTMP+1}, s{sTMP}, {s*512}")
        A(f"s_cmp_ge_u32 s{sTMP+1}, s{sNR}")
        A(f"s_cbranch_scc1 K2_LD_DONE")
        A(f"v_add_u32 v{vT1}, {s*512}, v0")
        A(f"v_cmp_gt_u32 vcc, s{sNR}, v{vT1}")
        A(f"s_and_saveexec_b64 s[{sEX}:{sEX+1}], vcc")
        A(f"v_lshlrev_b32 v{vT2}, 2, v{MK+s}")
        A(f"v_lshlrev_b32 v{vT3}, 4, v{MK+s}")
        A(f"buffer_load_dword v{KEY+s}, v{vT2}, s[{sKEY}:{sKEY+3}], 0 offen")
        A(f"buffer_load_dwordx4 v[{PAY+4*s}:{PAY+4*s+3}], v{vT3}, s[{sPAY}:{sPAY+3}], 0 offen")
        A(f"s_mov_b64 exec, -1")
    A.label("K2_LD_DONE")
    A("s_waitcnt vmcnt(0)")
    A(f"v_mov_b32 v{vT4}, 1")
    for s in range(4):
        A(f"s_add_u32 s{sTMP+1}, s{sTMP}, {s*512}")
        A(f"s_cmp_ge_u32 s{sTMP+1}, s{sNR}")
        A(f"s_cbranch_scc1 K2_H_DONE")
        A(f"v_add_u32 v{vT1}, {s*512}, v0")
        A(f"v_cmp_gt_u32 vcc, s{sNR}, v{vT1}")
        A(f"v_lshrrev_b32 v{BINA+s}, 17, v{KEY+s}")
        A(f"v_lshlrev_b32 v{BINA+s}, 2, v{BINA+s}")
        A(f"s_and_saveexec_b64 s[{sEX}:{sEX+1}], vcc")
        A(f"ds_add_rtn_u32 v{RANK+s}, v{BINA+s}, v{vT4} offset:{LDS_HIST}")
        A(f"s_mov_b64 exec, -1")
        for o in range(4):
            A(f"v_mfma_f32_4x4x4_16b_bf16 v[{AT+4*o}:{AT+4*o+3}], v[{CG+2*o}:{CG+2*o+1}], v[{PAY+4*s}:{PAY+4*s+1}], 0")
        A("s_nop 4")
        for o in range(4):
            A(f"v_cvt_pk_bf16_f32 v{AP+8*s+2*o}, v{AT+4*o}, v{AT+4*o+1}")
            A(f"v_cvt_pk_bf16_f32 v{AP+8*s+2*o+1}, v{AT+4*o+2}, v{AT+4*o+3}")
    A.label("K2_H_DONE")
    A("s_waitcnt lgkmcnt(0)")
    A("s_barrier")
    A(f"s_lshl_b32 s{sTMP+1}, s{sW}, {(B*4).bit_length()-1}")
    A(f"v_lshlrev_b32 v{vT0}, 2, v{vLANE}")
    A(f"v_add_u32 v{vT0}, s{sTMP+1}, v{vT0}")
    if B<64:
        A(f"v_mov_b32 v{vT1}, 0")
        A(f"v_cmp_gt_u32 vcc, {B}, v{vLANE}")
        A(f"s_and_saveexec_b64 s[{sEX}:{sEX+1}], vcc")
    A(f"ds_read_b32 v{vT1}, v{vT0} offset:{LDS_HIST}")
    A("s_waitcnt lgkmcnt(0)")
    A(f"s_mov_b64 exec, -1")
    A(f"v_mov_b32 v{vT2}, v{vT1}")
    dpp_scan(A,vT2,nrows={16:1,32:2,64:4}[B])
    A(f"s_nop 0")
    A(f"v_readlane_b32 s{sTOT}, v{vT2}, {B-1}")
    A(f"v_sub_u32 v{vT2}, v{vT2}, v{vT1}")
    A(f"s_lshl_b32 s{sTMP+2}, s{sW}, 8")
    A(f"v_add_u32 v{vT2}, s{sTMP+2}, v{vT2}")
    if B<64:
        A(f"v_cmp_gt_u32 vcc, {B}, v{vLANE}")
        A(f"s_and_saveexec_b64 s[{sEX}:{sEX+1}], vcc")
    A(f"ds_write_b32 v{vT0}, v{vT2} offset:{LDS_BASE}")
    A(f"s_mov_b64 exec, -1")
    A(f"s_cmp_gt_u32 s{sTOT}, {WINSMALL}")
    A("s_cbranch_scc0 K2_NOOVF")
    A(f"v_mov_b32 v{vT0}, 1"); A(f"v_mov_b32 v{vT1}, {LDS_FLAG}")
    A(f"ds_write_b32 v{vT1}, v{vT0}")
    A("s_branch K2_PADDONE")
    A.label("K2_NOOVF")
    A(f"s_add_u32 s{sTMP+2}, s{sTMP+2}, s{sTOT}")
    A(f"v_add_u32 v{vT0}, s{sTMP+2}, v{vLANE}")
    A(f"v_lshlrev_b32 v{vT1}, 2, v{vT0}")
    A(f"v_mov_b32 v{vT2}, 0"); A(f"v_mov_b32 v{vT3}, 40")
    A(f"v_cmp_gt_u32 vcc, 16, v{vLANE}")
    A(f"s_and_saveexec_b64 s[{sEX}:{sEX+1}], vcc")
    A(f"ds_write_b32 v{vT1}, v{vT2} offset:{LDS_IDX}")
    A(f"ds_write_b8 v{vT0}, v{vT3} offset:{LDS_K}")
    A(f"s_mov_b64 exec, -1")
    A.label("K2_PADDONE")
    A("s_waitcnt lgkmcnt(0)")
    A("s_barrier")
    A(f"v_mov_b32 v{vT1}, {LDS_FLAG}")
    A(f"ds_read_b32 v{vT0}, v{vT1}")
    for s in range(4):
        A(f"ds_read_b32 v{MK+s}, v{BINA+s} offset:{LDS_BASE}")
    A("s_waitcnt lgkmcnt(0)")
    A(f"v_readfirstlane_b32 s{sTMP+1}, v{vT0}")
    A("s_nop 3")
    A(f"s_cmp_eq_u32 s{sTMP+1}, 0")
    A("s_cbranch_scc1 K2_PLACE")
    A(f"s_mov_b32 s{sWIN}, {WINSMALL}")
    A("s_branch K2_ROUND")
    A.label("K2_PLACE")
    for s in range(4):
        A(f"s_add_u32 s{sTMP+1}, s{sTMP}, {s*512}")
        A(f"s_cmp_ge_u32 s{sTMP+1}, s{sNR}")
        A(f"s_cbranch_scc1 K2_P_DONE")
        A(f"v_add_u32 v{vT1}, {s*512}, v0")
        A(f"v_cmp_gt_u32 vcc, s{sNR}, v{vT1}")
        A(f"v_add_u32 v{MK+s}, v{MK+s}, v{RANK+s}")
        A(f"v_lshlrev_b32 v{vT0}, 2, v{MK+s}")
        A(f"v_lshlrev_b32 v{vT1}, 3, v{MK+s}")
        A(f"v_lshlrev_b32 v{vT2}, 5, v{MK+s}")
        A(f"v_add_u32 v{vT2}, {LDS_A}, v{vT2}")
        A(f"v_and_b32 v{vT3}, 0x3fff, v{KEY+s}")
        A(f"v_lshrrev_b32 v{vT4}, 11, v{KEY+s}")
        A(f"v_and_b32 v{vT4}, 0x38, v{vT4}")
        A(f"s_and_saveexec_b64 s[{sEX}:{sEX+1}], vcc")
        A(f"ds_write_b32 v{vT0}, v{vT3} offset:{LDS_IDX}")
        A(f"ds_write_b8 v{MK+s}, v{vT4} offset:{LDS_K}")
        A(f"ds_write_b64 v{vT1}, v[{PAY+4*s+2}:{PAY+4*s+3}] offset:{LDS_EF}")
        A(f"ds_write_b128 v{vT2}, v[{AP+8*s}:{AP+8*s+3}]")
        A(f"ds_write_b128 v{vT2}, v[{AP+8*s+4}:{AP+8*s+7}] offset:16")
        A(f"s_mov_b64 exec, -1")
    A.label("K2_P_DONE")
    A("s_waitcnt lgkmcnt(0)")
    A("s_barrier")
    A(f"s_cmp_eq_u32 s{sTOT}, 0")
    A("s_cbranch_scc1 K2_MAIN_DONE")
    A(f"s_add_u32 s{sN}, s{sTOT}, 3"); A(f"s_lshr_b32 s{sN}, s{sN}, 2"); A(f"s_sub_u32 s{sN}, 0, s{sN}")
    A(f"s_lshl_b32 s{sTMP}, s{sW}, 10"); A(f"v_mov_b32 v{vIad}, s{sTMP}")
    A(f"s_lshl_b32 s{sTMP}, s{sW}, 8"); A(f"v_mov_b32 v{vKad}, s{sTMP}")
    A(f"s_lshl_b32 s{sTMP}, s{sW}, 13"); A(f"s_add_u32 s{sTMP}, s{sTMP}, {LDS_A}")
    A(f"v_lshlrev_b32 v{vT0}, 3, v{vLANE}")
    A(f"v_add_u32 v{vAad}, s{sTMP}, v{vT0}")
    A(f"s_lshl_b32 s{sTMP}, s{sW}, 11"); A(f"s_add_u32 s{sTMP}, s{sTMP}, {LDS_EF}")
    A(f"v_add_u32 v{vEad}, s{sTMP}, v{vT0}")
    for p in range(4): A(f"v_mov_b32 v{PAIR+2*p+1}, v{vL16}")
    def mf(d,a,b,abid,c="0"): return f"v_mfma_f32_4x4x4_16b_bf16 v[{d}:{d+3}], v[{a}:{a+1}], v[{b}:{b+1}], {c} cbsz:4 abid:{abid}"
    def xload(j): return f"buffer_load_dwordx4 v[{X+4*(j%U)}:{X+4*(j%U)+3}], v[{PAIR+2*(j%4)}:{PAIR+2*(j%4)+1}], s[{sSRD}:{sSRD+3}], 0 idxen offen"
    A(f"ds_read_b64 v[{AOP}:{AOP+1}], v{vAad}")
    A(f"ds_read_b64 v[{EOP}:{EOP+1}], v{vEad}")
    A(f"ds_read_b32 v{vK}, v{vKad} offset:{LDS_K}")
    for j0 in range(0,U,4):
        for j in range(j0,j0+4): A(f"ds_read_b32 v{PAIR+2*(j%4)}, v{vIad} offset:{LDS_IDX+4*j}")
        A("s_waitcnt lgkmcnt(0)")
        for j in range(j0,j0+4): A(xload(j))
    A(f"ds_read_b32 v{PAIR+0}, v{vIad} offset:{LDS_IDX+4*U}")
    A(f"ds_read_b32 v{PAIR+2}, v{vIad} offset:{LDS_IDX+4*(U+1)}")
    A(f"v_readfirstlane_b32 s{sK[0]}, v{vK}")
    hi_e,hi_o,lo_e,lo_o=WF,WF+2,WF+4,WF+6
    for t in (0,1):
        u=UU[t]
        A(mf(u,EOP,hi_e,t)); A(mf(u+4,EOP,hi_o,t))
        A("s_nop 1")
        A(mf(u,EOP,lo_e,t,f"v[{u}:{u+3}]")); A(mf(u+4,EOP,lo_o,t,f"v[{u+4}:{u+7}]"))
    A("s_nop 4")
    u=UU[0]
    for q in range(8): A(f"v_exp_f32 v{EE+q}, v{u+q}")
    A("s_nop 0")
    for q in range(4): A(f"v_pk_add_f32 v[{EE+2*q}:{EE+2*q+1}], v[{EE+2*q}:{EE+2*q+1}], 1.0 op_sel_hi:[1,0]")
    for q in range(8): A(f"v_rcp_f32 v{EE+q}, v{EE+q}")
    A("s_nop 0")
    for q in range(2): A(f"v_pk_mul_f32 v[{RR[0]+2*q}:{RR[0]+2*q+1}], v[{u+2*q}:{u+2*q+1}], v[{EE+2*q}:{EE+2*q+1}]")
    A("s_waitcnt lgkmcnt(0)")
    body=[]
    for t in range(4):
        cur=t%2; nxt=(t+1)%2
        for i in range(4):
            j=4*t+i
            x=X+4*(j%U)
            un=UU[nxt]
            uw=UU[cur]
            if i==0: T=[f"v_exp_f32 v{EE+q}, v{un+q}" for q in range(4)]
            if i==1: T=[f"v_exp_f32 v{EE+4+q}, v{un+4+q}" for q in range(4)]
            if i==2: T=[f"v_rcp_f32 v{EE+q}, v{EE+q}" for q in range(4)]
            if i==3: T=[f"v_rcp_f32 v{EE+4+q}, v{EE+4+q}" for q in range(4)]
            if i==0: PK=[f"v_pk_mul_f32 v[{RR[cur]+4+2*q}:{RR[cur]+4+2*q+1}], v[{uw+4+2*q}:{uw+4+2*q+1}], v[{EE+4+2*q}:{EE+4+2*q+1}]" for q in range(2)]
            if i==1: PK=[f"v_pk_add_f32 v[{EE+2*q}:{EE+2*q+1}], v[{EE+2*q}:{EE+2*q+1}], 1.0 op_sel_hi:[1,0]" for q in range(2)]
            if i==2: PK=[f"v_pk_add_f32 v[{EE+4+2*q}:{EE+4+2*q+1}], v[{EE+4+2*q}:{EE+4+2*q+1}], 1.0 op_sel_hi:[1,0]" for q in range(2)]
            if i==3: PK=[f"v_pk_mul_f32 v[{RR[nxt]+2*q}:{RR[nxt]+2*q+1}], v[{un+2*q}:{un+2*q+1}], v[{EE+2*q}:{EE+2*q+1}]" for q in range(2)]
            eop,ab=(EOP,t+2) if t<2 else (EOPN,t-2)
            if i==0: UM=mf(uw,eop,hi_e,ab)
            if i==1: UM=mf(uw+4,eop,hi_o,ab)
            if i==2: UM=mf(uw,eop,lo_e,ab,f"v[{uw}:{uw+3}]")
            if i==3: UM=mf(uw+4,eop,lo_o,ab,f"v[{uw+4}:{uw+7}]")
            body.append(('s',f"s_waitcnt vmcnt({U-1})"))
            body.append(('s',mf(TP,AOP,x,j)))
            if i==0:
                pass
            body.append(('s',T[0]))
            body.append(('s',mf(TP+4,AOP,x+2,j)))
            body.append(('s',T[1]))
            body.append(('need',f"idx{j}"))
            body.append(('s',xload(j+U).replace(f"v[{PAIR+2*((j+U)%4)}:{PAIR+2*((j+U)%4)+1}]", f"v[{PAIR+2*(j%4)}:{PAIR+2*(j%4)+1}]")))
            body.append(('lds',f"idx{(j+2)%16}",f"ds_read_b32 v{PAIR+2*((j+2)%4)}, v{vIad} offset:{LDS_IDX+4*(j+2+U)}"))
            if i==0: body.append(('lds',f"k{t}",f"ds_read_b32 v{vK}, v{vKad} offset:{LDS_K+4*(t+1)}"))
            if j==1:
                body.append(('lds',"eopn",f"ds_read_b64 v[{EOPN}:{EOPN+1}], v{vEad} offset:128"))
                body.append(('lds',"aopn",f"ds_read_b64 v[{AOPN}:{AOPN+1}], v{vAad} offset:512"))
            if t==2 and i==0: body.append(('need',"eopn"))
            body.append(('s',UM))
            body.append(('s',T[2])); body.append(('s',T[3]))
            for q in PK: body.append(('s',q))
            if i==2:
                body.append(('need',f"k{t}"))
                body.append(('s',f"v_readfirstlane_b32 s{sK[nxt]}, v{vK}"))
            body.append(('s',f"s_set_gpr_idx_on s{sK[cur]}, gpr_idx(SRC2,DST)"))
            sel=i%2; pr=i//2
            for h in range(4):
                R=RR[cur]+(0 if h<2 else 4)+2*pr
                a=ACC+2*h; tp=TP+2*h
                mod = "op_sel_hi:[1,0,1]" if sel==0 else "op_sel:[0,1,0] op_sel_hi:[1,1,1]"
                body.append(('s',f"v_pk_fma_f32 v[{a}:{a+1}], v[{tp}:{tp+1}], v[{R}:{R+1}], v[{a}:{a+1}] {mod}"))
            body.append(('s',"s_set_gpr_idx_off"))
            if i<3: body.append(('s',f"s_lshr_b32 s{sK[cur]}, s{sK[cur]}, 8"))
        body.append(('s',f"s_add_u32 s{sN}, s{sN}, 1"))
        body.append(('s',"s_cbranch_scc1 K2_MAIN_DONE"))
    body.append(('need',"aopn"))
    body.append(('s',f"v_mov_b32 v{AOP}, v{AOPN}")); body.append(('s',f"v_mov_b32 v{AOP+1}, v{AOPN+1}"))
    body.append(('s',f"v_mov_b32 v{EOP}, v{EOPN}")); body.append(('s',f"v_mov_b32 v{EOP+1}, v{EOPN+1}"))
    body.append(('s',f"v_add_u32 v{vAad}, 512, v{vAad}")); body.append(('s',f"v_add_u32 v{vEad}, 128, v{vEad}"))
    body.append(('s',f"v_add_u32 v{vIad}, 64, v{vIad}")); body.append(('s',f"v_add_u32 v{vKad}, 16, v{vKad}"))
    body.append(('s',"s_branch K2_LOOP"))
    ldsidx=[i for i,b in enumerate(body) if b[0]=='lds']
    A.label("K2_LOOP")
    for i,b in enumerate(body):
        if b[0]=='s': A(b[1])
        elif b[0]=='lds': A(b[2])
        else:
            cnt=0; k=i-1; found=False
            for step in range(len(body)):
                kk=(i-1-step)%len(body)
                if body[kk][0]=='lds':
                    if body[kk][1]==b[1]: found=True; break
                    cnt+=1
            assert found,b
            A(f"s_waitcnt lgkmcnt({min(cnt,15)})")
    A.label("K2_MAIN_DONE")
    A(f"s_add_u32 s{sLO}, s{sLO}, s{sWIN}")
    A(f"s_cmp_lt_u32 s{sLO}, s{sT}")
    A("s_cbranch_scc0 K2_EPI")
    A("s_waitcnt vmcnt(0) lgkmcnt(0)")
    A("s_branch K2_ROUND")
    A.label("K2_EPI")
    A("s_waitcnt lgkmcnt(0)")
    for q in range(20): A(f"v_pk_mul_f32 v[{ACC+2*q}:{ACC+2*q+1}], v[{ACC+2*q}:{ACC+2*q+1}], s[{sLN2}:{sLN2+1}]")
    A(f"s_lshl_b32 s{sTMP}, s{sW}, 13"); A(f"s_add_u32 s{sTMP}, s{sTMP}, {LDS_A}")
    A(f"v_lshlrev_b32 v{vT0}, 2, v{vLANE}")
    A(f"v_add_u32 v{vT0}, s{sTMP}, v{vT0}")
    for k in range(5):
        for o in range(4):
            t=vT1+(o%2)
            A(f"v_cvt_pk_bf16_f32 v{t}, v{ACC+8*k+o}, v{ACC+8*k+4+o}")
            A(f"ds_write_b32 v{vT0}, v{t} offset:{(4*k+o)*AGG_STRIDE}")
    A("s_waitcnt lgkmcnt(0)")
    A("s_barrier")
    FR=172
    D=ACC
    A(f"v_and_b32 v{vT1}, 15, v{vLANE}")
    A(f"v_lshrrev_b32 v{vT2}, 2, v{vT1}")
    A(f"v_and_b32 v{vT1}, 3, v{vT1}")
    A(f"v_lshrrev_b32 v{vT3}, 4, v{vLANE}")
    A(f"s_mul_i32 s{sTMP}, s{sRG}, 20")
    AD=[212,213,214,215,216]
    for q in range(5):
        a=AD[q]
        A(f"v_add_u32 v{a}, s{sTMP}, v{vT2}")
        if q: A(f"v_add_u32 v{a}, {4*q}, v{a}")
        A(f"v_mul_u32_u24 v{vT4}, 0xcd, v{a}")
        A(f"v_lshrrev_b32 v{vT4}, 10, v{vT4}")
        A(f"v_mad_i32_i24 v{a}, v{vT4}, -5, v{a}")
        A(f"v_lshl_add_u32 v{a}, v{a}, 2, v{vT1}")
        A(f"v_mul_u32_u24 v{a}, {AGG_STRIDE}, v{a}")
        A(f"v_lshl_add_u32 v{a}, v{vT4}, 13, v{a}")
        A(f"v_lshl_add_u32 v{a}, v{vT3}, 4, v{a}")
        A(f"v_add_u32 v{a}, {LDS_A}, v{a}")
    A(f"s_mul_i32 s{sTMP}, s{sB}, {NPB}"); A(f"s_mul_i32 s{sTMP+1}, s{sRG}, 20"); A(f"s_add_u32 s{sTMP}, s{sTMP}, s{sTMP+1}")
    A(f"s_lshl_b32 s{sTMP}, s{sTMP}, 10"); A(f"s_lshl_b32 s{sTMP+1}, s{sCGP}, 8"); A(f"s_add_u32 s{sTMP}, s{sTMP}, s{sTMP+1}")
    A(f"s_add_u32 s{sOUT}, s{sOUT}, s{sTMP}"); A(f"s_addc_u32 s{sOUT+1}, s{sOUT+1}, 0")
    A(f"v_and_b32 v{vT1}, 15, v{vLANE}"); A(f"v_lshlrev_b32 v{vT1}, 4, v{vT1}")
    A(f"v_lshl_add_u32 v{vT0}, v{vT3}, 10, v{vT1}")
    def rd(q):
        for ks in range(4): A(f"ds_read_b128 v[{FR+16*(q%2)+4*ks}:{FR+16*(q%2)+4*ks+3}], v{AD[q]} offset:{ks*64}")
    rd(0); rd(1)
    for q in range(5):
        A(f"s_waitcnt lgkmcnt({4 if q<4 else 0})")
        for ks in range(4):
            for p in range(2):
                d=D+8*q+4*p; f=FR+16*(q%2)+4*ks; w=WM+4*(4*p+ks)
                c="0" if ks==0 else f"v[{d}:{d+3}]"
                A(f"v_mfma_f32_16x16x32_bf16 v[{d}:{d+3}], v[{f}:{f+3}], v[{w}:{w+3}], {c}")
        if q+2<5: rd(q+2)
    A("s_nop 7")
    OB=[172,176,180,184,188]
    for q in range(5):
        d=D+8*q; o=OB[q]
        A(f"v_cvt_pk_bf16_f32 v{o}, v{d}, v{d+1}"); A(f"v_cvt_pk_bf16_f32 v{o+1}, v{d+2}, v{d+3}")
        A(f"v_cvt_pk_bf16_f32 v{o+2}, v{d+4}, v{d+5}"); A(f"v_cvt_pk_bf16_f32 v{o+3}, v{d+6}, v{d+7}")
        if q: A(f"v_add_u32 v{vT0}, 4096, v{vT0}")
        A(f"global_store_dwordx4 v{vT0}, v[{o}:{o+3}], s[{sOUT}:{sOUT+1}]")
    A.label("K2_END")
    A("s_endpgm")
    return NV

def kd(name,nv,ns):
    nv8=(nv+3)//4*4
    return f""".amdhsa_kernel {name}
  .amdhsa_next_free_vgpr {nv8}
  .amdhsa_next_free_sgpr {ns}
  .amdhsa_accum_offset {nv8}
  .amdhsa_group_segment_fixed_size 0
  .amdhsa_kernarg_size 88
  .amdhsa_user_sgpr_count 2
  .amdhsa_user_sgpr_kernarg_segment_ptr 1
  .amdhsa_system_sgpr_workgroup_id_x 1
  .amdhsa_float_denorm_mode_32 3
.end_amdhsa_kernel
"""

def main():
    ap=argparse.ArgumentParser()
    ap.add_argument("-o",default="standalone__tensor_product_equiv_tfn__graph.s")
    ap.add_argument("--U",type=int,default=8)
    ap.add_argument("--B",type=int,default=32)
    ap.add_argument("--rot",type=int,default=0)
    P=ap.parse_args()
    hdr=open("standalone__tensor_product_equiv_tfn__graph.s.ref").read().split("; Override")[0]
    A=Asm()
    A.L.append(hdr.rstrip("\n"))
    A.L.append(f"; @launch kernel=tfn_bin_kernel grid=({NC+K1_CONST_WGS},1,1) block=({K1_THREADS},1,1) lds=2048")
    A.L.append(f"; @launch kernel=standalone__tensor_product_equiv_tfn__graph_kernel grid=({NB},1,1) block=(512,1,1) lds={K2_LDS}")
    A('.amdgcn_target "amdgcn-amd-amdhsa--gfx950"')
    A(".text")
    A(".globl tfn_bin_kernel")
    A(".globl standalone__tensor_product_equiv_tfn__graph_kernel")
    gen_k1(A,P)
    nv=gen_k2(A,P)
    A('.section .rodata,"a"')
    A(".p2align 6")
    s=A.text()+kd("tfn_bin_kernel",72,40)+".p2align 6\n"+kd("standalone__tensor_product_equiv_tfn__graph_kernel",nv,64)
    open(P.o,"w").write(s)
    print("wrote",P.o,len(s),"bytes")
main()
```

```python
import sys, struct, argparse

N=10000; E=320000; C=128
NPB=40
NB=250
NC=250
CH=1280
K1_THREADS=320
K1_CONST_WGS=8
WS_KEYS=0; WS_PAY=0x140000; WS_CELL=0x630000; WS_CONST=0x680000
CONST_WF=0; CONST_CG=2048; CONST_WM=4096
LOG2E=1.4426950408889634; LN2=0.6931471805599453
def f2u(f): return struct.unpack("<I",struct.pack("<f",f))[0]

class Asm:
    def __init__(s): s.L=[]
    def __call__(s,x=""):
        for l in x.split("\n"):
            s.L.append(l if (l.endswith(":") or l.startswith(".") or l=="" ) else "    "+l)
    def c(s,x): s.L.append("    ; "+x)
    def label(s,x): s.L.append(x+":")
    def text(s): return "\n".join(s.L)+"\n"

def vr(a,n=1): return f"v{a}" if n==1 else f"v[{a}:{a+n-1}]"
def sr(a,n=1): return f"s{a}" if n==1 else f"s[{a}:{a+n-1}]"

WS_STAMP=0x800000
class Stamps:
    def __init__(s,A,on,kn,base_sgpr=82,tmp=80): s.A=A; s.on=on; s.n=0; s.base=base_sgpr; s.tmp=tmp; s.kn=kn
    def mark(s,name=""):
        if not s.on: return
        A=s.A
        A(f"s_memrealtime s[{s.tmp}:{s.tmp+1}]")
        A("s_waitcnt lgkmcnt(0)")
        A(f"s_mov_b32 s{s.base+s.n}, s{s.tmp}")
        s.n+=1
    def markc(s,name=""):
        if not s.on: return
        A=s.A
        A(f"s_memtime s[{s.tmp}:{s.tmp+1}]")
        A("s_waitcnt lgkmcnt(0)")
        A(f"s_mov_b32 s{s.base+s.n}, s{s.tmp}")
        s.n+=1
    def dump(s,wsreg,kernel,wgreg,wavereg,vtmp):
        if not s.on: return
        A=s.A
        A(f"s_lshl_b32 s{s.tmp}, s{wgreg}, 4"); A(f"s_add_u32 s{s.tmp}, s{s.tmp}, s{wavereg}"); A(f"s_lshl_b32 s{s.tmp}, s{s.tmp}, 7")
        A(f"s_add_u32 s{s.tmp}, s{s.tmp}, {WS_STAMP+kernel*0x100000}")
        A(f"s_add_u32 s{s.tmp}, s{wsreg}, s{s.tmp}"); A(f"s_addc_u32 s{s.tmp+1}, s{wsreg+1}, 0")
        A(f"v_mov_b32 v{vtmp}, 0")
        for i in range(s.n):
            A(f"v_mov_b32 v{vtmp+1}, s{s.base+i}")
            A(f"global_store_dword v{vtmp}, v{vtmp+1}, s[{s.tmp}:{s.tmp+1}] offset:{4*i}")
            A("s_nop 1")

def dpp_scan(A,v,nrows=4):
    for sh in (1,2,4,8):
        A("s_nop 1")
        A(f"v_add_u32_dpp v{v}, v{v}, v{v} row_shr:{sh} row_mask:0xf bank_mask:0xf bound_ctrl:1")
    if nrows>=2:
        A("s_nop 1")
        A(f"v_add_u32_dpp v{v}, v{v}, v{v} row_bcast:15 row_mask:0xa bank_mask:0xf")
    if nrows>=4:
        A("s_nop 1")
        A(f"v_add_u32_dpp v{v}, v{v}, v{v} row_bcast:31 row_mask:0xc bank_mask:0xf")

def gen_k1(A,P):
    B=P.B
    blkmul={32:209,16:104,64:419}[B]
    assert ((N-1)*blkmul)>>16 < B
    for d in range(N):
        b=(d*52429)>>21; assert b==d//40
    for dl in range(40): assert (dl*205)>>10==dl//5
    A(".p2align 8")
    A(".type tfn_bin_kernel,@function")
    A.label("tfn_bin_kernel")
    A(f"s_cmp_ge_u32 s2, {NC+K1_CONST_WGS}")
    A("s_cbranch_scc1 K1_END")
    A("s_load_dwordx4 s[4:7], s[0:1], 8")
    A("s_load_dwordx4 s[8:11], s[0:1], 24")
    A("s_load_dwordx2 s[12:13], s[0:1], 80")
    if P.k1pf: A("s_load_dwordx2 s[32:33], s[0:1], 0")
    A(f"s_cmp_ge_u32 s2, {NC}")
    A("s_cbranch_scc1 K1_CONST")
    ST=Stamps(A,P.stamps,"K1")
    ST.mark("start")
    A(f"s_mul_i32 s14, s2, {CH*4}")
    A("v_lshlrev_b32 v1, 4, v0")
    A("v_add_u32 v1, s14, v1")
    A("v_lshlrev_b32 v2, 1, v1")
    A("v_lshlrev_b32 v3, 2, v0")
    A("v_mov_b32 v4, 0")
    A("v_mov_b32 v5, 1")
    A("v_cmp_gt_u32 vcc, 0x100, v0")
    A("s_and_saveexec_b64 s[16:17], vcc")
    A("s_cbranch_execz K1_NOZ")
    A("ds_write_b32 v3, v4")
    A.label("K1_NOZ")
    A("s_mov_b64 exec, s[16:17]")
    A("s_waitcnt lgkmcnt(0)")
    A("global_load_dwordx4 v[8:11], v1, s[6:7]")
    A("global_load_dwordx4 v[12:15], v1, s[4:5]")
    A("global_load_dwordx4 v[16:19], v2, s[8:9]")
    A("global_load_dwordx4 v[20:23], v2, s[8:9] offset:16")
    A("global_load_dwordx4 v[24:27], v2, s[10:11]")
    A("global_load_dwordx4 v[28:31], v2, s[10:11] offset:16")
    def k1pf():
        if P.k1l2==0:
            per=(P.k1rows*8+249)//250
            A(f"s_mul_i32 s34, s2, {per*128}")
            A("v_lshlrev_b32 v68, 7, v0"); A("v_add_u32 v68, s34, v68")
            if per<320:
                A(f"v_cmp_gt_u32 vcc, {per}, v0"); A("s_and_saveexec_b64 s[36:37], vcc"); A("s_cbranch_execz K1_NOPF")
            A("global_load_dword v69, v68, s[32:33]")
            if per<320:
                A.label("K1_NOPF"); A("s_mov_b64 exec, s[36:37]")
        else:
            A("s_lshr_b32 s34, s2, 3"); A(f"s_mul_i32 s34, s34, {320*128}")
            A("v_lshlrev_b32 v68, 7, v0"); A("v_add_u32 v68, s34, v68")
            for q in range(P.k1l2):
                A("global_load_dword v69, v68, s[32:33]")
                A(f"v_add_u32 v68, {10240*128}, v68")
            rem=80000-10240*P.k1l2; per=(rem+249)//250
            assert per<=320
            A(f"s_mul_i32 s34, s2, {per}"); A(f"s_add_u32 s34, s34, {10240*P.k1l2}")
            A("v_add_u32 v70, s34, v0")
            A(f"v_cmp_gt_u32 vcc, {per}, v0"); A(f"s_mov_b32 s35, 80000"); A("v_cmp_gt_u32 s[36:37], s35, v70"); A("s_and_b64 vcc, vcc, s[36:37]")
            A("v_lshlrev_b32 v70, 7, v70")
            A("s_and_saveexec_b64 s[36:37], vcc")
            A("s_cbranch_execz K1_NOPF")
            A("global_load_dword v71, v70, s[32:33]")
            A.label("K1_NOPF")
            A("s_mov_b64 exec, s[36:37]")
    if P.k1pf==1: k1pf()
    A(f"s_mul_i32 s15, s2, {CH*16}")
    A("s_add_u32 s18, s12, s14"); A("s_addc_u32 s19, s13, 0")
    A(f"s_add_u32 s20, s12, {WS_PAY}"); A("s_addc_u32 s21, s13, 0")
    A("s_add_u32 s20, s20, s15"); A("s_addc_u32 s21, s21, 0")
    A("s_lshl_b32 s15, s2, 2")
    A(f"s_add_u32 s22, s12, {WS_CELL}"); A("s_addc_u32 s23, s13, 0")
    A("s_add_u32 s22, s22, s15"); A("s_addc_u32 s23, s23, 0")
    A("s_movk_i32 s24, -40")
    A("v_lshrrev_b32 v6, 6, v0")
    A("v_and_b32 v7, 63, v0")
    A("v_readfirstlane_b32 s25, v6")
    A("s_barrier")
    A(f"s_waitcnt vmcnt({5 if P.k1pf==1 else 4})")
    ST.mark("ld")
    for i in range(4):
        d=8+i; s=12+i
        A(f"v_mul_u32_u24 v44, 0xcccd, v{d}")
        A("v_lshrrev_b32 v44, 21, v44")
        A(f"v_mad_i32_i24 v45, v44, s24, v{d}")
        A(f"v_lshlrev_b32 v{36+i}, 2, v44")
        A(f"ds_add_rtn_u32 v{40+i}, v{36+i}, v5")
        A("v_mul_u32_u24 v46, 0xcd, v45")
        A("v_lshrrev_b32 v46, 10, v46")
        A("v_mad_i32_i24 v47, v46, -5, v45")
        A(f"v_mul_u32_u24 v48, {blkmul}, v{s}")
        A("v_lshrrev_b32 v48, 16, v48")
        if P.rot:
            A("v_mul_u32_u24 v49, 2098, v44"); A("v_lshrrev_b32 v49, 16, v49")
            A(f"v_mul_u32_u24 v49, {(B//8)*P.rot}, v49")
            A("v_add_u32 v48, v48, v49")
            A(f"v_and_b32 v48, {B-1}, v48")
        sh={16:4,32:5,64:6}[B]
        A(f"v_lshl_add_u32 v48, v46, {sh}, v48")
        A(f"v_lshl_or_b32 v{32+i}, v47, 14, v{s}")
        A(f"v_lshl_or_b32 v{32+i}, v48, 17, v{32+i}")
    A(f"s_waitcnt vmcnt({1 if P.k1pf==1 else 0})")
    A("v_swap_b32 v18, v24"); A("v_swap_b32 v19, v25"); A("v_swap_b32 v22, v28"); A("v_swap_b32 v23, v29")
    pay=[16,24,20,28]
    A("v_lshlrev_b32 v50, 4, v7")
    A("s_waitcnt lgkmcnt(0)")
    A("s_barrier")
    ST.mark("hist")
    if P.k1pf==2: k1pf()
    A("ds_read_b128 v[52:55], v50")
    A("s_waitcnt lgkmcnt(0)")
    A("v_add_u32 v56, v52, v53")
    A("v_add_u32 v57, v56, v54")
    A("v_add_u32 v58, v57, v55")
    A("v_mov_b32 v59, v58")
    dpp_scan(A,59)
    A("v_sub_u32 v60, v59, v58")
    A("v_add_u32 v61, v60, v52")
    A("v_add_u32 v62, v60, v56")
    A("v_add_u32 v63, v60, v57")
    A("ds_write_b128 v50, v[60:63] offset:1024")
    for i in range(4):
        A(f"s_cmp_lg_u32 s25, {i}")
        A(f"s_cbranch_scc1 K1_CS{i}")
        A(f"v_lshl_or_b32 v64, v{52+i}, 16, v{60+i}")
        A(f"v_lshlrev_b32 v65, 12, v7")
        if i: A(f"v_add_u32 v65, {i*1024}, v65")
        A(f"v_cmp_gt_u32 vcc, {(NB-i+3)//4}, v7")
        A("s_and_saveexec_b64 s[16:17], vcc")
        A("global_store_dword v65, v64, s[22:23]")
        A(f"s_cmp_ge_u32 s2, {256-NC}")
        A(f"s_cbranch_scc1 K1_CZ{i}")
        A(f"global_store_dword v65, v4, s[22:23] offset:{NC*4}")
        A.label(f"K1_CZ{i}")
        A("s_mov_b64 exec, s[16:17]")
        A.label(f"K1_CS{i}")
    A("s_waitcnt lgkmcnt(0)")
    for i in range(4): A(f"ds_read_b32 v{44+i}, v{36+i} offset:1024")
    if not P.k1stage:
        for i in range(4):
            A(f"s_waitcnt lgkmcnt({3-i})")
            A(f"v_add_u32 v{44+i}, v{44+i}, v{40+i}")
            A(f"v_lshlrev_b32 v48, 2, v{44+i}")
            A(f"v_lshlrev_b32 v49, 4, v{44+i}")
            A(f"global_store_dwordx4 v49, v[{pay[i]}:{pay[i]+3}], s[20:21]")
            A(f"global_store_dword v48, v{32+i}, s[18:19]")
            A("s_nop 1")
    else:
        KST=2048; PST=KST+CH*4
        fl={0:"",1:" sc1",2:" sc0 sc1",3:" nt"}[P.k1wt]
        for i in range(4):
            A(f"s_waitcnt lgkmcnt({3-i+2*i})")
            A(f"v_add_u32 v{44+i}, v{44+i}, v{40+i}")
            A(f"v_lshlrev_b32 v48, 2, v{44+i}")
            A(f"v_lshlrev_b32 v49, 4, v{44+i}")
            A(f"ds_write_b128 v49, v[{pay[i]}:{pay[i]+3}] offset:{PST}")
            A(f"ds_write_b32 v48, v{32+i} offset:{KST}")
        A("v_lshlrev_b32 v50, 4, v0")
        A("s_waitcnt lgkmcnt(0)")
        A("s_barrier")
        A(f"ds_read_b128 v[8:11], v50 offset:{KST}")
        for q in range(4): A(f"ds_read_b128 v[{12+4*q}:{15+4*q}], v50 offset:{PST+q*5120}")
        A("v_add_u32 v51, 5120, v50"); A("v_add_u32 v52, 10240, v50"); A("v_add_u32 v53, 15360, v50")
        A("s_waitcnt lgkmcnt(4)")
        A(f"global_store_dwordx4 v50, v[8:11], s[18:19]{fl}")
        for q in range(4):
            A(f"s_waitcnt lgkmcnt({3-q})")
            A(f"global_store_dwordx4 v{50+q}, v[{12+4*q}:{15+4*q}], s[20:21]{fl}")
    if P.k1pf==3: k1pf()
    ST.mark("iss")
    if P.stamps:
        A("s_waitcnt vmcnt(0)")
        ST.mark("done")
        ST.dump(12,0,2,25,66)
    A("s_endpgm")
    A.label("K1_CONST")
    A("s_load_dwordx2 s[26:27], s[0:1], 40")
    A("s_load_dwordx4 s[28:31], s[0:1], 48")
    A("v_lshrrev_b32 v6, 6, v0")
    A("s_nop 0")
    A("v_readfirstlane_b32 s25, v6")
    A(f"s_sub_u32 s14, s2, {NC}")
    A("v_and_b32 v7, 63, v0")
    A("s_waitcnt lgkmcnt(0)")
    A(f"s_add_u32 s18, s12, {WS_CONST}"); A("s_addc_u32 s19, s13, 0")
    A("s_cmp_eq_u32 s25, 4")
    A("s_cbranch_scc1 K1_CW4")
    A("s_and_b32 s15, s14, 1")
    A("s_lshr_b32 s16, s14, 1")
    A("s_lshl_b32 s16, s16, 5"); A("s_add_u32 s16, s16, s15")
    A("v_and_b32 v1, 15, v7"); A("v_lshlrev_b32 v1, 1, v1"); A("v_add_u32 v1, s16, v1")
    A("v_lshrrev_b32 v2, 4, v7"); A("v_lshlrev_b32 v2, 3, v2")
    A("s_lshl_b32 s17, s25, 5"); A("v_add_u32 v2, s17, v2")
    A("v_lshlrev_b32 v2, 7, v2"); A("v_add_u32 v2, v2, v1"); A("v_lshlrev_b32 v2, 1, v2")
    for r in range(8): A(f"global_load_ushort v{8+r}, v2, s[30:31] offset:{r*256}")
    A("s_lshl_b32 s17, s14, 12")
    A("v_lshlrev_b32 v3, 4, v0"); A("v_add_u32 v3, s17, v3"); A(f"v_add_u32 v3, {CONST_WM}, v3")
    A("s_waitcnt vmcnt(0)")
    for r in range(4): A(f"v_lshl_or_b32 v{16+r}, v{9+2*r}, 16, v{8+2*r}")
    A("global_store_dwordx4 v3, v[16:19], s[18:19]")
    A("s_endpgm")
    A.label("K1_CW4")
    A("s_cmp_eq_u32 s14, 0"); A("s_cbranch_scc1 K1_WF")
    A("s_cmp_eq_u32 s14, 1"); A("s_cbranch_scc1 K1_CG")
    if P.codepf&1:
        A("s_cmp_eq_u32 s14, 2"); A("s_cbranch_scc0 K1_CPX")
        A("s_getpc_b64 s[34:35]")
        A.label("K1_PC")
        A("s_add_u32 s34, s34, standalone__tensor_product_equiv_tfn__graph_kernel-K1_PC"); A("s_addc_u32 s35, s35, 0")
        A("v_lshlrev_b32 v1, 7, v7")
        for q in range(2):
            A(f"v_add_u32 v2, {q*8192}, v1")
            A(f"v_cmp_gt_u32 vcc, K2_CODE_END-standalone__tensor_product_equiv_tfn__graph_kernel, v2")
            A("s_and_saveexec_b64 s[36:37], vcc")
            A(f"s_cbranch_execz K1_CPS{q}")
            A(f"global_load_dword v{8+q}, v2, s[34:35]")
            A.label(f"K1_CPS{q}")
            A("s_mov_b64 exec, s[36:37]")
        A.label("K1_CPX")
    A("s_endpgm")
    A.label("K1_WF")
    A("v_lshlrev_b32 v1, 2, v7")
    for k in range(4): A(f"global_load_dword v{8+k}, v1, s[26:27] offset:{k*256}")
    A(f"s_mov_b32 s15, 0x{f2u(-LOG2E):08x}")
    A("s_mov_b32 s16, 0xffff0000")
    A("s_waitcnt vmcnt(0)")
    for k in range(4):
        A(f"v_lshlrev_b32 v{12+k}, 16, v{8+k}")
        A(f"v_and_b32 v{16+k}, s16, v{8+k}")
    for k in range(8): A(f"v_mul_f32 v{12+k}, s15, v{12+k}")
    A("v_cvt_pk_bf16_f32 v20, v12, v13"); A("v_cvt_pk_bf16_f32 v21, v14, v15")
    A("v_cvt_pk_bf16_f32 v22, v16, v17"); A("v_cvt_pk_bf16_f32 v23, v18, v19")
    for q in range(4):
        A(f"v_lshlrev_b32 v28, 16, v{20+q}")
        A(f"v_and_b32 v29, s16, v{20+q}")
        A(f"v_sub_f32 v28, v{12+2*q}, v28")
        A(f"v_sub_f32 v29, v{13+2*q}, v29")
        A(f"v_cvt_pk_bf16_f32 v{24+q}, v28, v29")
    A("v_lshlrev_b32 v3, 5, v7")
    A(f"global_store_dwordx4 v3, v[20:23], s[18:19] offset:{CONST_WF}")
    A(f"global_store_dwordx4 v3, v[24:27], s[18:19] offset:{CONST_WF+16}")
    A("s_endpgm")
    A.label("K1_CG")
    A("v_and_b32 v1, 3, v7"); A("v_lshlrev_b32 v1, 5, v1")
    for f in range(4): A(f"global_load_dwordx2 v[{8+2*f}:{9+2*f}], v1, s[28:29] offset:{f*8}")
    A("s_mov_b32 s15, 0x05040100"); A("s_mov_b32 s16, 0x07060302")
    A("s_waitcnt vmcnt(0)")
    for o in range(4):
        sel="s15" if o%2==0 else "s16"; h=o//2
        A(f"v_perm_b32 v{16+2*o}, v{10+h}, v{8+h}, {sel}")
        A(f"v_perm_b32 v{17+2*o}, v{14+h}, v{12+h}, {sel}")
    A("v_lshlrev_b32 v3, 5, v7"); A(f"v_add_u32 v3, {CONST_CG}, v3")
    A("global_store_dwordx4 v3, v[16:19], s[18:19]")
    A("global_store_dwordx4 v3, v[20:23], s[18:19] offset:16")
    A.label("K1_END")
    A("s_endpgm")


def gen_phase1(A,P,ST):
    B=P.B
    blkmul={32:209,16:104,64:419}[B]
    A("s_load_dwordx4 s[4:7], s[0:1], 8")
    A("s_load_dwordx4 s[8:11], s[0:1], 24")
    A("s_load_dwordx2 s[12:13], s[0:1], 80")
    A("s_load_dwordx2 s[26:27], s[0:1], 40")
    A("s_load_dwordx4 s[28:31], s[0:1], 48")
    A("s_load_dwordx2 s[32:33], s[0:1], 0")
    A("s_load_dwordx2 s[72:73], s[0:1], 72")
    A("v_lshrrev_b32 v6, 6, v0")
    A("v_and_b32 v7, 63, v0")
    A("v_readfirstlane_b32 s25, v6")
    A("s_nop 3")
    A("s_cmp_ge_u32 s25, 5")
    A("s_cbranch_scc1 F_OTHER")
    A(f"s_mul_i32 s14, s2, {CH*4}")
    A("v_lshlrev_b32 v1, 4, v0")
    A("v_add_u32 v1, s14, v1")
    A("v_lshlrev_b32 v2, 1, v1")
    A("v_lshlrev_b32 v3, 2, v0")
    A("v_mov_b32 v4, 0")
    A("v_mov_b32 v5, 1")
    A("v_cmp_gt_u32 vcc, 0x100, v0")
    A("s_and_saveexec_b64 s[16:17], vcc")
    A("s_cbranch_execz F_NOZ")
    A("ds_write_b32 v3, v4")
    A.label("F_NOZ")
    A("s_mov_b64 exec, s[16:17]")
    A("s_waitcnt lgkmcnt(0)")
    A("global_load_dwordx4 v[8:11], v1, s[6:7]")
    A("global_load_dwordx4 v[12:15], v1, s[4:5]")
    A("global_load_dwordx4 v[16:19], v2, s[8:9]")
    A("global_load_dwordx4 v[20:23], v2, s[8:9] offset:16")
    A("global_load_dwordx4 v[24:27], v2, s[10:11]")
    A("global_load_dwordx4 v[28:31], v2, s[10:11] offset:16")
    A(f"s_mul_i32 s15, s2, {CH*16}")
    A("s_add_u32 s18, s12, s14"); A("s_addc_u32 s19, s13, 0")
    A(f"s_add_u32 s20, s12, {WS_PAY}"); A("s_addc_u32 s21, s13, 0")
    A("s_add_u32 s20, s20, s15"); A("s_addc_u32 s21, s21, 0")
    A("s_lshl_b32 s15, s2, 10")
    A(f"s_add_u32 s22, s12, {WS_CELL}"); A("s_addc_u32 s23, s13, 0")
    A("s_add_u32 s22, s22, s15"); A("s_addc_u32 s23, s23, 0")
    A("s_movk_i32 s24, -40")
    A("s_barrier")
    A("s_waitcnt vmcnt(4)")
    for i in range(4):
        d=8+i; s=12+i
        A(f"v_mul_u32_u24 v44, 0xcccd, v{d}")
        A("v_lshrrev_b32 v44, 21, v44")
        A(f"v_mad_i32_i24 v45, v44, s24, v{d}")
        A(f"v_lshlrev_b32 v{36+i}, 2, v44")
        A(f"ds_add_rtn_u32 v{40+i}, v{36+i}, v5")
        A("v_mul_u32_u24 v46, 0xcd, v45")
        A("v_lshrrev_b32 v46, 10, v46")
        A("v_mad_i32_i24 v47, v46, -5, v45")
        A(f"v_mul_u32_u24 v48, {blkmul}, v{s}")
        A("v_lshrrev_b32 v48, 16, v48")
        sh={16:4,32:5,64:6}[B]
        A(f"v_lshl_add_u32 v48, v46, {sh}, v48")
        A(f"v_lshl_or_b32 v{32+i}, v47, 14, v{s}")
        A(f"v_lshl_or_b32 v{32+i}, v48, 17, v{32+i}")
    A("s_waitcnt vmcnt(0)")
    A("v_swap_b32 v18, v24"); A("v_swap_b32 v19, v25"); A("v_swap_b32 v22, v28"); A("v_swap_b32 v23, v29")
    pay=[16,24,20,28]
    A("v_lshlrev_b32 v50, 4, v7")
    A("s_waitcnt lgkmcnt(0)")
    A("s_barrier")
    ST.mark("hist")
    A("ds_read_b128 v[52:55], v50")
    A("s_waitcnt lgkmcnt(0)")
    A("v_add_u32 v56, v52, v53"); A("v_add_u32 v57, v56, v54"); A("v_add_u32 v58, v57, v55"); A("v_mov_b32 v59, v58")
    dpp_scan(A,59)
    A("v_sub_u32 v60, v59, v58"); A("v_add_u32 v61, v60, v52"); A("v_add_u32 v62, v60, v56"); A("v_add_u32 v63, v60, v57")
    A("ds_write_b128 v50, v[60:63] offset:1024")
    A("s_cmp_lg_u32 s25, 0")
    A("s_cbranch_scc1 F_CS")
    for i in range(4): A(f"v_lshl_or_b32 v{64+i}, v{52+i}, 16, v{60+i}")
    A("global_store_dwordx4 v50, v[64:67], s[22:23] sc1")
    A.label("F_CS")
    A("s_waitcnt lgkmcnt(0)")
    for i in range(4): A(f"ds_read_b32 v{44+i}, v{36+i} offset:1024")
    KST=2048; PST=KST+CH*4
    for i in range(4):
        A(f"s_waitcnt lgkmcnt({3-i+2*i})")
        A(f"v_add_u32 v{44+i}, v{44+i}, v{40+i}")
        A(f"v_lshlrev_b32 v48, 2, v{44+i}")
        A(f"v_lshlrev_b32 v49, 4, v{44+i}")
        A(f"ds_write_b128 v49, v[{pay[i]}:{pay[i]+3}] offset:{PST}")
        A(f"ds_write_b32 v48, v{32+i} offset:{KST}")
    A("v_lshlrev_b32 v50, 4, v0")
    A("s_waitcnt lgkmcnt(0)")
    A("s_barrier")
    A(f"ds_read_b128 v[8:11], v50 offset:{KST}")
    for q in range(4): A(f"ds_read_b128 v[{12+4*q}:{15+4*q}], v50 offset:{PST+q*5120}")
    A("v_add_u32 v51, 5120, v50"); A("v_add_u32 v52, 10240, v50"); A("v_add_u32 v53, 15360, v50")
    A("s_waitcnt lgkmcnt(4)")
    A("global_store_dwordx4 v50, v[8:11], s[18:19] sc1")
    for q in range(4):
        A(f"s_waitcnt lgkmcnt({3-q})")
        A(f"global_store_dwordx4 v{50+q}, v[{12+4*q}:{15+4*q}], s[20:21] sc1")
    ST.mark("iss1")
    A("s_branch F_JOIN")
    A.label("F_OTHER")
    A("s_waitcnt lgkmcnt(0)")
    A(f"s_add_u32 s18, s12, {WS_CONST}"); A("s_addc_u32 s19, s13, 0")
    A("s_mov_b32 s36, 0")
    A("s_cmp_ge_u32 s25, 9"); A("s_cbranch_scc1 F_R0")
    A("s_cmp_lt_u32 s2, 8"); A("s_cbranch_scc1 F_RW")
    A("s_cmp_lg_u32 s25, 5"); A("s_cbranch_scc1 F_R0")
    A("s_cmp_eq_u32 s2, 8"); A("s_cbranch_scc1 F_RF")
    A("s_cmp_eq_u32 s2, 9"); A("s_cbranch_scc1 F_RC")
    A("s_branch F_R0")
    A.label("F_RW")
    A("s_mov_b32 s36, 1")
    A("s_sub_u32 s14, s25, 5")
    A("s_and_b32 s15, s2, 1"); A("s_lshr_b32 s16, s2, 1"); A("s_lshl_b32 s16, s16, 5"); A("s_add_u32 s16, s16, s15")
    A("v_and_b32 v1, 15, v7"); A("v_lshlrev_b32 v1, 1, v1"); A("v_add_u32 v1, s16, v1")
    A("v_lshrrev_b32 v2, 4, v7"); A("v_lshlrev_b32 v2, 3, v2")
    A("s_lshl_b32 s17, s14, 5"); A("v_add_u32 v2, s17, v2")
    A("v_lshlrev_b32 v2, 7, v2"); A("v_add_u32 v2, v2, v1"); A("v_lshlrev_b32 v2, 1, v2")
    for r in range(8): A(f"global_load_ushort v{8+r}, v2, s[30:31] offset:{r*256}")
    A("s_branch F_R0")
    A.label("F_RF")
    A("s_mov_b32 s36, 2")
    A("v_lshlrev_b32 v1, 2, v7")
    for k in range(4): A(f"global_load_dword v{8+k}, v1, s[26:27] offset:{k*256}")
    A("s_branch F_R0")
    A.label("F_RC")
    A("s_mov_b32 s36, 3")
    A("v_and_b32 v1, 3, v7"); A("v_lshlrev_b32 v1, 5, v1")
    for f in range(4): A(f"global_load_dwordx2 v[{8+2*f}:{9+2*f}], v1, s[28:29] offset:{f*8}")
    A.label("F_R0")
    A("s_barrier")
    A("s_barrier")
    A("s_cmp_eq_u32 s36, 0"); A("s_cbranch_scc1 F_RD")
    A("s_waitcnt vmcnt(0)")
    A("s_cmp_eq_u32 s36, 2"); A("s_cbranch_scc1 F_RF2")
    A("s_cmp_eq_u32 s36, 3"); A("s_cbranch_scc1 F_RC2")
    A("s_lshl_b32 s17, s2, 12"); A("s_lshl_b32 s15, s14, 10"); A("s_add_u32 s17, s17, s15"); A(f"s_add_u32 s17, s17, {CONST_WM}")
    A("v_lshlrev_b32 v3, 4, v7"); A("v_add_u32 v3, s17, v3")
    for r in range(4): A(f"v_lshl_or_b32 v{16+r}, v{9+2*r}, 16, v{8+2*r}")
    A("global_store_dwordx4 v3, v[16:19], s[18:19] sc1")
    A("s_branch F_RD")
    A.label("F_RF2")
    A(f"s_mov_b32 s15, 0x{f2u(-LOG2E):08x}"); A("s_mov_b32 s16, 0xffff0000")
    for k in range(4):
        A(f"v_lshlrev_b32 v{12+k}, 16, v{8+k}"); A(f"v_and_b32 v{16+k}, s16, v{8+k}")
    for k in range(8): A(f"v_mul_f32 v{12+k}, s15, v{12+k}")
    A("v_cvt_pk_bf16_f32 v20, v12, v13"); A("v_cvt_pk_bf16_f32 v21, v14, v15")
    A("v_cvt_pk_bf16_f32 v22, v16, v17"); A("v_cvt_pk_bf16_f32 v23, v18, v19")
    for q in range(4):
        A(f"v_lshlrev_b32 v28, 16, v{20+q}"); A(f"v_and_b32 v29, s16, v{20+q}")
        A(f"v_sub_f32 v28, v{12+2*q}, v28"); A(f"v_sub_f32 v29, v{13+2*q}, v29")
        A(f"v_cvt_pk_bf16_f32 v{24+q}, v28, v29")
    A("v_lshlrev_b32 v3, 5, v7")
    A(f"global_store_dwordx4 v3, v[20:23], s[18:19] offset:{CONST_WF} sc1")
    A(f"global_store_dwordx4 v3, v[24:27], s[18:19] offset:{CONST_WF+16} sc1")
    A("s_branch F_RD")
    A.label("F_RC2")
    A("s_mov_b32 s15, 0x05040100"); A("s_mov_b32 s16, 0x07060302")
    for o in range(4):
        sel="s15" if o%2==0 else "s16"; h=o//2
        A(f"v_perm_b32 v{16+2*o}, v{10+h}, v{8+h}, {sel}")
        A(f"v_perm_b32 v{17+2*o}, v{14+h}, v{12+h}, {sel}")
    A("v_lshlrev_b32 v3, 5, v7"); A(f"v_add_u32 v3, {CONST_CG}, v3")
    A("global_store_dwordx4 v3, v[16:19], s[18:19] sc1")
    A("global_store_dwordx4 v3, v[20:23], s[18:19] offset:16 sc1")
    A.label("F_RD")
    A("s_barrier")
    if P.fpf:
        A("s_cmp_lt_u32 s25, 9"); A("s_cbranch_scc1 F_JOIN")
        A("s_cmp_ge_u32 s25, 14"); A("s_cbranch_scc1 F_JOIN")
        A(f"s_mul_i32 s14, s2, {320*128}"); A("s_sub_u32 s15, s25, 9"); A("s_lshl_b32 s15, s15, 13"); A("s_add_u32 s14, s14, s15")
        A("v_lshlrev_b32 v126, 7, v7"); A("v_add_u32 v126, s14, v126")
        A("global_load_dword v127, v126, s[32:33]")
        A("s_branch F_JOIN2")
    A.label("F_JOIN")
    A("s_waitcnt vmcnt(0)")
    A.label("F_JOIN2")
    A("s_barrier")
    ST.mark("barD")
    A("s_cmp_lg_u32 s25, 0"); A("s_cbranch_scc1 F_WAIT")
    A("s_and_b32 s14, s2, 3"); A("s_lshl_b32 s14, s14, 6")
    A("v_mov_b32 v1, s14"); A("v_mov_b32 v2, 1")
    A("v_cmp_eq_u32 vcc, 0, v7"); A("s_and_saveexec_b64 s[16:17], vcc")
    A("global_atomic_add v1, v2, s[72:73]")
    A("s_mov_b64 exec, s[16:17]")
    A.label("F_WAIT")

NW=16; CAPW=160
LDS_IDX=0x0000
LDS_K=LDS_IDX+NW*CAPW*4
LDS_HIST=LDS_K+NW*CAPW
LDS_BASE=LDS_HIST+2048
LDS_FLAG=LDS_BASE+4096
LDS_MARK=LDS_FLAG+64
LDS_EF=LDS_MARK+8192+64
LDS_A=LDS_EF+NW*CAPW*8
LDS_CELL=LDS_A+NW*CAPW*32+1024
K2_LDS=LDS_CELL+1024
WINBIG=2048; WINSMALL=200; TOTMAX=CAPW-8
AGG_STRIDE=272
assert LDS_A%16==0 and LDS_EF%16==0 and LDS_MARK%4==0 and K2_LDS<=163840

def gen_k2(A,P):
    U=4; B=P.B
    SC=" sc1" if P.fused else ""
    nbins=8*B
    assert nbins*4<=2048 and nbins*8<=4096
    vTID=0; vLANE=1; vT0=2
    vAad=3; vEad=4; vIad=5; vKad=6; vK=7
    ACC=8
    WF=48
    PAIR=56
    X=64
    TP=80
    AOP=88; AOPN=90; EOP=92; EOPN=94
    UU=[96,104]; EE=112; RR=120
    NV=128
    REC0=64; CNT=68; BASEC=72; AT=64
    CG=80; KEY=88; RANK=90; PAY=92; AP=100; MK=116; BINA=118
    T=[2,3,4,5,6,7,120,121,122,123,124,125,126,127]
    WM=96
    sX=4; sOUT=6; sWS=8; sSRD=12; sW=16; sB=17; sT=18; sLO=19; sWIN=20; sNR=21; sKK=22; sH=23; sEX=24; sM=26; sG8=28; sWB=29
    sK=[32,33]; sN=34; sTOT=35; sTMP=36; sC=40; sLN2=44; sRG=46; sCGP=47; sKEY=48; sPAY=52; sCELL=56; sCONST=58; sRAW=60; sPFO=65; sPFT=66; sNB=67; sGB=68; sGM=69; sQ=70; sCHI=40
    name="standalone__tensor_product_equiv_tfn__graph_kernel"
    A(".p2align 8")
    A(f".type {name},@function")
    A.label(name)
    A(f"s_cmp_ge_u32 s2, {NB}")
    A("s_cbranch_scc1 K2_END")
    ST=Stamps(A,P.stamps,"K2")
    ST.mark("start")
    if P.fused: gen_phase1(A,P,ST)
    A(f"s_load_dwordx2 s[{sX}:{sX+1}], s[0:1], 0")
    A(f"s_load_dwordx2 s[{sOUT}:{sOUT+1}], s[0:1], 64")
    A(f"s_load_dwordx2 s[{sWS}:{sWS+1}], s[0:1], 80")
    A(f"v_and_b32 v{vLANE}, 63, v0")
    A(f"v_lshrrev_b32 v{T[0]}, 6, v0")
    A(f"v_lshlrev_b32 v{PAIR+1}, 4, v{vLANE}")
    A(f"v_readfirstlane_b32 s{sW}, v{T[0]}")
    for p in (3,5,7): A(f"v_mov_b32 v{PAIR+p}, v{PAIR+1}")
    if P.xmap:
        A(f"s_and_b32 s{sTMP}, s2, 7"); A(f"s_mul_i32 s{sB}, s{sTMP}, 31"); A(f"s_min_u32 s{sTMP}, s{sTMP}, 2")
        A(f"s_add_u32 s{sB}, s{sB}, s{sTMP}"); A(f"s_lshr_b32 s{sTMP}, s2, 3"); A(f"s_add_u32 s{sB}, s{sB}, s{sTMP}")
    else:
        A(f"s_mov_b32 s{sB}, s2")
    A(f"s_lshr_b32 s{sG8}, s{sW}, 1"); A(f"s_and_b32 s{sH}, s{sW}, 1"); A(f"s_mul_i32 s{sWB}, s{sW}, {CAPW}")
    for i in range(40): A(f"v_mov_b32 v{ACC+i}, 0")
    A("s_waitcnt lgkmcnt(0)")
    A(f"s_lshl_b32 s{sTMP}, s{sB}, {2 if P.fused else 10}")
    A(f"s_add_u32 s{sCELL}, s{sWS}, {WS_CELL}"); A(f"s_addc_u32 s{sCELL+1}, s{sWS+1}, 0")
    A(f"s_add_u32 s{sCELL}, s{sCELL}, s{sTMP}"); A(f"s_addc_u32 s{sCELL+1}, s{sCELL+1}, 0")
    A(f"s_add_u32 s{sCONST}, s{sWS}, {WS_CONST}"); A(f"s_addc_u32 s{sCONST+1}, s{sWS+1}, 0")
    A(f"s_mov_b32 s{sLO}, 0")
    A(f"s_mov_b32 s{sWIN}, {WINBIG}")
    for i in range(3): A(f"s_mov_b32 s{sCHI+i}, {(i+1)*CH}")
    if not P.fused:
        A(f"v_lshlrev_b32 v{T[1]}, 5, v{vLANE}")
        if P.fused:
            A(f"v_mov_b32 v{T[2]}, 0")
            A(f"s_cmp_ge_u32 s{sW}, 4"); A("s_cbranch_scc1 K2_NOCL")
            A(f"v_lshlrev_b32 v{T[3]}, 10, v0")
            A(f"v_cmp_gt_u32 vcc, {NC}, v0"); A(f"s_and_saveexec_b64 s[{sEX}:{sEX+1}], vcc")
            A(f"global_load_dword v{T[2]}, v{T[3]}, s[{sCELL}:{sCELL+1}] sc1")
            A("s_mov_b64 exec, -1")
            A.label("K2_NOCL")
        else:
            A(f"global_load_dwordx4 v[{CNT}:{CNT+3}], v{PAIR+1}, s[{sCELL}:{sCELL+1}]"+SC)
        A(f"global_load_dwordx4 v[{WF}:{WF+3}], v{T[1]}, s[{sCONST}:{sCONST+1}] offset:{CONST_WF}"+SC)
        A(f"global_load_dwordx4 v[{WF+4}:{WF+7}], v{T[1]}, s[{sCONST}:{sCONST+1}] offset:{CONST_WF+16}"+SC)
        A(f"global_load_dwordx4 v[{CG}:{CG+3}], v{T[1]}, s[{sCONST}:{sCONST+1}] offset:{CONST_CG}"+SC)
        A(f"global_load_dwordx4 v[{CG+4}:{CG+7}], v{T[1]}, s[{sCONST}:{sCONST+1}] offset:{CONST_CG+16}"+SC)
    if P.codepf&2:
        A(f"s_cmp_eq_u32 s{sW}, 15"); A("s_cbranch_scc0 K2_CPX")
        A(f"s_getpc_b64 s[{sTMP}:{sTMP+1}]")
        A.label("K2_PC")
        A(f"s_sub_u32 s{sTMP}, s{sTMP}, K2_PC-standalone__tensor_product_equiv_tfn__graph_kernel"); A(f"s_subb_u32 s{sTMP+1}, s{sTMP+1}, 0")
        A(f"v_lshlrev_b32 v{T[8]}, 7, v{vLANE}")
        for q in range(2):
            A(f"v_add_u32 v{T[9]}, {q*8192}, v{T[8]}")
            A(f"v_cmp_gt_u32 vcc, K2_CODE_END-standalone__tensor_product_equiv_tfn__graph_kernel, v{T[9]}")
            A(f"s_and_saveexec_b64 s[{sEX}:{sEX+1}], vcc")
            A(f"s_cbranch_execz K2_CPS{q}")
            A(f"global_load_dword v{127-q}, v{T[9]}, s[{sTMP}:{sTMP+1}]")
            A.label(f"K2_CPS{q}")
            A("s_mov_b64 exec, -1")
        A.label("K2_CPX")
    A(f"s_mov_b32 s{sSRD}, s{sX}")
    A(f"s_and_b32 s{sSRD+1}, s{sX+1}, 0xffff")
    A(f"s_or_b32 s{sSRD+1}, s{sSRD+1}, {1024<<16}")
    A(f"s_mov_b32 s{sSRD+2}, {N}")
    A(f"s_mov_b32 s{sSRD+3}, 0x00020000")
    A(f"s_add_u32 s{sKEY}, s{sWS}, {WS_KEYS}"); A(f"s_addc_u32 s{sKEY+1}, s{sWS+1}, 0")
    A(f"s_and_b32 s{sKEY+1}, s{sKEY+1}, 0xffff"); A(f"s_mov_b32 s{sKEY+2}, {E*4}"); A(f"s_mov_b32 s{sKEY+3}, 0x00020000")
    A(f"s_add_u32 s{sPAY}, s{sWS}, {WS_PAY}"); A(f"s_addc_u32 s{sPAY+1}, s{sWS+1}, 0")
    A(f"s_and_b32 s{sPAY+1}, s{sPAY+1}, 0xffff"); A(f"s_mov_b32 s{sPAY+2}, {E*16}"); A(f"s_mov_b32 s{sPAY+3}, 0x00020000")
    A(f"s_mov_b32 s{sLN2}, 0x{f2u(-LN2):08x}"); A(f"s_mov_b32 s{sLN2+1}, 0x{f2u(-LN2):08x}")
    def burst(vaddr,vdst=2):
        for q in range(4):
            A(f"buffer_load_dword v{vdst}, v{vaddr}, s[{sRAW}:{sRAW+3}], s{sPFO} offen")
            if q<3: A(f"s_add_u32 s{sPFO}, s{sPFO}, 8192")
    def pf_row0(rnd_sreg,dst):
        A(f"s_lshr_b32 s{sTMP+2}, s2, 3")
        A(f"s_and_b32 s{sTMP+3}, s{sTMP+2}, 1"); A(f"s_lshl_b32 s{sTMP+3}, s{sTMP+3}, 9")
        A(f"s_lshr_b32 s{sTMP+2}, s{sTMP+2}, 1"); A(f"s_lshl_b32 s{sTMP+2}, s{sTMP+2}, 5")
        A(f"s_add_u32 s{sTMP+2}, s{sTMP+2}, s{sTMP+3}")
        A(f"s_lshl_b32 s{dst}, s{rnd_sreg}, 10"); A(f"s_add_u32 s{dst}, s{dst}, s{sTMP+2}"); A(f"s_lshl_b32 s{dst}, s{dst}, 10")
    if P.pf:
        A(f"s_mov_b32 s{sRAW}, s{sX}"); A(f"s_and_b32 s{sRAW+1}, s{sX+1}, 0xffff"); A(f"s_mov_b32 s{sRAW+2}, {N*1024}"); A(f"s_mov_b32 s{sRAW+3}, 0x00020000")
    def propf():
        if P.pf==3:
            r0=P.k1rows if P.k1pf else 0
            per=((N-r0)*8+249)//250; nw=(per+63)//64
            A(f"s_cmp_ge_u32 s{sW}, {nw}")
            A("s_cbranch_scc1 K2_NOPF0")
            A(f"s_mul_i32 s{sPFO}, s2, {per*128}"); A(f"s_lshl_b32 s{sTMP+2}, s{sW}, 13"); A(f"s_add_u32 s{sPFO}, s{sPFO}, s{sTMP+2}")
            if r0: A(f"s_add_u32 s{sPFO}, s{sPFO}, {r0*1024}")
            A(f"v_lshlrev_b32 v126, 7, v{vLANE}")
            A(f"buffer_load_dword v127, v126, s[{sRAW}:{sRAW+3}], s{sPFO} offen")
            A.label("K2_NOPF0")
            return
        A(f"s_cmp_ge_u32 s{sW}, {P.npro}")
        A("s_cbranch_scc1 K2_NOPF0")
        pf_row0(sW,sPFO)
        A(f"v_lshlrev_b32 v126, 7, v{vLANE}")
        burst(126,127)
        A.label("K2_NOPF0")
    if P.fused:
        A(f"s_cmp_lg_u32 s{sW}, 0"); A("s_cbranch_scc1 F_REL")
        A(f"v_lshlrev_b32 v{T[1]}, 6, v{vLANE}")
        A(f"s_mov_b32 s{sTMP}, 0")
        A.label("F_POLL")
        A(f"v_mov_b32 v{T[2]}, 0")
        A(f"v_cmp_gt_u32 vcc, 4, v{vLANE}"); A(f"s_and_saveexec_b64 s[{sEX}:{sEX+1}], vcc")
        A(f"global_load_dword v{T[2]}, v{T[1]}, s[72:73] sc1")
        A("s_mov_b64 exec, -1")
        A("s_waitcnt vmcnt(0)")
        A("s_nop 1"); A(f"v_add_u32_dpp v{T[2]}, v{T[2]}, v{T[2]} row_shr:1 row_mask:0xf bank_mask:0xf bound_ctrl:1")
        A("s_nop 1"); A(f"v_add_u32_dpp v{T[2]}, v{T[2]}, v{T[2]} row_shr:2 row_mask:0xf bank_mask:0xf bound_ctrl:1")
        A("s_nop 1"); A(f"v_readlane_b32 s{sTMP+1}, v{T[2]}, 3")
        A(f"s_add_u32 s{sTMP}, s{sTMP}, 1")
        A(f"s_cmp_ge_u32 s{sTMP}, 0x100000"); A("s_cbranch_scc1 F_REL")
        if P.sleep:
            A(f"s_cmp_ge_u32 s{sTMP+1}, {NB}"); A("s_cbranch_scc1 F_REL")
            A(f"s_sleep {P.sleep}")
            A("s_branch F_POLL")
        else:
            A(f"s_cmp_lt_u32 s{sTMP+1}, {NB}"); A("s_cbranch_scc1 F_POLL")
        A.label("F_REL")
        A("s_barrier")
        ST.mark("rel")
    A(f"v_lshlrev_b32 v{T[1]}, 5, v{vLANE}")
    if P.fused:
        A(f"v_mov_b32 v{T[2]}, 0")
        A(f"s_cmp_ge_u32 s{sW}, 4"); A("s_cbranch_scc1 K2_NOCL")
        A(f"v_lshlrev_b32 v{T[3]}, 10, v0")
        A(f"v_cmp_gt_u32 vcc, {NC}, v0"); A(f"s_and_saveexec_b64 s[{sEX}:{sEX+1}], vcc")
        A(f"global_load_dword v{T[2]}, v{T[3]}, s[{sCELL}:{sCELL+1}] sc1")
        A("s_mov_b64 exec, -1")
        A.label("K2_NOCL")
    else:
        A(f"global_load_dwordx4 v[{CNT}:{CNT+3}], v{PAIR+1}, s[{sCELL}:{sCELL+1}]"+SC)
    A(f"global_load_dwordx4 v[{WF}:{WF+3}], v{T[1]}, s[{sCONST}:{sCONST+1}] offset:{CONST_WF}"+SC)
    A(f"global_load_dwordx4 v[{WF+4}:{WF+7}], v{T[1]}, s[{sCONST}:{sCONST+1}] offset:{CONST_WF+16}"+SC)
    A(f"global_load_dwordx4 v[{CG}:{CG+3}], v{T[1]}, s[{sCONST}:{sCONST+1}] offset:{CONST_CG}"+SC)
    A(f"global_load_dwordx4 v[{CG+4}:{CG+7}], v{T[1]}, s[{sCONST}:{sCONST+1}] offset:{CONST_CG+16}"+SC)
    if P.fused:
        A(f"s_cmp_ge_u32 s{sW}, 4"); A("s_cbranch_scc1 K2_NOCW")
        A("s_waitcnt vmcnt(4)")
        A(f"v_lshlrev_b32 v{T[3]}, 2, v0"); A(f"v_add_u32 v{T[3]}, {LDS_CELL}, v{T[3]}")
        A(f"ds_write_b32 v{T[3]}, v{T[2]}")
        A("s_waitcnt lgkmcnt(0)")
        A.label("K2_NOCW")
        A("s_barrier")
        A(f"v_add_u32 v{T[3]}, {LDS_CELL}, v{PAIR+1}")
        A(f"ds_read_b128 v[{CNT}:{CNT+3}], v{T[3]}")
    A("s_branch K2_ROUND1")
    A.label("K2_ROUND")
    A(f"v_lshlrev_b32 v{T[1]}, 5, v{vLANE}")
    if P.fused:
        A(f"v_add_u32 v{T[3]}, {LDS_CELL}, v{PAIR+1}")
        A(f"ds_read_b128 v[{CNT}:{CNT+3}], v{T[3]}")
    else:
        A(f"global_load_dwordx4 v[{CNT}:{CNT+3}], v{PAIR+1}, s[{sCELL}:{sCELL+1}]"+SC)
    A(f"global_load_dwordx4 v[{CG}:{CG+3}], v{T[1]}, s[{sCONST}:{sCONST+1}] offset:{CONST_CG}"+SC)
    A(f"global_load_dwordx4 v[{CG+4}:{CG+7}], v{T[1]}, s[{sCONST}:{sCONST+1}] offset:{CONST_CG+16}"+SC)
    A("s_waitcnt vmcnt(0)")
    A.label("K2_ROUND1")
    A(f"v_lshlrev_b32 v{T[0]}, 2, v0")
    A(f"v_mov_b32 v{T[1]}, 0")
    A(f"v_cmp_gt_u32 vcc, {nbins}, v0")
    A(f"s_and_saveexec_b64 s[{sEX}:{sEX+1}], vcc")
    A("s_cbranch_execz K2_NOZ")
    A(f"ds_write_b32 v{T[0]}, v{T[1]} offset:{LDS_HIST}")
    A.label("K2_NOZ")
    A(f"s_mov_b64 exec, -1")
    A("s_waitcnt lgkmcnt(0)" if P.fused else "s_waitcnt vmcnt(4)")
    ST.mark("cell")
    if P.pf and P.pfat=="cell": propf()
    A(f"v_mul_u32_u24 v{T[0]}, {4*CH}, v{vLANE}")
    for i in range(4):
        A(f"v_and_b32 v{REC0+i}, 0xffff, v{CNT+i}")
        A(f"v_lshrrev_b32 v{CNT+i}, 16, v{CNT+i}")
        if i: A(f"v_add3_u32 v{REC0+i}, v{REC0+i}, v{T[0]}, s{sCHI+i-1}")
        else: A(f"v_add_u32 v{REC0+i}, v{REC0+i}, v{T[0]}")
    A(f"v_add_u32 v{T[1]}, v{CNT}, v{CNT+1}")
    A(f"v_add_u32 v{T[2]}, v{T[1]}, v{CNT+2}")
    A(f"v_add_u32 v{T[3]}, v{T[2]}, v{CNT+3}")
    A(f"v_max3_u32 v{T[5]}, v{CNT}, v{CNT+1}, v{CNT+2}")
    A(f"v_mov_b32 v{T[4]}, v{T[3]}")
    A(f"v_max_u32 v{T[5]}, v{T[5]}, v{CNT+3}")
    dpp_scan(A,T[4])
    A(f"v_sub_u32 v{BASEC}, v{T[4]}, v{T[3]}")
    A(f"v_add_u32 v{BASEC+1}, v{BASEC}, v{CNT}")
    A(f"v_add_u32 v{BASEC+2}, v{BASEC}, v{T[1]}")
    A(f"v_add_u32 v{BASEC+3}, v{BASEC}, v{T[2]}")
    A(f"v_readlane_b32 s{sT}, v{T[4]}, 63")
    A(f"v_mov_b32 v{T[6]}, 8192")
    A(f"s_mov_b32 s{sKK}, s{sW}")
    A(f"s_cmp_eq_u32 s{sT}, 0")
    A("s_cbranch_scc1 K2_EPI")
    A.label("K2_EX")
    A(f"v_cmp_lt_u32 vcc, s{sKK}, v{T[5]}")
    A(f"s_cbranch_vccz K2_EXD")
    A(f"s_sub_u32 s{sTMP}, s{sKK}, s{sLO}")
    for i in range(4):
        A(f"v_add_u32 v{T[0]}, s{sTMP}, v{BASEC+i}")
        A(f"v_cmp_lt_u32 vcc, s{sKK}, v{CNT+i}")
        A(f"v_cmp_gt_u32 s[{sM}:{sM+1}], s{sWIN}, v{T[0]}")
        A(f"v_lshlrev_b32 v{T[0]}, 2, v{T[0]}")
        A(f"v_add_u32 v{T[1]}, s{sKK}, v{REC0+i}")
        A(f"s_and_b64 vcc, vcc, s[{sM}:{sM+1}]")
        A(f"v_cndmask_b32 v{T[0]}, v{T[6]}, v{T[0]}, vcc")
        A(f"ds_write_b32 v{T[0]}, v{T[1]} offset:{LDS_MARK}")
    A(f"s_add_u32 s{sKK}, s{sKK}, {NW}")
    A("s_branch K2_EX")
    A.label("K2_EXD")
    A("s_waitcnt lgkmcnt(0)")
    A("s_barrier")
    ST.mark("bar1")
    A(f"v_lshlrev_b32 v{T[0]}, 2, v0")
    for s in range(2): A(f"ds_read_b32 v{MK+s}, v{T[0]} offset:{LDS_MARK+s*4096}")
    A(f"v_mov_b32 v{T[2]}, 0"); A(f"v_mov_b32 v{T[3]}, 0"); A(f"v_mov_b32 v{T[1]}, {LDS_FLAG}")
    A(f"ds_write_b64 v{T[1]}, v[{T[2]}:{T[3]}]")
    A(f"s_sub_u32 s{sNR}, s{sT}, s{sLO}")
    A(f"s_min_u32 s{sNR}, s{sNR}, s{sWIN}")
    A(f"s_lshl_b32 s{sTMP}, s{sW}, 6")
    A("s_waitcnt lgkmcnt(1)")
    for s in range(2):
        A(f"s_add_u32 s{sTMP+1}, s{sTMP}, {s*1024}")
        A(f"s_cmp_ge_u32 s{sTMP+1}, s{sNR}")
        A(f"s_cbranch_scc1 K2_LD_DONE")
        A(f"v_add_u32 v{T[1]}, {s*1024}, v0")
        A(f"v_cmp_gt_u32 vcc, s{sNR}, v{T[1]}")
        A(f"v_lshlrev_b32 v{T[2]}, 2, v{MK+s}")
        A(f"v_lshlrev_b32 v{T[3]}, 4, v{MK+s}")
        A(f"s_and_saveexec_b64 s[{sEX}:{sEX+1}], vcc")
        A(f"buffer_load_dword v{KEY+s}, v{T[2]}, s[{sKEY}:{sKEY+3}], 0 offen"+SC)
        A(f"buffer_load_dwordx4 v[{PAY+4*s}:{PAY+4*s+3}], v{T[3]}, s[{sPAY}:{sPAY+3}], 0 offen"+SC)
        A(f"s_mov_b64 exec, -1")
    A.label("K2_LD_DONE")
    A(f"v_mov_b32 v{T[4]}, 1")
    A("s_waitcnt vmcnt(0)")
    ST.mark("recs")
    if P.pf and P.pfat=="recs": propf()
    for s in range(2):
        A(f"s_add_u32 s{sTMP+1}, s{sTMP}, {s*1024}")
        A(f"s_cmp_ge_u32 s{sTMP+1}, s{sNR}")
        A(f"s_cbranch_scc1 K2_H_DONE")
        A(f"v_add_u32 v{T[1]}, {s*1024}, v0")
        A(f"v_lshrrev_b32 v{BINA+s}, 17, v{KEY+s}")
        A(f"v_cmp_gt_u32 vcc, s{sNR}, v{T[1]}")
        A(f"v_lshlrev_b32 v{T[2]}, 2, v{BINA+s}")
        A(f"s_and_saveexec_b64 s[{sEX}:{sEX+1}], vcc")
        A(f"ds_add_rtn_u32 v{RANK+s}, v{T[2]}, v{T[4]} offset:{LDS_HIST}")
        A(f"s_mov_b64 exec, -1")
        for o in range(4):
            A(f"v_mfma_f32_4x4x4_16b_bf16 v[{AT+4*o}:{AT+4*o+3}], v[{CG+2*o}:{CG+2*o+1}], v[{PAY+4*s}:{PAY+4*s+1}], 0")
        A("s_nop 4")
        for o in range(4):
            A(f"v_cvt_pk_bf16_f32 v{AP+8*s+2*o}, v{AT+4*o}, v{AT+4*o+1}")
            A(f"v_cvt_pk_bf16_f32 v{AP+8*s+2*o+1}, v{AT+4*o+2}, v{AT+4*o+3}")
    A.label("K2_H_DONE")
    A("s_waitcnt lgkmcnt(0)")
    A("s_barrier")
    ST.mark("bar2")
    if P.pf and P.pfat=="bar2": propf()
    A(f"s_lshl_b32 s{sTMP+1}, s{sG8}, {(B*4).bit_length()-1}")
    A(f"v_lshlrev_b32 v{T[0]}, 2, v{vLANE}")
    A(f"v_add_u32 v{T[0]}, s{sTMP+1}, v{T[0]}")
    if B<64:
        A(f"v_mov_b32 v{T[1]}, 0")
        A(f"v_cmp_gt_u32 vcc, {B}, v{vLANE}")
        A(f"s_and_saveexec_b64 s[{sEX}:{sEX+1}], vcc")
    A(f"ds_read_b32 v{T[1]}, v{T[0]} offset:{LDS_HIST}")
    A(f"s_mov_b64 exec, -1")
    A(f"v_add_u32 v{T[2]}, s{sH}, v{vLANE}"); A(f"v_and_b32 v{T[2]}, 1, v{T[2]}")
    A(f"v_lshlrev_b32 v{T[0]}, 1, v{T[0]}"); A(f"s_lshl_b32 s{sTMP+2}, s{sH}, 2"); A(f"v_add_u32 v{T[0]}, s{sTMP+2}, v{T[0]}")
    A("s_waitcnt lgkmcnt(0)")
    A(f"v_sub_u32 v{T[1]}, v{T[1]}, v{T[2]}"); A(f"v_add_u32 v{T[1]}, 1, v{T[1]}"); A(f"v_lshrrev_b32 v{T[1]}, 1, v{T[1]}")
    A(f"v_mov_b32 v{T[2]}, v{T[1]}")
    dpp_scan(A,T[2],nrows={16:1,32:2,64:4}[B])
    A(f"s_nop 0")
    A(f"v_readlane_b32 s{sTOT}, v{T[2]}, {B-1}")
    A(f"v_sub_u32 v{T[2]}, v{T[2]}, v{T[1]}")
    A(f"v_add_u32 v{T[2]}, s{sWB}, v{T[2]}")
    if B<64:
        A(f"v_cmp_gt_u32 vcc, {B}, v{vLANE}")
        A(f"s_and_saveexec_b64 s[{sEX}:{sEX+1}], vcc")
    A(f"ds_write_b32 v{T[0]}, v{T[2]} offset:{LDS_BASE}")
    A(f"s_mov_b64 exec, -1")
    if P.bar:
        A(f"v_mov_b32 v{T[0]}, s{sTOT}"); A(f"v_mov_b32 v{T[1]}, {LDS_FLAG}")
        A(f"ds_max_u32 v{T[1]}, v{T[0]} offset:4")
    A(f"s_cmp_gt_u32 s{sTOT}, {TOTMAX}")
    A("s_cbranch_scc0 K2_NOOVF")
    A(f"v_mov_b32 v{T[0]}, 1"); A(f"v_mov_b32 v{T[1]}, {LDS_FLAG}")
    A(f"ds_write_b32 v{T[1]}, v{T[0]}")
    A("s_branch K2_PADDONE")
    A.label("K2_NOOVF")
    A.label("K2_PADDONE")
    A("s_waitcnt lgkmcnt(0)")
    A("s_barrier")
    ST.mark("bar3")
    if P.pf and P.pfat=="bar3": propf()
    A(f"v_mov_b32 v{T[1]}, {LDS_FLAG}")
    A(f"ds_read_b32 v{T[0]}, v{T[1]}")
    if P.bar: A(f"ds_read_b32 v{T[5]}, v{T[1]} offset:4")
    for s in range(2):
        A(f"v_add_u32 v{T[2]}, v{RANK+s}, v{BINA+s}"); A(f"v_and_b32 v{T[2]}, 1, v{T[2]}")
        A(f"v_lshl_add_u32 v{T[2]}, v{BINA+s}, 1, v{T[2]}"); A(f"v_lshlrev_b32 v{T[2]}, 2, v{T[2]}")
        A(f"ds_read_b32 v{MK+s}, v{T[2]} offset:{LDS_BASE}")
    A("s_waitcnt lgkmcnt(0)")
    A(f"v_readfirstlane_b32 s{sTMP+1}, v{T[0]}")
    if P.bar:
        A(f"v_readfirstlane_b32 s{sGM}, v{T[5]}")
        A(f"s_add_u32 s{sGM}, s{sGM}, 15"); A(f"s_lshr_b32 s{sGM}, s{sGM}, 4"); A(f"s_mov_b32 s{sGB}, 0")
    A("s_nop 3")
    A(f"s_cmp_eq_u32 s{sTMP+1}, 0")
    A("s_cbranch_scc1 K2_PLACE")
    A(f"s_mov_b32 s{sWIN}, {WINSMALL}")
    A("s_branch K2_ROUND")
    A.label("K2_PLACE")
    A(f"s_add_u32 s{sTMP+2}, s{sWB}, s{sTOT}")
    A(f"v_add_u32 v{T[0]}, s{sTMP+2}, v{vLANE}")
    A(f"v_lshlrev_b32 v{T[1]}, 2, v{T[0]}")
    A(f"v_lshlrev_b32 v{T[2]}, 3, v{T[0]}")
    A(f"v_lshlrev_b32 v{T[3]}, 5, v{T[0]}"); A(f"v_add_u32 v{T[3]}, {LDS_A}, v{T[3]}")
    for q in range(4): A(f"v_mov_b32 v{T[6+q]}, 0")
    assert T[6]%2==0 and T[9]==T[6]+3
    A(f"v_cmp_gt_u32 vcc, 8, v{vLANE}")
    A(f"s_and_saveexec_b64 s[{sEX}:{sEX+1}], vcc")
    A(f"ds_write_b32 v{T[1]}, v{T[6]} offset:{LDS_IDX}")
    A(f"ds_write_b8 v{T[0]}, v{T[6]} offset:{LDS_K}")
    A(f"v_cmp_gt_u32 vcc, 4, v{vLANE}")
    A(f"s_and_b64 exec, exec, vcc")
    A(f"ds_write_b64 v{T[2]}, v[{T[6]}:{T[6]+1}] offset:{LDS_EF}")
    A(f"ds_write_b128 v{T[3]}, v[{T[6]}:{T[6]+3}]")
    A(f"ds_write_b128 v{T[3]}, v[{T[6]}:{T[6]+3}] offset:16")
    A(f"s_mov_b64 exec, -1")
    for s in range(2):
        A(f"s_add_u32 s{sTMP+1}, s{sTMP}, {s*1024}")
        A(f"s_cmp_ge_u32 s{sTMP+1}, s{sNR}")
        A(f"s_cbranch_scc1 K2_P_DONE")
        A(f"v_add_u32 v{T[1]}, {s*1024}, v0")
        A(f"v_cmp_gt_u32 vcc, s{sNR}, v{T[1]}")
        A(f"v_lshrrev_b32 v{T[0]}, 1, v{RANK+s}")
        A(f"v_add_u32 v{MK+s}, v{MK+s}, v{T[0]}")
        A(f"v_lshlrev_b32 v{T[0]}, 2, v{MK+s}")
        A(f"v_lshlrev_b32 v{T[1]}, 3, v{MK+s}")
        A(f"v_lshlrev_b32 v{T[2]}, 5, v{MK+s}")
        A(f"v_add_u32 v{T[2]}, {LDS_A}, v{T[2]}")
        A(f"v_and_b32 v{T[3]}, {hex(P.srcmask)}, v{KEY+s}")
        A(f"v_lshrrev_b32 v{T[4]}, 11, v{KEY+s}")
        A(f"v_and_b32 v{T[4]}, 0x38, v{T[4]}")
        A(f"s_and_saveexec_b64 s[{sEX}:{sEX+1}], vcc")
        A(f"ds_write_b128 v{T[2]}, v[{AP+8*s}:{AP+8*s+3}]")
        A(f"ds_write_b128 v{T[2]}, v[{AP+8*s+4}:{AP+8*s+7}] offset:16")
        A(f"ds_write_b64 v{T[1]}, v[{PAY+4*s+2}:{PAY+4*s+3}] offset:{LDS_EF}")
        A(f"ds_write_b32 v{T[0]}, v{T[3]} offset:{LDS_IDX}")
        A(f"ds_write_b8 v{MK+s}, v{T[4]} offset:{LDS_K}")
        A(f"s_mov_b64 exec, -1")
    A.label("K2_P_DONE")
    A("s_waitcnt lgkmcnt(0)")
    A("s_barrier")
    ST.mark("bar4")
    ST.markc("c0")
    A(f"s_cmp_eq_u32 s{sTOT}, 0")
    A("s_cbranch_scc1 K2_MAIN_DONE")
    A(f"s_add_u32 s{sNB}, s{sTOT}, 3"); A(f"s_lshr_b32 s{sNB}, s{sNB}, 2"); A(f"s_sub_u32 s{sN}, 0, s{sNB}")
    A(f"s_lshl_b32 s{sTMP}, s{sWB}, 2"); A(f"v_mov_b32 v{vIad}, s{sTMP}")
    A(f"v_mov_b32 v{vKad}, s{sWB}")
    A(f"s_lshl_b32 s{sTMP}, s{sWB}, 5"); A(f"s_add_u32 s{sTMP}, s{sTMP}, {LDS_A}")
    A(f"v_lshlrev_b32 v{vT0}, 3, v{vLANE}")
    A(f"v_add_u32 v{vAad}, s{sTMP}, v{vT0}")
    A(f"s_lshl_b32 s{sTMP}, s{sWB}, 3"); A(f"s_add_u32 s{sTMP}, s{sTMP}, {LDS_EF}")
    A(f"v_add_u32 v{vEad}, s{sTMP}, v{vT0}")
    if P.pf and P.nrounds:
        pf_row0(sW,sPFO)
        A(f"s_lshl_b32 s{sTMP}, s{sW}, 10"); A(f"s_add_u32 s{sTMP}, s{sTMP}, s{sTMP+3}"); A(f"s_sub_i32 s{sTMP}, s{sTMP}, {P.lead}")
        A(f"s_max_i32 s{sTMP}, s{sTMP}, 0"); A(f"s_mul_i32 s{sTMP}, s{sTMP}, s{sNB}"); A(f"s_mul_i32 s{sTMP}, s{sTMP}, 6711"); A(f"s_lshr_b32 s{sTMP}, s{sTMP}, 26")
        A(f"s_sub_u32 s{sPFT}, s{sTMP}, s{sNB}")
        A(f"s_min_i32 s{sPFT}, s{sPFT}, -2")
        A(f"s_cmp_lt_u32 s{sW}, {P.npro}"); A(f"s_cselect_b32 s{sPFT}, 1, s{sPFT}")
        A(f"s_cmp_ge_u32 s{sW}, {P.nrounds}"); A(f"s_cselect_b32 s{sPFT}, 1, s{sPFT}")
        A(f"v_lshlrev_b32 v0, 7, v{vLANE}")
    def mf(d,a,b,abid,c="0"): return f"v_mfma_f32_4x4x4_16b_bf16 v[{d}:{d+3}], v[{a}:{a+1}], v[{b}:{b+1}], {c} cbsz:4 abid:{abid}"
    def xload(slot,pair): return f"buffer_load_dwordx4 v[{X+4*(slot%U)}:{X+4*(slot%U)+3}], v[{PAIR+2*pair}:{PAIR+2*pair+1}], s[{sSRD}:{sSRD+3}], 0 idxen offen"
    if P.prio==4: A("s_setprio 3")
    for p in range(4): A(f"ds_read_b32 v{PAIR+2*p}, v{vIad} offset:{LDS_IDX+4*p}")
    A(f"ds_read_b64 v[{AOP}:{AOP+1}], v{vAad}")
    A(f"ds_read_b64 v[{EOP}:{EOP+1}], v{vEad}")
    A(f"ds_read_b32 v{vK}, v{vKad} offset:{LDS_K}")
    A("s_waitcnt lgkmcnt(3)")
    for p in range(4): A(xload(p,p))
    for p in range(4): A(f"ds_read_b32 v{PAIR+2*p}, v{vIad} offset:{LDS_IDX+4*(4+p)}")
    hi_e,hi_o,lo_e,lo_o=WF,WF+2,WF+4,WF+6
    A("s_waitcnt lgkmcnt(5)")
    for t in (0,1):
        u=UU[t]
        A(mf(u,EOP,hi_e,t)); A(mf(u+4,EOP,hi_o,t))
        A("s_nop 1")
        A(mf(u,EOP,lo_e,t,f"v[{u}:{u+3}]")); A(mf(u+4,EOP,lo_o,t,f"v[{u+4}:{u+7}]"))
    A("s_nop 2")
    u=UU[0]
    for q in range(8): A(f"v_exp_f32 v{EE+q}, v{u+q}")
    A("s_nop 0")
    for q in range(4): A(f"v_pk_add_f32 v[{EE+2*q}:{EE+2*q+1}], v[{EE+2*q}:{EE+2*q+1}], 1.0 op_sel_hi:[1,0]")
    for q in range(8): A(f"v_rcp_f32 v{EE+q}, v{EE+q}")
    A("s_nop 0")
    for q in range(2): A(f"v_pk_mul_f32 v[{RR+2*q}:{RR+2*q+1}], v[{u+2*q}:{u+2*q+1}], v[{EE+2*q}:{EE+2*q+1}]")
    body=[]
    for t in range(4):
        cur=t%2; nxt=(t+1)%2
        if P.prio==1: body.append(('s',f"s_setprio {3-t}"))
        body.append(('s',"s_waitcnt lgkmcnt(0)"))
        body.append(('s',f"v_readfirstlane_b32 s{sK[0]}, v{vK}"))
        if P.pf and P.nrounds:
            body.append(('s',f"s_cmp_eq_u32 s{sN}, s{sPFT}"))
            body.append(('s',f"s_cbranch_scc1 K2_PF{t}"))
            body.append(('l',f"K2_PFR{t}"))
        body.append(('s',f"ds_read_b32 v{vK}, v{vKad} offset:{LDS_K+4*(t+1)}"))
        if t==0:
            body.append(('s',f"ds_read_b64 v[{EOPN}:{EOPN+1}], v{vEad} offset:128"))
            body.append(('s',f"ds_read_b64 v[{AOPN}:{AOPN+1}], v{vAad} offset:512"))
        for i in range(4):
            j=4*t+i
            x=X+4*(j%U)
            if P.prio==2 and i%2==0: body.append(('s',f"s_setprio {3-(j//2)%4}"))
            if P.prio==3: body.append(('s',f"s_setprio {3-i}"))
            un=UU[nxt]; uw=UU[cur]
            if i==0: TR=[f"v_exp_f32 v{EE+q}, v{un+q}" for q in range(4)]
            if i==1: TR=[f"v_exp_f32 v{EE+4+q}, v{un+4+q}" for q in range(4)]
            if i==2: TR=[f"v_rcp_f32 v{EE+q}, v{EE+q}" for q in range(4)]
            if i==3: TR=[f"v_rcp_f32 v{EE+4+q}, v{EE+4+q}" for q in range(4)]
            PKpre=[];PKpost=[]
            if i==0: PKpre=[f"v_pk_mul_f32 v[{RR+4+2*q}:{RR+4+2*q+1}], v[{uw+4+2*q}:{uw+4+2*q+1}], v[{EE+4+2*q}:{EE+4+2*q+1}]" for q in range(2)]
            if i==1: PKpre=[f"v_pk_add_f32 v[{EE+2*q}:{EE+2*q+1}], v[{EE+2*q}:{EE+2*q+1}], 1.0 op_sel_hi:[1,0]" for q in range(2)]
            if i==2: PKpre=[f"v_pk_add_f32 v[{EE+4+2*q}:{EE+4+2*q+1}], v[{EE+4+2*q}:{EE+4+2*q+1}], 1.0 op_sel_hi:[1,0]" for q in range(2)]
            if i==3: PKpost=[f"v_pk_mul_f32 v[{RR+2*q}:{RR+2*q+1}], v[{un+2*q}:{un+2*q+1}], v[{EE+2*q}:{EE+2*q+1}]" for q in range(2)]
            eop,ab=(EOP,t+2) if t<2 else (EOPN,t-2)
            if i==0: UM=mf(uw,eop,hi_e,ab)
            if i==1: UM=mf(uw+4,eop,hi_o,ab)
            if i==2: UM=mf(uw,eop,lo_e,ab,f"v[{uw}:{uw+3}]")
            if i==3: UM=mf(uw+4,eop,lo_o,ab,f"v[{uw+4}:{uw+7}]")
            body.append(('s',f"s_waitcnt vmcnt({U-1})"))
            body.append(('s',mf(TP,AOP,x,j)))
            body.append(('s',TR[0]))
            body.append(('s',mf(TP+4,AOP,x+2,j)))
            body.append(('s',TR[1]))
            body.append(('s',xload(j,i)))
            body.append(('s',f"ds_read_b32 v{PAIR+2*i}, v{vIad} offset:{LDS_IDX+4*(j+2*U)}"))
            body.append(('s',UM))
            body.append(('s',TR[2])); body.append(('s',TR[3]))
            for q in PKpre: body.append(('s',q))
            body.append(('s',f"s_set_gpr_idx_on s{sK[0]}, gpr_idx(SRC2,DST)"))
            sel=i%2; pr=i//2
            for h in range(4):
                R=RR+(0 if h<2 else 4)+2*pr
                a=ACC+2*h; tp=TP+2*h
                mod = "op_sel_hi:[1,0,1]" if sel==0 else "op_sel:[0,1,0] op_sel_hi:[1,1,1]"
                body.append(('s',f"v_pk_fma_f32 v[{a}:{a+1}], v[{tp}:{tp+1}], v[{R}:{R+1}], v[{a}:{a+1}] {mod}"))
            body.append(('s',"s_set_gpr_idx_off"))
            for q in PKpost: body.append(('s',q))
            if i<3: body.append(('s',f"s_lshr_b32 s{sK[0]}, s{sK[0]}, 8"))
        body.append(('s',f"s_add_u32 s{sN}, s{sN}, 1"))
        body.append(('s',"s_cbranch_scc1 K2_MAIN_DONE"))
    if P.bar:
        body.append(('s',"s_barrier")); body.append(('s',f"s_add_u32 s{sGB}, s{sGB}, 1"))
    if P.prio==4:
        body.append(('s',f"s_sub_u32 s{sQ}, 0, s{sN}")); body.append(('s',f"s_lshl_b32 s{sQ}, s{sQ}, 2"))
        for lv in (3,2,1):
            pass
        body.append(('s',f"s_mul_i32 s{sQ+1}, s{sNB}, 3")); body.append(('s',f"s_cmp_ge_u32 s{sQ}, s{sQ+1}")); body.append(('s',"s_cbranch_scc1 K2_LOOPB"))
        body.append(('s',"s_setprio 2")); body.append(('s',f"s_lshl_b32 s{sQ+1}, s{sNB}, 1")); body.append(('s',f"s_cmp_ge_u32 s{sQ}, s{sQ+1}")); body.append(('s',"s_cbranch_scc1 K2_LOOPB"))
        body.append(('s',"s_setprio 1")); body.append(('s',f"s_cmp_ge_u32 s{sQ}, s{sNB}")); body.append(('s',"s_cbranch_scc1 K2_LOOPB"))
        body.append(('s',"s_setprio 0")); body.append(('l',"K2_LOOPB"))
    body.append(('s',f"v_mov_b32 v{AOP}, v{AOPN}")); body.append(('s',f"v_mov_b32 v{AOP+1}, v{AOPN+1}"))
    body.append(('s',f"v_mov_b32 v{EOP}, v{EOPN}")); body.append(('s',f"v_mov_b32 v{EOP+1}, v{EOPN+1}"))
    body.append(('s',f"v_add_u32 v{vAad}, 512, v{vAad}")); body.append(('s',f"v_add_u32 v{vEad}, 128, v{vEad}"))
    body.append(('s',f"v_add_u32 v{vIad}, 64, v{vIad}")); body.append(('s',f"v_add_u32 v{vKad}, 16, v{vKad}"))
    body.append(('s',"s_branch K2_LOOP"))
    if "noload" in P.dbg: body=[b for b in body if not (b[0]=='s' and (b[1].startswith("buffer_load") or b[1].startswith("s_waitcnt vmcnt")))]
    if "noidx" in P.dbg: body=[b for b in body if not (b[0]=='s' and b[1].startswith("s_set_gpr"))]
    if "notrans" in P.dbg: body=[b for b in body if not (b[0]=='s' and (b[1].startswith("v_exp") or b[1].startswith("v_rcp")))]
    if "nofma" in P.dbg: body=[b for b in body if not (b[0]=='s' and b[1].startswith("v_pk_fma"))]
    if "nolo" in P.dbg: body=[b for b in body if not (b[0]=='s' and b[1].startswith("v_mfma") and (f"v[{WF+4}:{WF+5}]" in b[1] or f"v[{WF+6}:{WF+7}]" in b[1]))]
    if "nomfma" in P.dbg: body=[b for b in body if not (b[0]=='s' and b[1].startswith("v_mfma"))]
    A.label("K2_LOOP")
    for i,b in enumerate(body):
        if b[0]=='s': A(b[1])
        elif b[0]=='l': A.label(b[1])
        elif b[0]=='lds': A(b[2])
        else:
            cnt=0; found=False
            for step in range(len(body)):
                kk=(i-1-step)%len(body)
                if body[kk][0]=='lds':
                    if body[kk][1]==b[1]: found=True; break
                    cnt+=1
            assert found,b
            A(f"s_waitcnt lgkmcnt({min(cnt,15)})")
    if P.pf and P.nrounds:
        for t in range(4):
            A.label(f"K2_PF{t}")
            burst(0)
            A(f"s_branch K2_PFR{t}")
    A.label("K2_MAIN_DONE")
    if P.prio: A("s_setprio 0")
    if P.bar:
        A.label("K2_BARL")
        A(f"s_cmp_ge_u32 s{sGB}, s{sGM}"); A("s_cbranch_scc1 K2_BARD")
        A("s_barrier"); A(f"s_add_u32 s{sGB}, s{sGB}, 1"); A("s_branch K2_BARL")
        A.label("K2_BARD")
    if P.pf and P.nrounds:
        A(f"s_lshl_b32 s{sTMP}, s{sW}, 6"); A(f"v_add_u32 v0, s{sTMP}, v{vLANE}")
    A(f"s_add_u32 s{sLO}, s{sLO}, s{sWIN}")
    A(f"s_cmp_lt_u32 s{sLO}, s{sT}")
    A("s_cbranch_scc0 K2_EPI")
    A("s_waitcnt vmcnt(0) lgkmcnt(0)")
    A("s_branch K2_ROUND")
    A.label("K2_EPI")
    A("s_waitcnt lgkmcnt(0)")
    ST.mark("main")
    ST.markc("c1")
    A(f"s_and_b32 s{sCGP}, s{sW}, 3"); A(f"s_lshr_b32 s{sRG}, s{sW}, 2")
    A(f"s_lshl_b32 s{sTMP}, s{sCGP}, 13"); A(f"s_add_u32 s{sTMP}, s{sTMP}, {CONST_WM}")
    A(f"v_add_u32 v{2}, s{sTMP}, v{PAIR+1}")
    A(f"v_add_u32 v{3}, 4096, v{2}")
    for f in range(8):
        base=2 if f<4 else 3
        A(f"global_load_dwordx4 v[{WM+4*f}:{WM+4*f+3}], v{base}, s[{sCONST}:{sCONST+1}] offset:{(f%4)*1024}"+SC)
    RSZ=CAPW*32
    A(f"s_mul_i32 s{sTMP}, s{sW}, {RSZ}"); A(f"s_add_u32 s{sTMP}, s{sTMP}, {LDS_A}")
    A(f"s_xor_b32 s{sTMP+1}, s{sW}, 1"); A(f"s_mul_i32 s{sTMP+1}, s{sTMP+1}, {RSZ}"); A(f"s_add_u32 s{sTMP+1}, s{sTMP+1}, {LDS_A}")
    A(f"v_lshlrev_b32 v4, 3, v{vLANE}")
    A(f"v_add_u32 v5, s{sTMP}, v4"); A(f"v_add_u32 v6, 2048, v5"); A(f"v_add_u32 v7, 4096, v5")
    EX=64
    def xaddr(k,regs):
        r=regs[k//2]; o=(k%2)*128
        return r,o,o+64
    A(f"s_cmp_eq_u32 s{sH}, 0")
    A("s_cbranch_scc0 K2_EXW1")
    for k in range(5):
        r,o0,o1=xaddr(k,[5,6,7]); a=ACC+8*k
        A(f"ds_write2_b64 v{r}, v[{a+2}:{a+3}], v[{a+6}:{a+7}] offset0:{o0} offset1:{o1}")
    A("s_branch K2_EXW2")
    A.label("K2_EXW1")
    for k in range(5):
        r,o0,o1=xaddr(k,[5,6,7]); a=ACC+8*k
        A(f"ds_write2_b64 v{r}, v[{a}:{a+1}], v[{a+4}:{a+5}] offset0:{o0} offset1:{o1}")
    A.label("K2_EXW2")
    pr0,pr1,pr2,vRW=PAIR,PAIR+2,PAIR+4,PAIR+6
    A(f"v_add_u32 v{pr0}, s{sTMP+1}, v4"); A(f"v_add_u32 v{pr1}, 2048, v{pr0}"); A(f"v_add_u32 v{pr2}, 4096, v{pr0}")
    A(f"s_mul_i32 s{sTMP+2}, s{sG8}, 20"); A(f"s_lshl_b32 s{sTMP+3}, s{sH}, 1"); A(f"s_add_u32 s{sTMP+2}, s{sTMP+2}, s{sTMP+3}"); A(f"s_mul_i32 s{sTMP+2}, s{sTMP+2}, {AGG_STRIDE}")
    A(f"v_lshlrev_b32 v4, 2, v{vLANE}"); A(f"v_add_u32 v{vRW}, s{sTMP+2}, v4")
    A(f"s_mul_i32 s{sTMP}, s{sRG}, 3"); A(f"s_lshl_b32 s{sTMP+1}, s{sRG}, 1"); A(f"s_add_u32 s{sTMP+1}, s{sTMP+1}, 2")
    A(f"s_cmp_lt_u32 s{sRG}, 2"); A(f"s_cselect_b32 s{sTMP}, s{sTMP}, s{sTMP+1}")
    A(f"s_mul_i32 s{sTMP+1}, s{sTMP}, {16*AGG_STRIDE}")
    A(f"v_and_b32 v3, 15, v{vLANE}"); A(f"v_lshrrev_b32 v4, 4, v{vLANE}")
    A(f"v_mul_u32_u24 v7, {AGG_STRIDE}, v3"); A(f"v_lshl_add_u32 v7, v4, 4, v7"); A(f"v_add_u32 v{PAIR+1}, s{sTMP+1}, v7")
    vMR=PAIR+1; vOUT=PAIR+3
    A(f"v_lshlrev_b32 v3, 4, v3"); A(f"v_lshl_add_u32 v{vOUT}, v4, 10, v3")
    A(f"s_lshl_b32 s{sTMP}, s{sTMP}, 2")
    A(f"s_mul_i32 s{sTMP+1}, s{sB}, {NPB}"); A(f"s_add_u32 s{sTMP+1}, s{sTMP+1}, s{sTMP}")
    A(f"s_lshl_b32 s{sTMP+1}, s{sTMP+1}, 10"); A(f"s_lshl_b32 s{sTMP+2}, s{sCGP}, 8"); A(f"s_add_u32 s{sTMP+1}, s{sTMP+1}, s{sTMP+2}")
    A(f"s_add_u32 s{sOUT}, s{sOUT}, s{sTMP+1}"); A(f"s_addc_u32 s{sOUT+1}, s{sOUT+1}, 0")
    A("s_waitcnt vmcnt(8) lgkmcnt(0)")
    A("s_barrier")
    ST.mark("barY")
    for k in range(5):
        r,o0,o1=xaddr(k,[pr0,pr1,pr2])
        A(f"ds_read2_b64 v[{EX+4*k}:{EX+4*k+3}], v{r} offset0:{o0} offset1:{o1}")
    A(f"s_cmp_eq_u32 s{sH}, 0")
    A("s_cbranch_scc0 K2_CB1")
    for hh in range(2):
        if hh==1: A.label("K2_CB1")
        off=0 if hh==0 else 2
        for k in range(5):
            a=ACC+8*k+off; e=EX+4*k
            A(f"s_waitcnt lgkmcnt({min(4-k+2*k,15)})")
            A(f"v_pk_add_f32 v[{a}:{a+1}], v[{a}:{a+1}], v[{e}:{e+1}]")
            A(f"v_pk_add_f32 v[{a+4}:{a+5}], v[{a+4}:{a+5}], v[{e+2}:{e+3}]")
            A(f"v_pk_mul_f32 v[{a}:{a+1}], v[{a}:{a+1}], s[{sLN2}:{sLN2+1}]")
            A(f"v_pk_mul_f32 v[{a+4}:{a+5}], v[{a+4}:{a+5}], s[{sLN2}:{sLN2+1}]")
            A(f"v_cvt_pk_bf16_f32 v{2+2*(k%2)}, v{a}, v{a+4}")
            A(f"v_cvt_pk_bf16_f32 v{3+2*(k%2)}, v{a+1}, v{a+5}")
            A(f"ds_write_b32 v{vRW}, v{2+2*(k%2)} offset:{(4*k)*AGG_STRIDE}")
            A(f"ds_write_b32 v{vRW}, v{3+2*(k%2)} offset:{(4*k+1)*AGG_STRIDE}")
        if hh==0: A("s_branch K2_CB2")
    A.label("K2_CB2")
    A("s_waitcnt lgkmcnt(0)")
    A("s_barrier")
    ST.mark("barZ")
    D=ACC; FR=64
    fl={0:"",1:" sc1",2:" sc0 sc1",3:" nt"}[P.outwt]
    def rd(q):
        for ks in range(4): A(f"ds_read_b128 v[{FR+16*(q%2)+4*ks}:{FR+16*(q%2)+4*ks+3}], v{vMR} offset:{q*16*AGG_STRIDE+ks*64}")
    def mm(q):
        for ks in range(4):
            for p in range(2):
                d=D+8*q+4*p; f=FR+16*(q%2)+4*ks; w=WM+4*(4*p+ks)
                c="0" if ks==0 else f"v[{d}:{d+3}]"
                A(f"v_mfma_f32_16x16x32_bf16 v[{d}:{d+3}], v[{f}:{f+3}], v[{w}:{w+3}], {c}")
    def st(q):
        d=D+8*q; o=D+24+4*q
        A(f"v_cvt_pk_bf16_f32 v{o}, v{d}, v{d+1}"); A(f"v_cvt_pk_bf16_f32 v{o+1}, v{d+2}, v{d+3}")
        A(f"v_cvt_pk_bf16_f32 v{o+2}, v{d+4}, v{d+5}"); A(f"v_cvt_pk_bf16_f32 v{o+3}, v{d+6}, v{d+7}")
        if q: A(f"v_add_u32 v{vOUT}, 4096, v{vOUT}")
        A(f"global_store_dwordx4 v{vOUT}, v[{o}:{o+3}], s[{sOUT}:{sOUT+1}]"+fl)
    rd(0); rd(1)
    A("s_waitcnt vmcnt(0) lgkmcnt(4)")
    mm(0)
    A(f"s_cmp_lt_u32 s{sRG}, 2")
    A("s_cbranch_scc0 K2_MIX2")
    rd(2)
    A("s_waitcnt lgkmcnt(4)")
    mm(1)
    st(0)
    A("s_waitcnt lgkmcnt(0)")
    mm(2)
    st(1)
    A("s_nop 4")
    st(2)
    A("s_branch K2_MIXD")
    A.label("K2_MIX2")
    A("s_waitcnt lgkmcnt(0)")
    mm(1)
    st(0)
    A("s_nop 4")
    st(1)
    A.label("K2_MIXD")
    ST.mark("iss")
    if P.stamps:
        A("s_waitcnt vmcnt(0)")
        ST.mark("done")
        ST.dump(sWS,1,2,sW,2)
    A.label("K2_END")
    A("s_endpgm")
    A.label("K2_CODE_END")
    return NV

def kd(name,nv,ns):
    nv8=(nv+3)//4*4
    return f""".amdhsa_kernel {name}
  .amdhsa_next_free_vgpr {nv8}
  .amdhsa_next_free_sgpr {ns}
  .amdhsa_accum_offset {nv8}
  .amdhsa_group_segment_fixed_size 0
  .amdhsa_kernarg_size 88
  .amdhsa_user_sgpr_count 2
  .amdhsa_user_sgpr_kernarg_segment_ptr 1
  .amdhsa_system_sgpr_workgroup_id_x 1
  .amdhsa_float_denorm_mode_32 3
.end_amdhsa_kernel
"""

def main():
    ap=argparse.ArgumentParser()
    ap.add_argument("-o",default="standalone__tensor_product_equiv_tfn__graph.s")
    ap.add_argument("--U",type=int,default=8)
    ap.add_argument("--B",type=int,default=32)
    ap.add_argument("--rot",type=int,default=0)
    ap.add_argument("--stamps",type=int,default=0)
    ap.add_argument("--srcmask",type=lambda x:int(x,0),default=0x3fff)
    ap.add_argument("--dbg",default="")
    ap.add_argument("--xmap",type=int,default=1)
    ap.add_argument("--prio",type=int,default=4)
    ap.add_argument("--pf",type=int,default=3)
    ap.add_argument("--npro",type=int,default=2)
    ap.add_argument("--lead",type=int,default=1500)
    ap.add_argument("--nrounds",type=int,default=0)
    ap.add_argument("--bar",type=int,default=0)
    ap.add_argument("--k1stage",type=int,default=1)
    ap.add_argument("--k1wt",type=int,default=1)
    ap.add_argument("--k1pf",type=int,default=0)
    ap.add_argument("--pfat",default="recs")
    ap.add_argument("--k1l2",type=int,default=0)
    ap.add_argument("--outwt",type=int,default=1)
    ap.add_argument("--codepf",type=int,default=1)
    ap.add_argument("--k1rows",type=int,default=10000)
    ap.add_argument("--fused",type=int,default=0)
    ap.add_argument("--fpf",type=int,default=1)
    ap.add_argument("--sleep",type=int,default=0)
    P=ap.parse_args()
    hdr=open("standalone__tensor_product_equiv_tfn__graph.s.ref").read().split("; Override")[0]
    A=Asm()
    A.L.append(hdr.rstrip("\n"))
    if P.fused:
        A.L.append(f"; @launch grid=({NB},1,1) block=(1024,1,1) lds={K2_LDS}")
    else:
        A.L.append(f"; @launch kernel=tfn_bin_kernel grid=({NC+K1_CONST_WGS},1,1) block=({K1_THREADS},1,1) lds={2048+CH*20 if P.k1stage else 2048}")
        A.L.append(f"; @launch kernel=standalone__tensor_product_equiv_tfn__graph_kernel grid=({NB},1,1) block=(1024,1,1) lds={K2_LDS}")
    A('.amdgcn_target "amdgcn-amd-amdhsa--gfx950"')
    A(".text")
    if not P.fused: A(".globl tfn_bin_kernel")
    A(".globl standalone__tensor_product_equiv_tfn__graph_kernel")
    if not P.fused: gen_k1(A,P)
    nv=gen_k2(A,P)
    A('.section .rodata,"a"')
    A(".p2align 6")
    s=A.text()+("" if P.fused else kd("tfn_bin_kernel",72,102 if P.stamps else 40)+".p2align 6\n")+kd("standalone__tensor_product_equiv_tfn__graph_kernel",nv,102 if P.stamps else 76)
    open(P.o,"w").write(s)
    print("wrote",P.o,len(s),"bytes")
main()
```

```python
import sys, struct, argparse

N=10000; E=320000; C=128
NPB=40
NB=250
NC=250
CH=1280
K1_THREADS=320
K1_CONST_WGS=8
import os
WS_BASE=int(os.environ.get("WSBASE","0"),0)
WS_KEYS=WS_BASE; WS_PAY=WS_BASE+0x140000; WS_CELL=WS_BASE+0x630000; WS_CONST=WS_BASE+0x680000
CONST_WF=0; CONST_CG=2048; CONST_WM=4096
LOG2E=1.4426950408889634; LN2=0.6931471805599453
def f2u(f): return struct.unpack("<I",struct.pack("<f",f))[0]

class Asm:
    def __init__(s): s.L=[]
    def __call__(s,x=""):
        for l in x.split("\n"):
            s.L.append(l if (l.endswith(":") or l.startswith(".") or l=="" ) else "    "+l)
    def c(s,x): s.L.append("    ; "+x)
    def label(s,x): s.L.append(x+":")
    def text(s): return "\n".join(s.L)+"\n"

def vr(a,n=1): return f"v{a}" if n==1 else f"v[{a}:{a+n-1}]"
def sr(a,n=1): return f"s{a}" if n==1 else f"s[{a}:{a+n-1}]"

WS_STAMP=0x800000
class Stamps:
    def __init__(s,A,on,kn,base_sgpr=82,tmp=80): s.A=A; s.on=on; s.n=0; s.base=base_sgpr; s.tmp=tmp; s.kn=kn
    def mark(s,name=""):
        if not s.on: return
        A=s.A
        A(f"s_memrealtime s[{s.tmp}:{s.tmp+1}]")
        A("s_waitcnt lgkmcnt(0)")
        A(f"s_mov_b32 s{s.base+s.n}, s{s.tmp}")
        s.n+=1
    def markc(s,name=""):
        if not s.on: return
        A=s.A
        A(f"s_memtime s[{s.tmp}:{s.tmp+1}]")
        A("s_waitcnt lgkmcnt(0)")
        A(f"s_mov_b32 s{s.base+s.n}, s{s.tmp}")
        s.n+=1
    def dump(s,wsreg,kernel,wgreg,wavereg,vtmp):
        if not s.on: return
        A=s.A
        A(f"s_lshl_b32 s{s.tmp}, s{wgreg}, 4"); A(f"s_add_u32 s{s.tmp}, s{s.tmp}, s{wavereg}"); A(f"s_lshl_b32 s{s.tmp}, s{s.tmp}, 7")
        A(f"s_add_u32 s{s.tmp}, s{s.tmp}, {WS_STAMP+kernel*0x100000}")
        A(f"s_add_u32 s{s.tmp}, s{wsreg}, s{s.tmp}"); A(f"s_addc_u32 s{s.tmp+1}, s{wsreg+1}, 0")
        A(f"v_mov_b32 v{vtmp}, 0")
        for i in range(s.n):
            A(f"v_mov_b32 v{vtmp+1}, s{s.base+i}")
            A(f"global_store_dword v{vtmp}, v{vtmp+1}, s[{s.tmp}:{s.tmp+1}] offset:{4*i}")
            A("s_nop 1")

def dpp_scan(A,v,nrows=4):
    for sh in (1,2,4,8):
        A("s_nop 1")
        A(f"v_add_u32_dpp v{v}, v{v}, v{v} row_shr:{sh} row_mask:0xf bank_mask:0xf bound_ctrl:1")
    if nrows>=2:
        A("s_nop 1")
        A(f"v_add_u32_dpp v{v}, v{v}, v{v} row_bcast:15 row_mask:0xa bank_mask:0xf")
    if nrows>=4:
        A("s_nop 1")
        A(f"v_add_u32_dpp v{v}, v{v}, v{v} row_bcast:31 row_mask:0xc bank_mask:0xf")

def gen_k1(A,P):
    B=P.B
    blkmul={32:209,16:104,64:419}[B]
    assert ((N-1)*blkmul)>>16 < B
    for d in range(N):
        b=(d*52429)>>21; assert b==d//40
    for dl in range(40): assert (dl*205)>>10==dl//5
    A(".p2align 8")
    A(".type tfn_bin_kernel,@function")
    A.label("tfn_bin_kernel")
    A(f"s_cmp_ge_u32 s2, {NC+K1_CONST_WGS}")
    A("s_cbranch_scc1 K1_END")
    A("s_load_dwordx4 s[4:7], s[0:1], 8")
    A("s_load_dwordx4 s[8:11], s[0:1], 24")
    A("s_load_dwordx2 s[12:13], s[0:1], 80")
    if P.k1pf: A("s_load_dwordx2 s[32:33], s[0:1], 0")
    A(f"s_cmp_ge_u32 s2, {NC}")
    A("s_cbranch_scc1 K1_CONST")
    ST=Stamps(A,P.stamps,"K1")
    ST.mark("start")
    A(f"s_mul_i32 s14, s2, {CH*4}")
    A("v_lshlrev_b32 v1, 4, v0")
    A("v_add_u32 v1, s14, v1")
    A("v_lshlrev_b32 v2, 1, v1")
    A("v_lshlrev_b32 v3, 2, v0")
    A("v_mov_b32 v4, 0")
    A("v_mov_b32 v5, 1")
    A("v_cmp_gt_u32 vcc, 0x100, v0")
    A("s_and_saveexec_b64 s[16:17], vcc")
    A("s_cbranch_execz K1_NOZ")
    A("ds_write_b32 v3, v4")
    A.label("K1_NOZ")
    A("s_mov_b64 exec, s[16:17]")
    A("s_waitcnt lgkmcnt(0)")
    A("global_load_dwordx4 v[8:11], v1, s[6:7]")
    A("global_load_dwordx4 v[12:15], v1, s[4:5]")
    A("global_load_dwordx4 v[16:19], v2, s[8:9]")
    A("global_load_dwordx4 v[20:23], v2, s[8:9] offset:16")
    A("global_load_dwordx4 v[24:27], v2, s[10:11]")
    A("global_load_dwordx4 v[28:31], v2, s[10:11] offset:16")
    def k1pf():
        if P.k1l2==0:
            per=(P.k1rows*8+249)//250
            A(f"s_mul_i32 s34, s2, {per*128}")
            A("v_lshlrev_b32 v68, 7, v0"); A("v_add_u32 v68, s34, v68")
            if per<320:
                A(f"v_cmp_gt_u32 vcc, {per}, v0"); A("s_and_saveexec_b64 s[36:37], vcc"); A("s_cbranch_execz K1_NOPF")
            A("global_load_dword v69, v68, s[32:33]")
            if per<320:
                A.label("K1_NOPF"); A("s_mov_b64 exec, s[36:37]")
        else:
            A("s_lshr_b32 s34, s2, 3"); A(f"s_mul_i32 s34, s34, {320*128}")
            A("v_lshlrev_b32 v68, 7, v0"); A("v_add_u32 v68, s34, v68")
            for q in range(P.k1l2):
                A("global_load_dword v69, v68, s[32:33]")
                A(f"v_add_u32 v68, {10240*128}, v68")
            rem=80000-10240*P.k1l2; per=(rem+249)//250
            assert per<=320
            A(f"s_mul_i32 s34, s2, {per}"); A(f"s_add_u32 s34, s34, {10240*P.k1l2}")
            A("v_add_u32 v70, s34, v0")
            A(f"v_cmp_gt_u32 vcc, {per}, v0"); A(f"s_mov_b32 s35, 80000"); A("v_cmp_gt_u32 s[36:37], s35, v70"); A("s_and_b64 vcc, vcc, s[36:37]")
            A("v_lshlrev_b32 v70, 7, v70")
            A("s_and_saveexec_b64 s[36:37], vcc")
            A("s_cbranch_execz K1_NOPF")
            A("global_load_dword v71, v70, s[32:33]")
            A.label("K1_NOPF")
            A("s_mov_b64 exec, s[36:37]")
    if P.k1pf==1: k1pf()
    A(f"s_mul_i32 s15, s2, {CH*16}")
    A(f"s_add_u32 s18, s12, {WS_KEYS}"); A("s_addc_u32 s19, s13, 0")
    A("s_add_u32 s18, s18, s14"); A("s_addc_u32 s19, s19, 0")
    A(f"s_add_u32 s20, s12, {WS_PAY}"); A("s_addc_u32 s21, s13, 0")
    A("s_add_u32 s20, s20, s15"); A("s_addc_u32 s21, s21, 0")
    A("s_lshl_b32 s15, s2, 2")
    A(f"s_add_u32 s22, s12, {WS_CELL}"); A("s_addc_u32 s23, s13, 0")
    A("s_add_u32 s22, s22, s15"); A("s_addc_u32 s23, s23, 0")
    A("s_movk_i32 s24, -40")
    A("v_lshrrev_b32 v6, 6, v0")
    A("v_and_b32 v7, 63, v0")
    A("v_readfirstlane_b32 s25, v6")
    A("s_barrier")
    A(f"s_waitcnt vmcnt({5 if P.k1pf==1 else 4})")
    ST.mark("ld")
    for i in range(4):
        d=8+i; s=12+i
        A(f"v_mul_u32_u24 v44, 0xcccd, v{d}")
        A("v_lshrrev_b32 v44, 21, v44")
        A(f"v_mad_i32_i24 v45, v44, s24, v{d}")
        A(f"v_lshlrev_b32 v{36+i}, 2, v44")
        A(f"ds_add_rtn_u32 v{40+i}, v{36+i}, v5")
        A("v_mul_u32_u24 v46, 0xcd, v45")
        A("v_lshrrev_b32 v46, 10, v46")
        A("v_mad_i32_i24 v47, v46, -5, v45")
        A(f"v_mul_u32_u24 v48, {blkmul}, v{s}")
        A("v_lshrrev_b32 v48, 16, v48")
        if P.rot:
            A("v_mul_u32_u24 v49, 2098, v44"); A("v_lshrrev_b32 v49, 16, v49")
            A(f"v_mul_u32_u24 v49, {(B//8)*P.rot}, v49")
            A("v_add_u32 v48, v48, v49")
            A(f"v_and_b32 v48, {B-1}, v48")
        sh={16:4,32:5,64:6}[B]
        A(f"v_lshl_add_u32 v48, v46, {sh}, v48")
        A(f"v_lshl_or_b32 v{32+i}, v47, 14, v{s}")
        A(f"v_lshl_or_b32 v{32+i}, v48, 17, v{32+i}")
    A(f"s_waitcnt vmcnt({1 if P.k1pf==1 else 0})")
    A("v_swap_b32 v18, v24"); A("v_swap_b32 v19, v25"); A("v_swap_b32 v22, v28"); A("v_swap_b32 v23, v29")
    pay=[16,24,20,28]
    A("v_lshlrev_b32 v50, 4, v7")
    A("s_waitcnt lgkmcnt(0)")
    A("s_barrier")
    ST.mark("hist")
    if P.k1pf==2: k1pf()
    A("ds_read_b128 v[52:55], v50")
    A("s_waitcnt lgkmcnt(0)")
    A("v_add_u32 v56, v52, v53")
    A("v_add_u32 v57, v56, v54")
    A("v_add_u32 v58, v57, v55")
    A("v_mov_b32 v59, v58")
    dpp_scan(A,59)
    A("v_sub_u32 v60, v59, v58")
    A("v_add_u32 v61, v60, v52")
    A("v_add_u32 v62, v60, v56")
    A("v_add_u32 v63, v60, v57")
    A("ds_write_b128 v50, v[60:63] offset:1024")
    for i in range(4):
        A(f"s_cmp_lg_u32 s25, {i}")
        A(f"s_cbranch_scc1 K1_CS{i}")
        A(f"v_lshl_or_b32 v64, v{52+i}, 16, v{60+i}")
        A(f"v_lshlrev_b32 v65, 12, v7")
        if i: A(f"v_add_u32 v65, {i*1024}, v65")
        A(f"v_cmp_gt_u32 vcc, {(NB-i+3)//4}, v7")
        A("s_and_saveexec_b64 s[16:17], vcc")
        A("global_store_dword v65, v64, s[22:23]")
        A(f"s_cmp_ge_u32 s2, {256-NC}")
        A(f"s_cbranch_scc1 K1_CZ{i}")
        A(f"global_store_dword v65, v4, s[22:23] offset:{NC*4}")
        A.label(f"K1_CZ{i}")
        A("s_mov_b64 exec, s[16:17]")
        A.label(f"K1_CS{i}")
    A("s_waitcnt lgkmcnt(0)")
    for i in range(4): A(f"ds_read_b32 v{44+i}, v{36+i} offset:1024")
    if not P.k1stage:
        for i in range(4):
            A(f"s_waitcnt lgkmcnt({3-i})")
            A(f"v_add_u32 v{44+i}, v{44+i}, v{40+i}")
            A(f"v_lshlrev_b32 v48, 2, v{44+i}")
            A(f"v_lshlrev_b32 v49, 4, v{44+i}")
            A(f"global_store_dwordx4 v49, v[{pay[i]}:{pay[i]+3}], s[20:21]")
            A(f"global_store_dword v48, v{32+i}, s[18:19]")
            A("s_nop 1")
    else:
        KST=2048; PST=KST+CH*4
        fl={0:"",1:" sc1",2:" sc0 sc1",3:" nt"}[P.k1wt]
        for i in range(4):
            A(f"s_waitcnt lgkmcnt({3-i+2*i})")
            A(f"v_add_u32 v{44+i}, v{44+i}, v{40+i}")
            A(f"v_lshlrev_b32 v48, 2, v{44+i}")
            A(f"v_lshlrev_b32 v49, 4, v{44+i}")
            A(f"ds_write_b128 v49, v[{pay[i]}:{pay[i]+3}] offset:{PST}")
            A(f"ds_write_b32 v48, v{32+i} offset:{KST}")
        A("v_lshlrev_b32 v50, 4, v0")
        A("s_waitcnt lgkmcnt(0)")
        A("s_barrier")
        A(f"ds_read_b128 v[8:11], v50 offset:{KST}")
        for q in range(4): A(f"ds_read_b128 v[{12+4*q}:{15+4*q}], v50 offset:{PST+q*5120}")
        A("v_add_u32 v51, 5120, v50"); A("v_add_u32 v52, 10240, v50"); A("v_add_u32 v53, 15360, v50")
        A("s_waitcnt lgkmcnt(4)")
        A(f"global_store_dwordx4 v50, v[8:11], s[18:19]{fl}")
        for q in range(4):
            A(f"s_waitcnt lgkmcnt({3-q})")
            A(f"global_store_dwordx4 v{50+q}, v[{12+4*q}:{15+4*q}], s[20:21]{fl}")
    if P.k1pf==3: k1pf()
    ST.mark("iss")
    if P.stamps:
        A("s_waitcnt vmcnt(0)")
        ST.mark("done")
        ST.dump(12,0,2,25,66)
    A("s_endpgm")
    A.label("K1_CONST")
    A("s_load_dwordx2 s[26:27], s[0:1], 40")
    A("s_load_dwordx4 s[28:31], s[0:1], 48")
    A("v_lshrrev_b32 v6, 6, v0")
    A("s_nop 0")
    A("v_readfirstlane_b32 s25, v6")
    A(f"s_sub_u32 s14, s2, {NC}")
    A("v_and_b32 v7, 63, v0")
    A("s_waitcnt lgkmcnt(0)")
    A(f"s_add_u32 s18, s12, {WS_CONST}"); A("s_addc_u32 s19, s13, 0")
    A("s_cmp_eq_u32 s25, 4")
    A("s_cbranch_scc1 K1_CW4")
    A("s_and_b32 s15, s14, 1")
    A("s_lshr_b32 s16, s14, 1")
    A("s_lshl_b32 s16, s16, 5"); A("s_add_u32 s16, s16, s15")
    A("v_and_b32 v1, 15, v7"); A("v_lshlrev_b32 v1, 1, v1"); A("v_add_u32 v1, s16, v1")
    A("v_lshrrev_b32 v2, 4, v7"); A("v_lshlrev_b32 v2, 3, v2")
    A("s_lshl_b32 s17, s25, 5"); A("v_add_u32 v2, s17, v2")
    A("v_lshlrev_b32 v2, 7, v2"); A("v_add_u32 v2, v2, v1"); A("v_lshlrev_b32 v2, 1, v2")
    for r in range(8): A(f"global_load_ushort v{8+r}, v2, s[30:31] offset:{r*256}")
    A("s_lshl_b32 s17, s14, 12")
    A("v_lshlrev_b32 v3, 4, v0"); A("v_add_u32 v3, s17, v3"); A(f"v_add_u32 v3, {CONST_WM}, v3")
    A("s_waitcnt vmcnt(0)")
    for r in range(4): A(f"v_lshl_or_b32 v{16+r}, v{9+2*r}, 16, v{8+2*r}")
    A("global_store_dwordx4 v3, v[16:19], s[18:19]")
    A("s_endpgm")
    A.label("K1_CW4")
    A("s_cmp_eq_u32 s14, 0"); A("s_cbranch_scc1 K1_WF")
    A("s_cmp_eq_u32 s14, 1"); A("s_cbranch_scc1 K1_CG")
    if P.codepf&1:
        A("s_cmp_eq_u32 s14, 2"); A("s_cbranch_scc0 K1_CPX")
        A("s_getpc_b64 s[34:35]")
        A.label("K1_PC")
        A("s_add_u32 s34, s34, standalone__tensor_product_equiv_tfn__graph_kernel-K1_PC"); A("s_addc_u32 s35, s35, 0")
        A("v_lshlrev_b32 v1, 7, v7")
        for q in range(2):
            A(f"v_add_u32 v2, {q*8192}, v1")
            A(f"v_cmp_gt_u32 vcc, K2_CODE_END-standalone__tensor_product_equiv_tfn__graph_kernel, v2")
            A("s_and_saveexec_b64 s[36:37], vcc")
            A(f"s_cbranch_execz K1_CPS{q}")
            A(f"global_load_dword v{8+q}, v2, s[34:35]")
            A.label(f"K1_CPS{q}")
            A("s_mov_b64 exec, s[36:37]")
        A.label("K1_CPX")
    A("s_endpgm")
    A.label("K1_WF")
    A("v_lshlrev_b32 v1, 2, v7")
    for k in range(4): A(f"global_load_dword v{8+k}, v1, s[26:27] offset:{k*256}")
    A(f"s_mov_b32 s15, 0x{f2u(-LOG2E):08x}")
    A("s_mov_b32 s16, 0xffff0000")
    A("s_waitcnt vmcnt(0)")
    for k in range(4):
        A(f"v_lshlrev_b32 v{12+k}, 16, v{8+k}")
        A(f"v_and_b32 v{16+k}, s16, v{8+k}")
    for k in range(8): A(f"v_mul_f32 v{12+k}, s15, v{12+k}")
    A("v_cvt_pk_bf16_f32 v20, v12, v13"); A("v_cvt_pk_bf16_f32 v21, v14, v15")
    A("v_cvt_pk_bf16_f32 v22, v16, v17"); A("v_cvt_pk_bf16_f32 v23, v18, v19")
    for q in range(4):
        A(f"v_lshlrev_b32 v28, 16, v{20+q}")
        A(f"v_and_b32 v29, s16, v{20+q}")
        A(f"v_sub_f32 v28, v{12+2*q}, v28")
        A(f"v_sub_f32 v29, v{13+2*q}, v29")
        A(f"v_cvt_pk_bf16_f32 v{24+q}, v28, v29")
    A("v_lshlrev_b32 v3, 5, v7")
    A(f"global_store_dwordx4 v3, v[20:23], s[18:19] offset:{CONST_WF}")
    A(f"global_store_dwordx4 v3, v[24:27], s[18:19] offset:{CONST_WF+16}")
    A("s_endpgm")
    A.label("K1_CG")
    A("v_and_b32 v1, 3, v7"); A("v_lshlrev_b32 v1, 5, v1")
    for f in range(4): A(f"global_load_dwordx2 v[{8+2*f}:{9+2*f}], v1, s[28:29] offset:{f*8}")
    A("s_mov_b32 s15, 0x05040100"); A("s_mov_b32 s16, 0x07060302")
    A("s_waitcnt vmcnt(0)")
    for o in range(4):
        sel="s15" if o%2==0 else "s16"; h=o//2
        A(f"v_perm_b32 v{16+2*o}, v{10+h}, v{8+h}, {sel}")
        A(f"v_perm_b32 v{17+2*o}, v{14+h}, v{12+h}, {sel}")
    A("v_lshlrev_b32 v3, 5, v7"); A(f"v_add_u32 v3, {CONST_CG}, v3")
    A("global_store_dwordx4 v3, v[16:19], s[18:19]")
    A("global_store_dwordx4 v3, v[20:23], s[18:19] offset:16")
    A.label("K1_END")
    A("s_endpgm")


def gen_phase1(A,P,ST):
    B=P.B
    blkmul={32:209,16:104,64:419}[B]
    A("s_load_dwordx4 s[4:7], s[0:1], 8")
    A("s_load_dwordx4 s[8:11], s[0:1], 24")
    A("s_load_dwordx2 s[12:13], s[0:1], 80")
    A("s_load_dwordx2 s[26:27], s[0:1], 40")
    A("s_load_dwordx4 s[28:31], s[0:1], 48")
    A("s_load_dwordx2 s[32:33], s[0:1], 0")
    A("s_load_dwordx2 s[72:73], s[0:1], 72")
    A("v_lshrrev_b32 v6, 6, v0")
    A("v_and_b32 v7, 63, v0")
    A("v_readfirstlane_b32 s25, v6")
    A("s_nop 3")
    A("s_cmp_ge_u32 s25, 5")
    A("s_cbranch_scc1 F_OTHER")
    A(f"s_mul_i32 s14, s2, {CH*4}")
    A("v_lshlrev_b32 v1, 4, v0")
    A("v_add_u32 v1, s14, v1")
    A("v_lshlrev_b32 v2, 1, v1")
    A("v_lshlrev_b32 v3, 2, v0")
    A("v_mov_b32 v4, 0")
    A("v_mov_b32 v5, 1")
    A("v_cmp_gt_u32 vcc, 0x100, v0")
    A("s_and_saveexec_b64 s[16:17], vcc")
    A("s_cbranch_execz F_NOZ")
    A("ds_write_b32 v3, v4")
    A.label("F_NOZ")
    A("s_mov_b64 exec, s[16:17]")
    A("s_waitcnt lgkmcnt(0)")
    A("global_load_dwordx4 v[8:11], v1, s[6:7]")
    A("global_load_dwordx4 v[12:15], v1, s[4:5]")
    A("global_load_dwordx4 v[16:19], v2, s[8:9]")
    A("global_load_dwordx4 v[20:23], v2, s[8:9] offset:16")
    A("global_load_dwordx4 v[24:27], v2, s[10:11]")
    A("global_load_dwordx4 v[28:31], v2, s[10:11] offset:16")
    A(f"s_mul_i32 s15, s2, {CH*16}")
    A(f"s_add_u32 s18, s12, {WS_KEYS}"); A("s_addc_u32 s19, s13, 0")
    A("s_add_u32 s18, s18, s14"); A("s_addc_u32 s19, s19, 0")
    A(f"s_add_u32 s20, s12, {WS_PAY}"); A("s_addc_u32 s21, s13, 0")
    A("s_add_u32 s20, s20, s15"); A("s_addc_u32 s21, s21, 0")
    A("s_lshl_b32 s15, s2, 10")
    A(f"s_add_u32 s22, s12, {WS_CELL}"); A("s_addc_u32 s23, s13, 0")
    A("s_add_u32 s22, s22, s15"); A("s_addc_u32 s23, s23, 0")
    A("s_movk_i32 s24, -40")
    A("s_barrier")
    A("s_waitcnt vmcnt(4)")
    for i in range(4):
        d=8+i; s=12+i
        A(f"v_mul_u32_u24 v44, 0xcccd, v{d}")
        A("v_lshrrev_b32 v44, 21, v44")
        A(f"v_mad_i32_i24 v45, v44, s24, v{d}")
        A(f"v_lshlrev_b32 v{36+i}, 2, v44")
        A(f"ds_add_rtn_u32 v{40+i}, v{36+i}, v5")
        A("v_mul_u32_u24 v46, 0xcd, v45")
        A("v_lshrrev_b32 v46, 10, v46")
        A("v_mad_i32_i24 v47, v46, -5, v45")
        A(f"v_mul_u32_u24 v48, {blkmul}, v{s}")
        A("v_lshrrev_b32 v48, 16, v48")
        sh={16:4,32:5,64:6}[B]
        A(f"v_lshl_add_u32 v48, v46, {sh}, v48")
        A(f"v_lshl_or_b32 v{32+i}, v47, 14, v{s}")
        A(f"v_lshl_or_b32 v{32+i}, v48, 17, v{32+i}")
    A("s_waitcnt vmcnt(0)")
    A("v_swap_b32 v18, v24"); A("v_swap_b32 v19, v25"); A("v_swap_b32 v22, v28"); A("v_swap_b32 v23, v29")
    pay=[16,24,20,28]
    A("v_lshlrev_b32 v50, 4, v7")
    A("s_waitcnt lgkmcnt(0)")
    A("s_barrier")
    ST.mark("hist")
    A("ds_read_b128 v[52:55], v50")
    A("s_waitcnt lgkmcnt(0)")
    A("v_add_u32 v56, v52, v53"); A("v_add_u32 v57, v56, v54"); A("v_add_u32 v58, v57, v55"); A("v_mov_b32 v59, v58")
    dpp_scan(A,59)
    A("v_sub_u32 v60, v59, v58"); A("v_add_u32 v61, v60, v52"); A("v_add_u32 v62, v60, v56"); A("v_add_u32 v63, v60, v57")
    A("ds_write_b128 v50, v[60:63] offset:1024")
    A("s_cmp_lg_u32 s25, 0")
    A("s_cbranch_scc1 F_CS")
    for i in range(4): A(f"v_lshl_or_b32 v{64+i}, v{52+i}, 16, v{60+i}")
    A("global_store_dwordx4 v50, v[64:67], s[22:23] sc1")
    A.label("F_CS")
    A("s_waitcnt lgkmcnt(0)")
    for i in range(4): A(f"ds_read_b32 v{44+i}, v{36+i} offset:1024")
    KST=2048; PST=KST+CH*4
    for i in range(4):
        A(f"s_waitcnt lgkmcnt({3-i+2*i})")
        A(f"v_add_u32 v{44+i}, v{44+i}, v{40+i}")
        A(f"v_lshlrev_b32 v48, 2, v{44+i}")
        A(f"v_lshlrev_b32 v49, 4, v{44+i}")
        A(f"ds_write_b128 v49, v[{pay[i]}:{pay[i]+3}] offset:{PST}")
        A(f"ds_write_b32 v48, v{32+i} offset:{KST}")
    A("v_lshlrev_b32 v50, 4, v0")
    A("s_waitcnt lgkmcnt(0)")
    A("s_barrier")
    A(f"ds_read_b128 v[8:11], v50 offset:{KST}")
    for q in range(4): A(f"ds_read_b128 v[{12+4*q}:{15+4*q}], v50 offset:{PST+q*5120}")
    A("v_add_u32 v51, 5120, v50"); A("v_add_u32 v52, 10240, v50"); A("v_add_u32 v53, 15360, v50")
    A("s_waitcnt lgkmcnt(4)")
    A("global_store_dwordx4 v50, v[8:11], s[18:19] sc1")
    for q in range(4):
        A(f"s_waitcnt lgkmcnt({3-q})")
        A(f"global_store_dwordx4 v{50+q}, v[{12+4*q}:{15+4*q}], s[20:21] sc1")
    ST.mark("iss1")
    A("s_branch F_JOIN")
    A.label("F_OTHER")
    A("s_waitcnt lgkmcnt(0)")
    A(f"s_add_u32 s18, s12, {WS_CONST}"); A("s_addc_u32 s19, s13, 0")
    A("s_mov_b32 s36, 0")
    A("s_cmp_ge_u32 s25, 9"); A("s_cbranch_scc1 F_R0")
    A("s_cmp_lt_u32 s2, 8"); A("s_cbranch_scc1 F_RW")
    A("s_cmp_lg_u32 s25, 5"); A("s_cbranch_scc1 F_R0")
    A("s_cmp_eq_u32 s2, 8"); A("s_cbranch_scc1 F_RF")
    A("s_cmp_eq_u32 s2, 9"); A("s_cbranch_scc1 F_RC")
    A("s_branch F_R0")
    A.label("F_RW")
    A("s_mov_b32 s36, 1")
    A("s_sub_u32 s14, s25, 5")
    A("s_and_b32 s15, s2, 1"); A("s_lshr_b32 s16, s2, 1"); A("s_lshl_b32 s16, s16, 5"); A("s_add_u32 s16, s16, s15")
    A("v_and_b32 v1, 15, v7"); A("v_lshlrev_b32 v1, 1, v1"); A("v_add_u32 v1, s16, v1")
    A("v_lshrrev_b32 v2, 4, v7"); A("v_lshlrev_b32 v2, 3, v2")
    A("s_lshl_b32 s17, s14, 5"); A("v_add_u32 v2, s17, v2")
    A("v_lshlrev_b32 v2, 7, v2"); A("v_add_u32 v2, v2, v1"); A("v_lshlrev_b32 v2, 1, v2")
    for r in range(8): A(f"global_load_ushort v{8+r}, v2, s[30:31] offset:{r*256}")
    A("s_branch F_R0")
    A.label("F_RF")
    A("s_mov_b32 s36, 2")
    A("v_lshlrev_b32 v1, 2, v7")
    for k in range(4): A(f"global_load_dword v{8+k}, v1, s[26:27] offset:{k*256}")
    A("s_branch F_R0")
    A.label("F_RC")
    A("s_mov_b32 s36, 3")
    A("v_and_b32 v1, 3, v7"); A("v_lshlrev_b32 v1, 5, v1")
    for f in range(4): A(f"global_load_dwordx2 v[{8+2*f}:{9+2*f}], v1, s[28:29] offset:{f*8}")
    A.label("F_R0")
    A("s_barrier")
    A("s_barrier")
    A("s_cmp_eq_u32 s36, 0"); A("s_cbranch_scc1 F_RD")
    A("s_waitcnt vmcnt(0)")
    A("s_cmp_eq_u32 s36, 2"); A("s_cbranch_scc1 F_RF2")
    A("s_cmp_eq_u32 s36, 3"); A("s_cbranch_scc1 F_RC2")
    A("s_lshl_b32 s17, s2, 12"); A("s_lshl_b32 s15, s14, 10"); A("s_add_u32 s17, s17, s15"); A(f"s_add_u32 s17, s17, {CONST_WM}")
    A("v_lshlrev_b32 v3, 4, v7"); A("v_add_u32 v3, s17, v3")
    for r in range(4): A(f"v_lshl_or_b32 v{16+r}, v{9+2*r}, 16, v{8+2*r}")
    A("global_store_dwordx4 v3, v[16:19], s[18:19] sc1")
    A("s_branch F_RD")
    A.label("F_RF2")
    A(f"s_mov_b32 s15, 0x{f2u(-LOG2E):08x}"); A("s_mov_b32 s16, 0xffff0000")
    for k in range(4):
        A(f"v_lshlrev_b32 v{12+k}, 16, v{8+k}"); A(f"v_and_b32 v{16+k}, s16, v{8+k}")
    for k in range(8): A(f"v_mul_f32 v{12+k}, s15, v{12+k}")
    A("v_cvt_pk_bf16_f32 v20, v12, v13"); A("v_cvt_pk_bf16_f32 v21, v14, v15")
    A("v_cvt_pk_bf16_f32 v22, v16, v17"); A("v_cvt_pk_bf16_f32 v23, v18, v19")
    for q in range(4):
        A(f"v_lshlrev_b32 v28, 16, v{20+q}"); A(f"v_and_b32 v29, s16, v{20+q}")
        A(f"v_sub_f32 v28, v{12+2*q}, v28"); A(f"v_sub_f32 v29, v{13+2*q}, v29")
        A(f"v_cvt_pk_bf16_f32 v{24+q}, v28, v29")
    A("v_lshlrev_b32 v3, 5, v7")
    A(f"global_store_dwordx4 v3, v[20:23], s[18:19] offset:{CONST_WF} sc1")
    A(f"global_store_dwordx4 v3, v[24:27], s[18:19] offset:{CONST_WF+16} sc1")
    A("s_branch F_RD")
    A.label("F_RC2")
    A("s_mov_b32 s15, 0x05040100"); A("s_mov_b32 s16, 0x07060302")
    for o in range(4):
        sel="s15" if o%2==0 else "s16"; h=o//2
        A(f"v_perm_b32 v{16+2*o}, v{10+h}, v{8+h}, {sel}")
        A(f"v_perm_b32 v{17+2*o}, v{14+h}, v{12+h}, {sel}")
    A("v_lshlrev_b32 v3, 5, v7"); A(f"v_add_u32 v3, {CONST_CG}, v3")
    A("global_store_dwordx4 v3, v[16:19], s[18:19] sc1")
    A("global_store_dwordx4 v3, v[20:23], s[18:19] offset:16 sc1")
    A.label("F_RD")
    A("s_barrier")
    if P.fpf:
        A("s_cmp_lt_u32 s25, 9"); A("s_cbranch_scc1 F_JOIN")
        A("s_cmp_ge_u32 s25, 14"); A("s_cbranch_scc1 F_JOIN")
        A(f"s_mul_i32 s14, s2, {320*128}"); A("s_sub_u32 s15, s25, 9"); A("s_lshl_b32 s15, s15, 13"); A("s_add_u32 s14, s14, s15")
        A("v_lshlrev_b32 v126, 7, v7"); A("v_add_u32 v126, s14, v126")
        A("global_load_dword v127, v126, s[32:33]")
        A("s_branch F_JOIN2")
    A.label("F_JOIN")
    A("s_waitcnt vmcnt(0)")
    A.label("F_JOIN2")
    A("s_barrier")
    ST.mark("barD")
    A("s_cmp_lg_u32 s25, 0"); A("s_cbranch_scc1 F_WAIT")
    A("s_and_b32 s14, s2, 3"); A("s_lshl_b32 s14, s14, 6")
    A("v_mov_b32 v1, s14"); A("v_mov_b32 v2, 1")
    A("v_cmp_eq_u32 vcc, 0, v7"); A("s_and_saveexec_b64 s[16:17], vcc")
    A("global_atomic_add v1, v2, s[72:73]")
    A("s_mov_b64 exec, s[16:17]")
    A.label("F_WAIT")

NW=16; CAPW=160
LDS_IDX=0x0000
LDS_K=LDS_IDX+NW*CAPW*4
LDS_HIST=LDS_K+NW*CAPW
LDS_BASE=LDS_HIST+2048
LDS_FLAG=LDS_BASE+4096
LDS_MARK=LDS_FLAG+64
LDS_EF=LDS_MARK+8192+64
LDS_A=LDS_EF+NW*CAPW*8
LDS_CELL=LDS_A+NW*CAPW*32+1024
K2_LDS=LDS_CELL+1024
WINBIG=2048; WINSMALL=200; TOTMAX=CAPW-8
AGG_STRIDE=272
assert LDS_A%16==0 and LDS_EF%16==0 and LDS_MARK%4==0 and K2_LDS<=163840

def gen_k2(A,P):
    U=4; B=P.B
    SC=" sc1" if P.fused else ""
    nbins=8*B
    assert nbins*4<=2048 and nbins*8<=4096
    vTID=0; vLANE=1; vT0=2
    vAad=3; vEad=4; vIad=5; vKad=6; vK=7
    ACC=8
    WF=48
    PAIR=56
    X=64
    TP=80
    AOP=88; AOPN=90; EOP=92; EOPN=94
    UU=[96,104]; EE=112; RR=120
    NV=128
    REC0=64; CNT=68; BASEC=72; AT=64
    CG=80; KEY=88; RANK=90; PAY=92; AP=100; MK=116; BINA=118
    T=[2,3,4,5,6,7,120,121,122,123,124,125,126,127]
    WM=96
    sX=4; sOUT=6; sWS=8; sSRD=12; sW=16; sB=17; sT=18; sLO=19; sWIN=20; sNR=21; sKK=22; sH=23; sEX=24; sM=26; sG8=28; sWB=29
    sK=[32,33]; sN=34; sTOT=35; sTMP=36; sC=40; sLN2=44; sRG=46; sCGP=47; sKEY=48; sPAY=52; sCELL=56; sCONST=58; sRAW=60; sPFO=65; sPFT=66; sNB=67; sGB=68; sGM=69; sQ=70; sCHI=40
    name="standalone__tensor_product_equiv_tfn__graph_kernel"
    A(".p2align 8")
    A(f".type {name},@function")
    A.label(name)
    A(f"s_cmp_ge_u32 s2, {NB}")
    A("s_cbranch_scc1 K2_END")
    ST=Stamps(A,P.stamps,"K2")
    ST.mark("start")
    if P.fused: gen_phase1(A,P,ST)
    A(f"s_load_dwordx2 s[{sX}:{sX+1}], s[0:1], 0")
    A(f"s_load_dwordx2 s[{sOUT}:{sOUT+1}], s[0:1], 64")
    A(f"s_load_dwordx2 s[{sWS}:{sWS+1}], s[0:1], 80")
    A(f"v_and_b32 v{vLANE}, 63, v0")
    A(f"v_lshrrev_b32 v{T[0]}, 6, v0")
    A(f"v_lshlrev_b32 v{PAIR+1}, 4, v{vLANE}")
    A(f"v_readfirstlane_b32 s{sW}, v{T[0]}")
    for p in (3,5,7): A(f"v_mov_b32 v{PAIR+p}, v{PAIR+1}")
    if P.xmap:
        A(f"s_and_b32 s{sTMP}, s2, 7"); A(f"s_mul_i32 s{sB}, s{sTMP}, 31"); A(f"s_min_u32 s{sTMP}, s{sTMP}, 2")
        A(f"s_add_u32 s{sB}, s{sB}, s{sTMP}"); A(f"s_lshr_b32 s{sTMP}, s2, 3"); A(f"s_add_u32 s{sB}, s{sB}, s{sTMP}")
    else:
        A(f"s_mov_b32 s{sB}, s2")
    A(f"s_lshr_b32 s{sG8}, s{sW}, 1"); A(f"s_and_b32 s{sH}, s{sW}, 1"); A(f"s_mul_i32 s{sWB}, s{sW}, {CAPW}")
    for i in range(40): A(f"v_mov_b32 v{ACC+i}, 0")
    A("s_waitcnt lgkmcnt(0)")
    A(f"s_lshl_b32 s{sTMP}, s{sB}, {2 if P.fused else 10}")
    A(f"s_add_u32 s{sCELL}, s{sWS}, {WS_CELL}"); A(f"s_addc_u32 s{sCELL+1}, s{sWS+1}, 0")
    A(f"s_add_u32 s{sCELL}, s{sCELL}, s{sTMP}"); A(f"s_addc_u32 s{sCELL+1}, s{sCELL+1}, 0")
    A(f"s_add_u32 s{sCONST}, s{sWS}, {WS_CONST}"); A(f"s_addc_u32 s{sCONST+1}, s{sWS+1}, 0")
    A(f"s_mov_b32 s{sLO}, 0")
    A(f"s_mov_b32 s{sWIN}, {WINBIG}")
    for i in range(3): A(f"s_mov_b32 s{sCHI+i}, {(i+1)*CH}")
    if not P.fused:
        A(f"v_lshlrev_b32 v{T[1]}, 5, v{vLANE}")
        if P.fused:
            A(f"v_mov_b32 v{T[2]}, 0")
            A(f"s_cmp_ge_u32 s{sW}, 4"); A("s_cbranch_scc1 K2_NOCL")
            A(f"v_lshlrev_b32 v{T[3]}, 10, v0")
            A(f"v_cmp_gt_u32 vcc, {NC}, v0"); A(f"s_and_saveexec_b64 s[{sEX}:{sEX+1}], vcc")
            A(f"global_load_dword v{T[2]}, v{T[3]}, s[{sCELL}:{sCELL+1}] sc1")
            A("s_mov_b64 exec, -1")
            A.label("K2_NOCL")
        else:
            A(f"global_load_dwordx4 v[{CNT}:{CNT+3}], v{PAIR+1}, s[{sCELL}:{sCELL+1}]"+SC)
        A(f"global_load_dwordx4 v[{WF}:{WF+3}], v{T[1]}, s[{sCONST}:{sCONST+1}] offset:{CONST_WF}"+SC)
        A(f"global_load_dwordx4 v[{WF+4}:{WF+7}], v{T[1]}, s[{sCONST}:{sCONST+1}] offset:{CONST_WF+16}"+SC)
        A(f"global_load_dwordx4 v[{CG}:{CG+3}], v{T[1]}, s[{sCONST}:{sCONST+1}] offset:{CONST_CG}"+SC)
        A(f"global_load_dwordx4 v[{CG+4}:{CG+7}], v{T[1]}, s[{sCONST}:{sCONST+1}] offset:{CONST_CG+16}"+SC)
    if P.codepf&2:
        A(f"s_cmp_eq_u32 s{sW}, 15"); A("s_cbranch_scc0 K2_CPX")
        A(f"s_getpc_b64 s[{sTMP}:{sTMP+1}]")
        A.label("K2_PC")
        A(f"s_sub_u32 s{sTMP}, s{sTMP}, K2_PC-standalone__tensor_product_equiv_tfn__graph_kernel"); A(f"s_subb_u32 s{sTMP+1}, s{sTMP+1}, 0")
        A(f"v_lshlrev_b32 v{T[8]}, 7, v{vLANE}")
        for q in range(2):
            A(f"v_add_u32 v{T[9]}, {q*8192}, v{T[8]}")
            A(f"v_cmp_gt_u32 vcc, K2_CODE_END-standalone__tensor_product_equiv_tfn__graph_kernel, v{T[9]}")
            A(f"s_and_saveexec_b64 s[{sEX}:{sEX+1}], vcc")
            A(f"s_cbranch_execz K2_CPS{q}")
            A(f"global_load_dword v{127-q}, v{T[9]}, s[{sTMP}:{sTMP+1}]")
            A.label(f"K2_CPS{q}")
            A("s_mov_b64 exec, -1")
        A.label("K2_CPX")
    A(f"s_mov_b32 s{sSRD}, s{sX}")
    A(f"s_and_b32 s{sSRD+1}, s{sX+1}, 0xffff")
    A(f"s_or_b32 s{sSRD+1}, s{sSRD+1}, {1024<<16}")
    A(f"s_mov_b32 s{sSRD+2}, {N}")
    A(f"s_mov_b32 s{sSRD+3}, 0x00020000")
    A(f"s_add_u32 s{sKEY}, s{sWS}, {WS_KEYS}"); A(f"s_addc_u32 s{sKEY+1}, s{sWS+1}, 0")
    A(f"s_and_b32 s{sKEY+1}, s{sKEY+1}, 0xffff"); A(f"s_mov_b32 s{sKEY+2}, {E*4}"); A(f"s_mov_b32 s{sKEY+3}, 0x00020000")
    A(f"s_add_u32 s{sPAY}, s{sWS}, {WS_PAY}"); A(f"s_addc_u32 s{sPAY+1}, s{sWS+1}, 0")
    A(f"s_and_b32 s{sPAY+1}, s{sPAY+1}, 0xffff"); A(f"s_mov_b32 s{sPAY+2}, {E*16}"); A(f"s_mov_b32 s{sPAY+3}, 0x00020000")
    A(f"s_mov_b32 s{sLN2}, 0x{f2u(-LN2):08x}"); A(f"s_mov_b32 s{sLN2+1}, 0x{f2u(-LN2):08x}")
    def burst(vaddr,vdst=2):
        for q in range(4):
            A(f"buffer_load_dword v{vdst}, v{vaddr}, s[{sRAW}:{sRAW+3}], s{sPFO} offen")
            if q<3: A(f"s_add_u32 s{sPFO}, s{sPFO}, 8192")
    def pf_row0(rnd_sreg,dst):
        A(f"s_lshr_b32 s{sTMP+2}, s2, 3")
        A(f"s_and_b32 s{sTMP+3}, s{sTMP+2}, 1"); A(f"s_lshl_b32 s{sTMP+3}, s{sTMP+3}, 9")
        A(f"s_lshr_b32 s{sTMP+2}, s{sTMP+2}, 1"); A(f"s_lshl_b32 s{sTMP+2}, s{sTMP+2}, 5")
        A(f"s_add_u32 s{sTMP+2}, s{sTMP+2}, s{sTMP+3}")
        A(f"s_lshl_b32 s{dst}, s{rnd_sreg}, 10"); A(f"s_add_u32 s{dst}, s{dst}, s{sTMP+2}"); A(f"s_lshl_b32 s{dst}, s{dst}, 10")
    if P.pf:
        A(f"s_mov_b32 s{sRAW}, s{sX}"); A(f"s_and_b32 s{sRAW+1}, s{sX+1}, 0xffff"); A(f"s_mov_b32 s{sRAW+2}, {N*1024}"); A(f"s_mov_b32 s{sRAW+3}, 0x00020000")
    def propf():
        if P.pf==3:
            r0=P.k1rows if P.k1pf else 0
            per=((N-r0)*8+249)//250; nw=(per+63)//64
            A(f"s_cmp_ge_u32 s{sW}, {nw}")
            A("s_cbranch_scc1 K2_NOPF0")
            A(f"s_mul_i32 s{sPFO}, s2, {per*128}"); A(f"s_lshl_b32 s{sTMP+2}, s{sW}, 13"); A(f"s_add_u32 s{sPFO}, s{sPFO}, s{sTMP+2}")
            if r0: A(f"s_add_u32 s{sPFO}, s{sPFO}, {r0*1024}")
            A(f"v_lshlrev_b32 v126, 7, v{vLANE}")
            A(f"buffer_load_dword v127, v126, s[{sRAW}:{sRAW+3}], s{sPFO} offen")
            A.label("K2_NOPF0")
            return
        A(f"s_cmp_ge_u32 s{sW}, {P.npro}")
        A("s_cbranch_scc1 K2_NOPF0")
        pf_row0(sW,sPFO)
        A(f"v_lshlrev_b32 v126, 7, v{vLANE}")
        burst(126,127)
        A.label("K2_NOPF0")
    if P.fused:
        A(f"s_cmp_lg_u32 s{sW}, 0"); A("s_cbranch_scc1 F_REL")
        A(f"v_lshlrev_b32 v{T[1]}, 6, v{vLANE}")
        A(f"s_mov_b32 s{sTMP}, 0")
        A.label("F_POLL")
        A(f"v_mov_b32 v{T[2]}, 0")
        A(f"v_cmp_gt_u32 vcc, 4, v{vLANE}"); A(f"s_and_saveexec_b64 s[{sEX}:{sEX+1}], vcc")
        A(f"global_load_dword v{T[2]}, v{T[1]}, s[72:73] sc1")
        A("s_mov_b64 exec, -1")
        A("s_waitcnt vmcnt(0)")
        A("s_nop 1"); A(f"v_add_u32_dpp v{T[2]}, v{T[2]}, v{T[2]} row_shr:1 row_mask:0xf bank_mask:0xf bound_ctrl:1")
        A("s_nop 1"); A(f"v_add_u32_dpp v{T[2]}, v{T[2]}, v{T[2]} row_shr:2 row_mask:0xf bank_mask:0xf bound_ctrl:1")
        A("s_nop 1"); A(f"v_readlane_b32 s{sTMP+1}, v{T[2]}, 3")
        A(f"s_add_u32 s{sTMP}, s{sTMP}, 1")
        A(f"s_cmp_ge_u32 s{sTMP}, 0x100000"); A("s_cbranch_scc1 F_REL")
        if P.sleep<0:
            A(f"s_cmp_ge_u32 s{sTMP+1}, {NB}"); A("s_cbranch_scc1 F_REL")
            A(f"s_cmp_ge_u32 s{sTMP+1}, {P.nfast}"); A("s_cbranch_scc1 F_FAST")
            A(f"s_sleep {-P.sleep}")
            A("s_branch F_POLL")
            A.label("F_FAST")
            A(f"s_sleep {P.sfast}")
            A("s_branch F_POLL")
        elif P.sleep:
            A(f"s_cmp_ge_u32 s{sTMP+1}, {NB}"); A("s_cbranch_scc1 F_REL")
            A(f"s_sleep {P.sleep}")
            A("s_branch F_POLL")
        else:
            A(f"s_cmp_lt_u32 s{sTMP+1}, {NB}"); A("s_cbranch_scc1 F_POLL")
        A.label("F_REL")
        A("s_barrier")
        ST.mark("rel")
    A(f"v_lshlrev_b32 v{T[1]}, 5, v{vLANE}")
    if P.fused:
        A(f"v_mov_b32 v{T[2]}, 0")
        A(f"s_cmp_ge_u32 s{sW}, 4"); A("s_cbranch_scc1 K2_NOCL")
        A(f"v_lshlrev_b32 v{T[3]}, 10, v0")
        A(f"v_cmp_gt_u32 vcc, {NC}, v0"); A(f"s_and_saveexec_b64 s[{sEX}:{sEX+1}], vcc")
        A(f"global_load_dword v{T[2]}, v{T[3]}, s[{sCELL}:{sCELL+1}] sc1")
        A("s_mov_b64 exec, -1")
        A.label("K2_NOCL")
    else:
        A(f"global_load_dwordx4 v[{CNT}:{CNT+3}], v{PAIR+1}, s[{sCELL}:{sCELL+1}]"+SC)
    A(f"global_load_dwordx4 v[{WF}:{WF+3}], v{T[1]}, s[{sCONST}:{sCONST+1}] offset:{CONST_WF}"+SC)
    A(f"global_load_dwordx4 v[{WF+4}:{WF+7}], v{T[1]}, s[{sCONST}:{sCONST+1}] offset:{CONST_WF+16}"+SC)
    A(f"global_load_dwordx4 v[{CG}:{CG+3}], v{T[1]}, s[{sCONST}:{sCONST+1}] offset:{CONST_CG}"+SC)
    A(f"global_load_dwordx4 v[{CG+4}:{CG+7}], v{T[1]}, s[{sCONST}:{sCONST+1}] offset:{CONST_CG+16}"+SC)
    if P.fused:
        A(f"s_cmp_ge_u32 s{sW}, 4"); A("s_cbranch_scc1 K2_NOCW")
        A("s_waitcnt vmcnt(4)")
        A(f"v_lshlrev_b32 v{T[3]}, 2, v0"); A(f"v_add_u32 v{T[3]}, {LDS_CELL}, v{T[3]}")
        A(f"ds_write_b32 v{T[3]}, v{T[2]}")
        A("s_waitcnt lgkmcnt(0)")
        A.label("K2_NOCW")
        A("s_barrier")
        A(f"v_add_u32 v{T[3]}, {LDS_CELL}, v{PAIR+1}")
        A(f"ds_read_b128 v[{CNT}:{CNT+3}], v{T[3]}")
    A("s_branch K2_ROUND1")
    A.label("K2_ROUND")
    A(f"v_lshlrev_b32 v{T[1]}, 5, v{vLANE}")
    if P.fused:
        A(f"v_add_u32 v{T[3]}, {LDS_CELL}, v{PAIR+1}")
        A(f"ds_read_b128 v[{CNT}:{CNT+3}], v{T[3]}")
    else:
        A(f"global_load_dwordx4 v[{CNT}:{CNT+3}], v{PAIR+1}, s[{sCELL}:{sCELL+1}]"+SC)
    A(f"global_load_dwordx4 v[{CG}:{CG+3}], v{T[1]}, s[{sCONST}:{sCONST+1}] offset:{CONST_CG}"+SC)
    A(f"global_load_dwordx4 v[{CG+4}:{CG+7}], v{T[1]}, s[{sCONST}:{sCONST+1}] offset:{CONST_CG+16}"+SC)
    A("s_waitcnt vmcnt(0)")
    A.label("K2_ROUND1")
    A(f"v_lshlrev_b32 v{T[0]}, 2, v0")
    A(f"v_mov_b32 v{T[1]}, 0")
    A(f"v_cmp_gt_u32 vcc, {nbins}, v0")
    A(f"s_and_saveexec_b64 s[{sEX}:{sEX+1}], vcc")
    A("s_cbranch_execz K2_NOZ")
    A(f"ds_write_b32 v{T[0]}, v{T[1]} offset:{LDS_HIST}")
    A.label("K2_NOZ")
    A(f"s_mov_b64 exec, -1")
    A("s_waitcnt lgkmcnt(0)" if P.fused else "s_waitcnt vmcnt(4)")
    ST.mark("cell")
    if P.pf and P.pfat=="cell": propf()
    A(f"v_mul_u32_u24 v{T[0]}, {4*CH}, v{vLANE}")
    for i in range(4):
        A(f"v_and_b32 v{REC0+i}, 0xffff, v{CNT+i}")
        A(f"v_lshrrev_b32 v{CNT+i}, 16, v{CNT+i}")
        if i: A(f"v_add3_u32 v{REC0+i}, v{REC0+i}, v{T[0]}, s{sCHI+i-1}")
        else: A(f"v_add_u32 v{REC0+i}, v{REC0+i}, v{T[0]}")
    A(f"v_add_u32 v{T[1]}, v{CNT}, v{CNT+1}")
    A(f"v_add_u32 v{T[2]}, v{T[1]}, v{CNT+2}")
    A(f"v_add_u32 v{T[3]}, v{T[2]}, v{CNT+3}")
    A(f"v_max3_u32 v{T[5]}, v{CNT}, v{CNT+1}, v{CNT+2}")
    A(f"v_mov_b32 v{T[4]}, v{T[3]}")
    A(f"v_max_u32 v{T[5]}, v{T[5]}, v{CNT+3}")
    dpp_scan(A,T[4])
    A(f"v_sub_u32 v{BASEC}, v{T[4]}, v{T[3]}")
    A(f"v_add_u32 v{BASEC+1}, v{BASEC}, v{CNT}")
    A(f"v_add_u32 v{BASEC+2}, v{BASEC}, v{T[1]}")
    A(f"v_add_u32 v{BASEC+3}, v{BASEC}, v{T[2]}")
    A(f"v_readlane_b32 s{sT}, v{T[4]}, 63")
    A(f"v_mov_b32 v{T[6]}, 8192")
    A(f"s_mov_b32 s{sKK}, s{sW}")
    A(f"s_cmp_eq_u32 s{sT}, 0")
    A("s_cbranch_scc1 K2_EPI")
    A.label("K2_EX")
    A(f"v_cmp_lt_u32 vcc, s{sKK}, v{T[5]}")
    A(f"s_cbranch_vccz K2_EXD")
    A(f"s_sub_u32 s{sTMP}, s{sKK}, s{sLO}")
    for i in range(4):
        A(f"v_add_u32 v{T[0]}, s{sTMP}, v{BASEC+i}")
        A(f"v_cmp_lt_u32 vcc, s{sKK}, v{CNT+i}")
        A(f"v_cmp_gt_u32 s[{sM}:{sM+1}], s{sWIN}, v{T[0]}")
        A(f"v_lshlrev_b32 v{T[0]}, 2, v{T[0]}")
        A(f"v_add_u32 v{T[1]}, s{sKK}, v{REC0+i}")
        A(f"s_and_b64 vcc, vcc, s[{sM}:{sM+1}]")
        A(f"v_cndmask_b32 v{T[0]}, v{T[6]}, v{T[0]}, vcc")
        A(f"ds_write_b32 v{T[0]}, v{T[1]} offset:{LDS_MARK}")
    A(f"s_add_u32 s{sKK}, s{sKK}, {NW}")
    A("s_branch K2_EX")
    A.label("K2_EXD")
    A("s_waitcnt lgkmcnt(0)")
    A("s_barrier")
    ST.mark("bar1")
    A(f"v_lshlrev_b32 v{T[0]}, 2, v0")
    for s in range(2): A(f"ds_read_b32 v{MK+s}, v{T[0]} offset:{LDS_MARK+s*4096}")
    A(f"v_mov_b32 v{T[2]}, 0"); A(f"v_mov_b32 v{T[3]}, 0"); A(f"v_mov_b32 v{T[1]}, {LDS_FLAG}")
    A(f"ds_write_b64 v{T[1]}, v[{T[2]}:{T[3]}]")
    A(f"s_sub_u32 s{sNR}, s{sT}, s{sLO}")
    A(f"s_min_u32 s{sNR}, s{sNR}, s{sWIN}")
    A(f"s_lshl_b32 s{sTMP}, s{sW}, 6")
    A("s_waitcnt lgkmcnt(1)")
    for s in range(2):
        A(f"s_add_u32 s{sTMP+1}, s{sTMP}, {s*1024}")
        A(f"s_cmp_ge_u32 s{sTMP+1}, s{sNR}")
        A(f"s_cbranch_scc1 K2_LD_DONE")
        A(f"v_add_u32 v{T[1]}, {s*1024}, v0")
        A(f"v_cmp_gt_u32 vcc, s{sNR}, v{T[1]}")
        A(f"v_lshlrev_b32 v{T[2]}, 2, v{MK+s}")
        A(f"v_lshlrev_b32 v{T[3]}, 4, v{MK+s}")
        A(f"s_and_saveexec_b64 s[{sEX}:{sEX+1}], vcc")
        A(f"buffer_load_dword v{KEY+s}, v{T[2]}, s[{sKEY}:{sKEY+3}], 0 offen"+SC)
        A(f"buffer_load_dwordx4 v[{PAY+4*s}:{PAY+4*s+3}], v{T[3]}, s[{sPAY}:{sPAY+3}], 0 offen"+SC)
        A(f"s_mov_b64 exec, -1")
    A.label("K2_LD_DONE")
    A(f"v_mov_b32 v{T[4]}, 1")
    A("s_waitcnt vmcnt(0)")
    ST.mark("recs")
    if P.pf and P.pfat=="recs": propf()
    for s in range(2):
        A(f"s_add_u32 s{sTMP+1}, s{sTMP}, {s*1024}")
        A(f"s_cmp_ge_u32 s{sTMP+1}, s{sNR}")
        A(f"s_cbranch_scc1 K2_H_DONE")
        A(f"v_add_u32 v{T[1]}, {s*1024}, v0")
        A(f"v_lshrrev_b32 v{BINA+s}, 17, v{KEY+s}")
        A(f"v_cmp_gt_u32 vcc, s{sNR}, v{T[1]}")
        A(f"v_lshlrev_b32 v{T[2]}, 2, v{BINA+s}")
        A(f"s_and_saveexec_b64 s[{sEX}:{sEX+1}], vcc")
        A(f"ds_add_rtn_u32 v{RANK+s}, v{T[2]}, v{T[4]} offset:{LDS_HIST}")
        A(f"s_mov_b64 exec, -1")
        for o in range(4):
            A(f"v_mfma_f32_4x4x4_16b_bf16 v[{AT+4*o}:{AT+4*o+3}], v[{CG+2*o}:{CG+2*o+1}], v[{PAY+4*s}:{PAY+4*s+1}], 0")
        A("s_nop 4")
        for o in range(4):
            A(f"v_cvt_pk_bf16_f32 v{AP+8*s+2*o}, v{AT+4*o}, v{AT+4*o+1}")
            A(f"v_cvt_pk_bf16_f32 v{AP+8*s+2*o+1}, v{AT+4*o+2}, v{AT+4*o+3}")
    A.label("K2_H_DONE")
    A("s_waitcnt lgkmcnt(0)")
    A("s_barrier")
    ST.mark("bar2")
    if P.pf and P.pfat=="bar2": propf()
    A(f"s_lshl_b32 s{sTMP+1}, s{sG8}, {(B*4).bit_length()-1}")
    A(f"v_lshlrev_b32 v{T[0]}, 2, v{vLANE}")
    A(f"v_add_u32 v{T[0]}, s{sTMP+1}, v{T[0]}")
    if B<64:
        A(f"v_mov_b32 v{T[1]}, 0")
        A(f"v_cmp_gt_u32 vcc, {B}, v{vLANE}")
        A(f"s_and_saveexec_b64 s[{sEX}:{sEX+1}], vcc")
    A(f"ds_read_b32 v{T[1]}, v{T[0]} offset:{LDS_HIST}")
    A(f"s_mov_b64 exec, -1")
    A(f"v_add_u32 v{T[2]}, s{sH}, v{vLANE}"); A(f"v_and_b32 v{T[2]}, 1, v{T[2]}")
    A(f"v_lshlrev_b32 v{T[0]}, 1, v{T[0]}"); A(f"s_lshl_b32 s{sTMP+2}, s{sH}, 2"); A(f"v_add_u32 v{T[0]}, s{sTMP+2}, v{T[0]}")
    A("s_waitcnt lgkmcnt(0)")
    A(f"v_sub_u32 v{T[1]}, v{T[1]}, v{T[2]}"); A(f"v_add_u32 v{T[1]}, 1, v{T[1]}"); A(f"v_lshrrev_b32 v{T[1]}, 1, v{T[1]}")
    A(f"v_mov_b32 v{T[2]}, v{T[1]}")
    dpp_scan(A,T[2],nrows={16:1,32:2,64:4}[B])
    A(f"s_nop 0")
    A(f"v_readlane_b32 s{sTOT}, v{T[2]}, {B-1}")
    A(f"v_sub_u32 v{T[2]}, v{T[2]}, v{T[1]}")
    A(f"v_add_u32 v{T[2]}, s{sWB}, v{T[2]}")
    if B<64:
        A(f"v_cmp_gt_u32 vcc, {B}, v{vLANE}")
        A(f"s_and_saveexec_b64 s[{sEX}:{sEX+1}], vcc")
    A(f"ds_write_b32 v{T[0]}, v{T[2]} offset:{LDS_BASE}")
    A(f"s_mov_b64 exec, -1")
    if P.bar:
        A(f"v_mov_b32 v{T[0]}, s{sTOT}"); A(f"v_mov_b32 v{T[1]}, {LDS_FLAG}")
        A(f"ds_max_u32 v{T[1]}, v{T[0]} offset:4")
    A(f"s_cmp_gt_u32 s{sTOT}, {TOTMAX}")
    A("s_cbranch_scc0 K2_NOOVF")
    A(f"v_mov_b32 v{T[0]}, 1"); A(f"v_mov_b32 v{T[1]}, {LDS_FLAG}")
    A(f"ds_write_b32 v{T[1]}, v{T[0]}")
    A("s_branch K2_PADDONE")
    A.label("K2_NOOVF")
    A.label("K2_PADDONE")
    A("s_waitcnt lgkmcnt(0)")
    A("s_barrier")
    ST.mark("bar3")
    if P.pf and P.pfat=="bar3": propf()
    A(f"v_mov_b32 v{T[1]}, {LDS_FLAG}")
    A(f"ds_read_b32 v{T[0]}, v{T[1]}")
    if P.bar: A(f"ds_read_b32 v{T[5]}, v{T[1]} offset:4")
    for s in range(2):
        A(f"v_add_u32 v{T[2]}, v{RANK+s}, v{BINA+s}"); A(f"v_and_b32 v{T[2]}, 1, v{T[2]}")
        A(f"v_lshl_add_u32 v{T[2]}, v{BINA+s}, 1, v{T[2]}"); A(f"v_lshlrev_b32 v{T[2]}, 2, v{T[2]}")
        A(f"ds_read_b32 v{MK+s}, v{T[2]} offset:{LDS_BASE}")
    A("s_waitcnt lgkmcnt(0)")
    A(f"v_readfirstlane_b32 s{sTMP+1}, v{T[0]}")
    if P.bar:
        A(f"v_readfirstlane_b32 s{sGM}, v{T[5]}")
        A(f"s_add_u32 s{sGM}, s{sGM}, 15"); A(f"s_lshr_b32 s{sGM}, s{sGM}, 4"); A(f"s_mov_b32 s{sGB}, 0")
    A("s_nop 3")
    A(f"s_cmp_eq_u32 s{sTMP+1}, 0")
    A("s_cbranch_scc1 K2_PLACE")
    A(f"s_mov_b32 s{sWIN}, {WINSMALL}")
    A("s_branch K2_ROUND")
    A.label("K2_PLACE")
    A(f"s_add_u32 s{sTMP+2}, s{sWB}, s{sTOT}")
    A(f"v_add_u32 v{T[0]}, s{sTMP+2}, v{vLANE}")
    A(f"v_lshlrev_b32 v{T[1]}, 2, v{T[0]}")
    A(f"v_lshlrev_b32 v{T[2]}, 3, v{T[0]}")
    A(f"v_lshlrev_b32 v{T[3]}, 5, v{T[0]}"); A(f"v_add_u32 v{T[3]}, {LDS_A}, v{T[3]}")
    for q in range(4): A(f"v_mov_b32 v{T[6+q]}, 0")
    assert T[6]%2==0 and T[9]==T[6]+3
    A(f"v_cmp_gt_u32 vcc, 8, v{vLANE}")
    A(f"s_and_saveexec_b64 s[{sEX}:{sEX+1}], vcc")
    A(f"ds_write_b32 v{T[1]}, v{T[6]} offset:{LDS_IDX}")
    A(f"ds_write_b8 v{T[0]}, v{T[6]} offset:{LDS_K}")
    A(f"v_cmp_gt_u32 vcc, 4, v{vLANE}")
    A(f"s_and_b64 exec, exec, vcc")
    A(f"ds_write_b64 v{T[2]}, v[{T[6]}:{T[6]+1}] offset:{LDS_EF}")
    A(f"ds_write_b128 v{T[3]}, v[{T[6]}:{T[6]+3}]")
    A(f"ds_write_b128 v{T[3]}, v[{T[6]}:{T[6]+3}] offset:16")
    A(f"s_mov_b64 exec, -1")
    for s in range(2):
        A(f"s_add_u32 s{sTMP+1}, s{sTMP}, {s*1024}")
        A(f"s_cmp_ge_u32 s{sTMP+1}, s{sNR}")
        A(f"s_cbranch_scc1 K2_P_DONE")
        A(f"v_add_u32 v{T[1]}, {s*1024}, v0")
        A(f"v_cmp_gt_u32 vcc, s{sNR}, v{T[1]}")
        A(f"v_lshrrev_b32 v{T[0]}, 1, v{RANK+s}")
        A(f"v_add_u32 v{MK+s}, v{MK+s}, v{T[0]}")
        A(f"v_lshlrev_b32 v{T[0]}, 2, v{MK+s}")
        A(f"v_lshlrev_b32 v{T[1]}, 3, v{MK+s}")
        A(f"v_lshlrev_b32 v{T[2]}, 5, v{MK+s}")
        A(f"v_add_u32 v{T[2]}, {LDS_A}, v{T[2]}")
        A(f"v_and_b32 v{T[3]}, {hex(P.srcmask)}, v{KEY+s}")
        A(f"v_lshrrev_b32 v{T[4]}, 11, v{KEY+s}")
        A(f"v_and_b32 v{T[4]}, 0x38, v{T[4]}")
        A(f"s_and_saveexec_b64 s[{sEX}:{sEX+1}], vcc")
        A(f"ds_write_b128 v{T[2]}, v[{AP+8*s}:{AP+8*s+3}]")
        A(f"ds_write_b128 v{T[2]}, v[{AP+8*s+4}:{AP+8*s+7}] offset:16")
        A(f"ds_write_b64 v{T[1]}, v[{PAY+4*s+2}:{PAY+4*s+3}] offset:{LDS_EF}")
        A(f"ds_write_b32 v{T[0]}, v{T[3]} offset:{LDS_IDX}")
        A(f"ds_write_b8 v{MK+s}, v{T[4]} offset:{LDS_K}")
        A(f"s_mov_b64 exec, -1")
    A.label("K2_P_DONE")
    A("s_waitcnt lgkmcnt(0)")
    A("s_barrier")
    ST.mark("bar4")
    ST.markc("c0")
    A(f"s_cmp_eq_u32 s{sTOT}, 0")
    A("s_cbranch_scc1 K2_MAIN_DONE")
    A(f"s_add_u32 s{sNB}, s{sTOT}, 3"); A(f"s_lshr_b32 s{sNB}, s{sNB}, 2"); A(f"s_sub_u32 s{sN}, 0, s{sNB}")
    A(f"s_lshl_b32 s{sTMP}, s{sWB}, 2"); A(f"v_mov_b32 v{vIad}, s{sTMP}")
    A(f"v_mov_b32 v{vKad}, s{sWB}")
    A(f"s_lshl_b32 s{sTMP}, s{sWB}, 5"); A(f"s_add_u32 s{sTMP}, s{sTMP}, {LDS_A}")
    A(f"v_lshlrev_b32 v{vT0}, 3, v{vLANE}")
    A(f"v_add_u32 v{vAad}, s{sTMP}, v{vT0}")
    A(f"s_lshl_b32 s{sTMP}, s{sWB}, 3"); A(f"s_add_u32 s{sTMP}, s{sTMP}, {LDS_EF}")
    A(f"v_add_u32 v{vEad}, s{sTMP}, v{vT0}")
    if P.pf and P.nrounds:
        pf_row0(sW,sPFO)
        A(f"s_lshl_b32 s{sTMP}, s{sW}, 10"); A(f"s_add_u32 s{sTMP}, s{sTMP}, s{sTMP+3}"); A(f"s_sub_i32 s{sTMP}, s{sTMP}, {P.lead}")
        A(f"s_max_i32 s{sTMP}, s{sTMP}, 0"); A(f"s_mul_i32 s{sTMP}, s{sTMP}, s{sNB}"); A(f"s_mul_i32 s{sTMP}, s{sTMP}, 6711"); A(f"s_lshr_b32 s{sTMP}, s{sTMP}, 26")
        A(f"s_sub_u32 s{sPFT}, s{sTMP}, s{sNB}")
        A(f"s_min_i32 s{sPFT}, s{sPFT}, -2")
        A(f"s_cmp_lt_u32 s{sW}, {P.npro}"); A(f"s_cselect_b32 s{sPFT}, 1, s{sPFT}")
        A(f"s_cmp_ge_u32 s{sW}, {P.nrounds}"); A(f"s_cselect_b32 s{sPFT}, 1, s{sPFT}")
        A(f"v_lshlrev_b32 v0, 7, v{vLANE}")
    def mf(d,a,b,abid,c="0"): return f"v_mfma_f32_4x4x4_16b_bf16 v[{d}:{d+3}], v[{a}:{a+1}], v[{b}:{b+1}], {c} cbsz:4 abid:{abid}"
    def xload(slot,pair): return f"buffer_load_dwordx4 v[{X+4*(slot%U)}:{X+4*(slot%U)+3}], v[{PAIR+2*pair}:{PAIR+2*pair+1}], s[{sSRD}:{sSRD+3}], 0 idxen offen"
    if P.prio==4: A("s_setprio 3")
    for p in range(4): A(f"ds_read_b32 v{PAIR+2*p}, v{vIad} offset:{LDS_IDX+4*p}")
    A(f"ds_read_b64 v[{AOP}:{AOP+1}], v{vAad}")
    A(f"ds_read_b64 v[{EOP}:{EOP+1}], v{vEad}")
    A(f"ds_read_b32 v{vK}, v{vKad} offset:{LDS_K}")
    A("s_waitcnt lgkmcnt(3)")
    for p in range(4): A(xload(p,p))
    for p in range(4): A(f"ds_read_b32 v{PAIR+2*p}, v{vIad} offset:{LDS_IDX+4*(4+p)}")
    hi_e,hi_o,lo_e,lo_o=WF,WF+2,WF+4,WF+6
    A("s_waitcnt lgkmcnt(5)")
    for t in (0,1):
        u=UU[t]
        A(mf(u,EOP,hi_e,t)); A(mf(u+4,EOP,hi_o,t))
        A("s_nop 1")
        A(mf(u,EOP,lo_e,t,f"v[{u}:{u+3}]")); A(mf(u+4,EOP,lo_o,t,f"v[{u+4}:{u+7}]"))
    A("s_nop 2")
    u=UU[0]
    for q in range(8): A(f"v_exp_f32 v{EE+q}, v{u+q}")
    A("s_nop 0")
    for q in range(4): A(f"v_pk_add_f32 v[{EE+2*q}:{EE+2*q+1}], v[{EE+2*q}:{EE+2*q+1}], 1.0 op_sel_hi:[1,0]")
    for q in range(8): A(f"v_rcp_f32 v{EE+q}, v{EE+q}")
    A("s_nop 0")
    for q in range(2): A(f"v_pk_mul_f32 v[{RR+2*q}:{RR+2*q+1}], v[{u+2*q}:{u+2*q+1}], v[{EE+2*q}:{EE+2*q+1}]")
    body=[]
    for t in range(4):
        cur=t%2; nxt=(t+1)%2
        if P.prio==1: body.append(('s',f"s_setprio {3-t}"))
        body.append(('s',"s_waitcnt lgkmcnt(0)"))
        body.append(('s',f"v_readfirstlane_b32 s{sK[0]}, v{vK}"))
        if P.pf and P.nrounds:
            body.append(('s',f"s_cmp_eq_u32 s{sN}, s{sPFT}"))
            body.append(('s',f"s_cbranch_scc1 K2_PF{t}"))
            body.append(('l',f"K2_PFR{t}"))
        body.append(('s',f"ds_read_b32 v{vK}, v{vKad} offset:{LDS_K+4*(t+1)}"))
        if t==0:
            body.append(('s',f"ds_read_b64 v[{EOPN}:{EOPN+1}], v{vEad} offset:128"))
            body.append(('s',f"ds_read_b64 v[{AOPN}:{AOPN+1}], v{vAad} offset:512"))
        for i in range(4):
            j=4*t+i
            x=X+4*(j%U)
            if P.prio==2 and i%2==0: body.append(('s',f"s_setprio {3-(j//2)%4}"))
            if P.prio==3: body.append(('s',f"s_setprio {3-i}"))
            un=UU[nxt]; uw=UU[cur]
            if i==0: TR=[f"v_exp_f32 v{EE+q}, v{un+q}" for q in range(4)]
            if i==1: TR=[f"v_exp_f32 v{EE+4+q}, v{un+4+q}" for q in range(4)]
            if i==2: TR=[f"v_rcp_f32 v{EE+q}, v{EE+q}" for q in range(4)]
            if i==3: TR=[f"v_rcp_f32 v{EE+4+q}, v{EE+4+q}" for q in range(4)]
            PKpre=[];PKpost=[]
            if i==0: PKpre=[f"v_pk_mul_f32 v[{RR+4+2*q}:{RR+4+2*q+1}], v[{uw+4+2*q}:{uw+4+2*q+1}], v[{EE+4+2*q}:{EE+4+2*q+1}]" for q in range(2)]
            if i==1: PKpre=[f"v_pk_add_f32 v[{EE+2*q}:{EE+2*q+1}], v[{EE+2*q}:{EE+2*q+1}], 1.0 op_sel_hi:[1,0]" for q in range(2)]
            if i==2: PKpre=[f"v_pk_add_f32 v[{EE+4+2*q}:{EE+4+2*q+1}], v[{EE+4+2*q}:{EE+4+2*q+1}], 1.0 op_sel_hi:[1,0]" for q in range(2)]
            if i==3: PKpost=[f"v_pk_mul_f32 v[{RR+2*q}:{RR+2*q+1}], v[{un+2*q}:{un+2*q+1}], v[{EE+2*q}:{EE+2*q+1}]" for q in range(2)]
            eop,ab=(EOP,t+2) if t<2 else (EOPN,t-2)
            if i==0: UM=mf(uw,eop,hi_e,ab)
            if i==1: UM=mf(uw+4,eop,hi_o,ab)
            if i==2: UM=mf(uw,eop,lo_e,ab,f"v[{uw}:{uw+3}]")
            if i==3: UM=mf(uw+4,eop,lo_o,ab,f"v[{uw+4}:{uw+7}]")
            body.append(('s',f"s_waitcnt vmcnt({U-1})"))
            body.append(('s',mf(TP,AOP,x,j)))
            body.append(('s',TR[0]))
            body.append(('s',mf(TP+4,AOP,x+2,j)))
            body.append(('s',TR[1]))
            body.append(('s',xload(j,i)))
            body.append(('s',f"ds_read_b32 v{PAIR+2*i}, v{vIad} offset:{LDS_IDX+4*(j+2*U)}"))
            body.append(('s',UM))
            body.append(('s',TR[2])); body.append(('s',TR[3]))
            for q in PKpre: body.append(('s',q))
            body.append(('s',f"s_set_gpr_idx_on s{sK[0]}, gpr_idx(SRC2,DST)"))
            sel=i%2; pr=i//2
            for h in range(4):
                R=RR+(0 if h<2 else 4)+2*pr
                a=ACC+2*h; tp=TP+2*h
                mod = "op_sel_hi:[1,0,1]" if sel==0 else "op_sel:[0,1,0] op_sel_hi:[1,1,1]"
                body.append(('s',f"v_pk_fma_f32 v[{a}:{a+1}], v[{tp}:{tp+1}], v[{R}:{R+1}], v[{a}:{a+1}] {mod}"))
            body.append(('s',"s_set_gpr_idx_off"))
            for q in PKpost: body.append(('s',q))
            if i<3: body.append(('s',f"s_lshr_b32 s{sK[0]}, s{sK[0]}, 8"))
        body.append(('s',f"s_add_u32 s{sN}, s{sN}, 1"))
        body.append(('s',"s_cbranch_scc1 K2_MAIN_DONE"))
    if P.bar:
        body.append(('s',"s_barrier")); body.append(('s',f"s_add_u32 s{sGB}, s{sGB}, 1"))
    if P.prio==4:
        body.append(('s',f"s_sub_u32 s{sQ}, 0, s{sN}")); body.append(('s',f"s_lshl_b32 s{sQ}, s{sQ}, 2"))
        for lv in (3,2,1):
            pass
        body.append(('s',f"s_mul_i32 s{sQ+1}, s{sNB}, 3")); body.append(('s',f"s_cmp_ge_u32 s{sQ}, s{sQ+1}")); body.append(('s',"s_cbranch_scc1 K2_LOOPB"))
        body.append(('s',"s_setprio 2")); body.append(('s',f"s_lshl_b32 s{sQ+1}, s{sNB}, 1")); body.append(('s',f"s_cmp_ge_u32 s{sQ}, s{sQ+1}")); body.append(('s',"s_cbranch_scc1 K2_LOOPB"))
        body.append(('s',"s_setprio 1")); body.append(('s',f"s_cmp_ge_u32 s{sQ}, s{sNB}")); body.append(('s',"s_cbranch_scc1 K2_LOOPB"))
        body.append(('s',"s_setprio 0")); body.append(('l',"K2_LOOPB"))
    body.append(('s',f"v_mov_b32 v{AOP}, v{AOPN}")); body.append(('s',f"v_mov_b32 v{AOP+1}, v{AOPN+1}"))
    body.append(('s',f"v_mov_b32 v{EOP}, v{EOPN}")); body.append(('s',f"v_mov_b32 v{EOP+1}, v{EOPN+1}"))
    body.append(('s',f"v_add_u32 v{vAad}, 512, v{vAad}")); body.append(('s',f"v_add_u32 v{vEad}, 128, v{vEad}"))
    body.append(('s',f"v_add_u32 v{vIad}, 64, v{vIad}")); body.append(('s',f"v_add_u32 v{vKad}, 16, v{vKad}"))
    body.append(('s',"s_branch K2_LOOP"))
    if "noload" in P.dbg: body=[b for b in body if not (b[0]=='s' and (b[1].startswith("buffer_load") or b[1].startswith("s_waitcnt vmcnt")))]
    if "noidx" in P.dbg: body=[b for b in body if not (b[0]=='s' and b[1].startswith("s_set_gpr"))]
    if "notrans" in P.dbg: body=[b for b in body if not (b[0]=='s' and (b[1].startswith("v_exp") or b[1].startswith("v_rcp")))]
    if "nofma" in P.dbg: body=[b for b in body if not (b[0]=='s' and b[1].startswith("v_pk_fma"))]
    if "nolo" in P.dbg: body=[b for b in body if not (b[0]=='s' and b[1].startswith("v_mfma") and (f"v[{WF+4}:{WF+5}]" in b[1] or f"v[{WF+6}:{WF+7}]" in b[1]))]
    if "nomfma" in P.dbg: body=[b for b in body if not (b[0]=='s' and b[1].startswith("v_mfma"))]
    A.label("K2_LOOP")
    for i,b in enumerate(body):
        if b[0]=='s': A(b[1])
        elif b[0]=='l': A.label(b[1])
        elif b[0]=='lds': A(b[2])
        else:
            cnt=0; found=False
            for step in range(len(body)):
                kk=(i-1-step)%len(body)
                if body[kk][0]=='lds':
                    if body[kk][1]==b[1]: found=True; break
                    cnt+=1
            assert found,b
            A(f"s_waitcnt lgkmcnt({min(cnt,15)})")
    if P.pf and P.nrounds:
        for t in range(4):
            A.label(f"K2_PF{t}")
            burst(0)
            A(f"s_branch K2_PFR{t}")
    A.label("K2_MAIN_DONE")
    if P.prio: A("s_setprio 0")
    if P.bar:
        A.label("K2_BARL")
        A(f"s_cmp_ge_u32 s{sGB}, s{sGM}"); A("s_cbranch_scc1 K2_BARD")
        A("s_barrier"); A(f"s_add_u32 s{sGB}, s{sGB}, 1"); A("s_branch K2_BARL")
        A.label("K2_BARD")
    if P.pf and P.nrounds:
        A(f"s_lshl_b32 s{sTMP}, s{sW}, 6"); A(f"v_add_u32 v0, s{sTMP}, v{vLANE}")
    A(f"s_add_u32 s{sLO}, s{sLO}, s{sWIN}")
    A(f"s_cmp_lt_u32 s{sLO}, s{sT}")
    A("s_cbranch_scc0 K2_EPI")
    A("s_waitcnt vmcnt(0) lgkmcnt(0)")
    A("s_branch K2_ROUND")
    A.label("K2_EPI")
    A("s_waitcnt lgkmcnt(0)")
    ST.mark("main")
    ST.markc("c1")
    A(f"s_and_b32 s{sCGP}, s{sW}, 3"); A(f"s_lshr_b32 s{sRG}, s{sW}, 2")
    A(f"s_lshl_b32 s{sTMP}, s{sCGP}, 13"); A(f"s_add_u32 s{sTMP}, s{sTMP}, {CONST_WM}")
    A(f"v_add_u32 v{2}, s{sTMP}, v{PAIR+1}")
    A(f"v_add_u32 v{3}, 4096, v{2}")
    for f in range(8):
        base=2 if f<4 else 3
        A(f"global_load_dwordx4 v[{WM+4*f}:{WM+4*f+3}], v{base}, s[{sCONST}:{sCONST+1}] offset:{(f%4)*1024}"+SC)
    RSZ=CAPW*32
    A(f"s_mul_i32 s{sTMP}, s{sW}, {RSZ}"); A(f"s_add_u32 s{sTMP}, s{sTMP}, {LDS_A}")
    A(f"s_xor_b32 s{sTMP+1}, s{sW}, 1"); A(f"s_mul_i32 s{sTMP+1}, s{sTMP+1}, {RSZ}"); A(f"s_add_u32 s{sTMP+1}, s{sTMP+1}, {LDS_A}")
    A(f"v_lshlrev_b32 v4, 3, v{vLANE}")
    A(f"v_add_u32 v5, s{sTMP}, v4"); A(f"v_add_u32 v6, 2048, v5"); A(f"v_add_u32 v7, 4096, v5")
    EX=64
    def xaddr(k,regs):
        r=regs[k//2]; o=(k%2)*128
        return r,o,o+64
    A(f"s_cmp_eq_u32 s{sH}, 0")
    A("s_cbranch_scc0 K2_EXW1")
    for k in range(5):
        r,o0,o1=xaddr(k,[5,6,7]); a=ACC+8*k
        A(f"ds_write2_b64 v{r}, v[{a+2}:{a+3}], v[{a+6}:{a+7}] offset0:{o0} offset1:{o1}")
    A("s_branch K2_EXW2")
    A.label("K2_EXW1")
    for k in range(5):
        r,o0,o1=xaddr(k,[5,6,7]); a=ACC+8*k
        A(f"ds_write2_b64 v{r}, v[{a}:{a+1}], v[{a+4}:{a+5}] offset0:{o0} offset1:{o1}")
    A.label("K2_EXW2")
    pr0,pr1,pr2,vRW=PAIR,PAIR+2,PAIR+4,PAIR+6
    A(f"v_add_u32 v{pr0}, s{sTMP+1}, v4"); A(f"v_add_u32 v{pr1}, 2048, v{pr0}"); A(f"v_add_u32 v{pr2}, 4096, v{pr0}")
    A(f"s_mul_i32 s{sTMP+2}, s{sG8}, 20"); A(f"s_lshl_b32 s{sTMP+3}, s{sH}, 1"); A(f"s_add_u32 s{sTMP+2}, s{sTMP+2}, s{sTMP+3}"); A(f"s_mul_i32 s{sTMP+2}, s{sTMP+2}, {AGG_STRIDE}")
    A(f"v_lshlrev_b32 v4, 2, v{vLANE}"); A(f"v_add_u32 v{vRW}, s{sTMP+2}, v4")
    A(f"s_mul_i32 s{sTMP}, s{sRG}, 3"); A(f"s_lshl_b32 s{sTMP+1}, s{sRG}, 1"); A(f"s_add_u32 s{sTMP+1}, s{sTMP+1}, 2")
    A(f"s_cmp_lt_u32 s{sRG}, 2"); A(f"s_cselect_b32 s{sTMP}, s{sTMP}, s{sTMP+1}")
    A(f"s_mul_i32 s{sTMP+1}, s{sTMP}, {16*AGG_STRIDE}")
    A(f"v_and_b32 v3, 15, v{vLANE}"); A(f"v_lshrrev_b32 v4, 4, v{vLANE}")
    A(f"v_mul_u32_u24 v7, {AGG_STRIDE}, v3"); A(f"v_lshl_add_u32 v7, v4, 4, v7"); A(f"v_add_u32 v{PAIR+1}, s{sTMP+1}, v7")
    vMR=PAIR+1; vOUT=PAIR+3
    A(f"v_lshlrev_b32 v3, 4, v3"); A(f"v_lshl_add_u32 v{vOUT}, v4, 10, v3")
    A(f"s_lshl_b32 s{sTMP}, s{sTMP}, 2")
    A(f"s_mul_i32 s{sTMP+1}, s{sB}, {NPB}"); A(f"s_add_u32 s{sTMP+1}, s{sTMP+1}, s{sTMP}")
    A(f"s_lshl_b32 s{sTMP+1}, s{sTMP+1}, 10"); A(f"s_lshl_b32 s{sTMP+2}, s{sCGP}, 8"); A(f"s_add_u32 s{sTMP+1}, s{sTMP+1}, s{sTMP+2}")
    A(f"s_add_u32 s{sOUT}, s{sOUT}, s{sTMP+1}"); A(f"s_addc_u32 s{sOUT+1}, s{sOUT+1}, 0")
    A("s_waitcnt vmcnt(8) lgkmcnt(0)")
    A("s_barrier")
    ST.mark("barY")
    for k in range(5):
        r,o0,o1=xaddr(k,[pr0,pr1,pr2])
        A(f"ds_read2_b64 v[{EX+4*k}:{EX+4*k+3}], v{r} offset0:{o0} offset1:{o1}")
    A(f"s_cmp_eq_u32 s{sH}, 0")
    A("s_cbranch_scc0 K2_CB1")
    for hh in range(2):
        if hh==1: A.label("K2_CB1")
        off=0 if hh==0 else 2
        for k in range(5):
            a=ACC+8*k+off; e=EX+4*k
            A(f"s_waitcnt lgkmcnt({min(4-k+2*k,15)})")
            A(f"v_pk_add_f32 v[{a}:{a+1}], v[{a}:{a+1}], v[{e}:{e+1}]")
            A(f"v_pk_add_f32 v[{a+4}:{a+5}], v[{a+4}:{a+5}], v[{e+2}:{e+3}]")
            A(f"v_pk_mul_f32 v[{a}:{a+1}], v[{a}:{a+1}], s[{sLN2}:{sLN2+1}]")
            A(f"v_pk_mul_f32 v[{a+4}:{a+5}], v[{a+4}:{a+5}], s[{sLN2}:{sLN2+1}]")
            A(f"v_cvt_pk_bf16_f32 v{2+2*(k%2)}, v{a}, v{a+4}")
            A(f"v_cvt_pk_bf16_f32 v{3+2*(k%2)}, v{a+1}, v{a+5}")
            A(f"ds_write_b32 v{vRW}, v{2+2*(k%2)} offset:{(4*k)*AGG_STRIDE}")
            A(f"ds_write_b32 v{vRW}, v{3+2*(k%2)} offset:{(4*k+1)*AGG_STRIDE}")
        if hh==0: A("s_branch K2_CB2")
    A.label("K2_CB2")
    A("s_waitcnt lgkmcnt(0)")
    A("s_barrier")
    ST.mark("barZ")
    D=ACC; FR=64
    fl={0:"",1:" sc1",2:" sc0 sc1",3:" nt"}[P.outwt]
    def rd(q):
        for ks in range(4): A(f"ds_read_b128 v[{FR+16*(q%2)+4*ks}:{FR+16*(q%2)+4*ks+3}], v{vMR} offset:{q*16*AGG_STRIDE+ks*64}")
    def mm(q):
        for ks in range(4):
            for p in range(2):
                d=D+8*q+4*p; f=FR+16*(q%2)+4*ks; w=WM+4*(4*p+ks)
                c="0" if ks==0 else f"v[{d}:{d+3}]"
                A(f"v_mfma_f32_16x16x32_bf16 v[{d}:{d+3}], v[{f}:{f+3}], v[{w}:{w+3}], {c}")
    def st(q):
        d=D+8*q; o=D+24+4*q
        A(f"v_cvt_pk_bf16_f32 v{o}, v{d}, v{d+1}"); A(f"v_cvt_pk_bf16_f32 v{o+1}, v{d+2}, v{d+3}")
        A(f"v_cvt_pk_bf16_f32 v{o+2}, v{d+4}, v{d+5}"); A(f"v_cvt_pk_bf16_f32 v{o+3}, v{d+6}, v{d+7}")
        if q: A(f"v_add_u32 v{vOUT}, 4096, v{vOUT}")
        A(f"global_store_dwordx4 v{vOUT}, v[{o}:{o+3}], s[{sOUT}:{sOUT+1}]"+fl)
    rd(0); rd(1)
    A("s_waitcnt vmcnt(0) lgkmcnt(4)")
    mm(0)
    A(f"s_cmp_lt_u32 s{sRG}, 2")
    A("s_cbranch_scc0 K2_MIX2")
    rd(2)
    A("s_waitcnt lgkmcnt(4)")
    mm(1)
    st(0)
    A("s_waitcnt lgkmcnt(0)")
    mm(2)
    st(1)
    A("s_nop 4")
    st(2)
    A("s_branch K2_MIXD")
    A.label("K2_MIX2")
    A("s_waitcnt lgkmcnt(0)")
    mm(1)
    st(0)
    A("s_nop 4")
    st(1)
    A.label("K2_MIXD")
    ST.mark("iss")
    if P.stamps:
        A("s_waitcnt vmcnt(0)")
        ST.mark("done")
        ST.dump(sWS,1,2,sW,2)
    A.label("K2_END")
    A("s_endpgm")
    A.label("K2_CODE_END")
    return NV

def kd(name,nv,ns):
    nv8=(nv+3)//4*4
    return f""".amdhsa_kernel {name}
  .amdhsa_next_free_vgpr {nv8}
  .amdhsa_next_free_sgpr {ns}
  .amdhsa_accum_offset {nv8}
  .amdhsa_group_segment_fixed_size 0
  .amdhsa_kernarg_size 88
  .amdhsa_user_sgpr_count 2
  .amdhsa_user_sgpr_kernarg_segment_ptr 1
  .amdhsa_system_sgpr_workgroup_id_x 1
  .amdhsa_float_denorm_mode_32 3
.end_amdhsa_kernel
"""

def main():
    ap=argparse.ArgumentParser()
    ap.add_argument("-o",default="standalone__tensor_product_equiv_tfn__graph.s")
    ap.add_argument("--U",type=int,default=8)
    ap.add_argument("--B",type=int,default=32)
    ap.add_argument("--rot",type=int,default=0)
    ap.add_argument("--stamps",type=int,default=0)
    ap.add_argument("--srcmask",type=lambda x:int(x,0),default=0x3fff)
    ap.add_argument("--dbg",default="")
    ap.add_argument("--xmap",type=int,default=1)
    ap.add_argument("--prio",type=int,default=4)
    ap.add_argument("--pf",type=int,default=3)
    ap.add_argument("--npro",type=int,default=2)
    ap.add_argument("--lead",type=int,default=1500)
    ap.add_argument("--nrounds",type=int,default=0)
    ap.add_argument("--bar",type=int,default=0)
    ap.add_argument("--k1stage",type=int,default=1)
    ap.add_argument("--k1wt",type=int,default=1)
    ap.add_argument("--k1pf",type=int,default=0)
    ap.add_argument("--pfat",default="recs")
    ap.add_argument("--k1l2",type=int,default=0)
    ap.add_argument("--outwt",type=int,default=1)
    ap.add_argument("--codepf",type=int,default=1)
    ap.add_argument("--k1rows",type=int,default=10000)
    ap.add_argument("--fused",type=int,default=0)
    ap.add_argument("--fpf",type=int,default=1)
    ap.add_argument("--sleep",type=int,default=0)
    ap.add_argument("--nfast",type=int,default=245)
    ap.add_argument("--sfast",type=int,default=8)
    P=ap.parse_args()
    hdr=open("standalone__tensor_product_equiv_tfn__graph.s.ref").read().split("; Override")[0]
    A=Asm()
    A.L.append(hdr.rstrip("\n"))
    if P.fused:
        A.L.append(f"; @launch grid=({NB},1,1) block=(1024,1,1) lds={K2_LDS}")
    else:
        A.L.append(f"; @launch kernel=tfn_bin_kernel grid=({NC+K1_CONST_WGS},1,1) block=({K1_THREADS},1,1) lds={2048+CH*20 if P.k1stage else 2048}")
        A.L.append(f"; @launch kernel=standalone__tensor_product_equiv_tfn__graph_kernel grid=({NB},1,1) block=(1024,1,1) lds={K2_LDS}")
    A('.amdgcn_target "amdgcn-amd-amdhsa--gfx950"')
    A(".text")
    if not P.fused: A(".globl tfn_bin_kernel")
    A(".globl standalone__tensor_product_equiv_tfn__graph_kernel")
    if not P.fused: gen_k1(A,P)
    nv=gen_k2(A,P)
    A('.section .rodata,"a"')
    A(".p2align 6")
    s=A.text()+("" if P.fused else kd("tfn_bin_kernel",72,102 if P.stamps else 40)+".p2align 6\n")+kd("standalone__tensor_product_equiv_tfn__graph_kernel",nv,102 if P.stamps else 76)
    open(P.o,"w").write(s)
    print("wrote",P.o,len(s),"bytes")
main()
```

```python
import sys, struct, argparse

N=10000; E=320000; C=128
NPB=40
NB=250
NC=250
CH=1280
K1_THREADS=320
K1_CONST_WGS=8
import os
WS_BASE=int(os.environ.get("WSBASE","0"),0)
WS_KEYS=WS_BASE; WS_PAY=WS_BASE+0x140000; WS_CELL=WS_BASE+0x630000; WS_CONST=WS_BASE+0x680000
CONST_WF=0; CONST_CG=2048; CONST_WM=4096
LOG2E=1.4426950408889634; LN2=0.6931471805599453
def f2u(f): return struct.unpack("<I",struct.pack("<f",f))[0]

class Asm:
    def __init__(s): s.L=[]
    def __call__(s,x=""):
        for l in x.split("\n"):
            s.L.append(l if (l.endswith(":") or l.startswith(".") or l=="" ) else "    "+l)
    def c(s,x): s.L.append("    ; "+x)
    def label(s,x): s.L.append(x+":")
    def text(s): return "\n".join(s.L)+"\n"

def vr(a,n=1): return f"v{a}" if n==1 else f"v[{a}:{a+n-1}]"
def sr(a,n=1): return f"s{a}" if n==1 else f"s[{a}:{a+n-1}]"

WS_STAMP=0x800000
class Stamps:
    def __init__(s,A,on,kn,base_sgpr=82,tmp=80): s.A=A; s.on=on; s.n=0; s.base=base_sgpr; s.tmp=tmp; s.kn=kn
    def mark(s,name=""):
        if not s.on: return
        A=s.A
        A(f"s_memrealtime s[{s.tmp}:{s.tmp+1}]")
        A("s_waitcnt lgkmcnt(0)")
        A(f"s_mov_b32 s{s.base+s.n}, s{s.tmp}")
        s.n+=1
    def markc(s,name=""):
        if not s.on: return
        A=s.A
        A(f"s_memtime s[{s.tmp}:{s.tmp+1}]")
        A("s_waitcnt lgkmcnt(0)")
        A(f"s_mov_b32 s{s.base+s.n}, s{s.tmp}")
        s.n+=1
    def dump(s,wsreg,kernel,wgreg,wavereg,vtmp):
        if not s.on: return
        A=s.A
        A(f"s_lshl_b32 s{s.tmp}, s{wgreg}, 4"); A(f"s_add_u32 s{s.tmp}, s{s.tmp}, s{wavereg}"); A(f"s_lshl_b32 s{s.tmp}, s{s.tmp}, 7")
        A(f"s_add_u32 s{s.tmp}, s{s.tmp}, {WS_STAMP+kernel*0x100000}")
        A(f"s_add_u32 s{s.tmp}, s{wsreg}, s{s.tmp}"); A(f"s_addc_u32 s{s.tmp+1}, s{wsreg+1}, 0")
        A(f"v_mov_b32 v{vtmp}, 0")
        for i in range(s.n):
            A(f"v_mov_b32 v{vtmp+1}, s{s.base+i}")
            A(f"global_store_dword v{vtmp}, v{vtmp+1}, s[{s.tmp}:{s.tmp+1}] offset:{4*i}")
            A("s_nop 1")

def dpp_scan(A,v,nrows=4):
    for sh in (1,2,4,8):
        A("s_nop 1")
        A(f"v_add_u32_dpp v{v}, v{v}, v{v} row_shr:{sh} row_mask:0xf bank_mask:0xf bound_ctrl:1")
    if nrows>=2:
        A("s_nop 1")
        A(f"v_add_u32_dpp v{v}, v{v}, v{v} row_bcast:15 row_mask:0xa bank_mask:0xf")
    if nrows>=4:
        A("s_nop 1")
        A(f"v_add_u32_dpp v{v}, v{v}, v{v} row_bcast:31 row_mask:0xc bank_mask:0xf")

def gen_k1(A,P):
    B=P.B
    blkmul={32:209,16:104,64:419}[B]
    assert ((N-1)*blkmul)>>16 < B
    for d in range(N):
        b=(d*52429)>>21; assert b==d//40
    for dl in range(40): assert (dl*205)>>10==dl//5
    A(".p2align 8")
    A(".type tfn_bin_kernel,@function")
    A.label("tfn_bin_kernel")
    A(f"s_cmp_ge_u32 s2, {NC+K1_CONST_WGS}")
    A("s_cbranch_scc1 K1_END")
    A("s_load_dwordx4 s[4:7], s[0:1], 8")
    A("s_load_dwordx4 s[8:11], s[0:1], 24")
    A("s_load_dwordx2 s[12:13], s[0:1], 80")
    if P.k1pf: A("s_load_dwordx2 s[32:33], s[0:1], 0")
    A(f"s_cmp_ge_u32 s2, {NC}")
    A("s_cbranch_scc1 K1_CONST")
    ST=Stamps(A,P.stamps,"K1")
    ST.mark("start")
    if P.tl:
        A("s_load_dwordx2 s[38:39], s[0:1], 72"); A("s_memrealtime s[34:35]"); A("s_waitcnt lgkmcnt(0)"); A("s_not_b32 s34, s34")
        A("v_mov_b32 v70, s34"); A("v_mov_b32 v71, 0"); A("global_atomic_umax v71, v70, s[38:39]")
    A(f"s_mul_i32 s14, s2, {CH*4}")
    A("v_lshlrev_b32 v1, 4, v0")
    A("v_add_u32 v1, s14, v1")
    A("v_lshlrev_b32 v2, 1, v1")
    A("v_lshlrev_b32 v3, 2, v0")
    A("v_mov_b32 v4, 0")
    A("v_mov_b32 v5, 1")
    A("v_cmp_gt_u32 vcc, 0x100, v0")
    A("s_and_saveexec_b64 s[16:17], vcc")
    A("s_cbranch_execz K1_NOZ")
    A("ds_write_b32 v3, v4")
    A.label("K1_NOZ")
    A("s_mov_b64 exec, s[16:17]")
    A("s_waitcnt lgkmcnt(0)")
    A("global_load_dwordx4 v[8:11], v1, s[6:7]")
    A("global_load_dwordx4 v[12:15], v1, s[4:5]")
    A("global_load_dwordx4 v[16:19], v2, s[8:9]")
    A("global_load_dwordx4 v[20:23], v2, s[8:9] offset:16")
    A("global_load_dwordx4 v[24:27], v2, s[10:11]")
    A("global_load_dwordx4 v[28:31], v2, s[10:11] offset:16")
    def k1pf():
        if P.k1l2==0:
            per=(P.k1rows*8+249)//250
            A(f"s_mul_i32 s34, s2, {per*128}")
            A("v_lshlrev_b32 v68, 7, v0"); A("v_add_u32 v68, s34, v68")
            if per<320:
                A(f"v_cmp_gt_u32 vcc, {per}, v0"); A("s_and_saveexec_b64 s[36:37], vcc"); A("s_cbranch_execz K1_NOPF")
            A("global_load_dword v69, v68, s[32:33]")
            if per<320:
                A.label("K1_NOPF"); A("s_mov_b64 exec, s[36:37]")
        else:
            A("s_lshr_b32 s34, s2, 3"); A(f"s_mul_i32 s34, s34, {320*128}")
            A("v_lshlrev_b32 v68, 7, v0"); A("v_add_u32 v68, s34, v68")
            for q in range(P.k1l2):
                A("global_load_dword v69, v68, s[32:33]")
                A(f"v_add_u32 v68, {10240*128}, v68")
            rem=80000-10240*P.k1l2; per=(rem+249)//250
            assert per<=320
            A(f"s_mul_i32 s34, s2, {per}"); A(f"s_add_u32 s34, s34, {10240*P.k1l2}")
            A("v_add_u32 v70, s34, v0")
            A(f"v_cmp_gt_u32 vcc, {per}, v0"); A(f"s_mov_b32 s35, 80000"); A("v_cmp_gt_u32 s[36:37], s35, v70"); A("s_and_b64 vcc, vcc, s[36:37]")
            A("v_lshlrev_b32 v70, 7, v70")
            A("s_and_saveexec_b64 s[36:37], vcc")
            A("s_cbranch_execz K1_NOPF")
            A("global_load_dword v71, v70, s[32:33]")
            A.label("K1_NOPF")
            A("s_mov_b64 exec, s[36:37]")
    if P.k1pf==1: k1pf()
    A(f"s_mul_i32 s15, s2, {CH*16}")
    A(f"s_add_u32 s18, s12, {WS_KEYS}"); A("s_addc_u32 s19, s13, 0")
    A("s_add_u32 s18, s18, s14"); A("s_addc_u32 s19, s19, 0")
    A(f"s_add_u32 s20, s12, {WS_PAY}"); A("s_addc_u32 s21, s13, 0")
    A("s_add_u32 s20, s20, s15"); A("s_addc_u32 s21, s21, 0")
    A("s_lshl_b32 s15, s2, 2")
    A(f"s_add_u32 s22, s12, {WS_CELL}"); A("s_addc_u32 s23, s13, 0")
    A("s_add_u32 s22, s22, s15"); A("s_addc_u32 s23, s23, 0")
    A("s_movk_i32 s24, -40")
    A("v_lshrrev_b32 v6, 6, v0")
    A("v_and_b32 v7, 63, v0")
    A("v_readfirstlane_b32 s25, v6")
    A("s_barrier")
    A(f"s_waitcnt vmcnt({5 if P.k1pf==1 else 4})")
    ST.mark("ld")
    for i in range(4):
        d=8+i; s=12+i
        A(f"v_mul_u32_u24 v44, 0xcccd, v{d}")
        A("v_lshrrev_b32 v44, 21, v44")
        A(f"v_mad_i32_i24 v45, v44, s24, v{d}")
        A(f"v_lshlrev_b32 v{36+i}, 2, v44")
        A(f"ds_add_rtn_u32 v{40+i}, v{36+i}, v5")
        A("v_mul_u32_u24 v46, 0xcd, v45")
        A("v_lshrrev_b32 v46, 10, v46")
        A("v_mad_i32_i24 v47, v46, -5, v45")
        A(f"v_mul_u32_u24 v48, {blkmul}, v{s}")
        A("v_lshrrev_b32 v48, 16, v48")
        if P.rot:
            A("v_mul_u32_u24 v49, 2098, v44"); A("v_lshrrev_b32 v49, 16, v49")
            A(f"v_mul_u32_u24 v49, {(B//8)*P.rot}, v49")
            A("v_add_u32 v48, v48, v49")
            A(f"v_and_b32 v48, {B-1}, v48")
        sh={16:4,32:5,64:6}[B]
        A(f"v_lshl_add_u32 v48, v46, {sh}, v48")
        A(f"v_lshl_or_b32 v{32+i}, v47, 14, v{s}")
        A(f"v_lshl_or_b32 v{32+i}, v48, 17, v{32+i}")
    A(f"s_waitcnt vmcnt({1 if P.k1pf==1 else 0})")
    A("v_swap_b32 v18, v24"); A("v_swap_b32 v19, v25"); A("v_swap_b32 v22, v28"); A("v_swap_b32 v23, v29")
    pay=[16,24,20,28]
    A("v_lshlrev_b32 v50, 4, v7")
    A("s_waitcnt lgkmcnt(0)")
    A("s_barrier")
    ST.mark("hist")
    if P.k1pf==2: k1pf()
    A("ds_read_b128 v[52:55], v50")
    A("s_waitcnt lgkmcnt(0)")
    A("v_add_u32 v56, v52, v53")
    A("v_add_u32 v57, v56, v54")
    A("v_add_u32 v58, v57, v55")
    A("v_mov_b32 v59, v58")
    dpp_scan(A,59)
    A("v_sub_u32 v60, v59, v58")
    A("v_add_u32 v61, v60, v52")
    A("v_add_u32 v62, v60, v56")
    A("v_add_u32 v63, v60, v57")
    A("ds_write_b128 v50, v[60:63] offset:1024")
    for i in range(4):
        A(f"s_cmp_lg_u32 s25, {i}")
        A(f"s_cbranch_scc1 K1_CS{i}")
        A(f"v_lshl_or_b32 v64, v{52+i}, 16, v{60+i}")
        A(f"v_lshlrev_b32 v65, 12, v7")
        if i: A(f"v_add_u32 v65, {i*1024}, v65")
        A(f"v_cmp_gt_u32 vcc, {(NB-i+3)//4}, v7")
        A("s_and_saveexec_b64 s[16:17], vcc")
        A("global_store_dword v65, v64, s[22:23]")
        A(f"s_cmp_ge_u32 s2, {256-NC}")
        A(f"s_cbranch_scc1 K1_CZ{i}")
        A(f"global_store_dword v65, v4, s[22:23] offset:{NC*4}")
        A.label(f"K1_CZ{i}")
        A("s_mov_b64 exec, s[16:17]")
        A.label(f"K1_CS{i}")
    A("s_waitcnt lgkmcnt(0)")
    for i in range(4): A(f"ds_read_b32 v{44+i}, v{36+i} offset:1024")
    if not P.k1stage:
        for i in range(4):
            A(f"s_waitcnt lgkmcnt({3-i})")
            A(f"v_add_u32 v{44+i}, v{44+i}, v{40+i}")
            A(f"v_lshlrev_b32 v48, 2, v{44+i}")
            A(f"v_lshlrev_b32 v49, 4, v{44+i}")
            A(f"global_store_dwordx4 v49, v[{pay[i]}:{pay[i]+3}], s[20:21]")
            A(f"global_store_dword v48, v{32+i}, s[18:19]")
            A("s_nop 1")
    else:
        KST=2048; PST=KST+CH*4
        fl={0:"",1:" sc1",2:" sc0 sc1",3:" nt"}[P.k1wt]
        for i in range(4):
            A(f"s_waitcnt lgkmcnt({3-i+2*i})")
            A(f"v_add_u32 v{44+i}, v{44+i}, v{40+i}")
            A(f"v_lshlrev_b32 v48, 2, v{44+i}")
            A(f"v_lshlrev_b32 v49, 4, v{44+i}")
            A(f"ds_write_b128 v49, v[{pay[i]}:{pay[i]+3}] offset:{PST}")
            A(f"ds_write_b32 v48, v{32+i} offset:{KST}")
        A("v_lshlrev_b32 v50, 4, v0")
        A("s_waitcnt lgkmcnt(0)")
        A("s_barrier")
        A(f"ds_read_b128 v[8:11], v50 offset:{KST}")
        for q in range(4): A(f"ds_read_b128 v[{12+4*q}:{15+4*q}], v50 offset:{PST+q*5120}")
        A("v_add_u32 v51, 5120, v50"); A("v_add_u32 v52, 10240, v50"); A("v_add_u32 v53, 15360, v50")
        A("s_waitcnt lgkmcnt(4)")
        A(f"global_store_dwordx4 v50, v[8:11], s[18:19]{fl}")
        for q in range(4):
            A(f"s_waitcnt lgkmcnt({3-q})")
            A(f"global_store_dwordx4 v{50+q}, v[{12+4*q}:{15+4*q}], s[20:21]{fl}")
    if P.k1pf==3: k1pf()
    if P.tl:
        A("s_waitcnt vmcnt(0)"); A("s_memrealtime s[34:35]"); A("s_waitcnt lgkmcnt(0)")
        A("v_mov_b32 v70, s34"); A("v_mov_b32 v71, 0"); A("global_atomic_umax v71, v70, s[38:39] offset:4")
    ST.mark("iss")
    if P.stamps:
        A("s_waitcnt vmcnt(0)")
        ST.mark("done")
        ST.dump(12,0,2,25,66)
    A("s_endpgm")
    A.label("K1_CONST")
    A("s_load_dwordx2 s[26:27], s[0:1], 40")
    A("s_load_dwordx4 s[28:31], s[0:1], 48")
    A("v_lshrrev_b32 v6, 6, v0")
    A("s_nop 0")
    A("v_readfirstlane_b32 s25, v6")
    A(f"s_sub_u32 s14, s2, {NC}")
    A("v_and_b32 v7, 63, v0")
    A("s_waitcnt lgkmcnt(0)")
    A(f"s_add_u32 s18, s12, {WS_CONST}"); A("s_addc_u32 s19, s13, 0")
    A("s_cmp_eq_u32 s25, 4")
    A("s_cbranch_scc1 K1_CW4")
    A("s_and_b32 s15, s14, 1")
    A("s_lshr_b32 s16, s14, 1")
    A("s_lshl_b32 s16, s16, 5"); A("s_add_u32 s16, s16, s15")
    A("v_and_b32 v1, 15, v7"); A("v_lshlrev_b32 v1, 1, v1"); A("v_add_u32 v1, s16, v1")
    A("v_lshrrev_b32 v2, 4, v7"); A("v_lshlrev_b32 v2, 3, v2")
    A("s_lshl_b32 s17, s25, 5"); A("v_add_u32 v2, s17, v2")
    A("v_lshlrev_b32 v2, 7, v2"); A("v_add_u32 v2, v2, v1"); A("v_lshlrev_b32 v2, 1, v2")
    for r in range(8): A(f"global_load_ushort v{8+r}, v2, s[30:31] offset:{r*256}")
    A("s_lshl_b32 s17, s14, 12")
    A("v_lshlrev_b32 v3, 4, v0"); A("v_add_u32 v3, s17, v3"); A(f"v_add_u32 v3, {CONST_WM}, v3")
    A("s_waitcnt vmcnt(0)")
    for r in range(4): A(f"v_lshl_or_b32 v{16+r}, v{9+2*r}, 16, v{8+2*r}")
    A("global_store_dwordx4 v3, v[16:19], s[18:19]")
    A("s_endpgm")
    A.label("K1_CW4")
    A("s_cmp_eq_u32 s14, 0"); A("s_cbranch_scc1 K1_WF")
    A("s_cmp_eq_u32 s14, 1"); A("s_cbranch_scc1 K1_CG")
    if P.codepf&1:
        A("s_cmp_eq_u32 s14, 2"); A("s_cbranch_scc0 K1_CPX")
        A("s_getpc_b64 s[34:35]")
        A.label("K1_PC")
        A("s_add_u32 s34, s34, standalone__tensor_product_equiv_tfn__graph_kernel-K1_PC"); A("s_addc_u32 s35, s35, 0")
        A("v_lshlrev_b32 v1, 7, v7")
        for q in range(2):
            A(f"v_add_u32 v2, {q*8192}, v1")
            A(f"v_cmp_gt_u32 vcc, K2_CODE_END-standalone__tensor_product_equiv_tfn__graph_kernel, v2")
            A("s_and_saveexec_b64 s[36:37], vcc")
            A(f"s_cbranch_execz K1_CPS{q}")
            A(f"global_load_dword v{8+q}, v2, s[34:35]")
            A.label(f"K1_CPS{q}")
            A("s_mov_b64 exec, s[36:37]")
        A.label("K1_CPX")
    A("s_endpgm")
    A.label("K1_WF")
    A("v_lshlrev_b32 v1, 2, v7")
    for k in range(4): A(f"global_load_dword v{8+k}, v1, s[26:27] offset:{k*256}")
    A(f"s_mov_b32 s15, 0x{f2u(-LOG2E):08x}")
    A("s_mov_b32 s16, 0xffff0000")
    A("s_waitcnt vmcnt(0)")
    for k in range(4):
        A(f"v_lshlrev_b32 v{12+k}, 16, v{8+k}")
        A(f"v_and_b32 v{16+k}, s16, v{8+k}")
    for k in range(8): A(f"v_mul_f32 v{12+k}, s15, v{12+k}")
    A("v_cvt_pk_bf16_f32 v20, v12, v13"); A("v_cvt_pk_bf16_f32 v21, v14, v15")
    A("v_cvt_pk_bf16_f32 v22, v16, v17"); A("v_cvt_pk_bf16_f32 v23, v18, v19")
    for q in range(4):
        A(f"v_lshlrev_b32 v28, 16, v{20+q}")
        A(f"v_and_b32 v29, s16, v{20+q}")
        A(f"v_sub_f32 v28, v{12+2*q}, v28")
        A(f"v_sub_f32 v29, v{13+2*q}, v29")
        A(f"v_cvt_pk_bf16_f32 v{24+q}, v28, v29")
    A("v_lshlrev_b32 v3, 5, v7")
    A(f"global_store_dwordx4 v3, v[20:23], s[18:19] offset:{CONST_WF}")
    A(f"global_store_dwordx4 v3, v[24:27], s[18:19] offset:{CONST_WF+16}")
    A("s_endpgm")
    A.label("K1_CG")
    A("v_and_b32 v1, 3, v7"); A("v_lshlrev_b32 v1, 5, v1")
    for f in range(4): A(f"global_load_dwordx2 v[{8+2*f}:{9+2*f}], v1, s[28:29] offset:{f*8}")
    A("s_mov_b32 s15, 0x05040100"); A("s_mov_b32 s16, 0x07060302")
    A("s_waitcnt vmcnt(0)")
    for o in range(4):
        sel="s15" if o%2==0 else "s16"; h=o//2
        A(f"v_perm_b32 v{16+2*o}, v{10+h}, v{8+h}, {sel}")
        A(f"v_perm_b32 v{17+2*o}, v{14+h}, v{12+h}, {sel}")
    A("v_lshlrev_b32 v3, 5, v7"); A(f"v_add_u32 v3, {CONST_CG}, v3")
    A("global_store_dwordx4 v3, v[16:19], s[18:19]")
    A("global_store_dwordx4 v3, v[20:23], s[18:19] offset:16")
    A.label("K1_END")
    A("s_endpgm")


def gen_phase1(A,P,ST):
    B=P.B
    blkmul={32:209,16:104,64:419}[B]
    A("s_load_dwordx4 s[4:7], s[0:1], 8")
    A("s_load_dwordx4 s[8:11], s[0:1], 24")
    A("s_load_dwordx2 s[12:13], s[0:1], 80")
    A("s_load_dwordx2 s[26:27], s[0:1], 40")
    A("s_load_dwordx4 s[28:31], s[0:1], 48")
    A("s_load_dwordx2 s[32:33], s[0:1], 0")
    A("s_load_dwordx2 s[72:73], s[0:1], 72")
    A("v_lshrrev_b32 v6, 6, v0")
    A("v_and_b32 v7, 63, v0")
    A("v_readfirstlane_b32 s25, v6")
    A("s_nop 3")
    A("s_cmp_ge_u32 s25, 5")
    A("s_cbranch_scc1 F_OTHER")
    A(f"s_mul_i32 s14, s2, {CH*4}")
    A("v_lshlrev_b32 v1, 4, v0")
    A("v_add_u32 v1, s14, v1")
    A("v_lshlrev_b32 v2, 1, v1")
    A("v_lshlrev_b32 v3, 2, v0")
    A("v_mov_b32 v4, 0")
    A("v_mov_b32 v5, 1")
    A("v_cmp_gt_u32 vcc, 0x100, v0")
    A("s_and_saveexec_b64 s[16:17], vcc")
    A("s_cbranch_execz F_NOZ")
    A("ds_write_b32 v3, v4")
    A.label("F_NOZ")
    A("s_mov_b64 exec, s[16:17]")
    A("s_waitcnt lgkmcnt(0)")
    A("global_load_dwordx4 v[8:11], v1, s[6:7]")
    A("global_load_dwordx4 v[12:15], v1, s[4:5]")
    A("global_load_dwordx4 v[16:19], v2, s[8:9]")
    A("global_load_dwordx4 v[20:23], v2, s[8:9] offset:16")
    A("global_load_dwordx4 v[24:27], v2, s[10:11]")
    A("global_load_dwordx4 v[28:31], v2, s[10:11] offset:16")
    A(f"s_mul_i32 s15, s2, {CH*16}")
    A(f"s_add_u32 s18, s12, {WS_KEYS}"); A("s_addc_u32 s19, s13, 0")
    A("s_add_u32 s18, s18, s14"); A("s_addc_u32 s19, s19, 0")
    A(f"s_add_u32 s20, s12, {WS_PAY}"); A("s_addc_u32 s21, s13, 0")
    A("s_add_u32 s20, s20, s15"); A("s_addc_u32 s21, s21, 0")
    A("s_lshl_b32 s15, s2, 10")
    A(f"s_add_u32 s22, s12, {WS_CELL}"); A("s_addc_u32 s23, s13, 0")
    A("s_add_u32 s22, s22, s15"); A("s_addc_u32 s23, s23, 0")
    A("s_movk_i32 s24, -40")
    A("s_barrier")
    A("s_waitcnt vmcnt(4)")
    for i in range(4):
        d=8+i; s=12+i
        A(f"v_mul_u32_u24 v44, 0xcccd, v{d}")
        A("v_lshrrev_b32 v44, 21, v44")
        A(f"v_mad_i32_i24 v45, v44, s24, v{d}")
        A(f"v_lshlrev_b32 v{36+i}, 2, v44")
        A(f"ds_add_rtn_u32 v{40+i}, v{36+i}, v5")
        A("v_mul_u32_u24 v46, 0xcd, v45")
        A("v_lshrrev_b32 v46, 10, v46")
        A("v_mad_i32_i24 v47, v46, -5, v45")
        A(f"v_mul_u32_u24 v48, {blkmul}, v{s}")
        A("v_lshrrev_b32 v48, 16, v48")
        sh={16:4,32:5,64:6}[B]
        A(f"v_lshl_add_u32 v48, v46, {sh}, v48")
        A(f"v_lshl_or_b32 v{32+i}, v47, 14, v{s}")
        A(f"v_lshl_or_b32 v{32+i}, v48, 17, v{32+i}")
    A("s_waitcnt vmcnt(0)")
    A("v_swap_b32 v18, v24"); A("v_swap_b32 v19, v25"); A("v_swap_b32 v22, v28"); A("v_swap_b32 v23, v29")
    pay=[16,24,20,28]
    A("v_lshlrev_b32 v50, 4, v7")
    A("s_waitcnt lgkmcnt(0)")
    A("s_barrier")
    ST.mark("hist")
    A("ds_read_b128 v[52:55], v50")
    A("s_waitcnt lgkmcnt(0)")
    A("v_add_u32 v56, v52, v53"); A("v_add_u32 v57, v56, v54"); A("v_add_u32 v58, v57, v55"); A("v_mov_b32 v59, v58")
    dpp_scan(A,59)
    A("v_sub_u32 v60, v59, v58"); A("v_add_u32 v61, v60, v52"); A("v_add_u32 v62, v60, v56"); A("v_add_u32 v63, v60, v57")
    A("ds_write_b128 v50, v[60:63] offset:1024")
    A("s_cmp_lg_u32 s25, 0")
    A("s_cbranch_scc1 F_CS")
    for i in range(4): A(f"v_lshl_or_b32 v{64+i}, v{52+i}, 16, v{60+i}")
    A("global_store_dwordx4 v50, v[64:67], s[22:23] sc1")
    A.label("F_CS")
    A("s_waitcnt lgkmcnt(0)")
    for i in range(4): A(f"ds_read_b32 v{44+i}, v{36+i} offset:1024")
    KST=2048; PST=KST+CH*4
    for i in range(4):
        A(f"s_waitcnt lgkmcnt({3-i+2*i})")
        A(f"v_add_u32 v{44+i}, v{44+i}, v{40+i}")
        A(f"v_lshlrev_b32 v48, 2, v{44+i}")
        A(f"v_lshlrev_b32 v49, 4, v{44+i}")
        A(f"ds_write_b128 v49, v[{pay[i]}:{pay[i]+3}] offset:{PST}")
        A(f"ds_write_b32 v48, v{32+i} offset:{KST}")
    A("v_lshlrev_b32 v50, 4, v0")
    A("s_waitcnt lgkmcnt(0)")
    A("s_barrier")
    A(f"ds_read_b128 v[8:11], v50 offset:{KST}")
    for q in range(4): A(f"ds_read_b128 v[{12+4*q}:{15+4*q}], v50 offset:{PST+q*5120}")
    A("v_add_u32 v51, 5120, v50"); A("v_add_u32 v52, 10240, v50"); A("v_add_u32 v53, 15360, v50")
    A("s_waitcnt lgkmcnt(4)")
    A("global_store_dwordx4 v50, v[8:11], s[18:19] sc1")
    for q in range(4):
        A(f"s_waitcnt lgkmcnt({3-q})")
        A(f"global_store_dwordx4 v{50+q}, v[{12+4*q}:{15+4*q}], s[20:21] sc1")
    ST.mark("iss1")
    A("s_branch F_JOIN")
    A.label("F_OTHER")
    A("s_waitcnt lgkmcnt(0)")
    A(f"s_add_u32 s18, s12, {WS_CONST}"); A("s_addc_u32 s19, s13, 0")
    A("s_mov_b32 s36, 0")
    A("s_cmp_ge_u32 s25, 9"); A("s_cbranch_scc1 F_R0")
    A("s_cmp_lt_u32 s2, 8"); A("s_cbranch_scc1 F_RW")
    A("s_cmp_lg_u32 s25, 5"); A("s_cbranch_scc1 F_R0")
    A("s_cmp_eq_u32 s2, 8"); A("s_cbranch_scc1 F_RF")
    A("s_cmp_eq_u32 s2, 9"); A("s_cbranch_scc1 F_RC")
    A("s_branch F_R0")
    A.label("F_RW")
    A("s_mov_b32 s36, 1")
    A("s_sub_u32 s14, s25, 5")
    A("s_and_b32 s15, s2, 1"); A("s_lshr_b32 s16, s2, 1"); A("s_lshl_b32 s16, s16, 5"); A("s_add_u32 s16, s16, s15")
    A("v_and_b32 v1, 15, v7"); A("v_lshlrev_b32 v1, 1, v1"); A("v_add_u32 v1, s16, v1")
    A("v_lshrrev_b32 v2, 4, v7"); A("v_lshlrev_b32 v2, 3, v2")
    A("s_lshl_b32 s17, s14, 5"); A("v_add_u32 v2, s17, v2")
    A("v_lshlrev_b32 v2, 7, v2"); A("v_add_u32 v2, v2, v1"); A("v_lshlrev_b32 v2, 1, v2")
    for r in range(8): A(f"global_load_ushort v{8+r}, v2, s[30:31] offset:{r*256}")
    A("s_branch F_R0")
    A.label("F_RF")
    A("s_mov_b32 s36, 2")
    A("v_lshlrev_b32 v1, 2, v7")
    for k in range(4): A(f"global_load_dword v{8+k}, v1, s[26:27] offset:{k*256}")
    A("s_branch F_R0")
    A.label("F_RC")
    A("s_mov_b32 s36, 3")
    A("v_and_b32 v1, 3, v7"); A("v_lshlrev_b32 v1, 5, v1")
    for f in range(4): A(f"global_load_dwordx2 v[{8+2*f}:{9+2*f}], v1, s[28:29] offset:{f*8}")
    A.label("F_R0")
    A("s_barrier")
    A("s_barrier")
    A("s_cmp_eq_u32 s36, 0"); A("s_cbranch_scc1 F_RD")
    A("s_waitcnt vmcnt(0)")
    A("s_cmp_eq_u32 s36, 2"); A("s_cbranch_scc1 F_RF2")
    A("s_cmp_eq_u32 s36, 3"); A("s_cbranch_scc1 F_RC2")
    A("s_lshl_b32 s17, s2, 12"); A("s_lshl_b32 s15, s14, 10"); A("s_add_u32 s17, s17, s15"); A(f"s_add_u32 s17, s17, {CONST_WM}")
    A("v_lshlrev_b32 v3, 4, v7"); A("v_add_u32 v3, s17, v3")
    for r in range(4): A(f"v_lshl_or_b32 v{16+r}, v{9+2*r}, 16, v{8+2*r}")
    A("global_store_dwordx4 v3, v[16:19], s[18:19] sc1")
    A("s_branch F_RD")
    A.label("F_RF2")
    A(f"s_mov_b32 s15, 0x{f2u(-LOG2E):08x}"); A("s_mov_b32 s16, 0xffff0000")
    for k in range(4):
        A(f"v_lshlrev_b32 v{12+k}, 16, v{8+k}"); A(f"v_and_b32 v{16+k}, s16, v{8+k}")
    for k in range(8): A(f"v_mul_f32 v{12+k}, s15, v{12+k}")
    A("v_cvt_pk_bf16_f32 v20, v12, v13"); A("v_cvt_pk_bf16_f32 v21, v14, v15")
    A("v_cvt_pk_bf16_f32 v22, v16, v17"); A("v_cvt_pk_bf16_f32 v23, v18, v19")
    for q in range(4):
        A(f"v_lshlrev_b32 v28, 16, v{20+q}"); A(f"v_and_b32 v29, s16, v{20+q}")
        A(f"v_sub_f32 v28, v{12+2*q}, v28"); A(f"v_sub_f32 v29, v{13+2*q}, v29")
        A(f"v_cvt_pk_bf16_f32 v{24+q}, v28, v29")
    A("v_lshlrev_b32 v3, 5, v7")
    A(f"global_store_dwordx4 v3, v[20:23], s[18:19] offset:{CONST_WF} sc1")
    A(f"global_store_dwordx4 v3, v[24:27], s[18:19] offset:{CONST_WF+16} sc1")
    A("s_branch F_RD")
    A.label("F_RC2")
    A("s_mov_b32 s15, 0x05040100"); A("s_mov_b32 s16, 0x07060302")
    for o in range(4):
        sel="s15" if o%2==0 else "s16"; h=o//2
        A(f"v_perm_b32 v{16+2*o}, v{10+h}, v{8+h}, {sel}")
        A(f"v_perm_b32 v{17+2*o}, v{14+h}, v{12+h}, {sel}")
    A("v_lshlrev_b32 v3, 5, v7"); A(f"v_add_u32 v3, {CONST_CG}, v3")
    A("global_store_dwordx4 v3, v[16:19], s[18:19] sc1")
    A("global_store_dwordx4 v3, v[20:23], s[18:19] offset:16 sc1")
    A.label("F_RD")
    A("s_barrier")
    if P.fpf:
        A("s_cmp_lt_u32 s25, 9"); A("s_cbranch_scc1 F_JOIN")
        A("s_cmp_ge_u32 s25, 14"); A("s_cbranch_scc1 F_JOIN")
        A(f"s_mul_i32 s14, s2, {320*128}"); A("s_sub_u32 s15, s25, 9"); A("s_lshl_b32 s15, s15, 13"); A("s_add_u32 s14, s14, s15")
        A("v_lshlrev_b32 v126, 7, v7"); A("v_add_u32 v126, s14, v126")
        A("global_load_dword v127, v126, s[32:33]")
        A("s_branch F_JOIN2")
    A.label("F_JOIN")
    A("s_waitcnt vmcnt(0)")
    A.label("F_JOIN2")
    A("s_barrier")
    ST.mark("barD")
    A("s_cmp_lg_u32 s25, 0"); A("s_cbranch_scc1 F_WAIT")
    A("s_and_b32 s14, s2, 3"); A("s_lshl_b32 s14, s14, 6")
    A("v_mov_b32 v1, s14"); A("v_mov_b32 v2, 1")
    A("v_cmp_eq_u32 vcc, 0, v7"); A("s_and_saveexec_b64 s[16:17], vcc")
    A("global_atomic_add v1, v2, s[72:73]")
    A("s_mov_b64 exec, s[16:17]")
    A.label("F_WAIT")

NW=16; CAPW=160
LDS_IDX=0x0000
LDS_K=LDS_IDX+NW*CAPW*4
LDS_HIST=LDS_K+NW*CAPW
LDS_BASE=LDS_HIST+2048
LDS_FLAG=LDS_BASE+4096
LDS_MARK=LDS_FLAG+64
LDS_EF=LDS_MARK+8192+64
LDS_A=LDS_EF+NW*CAPW*8
LDS_CELL=LDS_A+NW*CAPW*32+1024
K2_LDS=LDS_CELL+1024
WINBIG=2048; WINSMALL=200; TOTMAX=CAPW-8
AGG_STRIDE=272
assert LDS_A%16==0 and LDS_EF%16==0 and LDS_MARK%4==0 and K2_LDS<=163840

def gen_k2(A,P):
    U=4; B=P.B
    SC=" sc1" if P.fused else ""
    nbins=8*B
    assert nbins*4<=2048 and nbins*8<=4096
    vTID=0; vLANE=1; vT0=2
    vAad=3; vEad=4; vIad=5; vKad=6; vK=7
    ACC=8
    WF=48
    PAIR=56
    X=64
    TP=80
    AOP=88; AOPN=90; EOP=92; EOPN=94
    UU=[96,104]; EE=112; RR=120
    NV=128
    REC0=64; CNT=68; BASEC=72; AT=64
    CG=80; KEY=88; RANK=90; PAY=92; AP=100; MK=116; BINA=118
    T=[2,3,4,5,6,7,120,121,122,123,124,125,126,127]
    WM=96
    sX=4; sOUT=6; sWS=8; sSRD=12; sW=16; sB=17; sT=18; sLO=19; sWIN=20; sNR=21; sKK=22; sH=23; sEX=24; sM=26; sG8=28; sWB=29
    sK=[32,33]; sN=34; sTOT=35; sTMP=36; sC=40; sLN2=44; sRG=46; sCGP=47; sKEY=48; sPAY=52; sCELL=56; sCONST=58; sRAW=60; sPFO=65; sPFT=66; sNB=67; sGB=68; sGM=69; sQ=70; sCHI=40
    name="standalone__tensor_product_equiv_tfn__graph_kernel"
    A(".p2align 8")
    A(f".type {name},@function")
    A.label(name)
    A(f"s_cmp_ge_u32 s2, {NB}")
    A("s_cbranch_scc1 K2_END")
    ST=Stamps(A,P.stamps,"K2")
    ST.mark("start")
    def tl(off,inv=False):
        if not P.tl: return
        A("s_memrealtime s[74:75]"); A("s_waitcnt lgkmcnt(0)")
        if inv: A("s_not_b32 s74, s74")
        A("v_mov_b32 v2, s74"); A("v_mov_b32 v3, 0"); A(f"global_atomic_umax v3, v2, s[72:73] offset:{off}")
    if P.tl:
        A("s_load_dwordx2 s[72:73], s[0:1], 72"); A("s_waitcnt lgkmcnt(0)")
        if not P.fused: A("s_sub_u32 s72, s72, 512"); A("s_subb_u32 s73, s73, 0")
        tl(8,True)
    if P.fused: gen_phase1(A,P,ST)
    A(f"s_load_dwordx2 s[{sX}:{sX+1}], s[0:1], 0")
    A(f"s_load_dwordx2 s[{sOUT}:{sOUT+1}], s[0:1], 64")
    A(f"s_load_dwordx2 s[{sWS}:{sWS+1}], s[0:1], 80")
    A(f"v_and_b32 v{vLANE}, 63, v0")
    A(f"v_lshrrev_b32 v{T[0]}, 6, v0")
    A(f"v_lshlrev_b32 v{PAIR+1}, 4, v{vLANE}")
    A(f"v_readfirstlane_b32 s{sW}, v{T[0]}")
    for p in (3,5,7): A(f"v_mov_b32 v{PAIR+p}, v{PAIR+1}")
    if P.xmap:
        A(f"s_and_b32 s{sTMP}, s2, 7"); A(f"s_mul_i32 s{sB}, s{sTMP}, 31"); A(f"s_min_u32 s{sTMP}, s{sTMP}, 2")
        A(f"s_add_u32 s{sB}, s{sB}, s{sTMP}"); A(f"s_lshr_b32 s{sTMP}, s2, 3"); A(f"s_add_u32 s{sB}, s{sB}, s{sTMP}")
    else:
        A(f"s_mov_b32 s{sB}, s2")
    A(f"s_lshr_b32 s{sG8}, s{sW}, 1"); A(f"s_and_b32 s{sH}, s{sW}, 1"); A(f"s_mul_i32 s{sWB}, s{sW}, {CAPW}")
    for i in range(40): A(f"v_mov_b32 v{ACC+i}, 0")
    A("s_waitcnt lgkmcnt(0)")
    A(f"s_lshl_b32 s{sTMP}, s{sB}, {2 if P.fused else 10}")
    A(f"s_add_u32 s{sCELL}, s{sWS}, {WS_CELL}"); A(f"s_addc_u32 s{sCELL+1}, s{sWS+1}, 0")
    A(f"s_add_u32 s{sCELL}, s{sCELL}, s{sTMP}"); A(f"s_addc_u32 s{sCELL+1}, s{sCELL+1}, 0")
    A(f"s_add_u32 s{sCONST}, s{sWS}, {WS_CONST}"); A(f"s_addc_u32 s{sCONST+1}, s{sWS+1}, 0")
    A(f"s_mov_b32 s{sLO}, 0")
    A(f"s_mov_b32 s{sWIN}, {WINBIG}")
    for i in range(3): A(f"s_mov_b32 s{sCHI+i}, {(i+1)*CH}")
    if not P.fused:
        A(f"v_lshlrev_b32 v{T[1]}, 5, v{vLANE}")
        if P.fused:
            A(f"v_mov_b32 v{T[2]}, 0")
            A(f"s_cmp_ge_u32 s{sW}, 4"); A("s_cbranch_scc1 K2_NOCL")
            A(f"v_lshlrev_b32 v{T[3]}, 10, v0")
            A(f"v_cmp_gt_u32 vcc, {NC}, v0"); A(f"s_and_saveexec_b64 s[{sEX}:{sEX+1}], vcc")
            A(f"global_load_dword v{T[2]}, v{T[3]}, s[{sCELL}:{sCELL+1}] sc1")
            A("s_mov_b64 exec, -1")
            A.label("K2_NOCL")
        else:
            A(f"global_load_dwordx4 v[{CNT}:{CNT+3}], v{PAIR+1}, s[{sCELL}:{sCELL+1}]"+SC)
        A(f"global_load_dwordx4 v[{WF}:{WF+3}], v{T[1]}, s[{sCONST}:{sCONST+1}] offset:{CONST_WF}"+SC)
        A(f"global_load_dwordx4 v[{WF+4}:{WF+7}], v{T[1]}, s[{sCONST}:{sCONST+1}] offset:{CONST_WF+16}"+SC)
        A(f"global_load_dwordx4 v[{CG}:{CG+3}], v{T[1]}, s[{sCONST}:{sCONST+1}] offset:{CONST_CG}"+SC)
        A(f"global_load_dwordx4 v[{CG+4}:{CG+7}], v{T[1]}, s[{sCONST}:{sCONST+1}] offset:{CONST_CG+16}"+SC)
    if P.codepf&2:
        A(f"s_cmp_eq_u32 s{sW}, 15"); A("s_cbranch_scc0 K2_CPX")
        A(f"s_getpc_b64 s[{sTMP}:{sTMP+1}]")
        A.label("K2_PC")
        A(f"s_sub_u32 s{sTMP}, s{sTMP}, K2_PC-standalone__tensor_product_equiv_tfn__graph_kernel"); A(f"s_subb_u32 s{sTMP+1}, s{sTMP+1}, 0")
        A(f"v_lshlrev_b32 v{T[8]}, 7, v{vLANE}")
        for q in range(2):
            A(f"v_add_u32 v{T[9]}, {q*8192}, v{T[8]}")
            A(f"v_cmp_gt_u32 vcc, K2_CODE_END-standalone__tensor_product_equiv_tfn__graph_kernel, v{T[9]}")
            A(f"s_and_saveexec_b64 s[{sEX}:{sEX+1}], vcc")
            A(f"s_cbranch_execz K2_CPS{q}")
            A(f"global_load_dword v{127-q}, v{T[9]}, s[{sTMP}:{sTMP+1}]")
            A.label(f"K2_CPS{q}")
            A("s_mov_b64 exec, -1")
        A.label("K2_CPX")
    A(f"s_mov_b32 s{sSRD}, s{sX}")
    A(f"s_and_b32 s{sSRD+1}, s{sX+1}, 0xffff")
    A(f"s_or_b32 s{sSRD+1}, s{sSRD+1}, {1024<<16}")
    A(f"s_mov_b32 s{sSRD+2}, {N}")
    A(f"s_mov_b32 s{sSRD+3}, 0x00020000")
    A(f"s_add_u32 s{sKEY}, s{sWS}, {WS_KEYS}"); A(f"s_addc_u32 s{sKEY+1}, s{sWS+1}, 0")
    A(f"s_and_b32 s{sKEY+1}, s{sKEY+1}, 0xffff"); A(f"s_mov_b32 s{sKEY+2}, {E*4}"); A(f"s_mov_b32 s{sKEY+3}, 0x00020000")
    A(f"s_add_u32 s{sPAY}, s{sWS}, {WS_PAY}"); A(f"s_addc_u32 s{sPAY+1}, s{sWS+1}, 0")
    A(f"s_and_b32 s{sPAY+1}, s{sPAY+1}, 0xffff"); A(f"s_mov_b32 s{sPAY+2}, {E*16}"); A(f"s_mov_b32 s{sPAY+3}, 0x00020000")
    A(f"s_mov_b32 s{sLN2}, 0x{f2u(-LN2):08x}"); A(f"s_mov_b32 s{sLN2+1}, 0x{f2u(-LN2):08x}")
    def burst(vaddr,vdst=2):
        for q in range(4):
            A(f"buffer_load_dword v{vdst}, v{vaddr}, s[{sRAW}:{sRAW+3}], s{sPFO} offen")
            if q<3: A(f"s_add_u32 s{sPFO}, s{sPFO}, 8192")
    def pf_row0(rnd_sreg,dst):
        A(f"s_lshr_b32 s{sTMP+2}, s2, 3")
        A(f"s_and_b32 s{sTMP+3}, s{sTMP+2}, 1"); A(f"s_lshl_b32 s{sTMP+3}, s{sTMP+3}, 9")
        A(f"s_lshr_b32 s{sTMP+2}, s{sTMP+2}, 1"); A(f"s_lshl_b32 s{sTMP+2}, s{sTMP+2}, 5")
        A(f"s_add_u32 s{sTMP+2}, s{sTMP+2}, s{sTMP+3}")
        A(f"s_lshl_b32 s{dst}, s{rnd_sreg}, 10"); A(f"s_add_u32 s{dst}, s{dst}, s{sTMP+2}"); A(f"s_lshl_b32 s{dst}, s{dst}, 10")
    if P.pf:
        A(f"s_mov_b32 s{sRAW}, s{sX}"); A(f"s_and_b32 s{sRAW+1}, s{sX+1}, 0xffff"); A(f"s_mov_b32 s{sRAW+2}, {N*1024}"); A(f"s_mov_b32 s{sRAW+3}, 0x00020000")
    def propf(part=0):
        if P.pf==3:
            r0=(P.k1rows if P.k1pf else 0) if part==0 else P.pfsplit
            r1=P.pfsplit if (part==0 and P.pfsplit) else N
            per=((r1-r0)*8+249)//250; nw=(per+63)//64
            lab=f"K2_NOPF{part}"
            A(f"s_cmp_ge_u32 s{sW}, {nw}")
            A(f"s_cbranch_scc1 {lab}")
            A(f"s_mul_i32 s{sPFO}, s2, {per*128}"); A(f"s_lshl_b32 s{sTMP+2}, s{sW}, 13"); A(f"s_add_u32 s{sPFO}, s{sPFO}, s{sTMP+2}")
            if r0: A(f"s_add_u32 s{sPFO}, s{sPFO}, {r0*1024}")
            A(f"v_lshlrev_b32 v126, 7, v{vLANE}")
            A(f"buffer_load_dword v127, v126, s[{sRAW}:{sRAW+3}], s{sPFO} offen")
            A.label(lab)
            return
        A(f"s_cmp_ge_u32 s{sW}, {P.npro}")
        A("s_cbranch_scc1 K2_NOPF0")
        pf_row0(sW,sPFO)
        A(f"v_lshlrev_b32 v126, 7, v{vLANE}")
        burst(126,127)
        A.label("K2_NOPF0")
    if P.fused:
        A(f"s_cmp_lg_u32 s{sW}, 0"); A("s_cbranch_scc1 F_REL")
        A(f"v_lshlrev_b32 v{T[1]}, 6, v{vLANE}")
        A(f"s_mov_b32 s{sTMP}, 0")
        A.label("F_POLL")
        A(f"v_mov_b32 v{T[2]}, 0")
        A(f"v_cmp_gt_u32 vcc, 4, v{vLANE}"); A(f"s_and_saveexec_b64 s[{sEX}:{sEX+1}], vcc")
        A(f"global_load_dword v{T[2]}, v{T[1]}, s[72:73] sc1")
        A("s_mov_b64 exec, -1")
        A("s_waitcnt vmcnt(0)")
        A("s_nop 1"); A(f"v_add_u32_dpp v{T[2]}, v{T[2]}, v{T[2]} row_shr:1 row_mask:0xf bank_mask:0xf bound_ctrl:1")
        A("s_nop 1"); A(f"v_add_u32_dpp v{T[2]}, v{T[2]}, v{T[2]} row_shr:2 row_mask:0xf bank_mask:0xf bound_ctrl:1")
        A("s_nop 1"); A(f"v_readlane_b32 s{sTMP+1}, v{T[2]}, 3")
        A(f"s_add_u32 s{sTMP}, s{sTMP}, 1")
        A(f"s_cmp_ge_u32 s{sTMP}, 0x100000"); A("s_cbranch_scc1 F_REL")
        if P.sleep<0:
            A(f"s_cmp_ge_u32 s{sTMP+1}, {NB}"); A("s_cbranch_scc1 F_REL")
            A(f"s_cmp_ge_u32 s{sTMP+1}, {P.nfast}"); A("s_cbranch_scc1 F_FAST")
            A(f"s_sleep {-P.sleep}")
            A("s_branch F_POLL")
            A.label("F_FAST")
            A(f"s_sleep {P.sfast}")
            A("s_branch F_POLL")
        elif P.sleep:
            A(f"s_cmp_ge_u32 s{sTMP+1}, {NB}"); A("s_cbranch_scc1 F_REL")
            A(f"s_sleep {P.sleep}")
            A("s_branch F_POLL")
        else:
            A(f"s_cmp_lt_u32 s{sTMP+1}, {NB}"); A("s_cbranch_scc1 F_POLL")
        A.label("F_REL")
        A("s_barrier")
        ST.mark("rel")
    A(f"v_lshlrev_b32 v{T[1]}, 5, v{vLANE}")
    if P.fused:
        A(f"v_mov_b32 v{T[2]}, 0")
        A(f"s_cmp_ge_u32 s{sW}, 4"); A("s_cbranch_scc1 K2_NOCL")
        A(f"v_lshlrev_b32 v{T[3]}, 10, v0")
        A(f"v_cmp_gt_u32 vcc, {NC}, v0"); A(f"s_and_saveexec_b64 s[{sEX}:{sEX+1}], vcc")
        A(f"global_load_dword v{T[2]}, v{T[3]}, s[{sCELL}:{sCELL+1}] sc1")
        A("s_mov_b64 exec, -1")
        A.label("K2_NOCL")
    else:
        A(f"global_load_dwordx4 v[{CNT}:{CNT+3}], v{PAIR+1}, s[{sCELL}:{sCELL+1}]"+SC)
    A(f"global_load_dwordx4 v[{WF}:{WF+3}], v{T[1]}, s[{sCONST}:{sCONST+1}] offset:{CONST_WF}"+SC)
    A(f"global_load_dwordx4 v[{WF+4}:{WF+7}], v{T[1]}, s[{sCONST}:{sCONST+1}] offset:{CONST_WF+16}"+SC)
    A(f"global_load_dwordx4 v[{CG}:{CG+3}], v{T[1]}, s[{sCONST}:{sCONST+1}] offset:{CONST_CG}"+SC)
    A(f"global_load_dwordx4 v[{CG+4}:{CG+7}], v{T[1]}, s[{sCONST}:{sCONST+1}] offset:{CONST_CG+16}"+SC)
    if P.fused:
        A(f"s_cmp_ge_u32 s{sW}, 4"); A("s_cbranch_scc1 K2_NOCW")
        A("s_waitcnt vmcnt(4)")
        A(f"v_lshlrev_b32 v{T[3]}, 2, v0"); A(f"v_add_u32 v{T[3]}, {LDS_CELL}, v{T[3]}")
        A(f"ds_write_b32 v{T[3]}, v{T[2]}")
        A("s_waitcnt lgkmcnt(0)")
        A.label("K2_NOCW")
        A("s_barrier")
        A(f"v_add_u32 v{T[3]}, {LDS_CELL}, v{PAIR+1}")
        A(f"ds_read_b128 v[{CNT}:{CNT+3}], v{T[3]}")
    A("s_branch K2_ROUND1")
    A.label("K2_ROUND")
    A(f"v_lshlrev_b32 v{T[1]}, 5, v{vLANE}")
    if P.fused:
        A(f"v_add_u32 v{T[3]}, {LDS_CELL}, v{PAIR+1}")
        A(f"ds_read_b128 v[{CNT}:{CNT+3}], v{T[3]}")
    else:
        A(f"global_load_dwordx4 v[{CNT}:{CNT+3}], v{PAIR+1}, s[{sCELL}:{sCELL+1}]"+SC)
    A(f"global_load_dwordx4 v[{CG}:{CG+3}], v{T[1]}, s[{sCONST}:{sCONST+1}] offset:{CONST_CG}"+SC)
    A(f"global_load_dwordx4 v[{CG+4}:{CG+7}], v{T[1]}, s[{sCONST}:{sCONST+1}] offset:{CONST_CG+16}"+SC)
    A("s_waitcnt vmcnt(0)")
    A.label("K2_ROUND1")
    A(f"v_lshlrev_b32 v{T[0]}, 2, v0")
    A(f"v_mov_b32 v{T[1]}, 0")
    A(f"v_cmp_gt_u32 vcc, {nbins}, v0")
    A(f"s_and_saveexec_b64 s[{sEX}:{sEX+1}], vcc")
    A("s_cbranch_execz K2_NOZ")
    A(f"ds_write_b32 v{T[0]}, v{T[1]} offset:{LDS_HIST}")
    A.label("K2_NOZ")
    A(f"s_mov_b64 exec, -1")
    A("s_waitcnt lgkmcnt(0)" if P.fused else "s_waitcnt vmcnt(4)")
    ST.mark("cell")
    if P.pf and P.pfat=="cell": propf()
    A(f"v_mul_u32_u24 v{T[0]}, {4*CH}, v{vLANE}")
    for i in range(4):
        A(f"v_and_b32 v{REC0+i}, 0xffff, v{CNT+i}")
        A(f"v_lshrrev_b32 v{CNT+i}, 16, v{CNT+i}")
        if i: A(f"v_add3_u32 v{REC0+i}, v{REC0+i}, v{T[0]}, s{sCHI+i-1}")
        else: A(f"v_add_u32 v{REC0+i}, v{REC0+i}, v{T[0]}")
    A(f"v_add_u32 v{T[1]}, v{CNT}, v{CNT+1}")
    A(f"v_add_u32 v{T[2]}, v{T[1]}, v{CNT+2}")
    A(f"v_add_u32 v{T[3]}, v{T[2]}, v{CNT+3}")
    A(f"v_max3_u32 v{T[5]}, v{CNT}, v{CNT+1}, v{CNT+2}")
    A(f"v_mov_b32 v{T[4]}, v{T[3]}")
    A(f"v_max_u32 v{T[5]}, v{T[5]}, v{CNT+3}")
    dpp_scan(A,T[4])
    A(f"v_sub_u32 v{BASEC}, v{T[4]}, v{T[3]}")
    A(f"v_add_u32 v{BASEC+1}, v{BASEC}, v{CNT}")
    A(f"v_add_u32 v{BASEC+2}, v{BASEC}, v{T[1]}")
    A(f"v_add_u32 v{BASEC+3}, v{BASEC}, v{T[2]}")
    A(f"v_readlane_b32 s{sT}, v{T[4]}, 63")
    A(f"v_mov_b32 v{T[6]}, 8192")
    A(f"s_mov_b32 s{sKK}, s{sW}")
    A(f"s_cmp_eq_u32 s{sT}, 0")
    A("s_cbranch_scc1 K2_EPI")
    A.label("K2_EX")
    A(f"v_cmp_lt_u32 vcc, s{sKK}, v{T[5]}")
    A(f"s_cbranch_vccz K2_EXD")
    A(f"s_sub_u32 s{sTMP}, s{sKK}, s{sLO}")
    for i in range(4):
        A(f"v_add_u32 v{T[0]}, s{sTMP}, v{BASEC+i}")
        A(f"v_cmp_lt_u32 vcc, s{sKK}, v{CNT+i}")
        A(f"v_cmp_gt_u32 s[{sM}:{sM+1}], s{sWIN}, v{T[0]}")
        A(f"v_lshlrev_b32 v{T[0]}, 2, v{T[0]}")
        A(f"v_add_u32 v{T[1]}, s{sKK}, v{REC0+i}")
        A(f"s_and_b64 vcc, vcc, s[{sM}:{sM+1}]")
        A(f"v_cndmask_b32 v{T[0]}, v{T[6]}, v{T[0]}, vcc")
        A(f"ds_write_b32 v{T[0]}, v{T[1]} offset:{LDS_MARK}")
    A(f"s_add_u32 s{sKK}, s{sKK}, {NW}")
    A("s_branch K2_EX")
    A.label("K2_EXD")
    A("s_waitcnt lgkmcnt(0)")
    A("s_barrier")
    ST.mark("bar1")
    A(f"v_lshlrev_b32 v{T[0]}, 2, v0")
    for s in range(2): A(f"ds_read_b32 v{MK+s}, v{T[0]} offset:{LDS_MARK+s*4096}")
    A(f"v_mov_b32 v{T[2]}, 0"); A(f"v_mov_b32 v{T[3]}, 0"); A(f"v_mov_b32 v{T[1]}, {LDS_FLAG}")
    A(f"ds_write_b64 v{T[1]}, v[{T[2]}:{T[3]}]")
    A(f"s_sub_u32 s{sNR}, s{sT}, s{sLO}")
    A(f"s_min_u32 s{sNR}, s{sNR}, s{sWIN}")
    A(f"s_lshl_b32 s{sTMP}, s{sW}, 6")
    A("s_waitcnt lgkmcnt(1)")
    for s in range(2):
        A(f"s_add_u32 s{sTMP+1}, s{sTMP}, {s*1024}")
        A(f"s_cmp_ge_u32 s{sTMP+1}, s{sNR}")
        A(f"s_cbranch_scc1 K2_LD_DONE")
        A(f"v_add_u32 v{T[1]}, {s*1024}, v0")
        A(f"v_cmp_gt_u32 vcc, s{sNR}, v{T[1]}")
        A(f"v_lshlrev_b32 v{T[2]}, 2, v{MK+s}")
        A(f"v_lshlrev_b32 v{T[3]}, 4, v{MK+s}")
        A(f"s_and_saveexec_b64 s[{sEX}:{sEX+1}], vcc")
        A(f"buffer_load_dword v{KEY+s}, v{T[2]}, s[{sKEY}:{sKEY+3}], 0 offen"+SC)
        A(f"buffer_load_dwordx4 v[{PAY+4*s}:{PAY+4*s+3}], v{T[3]}, s[{sPAY}:{sPAY+3}], 0 offen"+SC)
        A(f"s_mov_b64 exec, -1")
    A.label("K2_LD_DONE")
    A(f"v_mov_b32 v{T[4]}, 1")
    A("s_waitcnt vmcnt(0)")
    ST.mark("recs")
    if P.pf and P.pfat=="recs": propf()
    for s in range(2):
        A(f"s_add_u32 s{sTMP+1}, s{sTMP}, {s*1024}")
        A(f"s_cmp_ge_u32 s{sTMP+1}, s{sNR}")
        A(f"s_cbranch_scc1 K2_H_DONE")
        A(f"v_add_u32 v{T[1]}, {s*1024}, v0")
        A(f"v_lshrrev_b32 v{BINA+s}, 17, v{KEY+s}")
        A(f"v_cmp_gt_u32 vcc, s{sNR}, v{T[1]}")
        A(f"v_lshlrev_b32 v{T[2]}, 2, v{BINA+s}")
        A(f"s_and_saveexec_b64 s[{sEX}:{sEX+1}], vcc")
        A(f"ds_add_rtn_u32 v{RANK+s}, v{T[2]}, v{T[4]} offset:{LDS_HIST}")
        A(f"s_mov_b64 exec, -1")
        for o in range(4):
            A(f"v_mfma_f32_4x4x4_16b_bf16 v[{AT+4*o}:{AT+4*o+3}], v[{CG+2*o}:{CG+2*o+1}], v[{PAY+4*s}:{PAY+4*s+1}], 0")
        A("s_nop 4")
        for o in range(4):
            A(f"v_cvt_pk_bf16_f32 v{AP+8*s+2*o}, v{AT+4*o}, v{AT+4*o+1}")
            A(f"v_cvt_pk_bf16_f32 v{AP+8*s+2*o+1}, v{AT+4*o+2}, v{AT+4*o+3}")
    A.label("K2_H_DONE")
    A("s_waitcnt lgkmcnt(0)")
    A("s_barrier")
    ST.mark("bar2")
    if P.pf and P.pfat=="bar2": propf()
    A(f"s_lshl_b32 s{sTMP+1}, s{sG8}, {(B*4).bit_length()-1}")
    A(f"v_lshlrev_b32 v{T[0]}, 2, v{vLANE}")
    A(f"v_add_u32 v{T[0]}, s{sTMP+1}, v{T[0]}")
    if B<64:
        A(f"v_mov_b32 v{T[1]}, 0")
        A(f"v_cmp_gt_u32 vcc, {B}, v{vLANE}")
        A(f"s_and_saveexec_b64 s[{sEX}:{sEX+1}], vcc")
    A(f"ds_read_b32 v{T[1]}, v{T[0]} offset:{LDS_HIST}")
    A(f"s_mov_b64 exec, -1")
    A(f"v_add_u32 v{T[2]}, s{sH}, v{vLANE}"); A(f"v_and_b32 v{T[2]}, 1, v{T[2]}")
    A(f"v_lshlrev_b32 v{T[0]}, 1, v{T[0]}"); A(f"s_lshl_b32 s{sTMP+2}, s{sH}, 2"); A(f"v_add_u32 v{T[0]}, s{sTMP+2}, v{T[0]}")
    A("s_waitcnt lgkmcnt(0)")
    A(f"v_sub_u32 v{T[1]}, v{T[1]}, v{T[2]}"); A(f"v_add_u32 v{T[1]}, 1, v{T[1]}"); A(f"v_lshrrev_b32 v{T[1]}, 1, v{T[1]}")
    A(f"v_mov_b32 v{T[2]}, v{T[1]}")
    dpp_scan(A,T[2],nrows={16:1,32:2,64:4}[B])
    A(f"s_nop 0")
    A(f"v_readlane_b32 s{sTOT}, v{T[2]}, {B-1}")
    A(f"v_sub_u32 v{T[2]}, v{T[2]}, v{T[1]}")
    A(f"v_add_u32 v{T[2]}, s{sWB}, v{T[2]}")
    if B<64:
        A(f"v_cmp_gt_u32 vcc, {B}, v{vLANE}")
        A(f"s_and_saveexec_b64 s[{sEX}:{sEX+1}], vcc")
    A(f"ds_write_b32 v{T[0]}, v{T[2]} offset:{LDS_BASE}")
    A(f"s_mov_b64 exec, -1")
    if P.bar:
        A(f"v_mov_b32 v{T[0]}, s{sTOT}"); A(f"v_mov_b32 v{T[1]}, {LDS_FLAG}")
        A(f"ds_max_u32 v{T[1]}, v{T[0]} offset:4")
    A(f"s_cmp_gt_u32 s{sTOT}, {TOTMAX}")
    A("s_cbranch_scc0 K2_NOOVF")
    A(f"v_mov_b32 v{T[0]}, 1"); A(f"v_mov_b32 v{T[1]}, {LDS_FLAG}")
    A(f"ds_write_b32 v{T[1]}, v{T[0]}")
    A("s_branch K2_PADDONE")
    A.label("K2_NOOVF")
    A.label("K2_PADDONE")
    A("s_waitcnt lgkmcnt(0)")
    A("s_barrier")
    ST.mark("bar3")
    if P.pf and P.pfat=="bar3": propf()
    if P.pf==3 and P.pfsplit and P.pfat2=="bar3": propf(1)
    A(f"v_mov_b32 v{T[1]}, {LDS_FLAG}")
    A(f"ds_read_b32 v{T[0]}, v{T[1]}")
    if P.bar: A(f"ds_read_b32 v{T[5]}, v{T[1]} offset:4")
    for s in range(2):
        A(f"v_add_u32 v{T[2]}, v{RANK+s}, v{BINA+s}"); A(f"v_and_b32 v{T[2]}, 1, v{T[2]}")
        A(f"v_lshl_add_u32 v{T[2]}, v{BINA+s}, 1, v{T[2]}"); A(f"v_lshlrev_b32 v{T[2]}, 2, v{T[2]}")
        A(f"ds_read_b32 v{MK+s}, v{T[2]} offset:{LDS_BASE}")
    A("s_waitcnt lgkmcnt(0)")
    A(f"v_readfirstlane_b32 s{sTMP+1}, v{T[0]}")
    if P.bar:
        A(f"v_readfirstlane_b32 s{sGM}, v{T[5]}")
        A(f"s_add_u32 s{sGM}, s{sGM}, 15"); A(f"s_lshr_b32 s{sGM}, s{sGM}, 4"); A(f"s_mov_b32 s{sGB}, 0")
    A("s_nop 3")
    A(f"s_cmp_eq_u32 s{sTMP+1}, 0")
    A("s_cbranch_scc1 K2_PLACE")
    A(f"s_mov_b32 s{sWIN}, {WINSMALL}")
    A("s_branch K2_ROUND")
    A.label("K2_PLACE")
    A(f"s_add_u32 s{sTMP+2}, s{sWB}, s{sTOT}")
    A(f"v_add_u32 v{T[0]}, s{sTMP+2}, v{vLANE}")
    A(f"v_lshlrev_b32 v{T[1]}, 2, v{T[0]}")
    A(f"v_lshlrev_b32 v{T[2]}, 3, v{T[0]}")
    A(f"v_lshlrev_b32 v{T[3]}, 5, v{T[0]}"); A(f"v_add_u32 v{T[3]}, {LDS_A}, v{T[3]}")
    for q in range(4): A(f"v_mov_b32 v{T[6+q]}, 0")
    assert T[6]%2==0 and T[9]==T[6]+3
    A(f"v_cmp_gt_u32 vcc, 8, v{vLANE}")
    A(f"s_and_saveexec_b64 s[{sEX}:{sEX+1}], vcc")
    A(f"ds_write_b32 v{T[1]}, v{T[6]} offset:{LDS_IDX}")
    A(f"ds_write_b8 v{T[0]}, v{T[6]} offset:{LDS_K}")
    A(f"v_cmp_gt_u32 vcc, 4, v{vLANE}")
    A(f"s_and_b64 exec, exec, vcc")
    A(f"ds_write_b64 v{T[2]}, v[{T[6]}:{T[6]+1}] offset:{LDS_EF}")
    A(f"ds_write_b128 v{T[3]}, v[{T[6]}:{T[6]+3}]")
    A(f"ds_write_b128 v{T[3]}, v[{T[6]}:{T[6]+3}] offset:16")
    A(f"s_mov_b64 exec, -1")
    for s in range(2):
        A(f"s_add_u32 s{sTMP+1}, s{sTMP}, {s*1024}")
        A(f"s_cmp_ge_u32 s{sTMP+1}, s{sNR}")
        A(f"s_cbranch_scc1 K2_P_DONE")
        A(f"v_add_u32 v{T[1]}, {s*1024}, v0")
        A(f"v_cmp_gt_u32 vcc, s{sNR}, v{T[1]}")
        A(f"v_lshrrev_b32 v{T[0]}, 1, v{RANK+s}")
        A(f"v_add_u32 v{MK+s}, v{MK+s}, v{T[0]}")
        A(f"v_lshlrev_b32 v{T[0]}, 2, v{MK+s}")
        A(f"v_lshlrev_b32 v{T[1]}, 3, v{MK+s}")
        A(f"v_lshlrev_b32 v{T[2]}, 5, v{MK+s}")
        A(f"v_add_u32 v{T[2]}, {LDS_A}, v{T[2]}")
        A(f"v_and_b32 v{T[3]}, {hex(P.srcmask)}, v{KEY+s}")
        A(f"v_lshrrev_b32 v{T[4]}, 11, v{KEY+s}")
        A(f"v_and_b32 v{T[4]}, 0x38, v{T[4]}")
        A(f"s_and_saveexec_b64 s[{sEX}:{sEX+1}], vcc")
        A(f"ds_write_b128 v{T[2]}, v[{AP+8*s}:{AP+8*s+3}]")
        A(f"ds_write_b128 v{T[2]}, v[{AP+8*s+4}:{AP+8*s+7}] offset:16")
        A(f"ds_write_b64 v{T[1]}, v[{PAY+4*s+2}:{PAY+4*s+3}] offset:{LDS_EF}")
        A(f"ds_write_b32 v{T[0]}, v{T[3]} offset:{LDS_IDX}")
        A(f"ds_write_b8 v{MK+s}, v{T[4]} offset:{LDS_K}")
        A(f"s_mov_b64 exec, -1")
    A.label("K2_P_DONE")
    A("s_waitcnt lgkmcnt(0)")
    A("s_barrier")
    ST.mark("bar4")
    tl(12)
    if P.pf==3 and P.pfsplit and P.pfat2=="bar4": propf(1)
    ST.markc("c0")
    A(f"s_cmp_eq_u32 s{sTOT}, 0")
    A("s_cbranch_scc1 K2_MAIN_DONE")
    A(f"s_add_u32 s{sNB}, s{sTOT}, 3"); A(f"s_lshr_b32 s{sNB}, s{sNB}, 2"); A(f"s_sub_u32 s{sN}, 0, s{sNB}")
    A(f"s_lshl_b32 s{sTMP}, s{sWB}, 2"); A(f"v_mov_b32 v{vIad}, s{sTMP}")
    A(f"v_mov_b32 v{vKad}, s{sWB}")
    A(f"s_lshl_b32 s{sTMP}, s{sWB}, 5"); A(f"s_add_u32 s{sTMP}, s{sTMP}, {LDS_A}")
    A(f"v_lshlrev_b32 v{vT0}, 3, v{vLANE}")
    A(f"v_add_u32 v{vAad}, s{sTMP}, v{vT0}")
    A(f"s_lshl_b32 s{sTMP}, s{sWB}, 3"); A(f"s_add_u32 s{sTMP}, s{sTMP}, {LDS_EF}")
    A(f"v_add_u32 v{vEad}, s{sTMP}, v{vT0}")
    if P.pf and P.nrounds:
        pf_row0(sW,sPFO)
        A(f"s_lshl_b32 s{sTMP}, s{sW}, 10"); A(f"s_add_u32 s{sTMP}, s{sTMP}, s{sTMP+3}"); A(f"s_sub_i32 s{sTMP}, s{sTMP}, {P.lead}")
        A(f"s_max_i32 s{sTMP}, s{sTMP}, 0"); A(f"s_mul_i32 s{sTMP}, s{sTMP}, s{sNB}"); A(f"s_mul_i32 s{sTMP}, s{sTMP}, 6711"); A(f"s_lshr_b32 s{sTMP}, s{sTMP}, 26")
        A(f"s_sub_u32 s{sPFT}, s{sTMP}, s{sNB}")
        A(f"s_min_i32 s{sPFT}, s{sPFT}, -2")
        A(f"s_cmp_lt_u32 s{sW}, {P.npro}"); A(f"s_cselect_b32 s{sPFT}, 1, s{sPFT}")
        A(f"s_cmp_ge_u32 s{sW}, {P.nrounds}"); A(f"s_cselect_b32 s{sPFT}, 1, s{sPFT}")
        A(f"v_lshlrev_b32 v0, 7, v{vLANE}")
    def mf(d,a,b,abid,c="0"): return f"v_mfma_f32_4x4x4_16b_bf16 v[{d}:{d+3}], v[{a}:{a+1}], v[{b}:{b+1}], {c} cbsz:4 abid:{abid}"
    def xload(slot,pair): return f"buffer_load_dwordx4 v[{X+4*(slot%U)}:{X+4*(slot%U)+3}], v[{PAIR+2*pair}:{PAIR+2*pair+1}], s[{sSRD}:{sSRD+3}], 0 idxen offen"
    if P.prio==4: A("s_setprio 3")
    for p in range(4): A(f"ds_read_b32 v{PAIR+2*p}, v{vIad} offset:{LDS_IDX+4*p}")
    A(f"ds_read_b64 v[{AOP}:{AOP+1}], v{vAad}")
    A(f"ds_read_b64 v[{EOP}:{EOP+1}], v{vEad}")
    A(f"ds_read_b32 v{vK}, v{vKad} offset:{LDS_K}")
    A("s_waitcnt lgkmcnt(3)")
    for p in range(4): A(xload(p,p))
    for p in range(4): A(f"ds_read_b32 v{PAIR+2*p}, v{vIad} offset:{LDS_IDX+4*(4+p)}")
    hi_e,hi_o,lo_e,lo_o=WF,WF+2,WF+4,WF+6
    A("s_waitcnt lgkmcnt(5)")
    for t in (0,1):
        u=UU[t]
        A(mf(u,EOP,hi_e,t)); A(mf(u+4,EOP,hi_o,t))
        A("s_nop 1")
        A(mf(u,EOP,lo_e,t,f"v[{u}:{u+3}]")); A(mf(u+4,EOP,lo_o,t,f"v[{u+4}:{u+7}]"))
    A("s_nop 2")
    u=UU[0]
    for q in range(8): A(f"v_exp_f32 v{EE+q}, v{u+q}")
    A("s_nop 0")
    for q in range(4): A(f"v_pk_add_f32 v[{EE+2*q}:{EE+2*q+1}], v[{EE+2*q}:{EE+2*q+1}], 1.0 op_sel_hi:[1,0]")
    for q in range(8): A(f"v_rcp_f32 v{EE+q}, v{EE+q}")
    A("s_nop 0")
    for q in range(2): A(f"v_pk_mul_f32 v[{RR+2*q}:{RR+2*q+1}], v[{u+2*q}:{u+2*q+1}], v[{EE+2*q}:{EE+2*q+1}]")
    body=[]
    for t in range(4):
        cur=t%2; nxt=(t+1)%2
        if P.prio==1: body.append(('s',f"s_setprio {3-t}"))
        body.append(('s',"s_waitcnt lgkmcnt(0)"))
        body.append(('s',f"v_readfirstlane_b32 s{sK[0]}, v{vK}"))
        if P.pf and P.nrounds:
            body.append(('s',f"s_cmp_eq_u32 s{sN}, s{sPFT}"))
            body.append(('s',f"s_cbranch_scc1 K2_PF{t}"))
            body.append(('l',f"K2_PFR{t}"))
        body.append(('s',f"ds_read_b32 v{vK}, v{vKad} offset:{LDS_K+4*(t+1)}"))
        if t==0:
            body.append(('s',f"ds_read_b64 v[{EOPN}:{EOPN+1}], v{vEad} offset:128"))
            body.append(('s',f"ds_read_b64 v[{AOPN}:{AOPN+1}], v{vAad} offset:512"))
        for i in range(4):
            j=4*t+i
            x=X+4*(j%U)
            if P.prio==2 and i%2==0: body.append(('s',f"s_setprio {3-(j//2)%4}"))
            if P.prio==3: body.append(('s',f"s_setprio {3-i}"))
            un=UU[nxt]; uw=UU[cur]
            if i==0: TR=[f"v_exp_f32 v{EE+q}, v{un+q}" for q in range(4)]
            if i==1: TR=[f"v_exp_f32 v{EE+4+q}, v{un+4+q}" for q in range(4)]
            if i==2: TR=[f"v_rcp_f32 v{EE+q}, v{EE+q}" for q in range(4)]
            if i==3: TR=[f"v_rcp_f32 v{EE+4+q}, v{EE+4+q}" for q in range(4)]
            PKpre=[];PKpost=[]
            if i==0: PKpre=[f"v_pk_mul_f32 v[{RR+4+2*q}:{RR+4+2*q+1}], v[{uw+4+2*q}:{uw+4+2*q+1}], v[{EE+4+2*q}:{EE+4+2*q+1}]" for q in range(2)]
            if i==1: PKpre=[f"v_pk_add_f32 v[{EE+2*q}:{EE+2*q+1}], v[{EE+2*q}:{EE+2*q+1}], 1.0 op_sel_hi:[1,0]" for q in range(2)]
            if i==2: PKpre=[f"v_pk_add_f32 v[{EE+4+2*q}:{EE+4+2*q+1}], v[{EE+4+2*q}:{EE+4+2*q+1}], 1.0 op_sel_hi:[1,0]" for q in range(2)]
            if i==3: PKpost=[f"v_pk_mul_f32 v[{RR+2*q}:{RR+2*q+1}], v[{un+2*q}:{un+2*q+1}], v[{EE+2*q}:{EE+2*q+1}]" for q in range(2)]
            eop,ab=(EOP,t+2) if t<2 else (EOPN,t-2)
            if i==0: UM=mf(uw,eop,hi_e,ab)
            if i==1: UM=mf(uw+4,eop,hi_o,ab)
            if i==2: UM=mf(uw,eop,lo_e,ab,f"v[{uw}:{uw+3}]")
            if i==3: UM=mf(uw+4,eop,lo_o,ab,f"v[{uw+4}:{uw+7}]")
            body.append(('s',f"s_waitcnt vmcnt({U-1})"))
            body.append(('s',mf(TP,AOP,x,j)))
            body.append(('s',TR[0]))
            body.append(('s',mf(TP+4,AOP,x+2,j)))
            body.append(('s',TR[1]))
            body.append(('s',xload(j,i)))
            body.append(('s',f"ds_read_b32 v{PAIR+2*i}, v{vIad} offset:{LDS_IDX+4*(j+2*U)}"))
            body.append(('s',UM))
            body.append(('s',TR[2])); body.append(('s',TR[3]))
            for q in PKpre: body.append(('s',q))
            body.append(('s',f"s_set_gpr_idx_on s{sK[0]}, gpr_idx(SRC2,DST)"))
            sel=i%2; pr=i//2
            for h in range(4):
                R=RR+(0 if h<2 else 4)+2*pr
                a=ACC+2*h; tp=TP+2*h
                mod = "op_sel_hi:[1,0,1]" if sel==0 else "op_sel:[0,1,0] op_sel_hi:[1,1,1]"
                body.append(('s',f"v_pk_fma_f32 v[{a}:{a+1}], v[{tp}:{tp+1}], v[{R}:{R+1}], v[{a}:{a+1}] {mod}"))
            body.append(('s',"s_set_gpr_idx_off"))
            for q in PKpost: body.append(('s',q))
            if i<3: body.append(('s',f"s_lshr_b32 s{sK[0]}, s{sK[0]}, 8"))
        body.append(('s',f"s_add_u32 s{sN}, s{sN}, 1"))
        body.append(('s',"s_cbranch_scc1 K2_MAIN_DONE"))
    if P.bar:
        body.append(('s',"s_barrier")); body.append(('s',f"s_add_u32 s{sGB}, s{sGB}, 1"))
    if P.prio==4:
        body.append(('s',f"s_sub_u32 s{sQ}, 0, s{sN}")); body.append(('s',f"s_lshl_b32 s{sQ}, s{sQ}, 2"))
        for lv in (3,2,1):
            pass
        body.append(('s',f"s_mul_i32 s{sQ+1}, s{sNB}, 3")); body.append(('s',f"s_cmp_ge_u32 s{sQ}, s{sQ+1}")); body.append(('s',"s_cbranch_scc1 K2_LOOPB"))
        body.append(('s',"s_setprio 2")); body.append(('s',f"s_lshl_b32 s{sQ+1}, s{sNB}, 1")); body.append(('s',f"s_cmp_ge_u32 s{sQ}, s{sQ+1}")); body.append(('s',"s_cbranch_scc1 K2_LOOPB"))
        body.append(('s',"s_setprio 1")); body.append(('s',f"s_cmp_ge_u32 s{sQ}, s{sNB}")); body.append(('s',"s_cbranch_scc1 K2_LOOPB"))
        body.append(('s',"s_setprio 0")); body.append(('l',"K2_LOOPB"))
    body.append(('s',f"v_mov_b32 v{AOP}, v{AOPN}")); body.append(('s',f"v_mov_b32 v{AOP+1}, v{AOPN+1}"))
    body.append(('s',f"v_mov_b32 v{EOP}, v{EOPN}")); body.append(('s',f"v_mov_b32 v{EOP+1}, v{EOPN+1}"))
    body.append(('s',f"v_add_u32 v{vAad}, 512, v{vAad}")); body.append(('s',f"v_add_u32 v{vEad}, 128, v{vEad}"))
    body.append(('s',f"v_add_u32 v{vIad}, 64, v{vIad}")); body.append(('s',f"v_add_u32 v{vKad}, 16, v{vKad}"))
    body.append(('s',"s_branch K2_LOOP"))
    if "noload" in P.dbg: body=[b for b in body if not (b[0]=='s' and (b[1].startswith("buffer_load") or b[1].startswith("s_waitcnt vmcnt")))]
    if "noidx" in P.dbg: body=[b for b in body if not (b[0]=='s' and b[1].startswith("s_set_gpr"))]
    if "notrans" in P.dbg: body=[b for b in body if not (b[0]=='s' and (b[1].startswith("v_exp") or b[1].startswith("v_rcp")))]
    if "nofma" in P.dbg: body=[b for b in body if not (b[0]=='s' and b[1].startswith("v_pk_fma"))]
    if "nolo" in P.dbg: body=[b for b in body if not (b[0]=='s' and b[1].startswith("v_mfma") and (f"v[{WF+4}:{WF+5}]" in b[1] or f"v[{WF+6}:{WF+7}]" in b[1]))]
    if "nomfma" in P.dbg: body=[b for b in body if not (b[0]=='s' and b[1].startswith("v_mfma"))]
    A.label("K2_LOOP")
    for i,b in enumerate(body):
        if b[0]=='s': A(b[1])
        elif b[0]=='l': A.label(b[1])
        elif b[0]=='lds': A(b[2])
        else:
            cnt=0; found=False
            for step in range(len(body)):
                kk=(i-1-step)%len(body)
                if body[kk][0]=='lds':
                    if body[kk][1]==b[1]: found=True; break
                    cnt+=1
            assert found,b
            A(f"s_waitcnt lgkmcnt({min(cnt,15)})")
    if P.pf and P.nrounds:
        for t in range(4):
            A.label(f"K2_PF{t}")
            burst(0)
            A(f"s_branch K2_PFR{t}")
    A.label("K2_MAIN_DONE")
    if P.prio: A("s_setprio 0")
    if P.bar:
        A.label("K2_BARL")
        A(f"s_cmp_ge_u32 s{sGB}, s{sGM}"); A("s_cbranch_scc1 K2_BARD")
        A("s_barrier"); A(f"s_add_u32 s{sGB}, s{sGB}, 1"); A("s_branch K2_BARL")
        A.label("K2_BARD")
    if P.pf and P.nrounds:
        A(f"s_lshl_b32 s{sTMP}, s{sW}, 6"); A(f"v_add_u32 v0, s{sTMP}, v{vLANE}")
    A(f"s_add_u32 s{sLO}, s{sLO}, s{sWIN}")
    A(f"s_cmp_lt_u32 s{sLO}, s{sT}")
    A("s_cbranch_scc0 K2_EPI")
    A("s_waitcnt vmcnt(0) lgkmcnt(0)")
    A("s_branch K2_ROUND")
    A.label("K2_EPI")
    A("s_waitcnt lgkmcnt(0)")
    ST.mark("main")
    tl(16)
    ST.markc("c1")
    A(f"s_and_b32 s{sCGP}, s{sW}, 3"); A(f"s_lshr_b32 s{sRG}, s{sW}, 2")
    A(f"s_lshl_b32 s{sTMP}, s{sCGP}, 13"); A(f"s_add_u32 s{sTMP}, s{sTMP}, {CONST_WM}")
    A(f"v_add_u32 v{2}, s{sTMP}, v{PAIR+1}")
    A(f"v_add_u32 v{3}, 4096, v{2}")
    for f in range(8):
        base=2 if f<4 else 3
        A(f"global_load_dwordx4 v[{WM+4*f}:{WM+4*f+3}], v{base}, s[{sCONST}:{sCONST+1}] offset:{(f%4)*1024}"+SC)
    RSZ=CAPW*32
    A(f"s_mul_i32 s{sTMP}, s{sW}, {RSZ}"); A(f"s_add_u32 s{sTMP}, s{sTMP}, {LDS_A}")
    A(f"s_xor_b32 s{sTMP+1}, s{sW}, 1"); A(f"s_mul_i32 s{sTMP+1}, s{sTMP+1}, {RSZ}"); A(f"s_add_u32 s{sTMP+1}, s{sTMP+1}, {LDS_A}")
    A(f"v_lshlrev_b32 v4, 3, v{vLANE}")
    A(f"v_add_u32 v5, s{sTMP}, v4"); A(f"v_add_u32 v6, 2048, v5"); A(f"v_add_u32 v7, 4096, v5")
    EX=64
    def xaddr(k,regs):
        r=regs[k//2]; o=(k%2)*128
        return r,o,o+64
    A(f"s_cmp_eq_u32 s{sH}, 0")
    A("s_cbranch_scc0 K2_EXW1")
    for k in range(5):
        r,o0,o1=xaddr(k,[5,6,7]); a=ACC+8*k
        A(f"ds_write2_b64 v{r}, v[{a+2}:{a+3}], v[{a+6}:{a+7}] offset0:{o0} offset1:{o1}")
    A("s_branch K2_EXW2")
    A.label("K2_EXW1")
    for k in range(5):
        r,o0,o1=xaddr(k,[5,6,7]); a=ACC+8*k
        A(f"ds_write2_b64 v{r}, v[{a}:{a+1}], v[{a+4}:{a+5}] offset0:{o0} offset1:{o1}")
    A.label("K2_EXW2")
    pr0,pr1,pr2,vRW=PAIR,PAIR+2,PAIR+4,PAIR+6
    A(f"v_add_u32 v{pr0}, s{sTMP+1}, v4"); A(f"v_add_u32 v{pr1}, 2048, v{pr0}"); A(f"v_add_u32 v{pr2}, 4096, v{pr0}")
    A(f"s_mul_i32 s{sTMP+2}, s{sG8}, 20"); A(f"s_lshl_b32 s{sTMP+3}, s{sH}, 1"); A(f"s_add_u32 s{sTMP+2}, s{sTMP+2}, s{sTMP+3}"); A(f"s_mul_i32 s{sTMP+2}, s{sTMP+2}, {AGG_STRIDE}")
    A(f"v_lshlrev_b32 v4, 2, v{vLANE}"); A(f"v_add_u32 v{vRW}, s{sTMP+2}, v4")
    A(f"s_mul_i32 s{sTMP}, s{sRG}, 3"); A(f"s_lshl_b32 s{sTMP+1}, s{sRG}, 1"); A(f"s_add_u32 s{sTMP+1}, s{sTMP+1}, 2")
    A(f"s_cmp_lt_u32 s{sRG}, 2"); A(f"s_cselect_b32 s{sTMP}, s{sTMP}, s{sTMP+1}")
    A(f"s_mul_i32 s{sTMP+1}, s{sTMP}, {16*AGG_STRIDE}")
    A(f"v_and_b32 v3, 15, v{vLANE}"); A(f"v_lshrrev_b32 v4, 4, v{vLANE}")
    A(f"v_mul_u32_u24 v7, {AGG_STRIDE}, v3"); A(f"v_lshl_add_u32 v7, v4, 4, v7"); A(f"v_add_u32 v{PAIR+1}, s{sTMP+1}, v7")
    vMR=PAIR+1; vOUT=PAIR+3
    A(f"v_lshlrev_b32 v3, 4, v3"); A(f"v_lshl_add_u32 v{vOUT}, v4, 10, v3")
    A(f"s_lshl_b32 s{sTMP}, s{sTMP}, 2")
    A(f"s_mul_i32 s{sTMP+1}, s{sB}, {NPB}"); A(f"s_add_u32 s{sTMP+1}, s{sTMP+1}, s{sTMP}")
    A(f"s_lshl_b32 s{sTMP+1}, s{sTMP+1}, 10"); A(f"s_lshl_b32 s{sTMP+2}, s{sCGP}, 8"); A(f"s_add_u32 s{sTMP+1}, s{sTMP+1}, s{sTMP+2}")
    A(f"s_add_u32 s{sOUT}, s{sOUT}, s{sTMP+1}"); A(f"s_addc_u32 s{sOUT+1}, s{sOUT+1}, 0")
    A("s_waitcnt vmcnt(8) lgkmcnt(0)")
    A("s_barrier")
    ST.mark("barY")
    for k in range(5):
        r,o0,o1=xaddr(k,[pr0,pr1,pr2])
        A(f"ds_read2_b64 v[{EX+4*k}:{EX+4*k+3}], v{r} offset0:{o0} offset1:{o1}")
    A(f"s_cmp_eq_u32 s{sH}, 0")
    A("s_cbranch_scc0 K2_CB1")
    for hh in range(2):
        if hh==1: A.label("K2_CB1")
        off=0 if hh==0 else 2
        for k in range(5):
            a=ACC+8*k+off; e=EX+4*k
            A(f"s_waitcnt lgkmcnt({min(4-k+2*k,15)})")
            A(f"v_pk_add_f32 v[{a}:{a+1}], v[{a}:{a+1}], v[{e}:{e+1}]")
            A(f"v_pk_add_f32 v[{a+4}:{a+5}], v[{a+4}:{a+5}], v[{e+2}:{e+3}]")
            A(f"v_pk_mul_f32 v[{a}:{a+1}], v[{a}:{a+1}], s[{sLN2}:{sLN2+1}]")
            A(f"v_pk_mul_f32 v[{a+4}:{a+5}], v[{a+4}:{a+5}], s[{sLN2}:{sLN2+1}]")
            A(f"v_cvt_pk_bf16_f32 v{2+2*(k%2)}, v{a}, v{a+4}")
            A(f"v_cvt_pk_bf16_f32 v{3+2*(k%2)}, v{a+1}, v{a+5}")
            A(f"ds_write_b32 v{vRW}, v{2+2*(k%2)} offset:{(4*k)*AGG_STRIDE}")
            A(f"ds_write_b32 v{vRW}, v{3+2*(k%2)} offset:{(4*k+1)*AGG_STRIDE}")
        if hh==0: A("s_branch K2_CB2")
    A.label("K2_CB2")
    A("s_waitcnt lgkmcnt(0)")
    A("s_barrier")
    ST.mark("barZ")
    D=ACC; FR=64
    fl={0:"",1:" sc1",2:" sc0 sc1",3:" nt"}[P.outwt]
    def rd(q):
        for ks in range(4): A(f"ds_read_b128 v[{FR+16*(q%2)+4*ks}:{FR+16*(q%2)+4*ks+3}], v{vMR} offset:{q*16*AGG_STRIDE+ks*64}")
    def mm(q):
        for ks in range(4):
            for p in range(2):
                d=D+8*q+4*p; f=FR+16*(q%2)+4*ks; w=WM+4*(4*p+ks)
                c="0" if ks==0 else f"v[{d}:{d+3}]"
                A(f"v_mfma_f32_16x16x32_bf16 v[{d}:{d+3}], v[{f}:{f+3}], v[{w}:{w+3}], {c}")
    def st(q):
        d=D+8*q; o=D+24+4*q
        A(f"v_cvt_pk_bf16_f32 v{o}, v{d}, v{d+1}"); A(f"v_cvt_pk_bf16_f32 v{o+1}, v{d+2}, v{d+3}")
        A(f"v_cvt_pk_bf16_f32 v{o+2}, v{d+4}, v{d+5}"); A(f"v_cvt_pk_bf16_f32 v{o+3}, v{d+6}, v{d+7}")
        if q: A(f"v_add_u32 v{vOUT}, 4096, v{vOUT}")
        A(f"global_store_dwordx4 v{vOUT}, v[{o}:{o+3}], s[{sOUT}:{sOUT+1}]"+fl)
    rd(0); rd(1)
    A("s_waitcnt vmcnt(0) lgkmcnt(4)")
    mm(0)
    A(f"s_cmp_lt_u32 s{sRG}, 2")
    A("s_cbranch_scc0 K2_MIX2")
    rd(2)
    A("s_waitcnt lgkmcnt(4)")
    mm(1)
    st(0)
    A("s_waitcnt lgkmcnt(0)")
    mm(2)
    st(1)
    A("s_nop 4")
    st(2)
    A("s_branch K2_MIXD")
    A.label("K2_MIX2")
    A("s_waitcnt lgkmcnt(0)")
    mm(1)
    st(0)
    A("s_nop 4")
    st(1)
    A.label("K2_MIXD")
    if P.tl:
        A("s_waitcnt vmcnt(0)"); tl(20)
    ST.mark("iss")
    if P.stamps:
        A("s_waitcnt vmcnt(0)")
        ST.mark("done")
        ST.dump(sWS,1,2,sW,2)
    A.label("K2_END")
    A("s_endpgm")
    A.label("K2_CODE_END")
    return NV

def kd(name,nv,ns):
    nv8=(nv+3)//4*4
    return f""".amdhsa_kernel {name}
  .amdhsa_next_free_vgpr {nv8}
  .amdhsa_next_free_sgpr {ns}
  .amdhsa_accum_offset {nv8}
  .amdhsa_group_segment_fixed_size 0
  .amdhsa_kernarg_size 88
  .amdhsa_user_sgpr_count 2
  .amdhsa_user_sgpr_kernarg_segment_ptr 1
  .amdhsa_system_sgpr_workgroup_id_x 1
  .amdhsa_float_denorm_mode_32 3
.end_amdhsa_kernel
"""

def main():
    ap=argparse.ArgumentParser()
    ap.add_argument("-o",default="standalone__tensor_product_equiv_tfn__graph.s")
    ap.add_argument("--U",type=int,default=8)
    ap.add_argument("--B",type=int,default=32)
    ap.add_argument("--rot",type=int,default=0)
    ap.add_argument("--stamps",type=int,default=0)
    ap.add_argument("--srcmask",type=lambda x:int(x,0),default=0x3fff)
    ap.add_argument("--dbg",default="")
    ap.add_argument("--xmap",type=int,default=1)
    ap.add_argument("--prio",type=int,default=4)
    ap.add_argument("--pf",type=int,default=3)
    ap.add_argument("--npro",type=int,default=2)
    ap.add_argument("--lead",type=int,default=1500)
    ap.add_argument("--nrounds",type=int,default=0)
    ap.add_argument("--bar",type=int,default=0)
    ap.add_argument("--k1stage",type=int,default=1)
    ap.add_argument("--k1wt",type=int,default=1)
    ap.add_argument("--k1pf",type=int,default=0)
    ap.add_argument("--pfat",default="recs")
    ap.add_argument("--k1l2",type=int,default=0)
    ap.add_argument("--outwt",type=int,default=1)
    ap.add_argument("--codepf",type=int,default=1)
    ap.add_argument("--k1rows",type=int,default=10000)
    ap.add_argument("--fused",type=int,default=0)
    ap.add_argument("--fpf",type=int,default=1)
    ap.add_argument("--sleep",type=int,default=0)
    ap.add_argument("--nfast",type=int,default=245)
    ap.add_argument("--pfsplit",type=int,default=0)
    ap.add_argument("--tl",type=int,default=0)
    ap.add_argument("--pfat2",default="bar4")
    ap.add_argument("--sfast",type=int,default=8)
    P=ap.parse_args()
    hdr=open("standalone__tensor_product_equiv_tfn__graph.s.ref").read().split("; Override")[0]
    A=Asm()
    A.L.append(hdr.rstrip("\n"))
    if P.fused:
        A.L.append(f"; @launch grid=({NB},1,1) block=(1024,1,1) lds={K2_LDS}")
    else:
        A.L.append(f"; @launch kernel=tfn_bin_kernel grid=({NC+K1_CONST_WGS},1,1) block=({K1_THREADS},1,1) lds={2048+CH*20 if P.k1stage else 2048}")
        A.L.append(f"; @launch kernel=standalone__tensor_product_equiv_tfn__graph_kernel grid=({NB},1,1) block=(1024,1,1) lds={K2_LDS}")
    A('.amdgcn_target "amdgcn-amd-amdhsa--gfx950"')
    A(".text")
    if not P.fused: A(".globl tfn_bin_kernel")
    A(".globl standalone__tensor_product_equiv_tfn__graph_kernel")
    if not P.fused: gen_k1(A,P)
    nv=gen_k2(A,P)
    A('.section .rodata,"a"')
    A(".p2align 6")
    s=A.text()+("" if P.fused else kd("tfn_bin_kernel",72,102 if P.stamps else 40)+".p2align 6\n")+kd("standalone__tensor_product_equiv_tfn__graph_kernel",nv,102 if P.stamps else 76)
    open(P.o,"w").write(s)
    print("wrote",P.o,len(s),"bytes")
main()
```

```python
import sys, struct, argparse

N=10000; E=320000; C=128
NPB=40
NB=250
NC=250
CH=1280
K1_THREADS=320
K1_CONST_WGS=8
import os
WS_BASE=int(os.environ.get("WSBASE","0"),0)
WS_KEYS=WS_BASE; WS_PAY=WS_BASE+0x140000; WS_CELL=WS_BASE+0x630000; WS_CONST=WS_BASE+0x680000
CONST_WF=0; CONST_CG=2048; CONST_WM=4096
LOG2E=1.4426950408889634; LN2=0.6931471805599453
def f2u(f): return struct.unpack("<I",struct.pack("<f",f))[0]

class Asm:
    def __init__(s): s.L=[]
    def __call__(s,x=""):
        for l in x.split("\n"):
            s.L.append(l if (l.endswith(":") or l.startswith(".") or l=="" ) else "    "+l)
    def c(s,x): s.L.append("    ; "+x)
    def label(s,x): s.L.append(x+":")
    def text(s): return "\n".join(s.L)+"\n"

def vr(a,n=1): return f"v{a}" if n==1 else f"v[{a}:{a+n-1}]"
def sr(a,n=1): return f"s{a}" if n==1 else f"s[{a}:{a+n-1}]"

WS_STAMP=0x800000
class Stamps:
    def __init__(s,A,on,kn,base_sgpr=82,tmp=80): s.A=A; s.on=on; s.n=0; s.base=base_sgpr; s.tmp=tmp; s.kn=kn
    def mark(s,name=""):
        if not s.on: return
        A=s.A
        A(f"s_memrealtime s[{s.tmp}:{s.tmp+1}]")
        A("s_waitcnt lgkmcnt(0)")
        A(f"s_mov_b32 s{s.base+s.n}, s{s.tmp}")
        s.n+=1
    def markc(s,name=""):
        if not s.on: return
        A=s.A
        A(f"s_memtime s[{s.tmp}:{s.tmp+1}]")
        A("s_waitcnt lgkmcnt(0)")
        A(f"s_mov_b32 s{s.base+s.n}, s{s.tmp}")
        s.n+=1
    def dump(s,wsreg,kernel,wgreg,wavereg,vtmp):
        if not s.on: return
        A=s.A
        A(f"s_lshl_b32 s{s.tmp}, s{wgreg}, 4"); A(f"s_add_u32 s{s.tmp}, s{s.tmp}, s{wavereg}"); A(f"s_lshl_b32 s{s.tmp}, s{s.tmp}, 7")
        A(f"s_add_u32 s{s.tmp}, s{s.tmp}, {WS_STAMP+kernel*0x100000}")
        A(f"s_add_u32 s{s.tmp}, s{wsreg}, s{s.tmp}"); A(f"s_addc_u32 s{s.tmp+1}, s{wsreg+1}, 0")
        A(f"v_mov_b32 v{vtmp}, 0")
        for i in range(s.n):
            A(f"v_mov_b32 v{vtmp+1}, s{s.base+i}")
            A(f"global_store_dword v{vtmp}, v{vtmp+1}, s[{s.tmp}:{s.tmp+1}] offset:{4*i}")
            A("s_nop 1")

def dpp_scan(A,v,nrows=4):
    for sh in (1,2,4,8):
        A("s_nop 1")
        A(f"v_add_u32_dpp v{v}, v{v}, v{v} row_shr:{sh} row_mask:0xf bank_mask:0xf bound_ctrl:1")
    if nrows>=2:
        A("s_nop 1")
        A(f"v_add_u32_dpp v{v}, v{v}, v{v} row_bcast:15 row_mask:0xa bank_mask:0xf")
    if nrows>=4:
        A("s_nop 1")
        A(f"v_add_u32_dpp v{v}, v{v}, v{v} row_bcast:31 row_mask:0xc bank_mask:0xf")

def gen_k1(A,P):
    B=P.B
    blkmul={32:209,16:104,64:419}[B]
    assert ((N-1)*blkmul)>>16 < B
    for d in range(N):
        b=(d*52429)>>21; assert b==d//40
    for dl in range(40): assert (dl*205)>>10==dl//5
    A(".p2align 8")
    A(".type tfn_bin_kernel,@function")
    A.label("tfn_bin_kernel")
    A(f"s_cmp_ge_u32 s2, {NC+K1_CONST_WGS}")
    A("s_cbranch_scc1 K1_END")
    A("s_load_dwordx4 s[4:7], s[0:1], 8")
    A("s_load_dwordx4 s[8:11], s[0:1], 24")
    A("s_load_dwordx2 s[12:13], s[0:1], 80")
    if P.k1pf: A("s_load_dwordx2 s[32:33], s[0:1], 0")
    A(f"s_cmp_ge_u32 s2, {NC}")
    A("s_cbranch_scc1 K1_CONST")
    ST=Stamps(A,P.stamps,"K1")
    ST.mark("start")
    if P.tl:
        A("s_memrealtime s[38:39]"); A("s_waitcnt lgkmcnt(0)")
    A(f"s_mul_i32 s14, s2, {CH*4}")
    A("v_lshlrev_b32 v1, 4, v0")
    A("v_add_u32 v1, s14, v1")
    A("v_lshlrev_b32 v2, 1, v1")
    A("v_lshlrev_b32 v3, 2, v0")
    A("v_mov_b32 v4, 0")
    A("v_mov_b32 v5, 1")
    A("v_cmp_gt_u32 vcc, 0x100, v0")
    A("s_and_saveexec_b64 s[16:17], vcc")
    A("s_cbranch_execz K1_NOZ")
    A("ds_write_b32 v3, v4")
    A.label("K1_NOZ")
    A("s_mov_b64 exec, s[16:17]")
    A("s_waitcnt lgkmcnt(0)")
    A("global_load_dwordx4 v[8:11], v1, s[6:7]")
    A("global_load_dwordx4 v[12:15], v1, s[4:5]")
    A("global_load_dwordx4 v[16:19], v2, s[8:9]")
    A("global_load_dwordx4 v[20:23], v2, s[8:9] offset:16")
    A("global_load_dwordx4 v[24:27], v2, s[10:11]")
    A("global_load_dwordx4 v[28:31], v2, s[10:11] offset:16")
    def k1pf():
        if P.k1l2==0:
            per=(P.k1rows*8+249)//250
            A(f"s_mul_i32 s34, s2, {per*128}")
            A("v_lshlrev_b32 v68, 7, v0"); A("v_add_u32 v68, s34, v68")
            if per<320:
                A(f"v_cmp_gt_u32 vcc, {per}, v0"); A("s_and_saveexec_b64 s[36:37], vcc"); A("s_cbranch_execz K1_NOPF")
            A("global_load_dword v69, v68, s[32:33]")
            if per<320:
                A.label("K1_NOPF"); A("s_mov_b64 exec, s[36:37]")
        else:
            A("s_lshr_b32 s34, s2, 3"); A(f"s_mul_i32 s34, s34, {320*128}")
            A("v_lshlrev_b32 v68, 7, v0"); A("v_add_u32 v68, s34, v68")
            for q in range(P.k1l2):
                A("global_load_dword v69, v68, s[32:33]")
                A(f"v_add_u32 v68, {10240*128}, v68")
            rem=80000-10240*P.k1l2; per=(rem+249)//250
            assert per<=320
            A(f"s_mul_i32 s34, s2, {per}"); A(f"s_add_u32 s34, s34, {10240*P.k1l2}")
            A("v_add_u32 v70, s34, v0")
            A(f"v_cmp_gt_u32 vcc, {per}, v0"); A(f"s_mov_b32 s35, 80000"); A("v_cmp_gt_u32 s[36:37], s35, v70"); A("s_and_b64 vcc, vcc, s[36:37]")
            A("v_lshlrev_b32 v70, 7, v70")
            A("s_and_saveexec_b64 s[36:37], vcc")
            A("s_cbranch_execz K1_NOPF")
            A("global_load_dword v71, v70, s[32:33]")
            A.label("K1_NOPF")
            A("s_mov_b64 exec, s[36:37]")
    if P.k1pf==1: k1pf()
    A(f"s_mul_i32 s15, s2, {CH*16}")
    A(f"s_add_u32 s18, s12, {WS_KEYS}"); A("s_addc_u32 s19, s13, 0")
    A("s_add_u32 s18, s18, s14"); A("s_addc_u32 s19, s19, 0")
    A(f"s_add_u32 s20, s12, {WS_PAY}"); A("s_addc_u32 s21, s13, 0")
    A("s_add_u32 s20, s20, s15"); A("s_addc_u32 s21, s21, 0")
    A("s_lshl_b32 s15, s2, 2")
    A(f"s_add_u32 s22, s12, {WS_CELL}"); A("s_addc_u32 s23, s13, 0")
    A("s_add_u32 s22, s22, s15"); A("s_addc_u32 s23, s23, 0")
    A("s_movk_i32 s24, -40")
    A("v_lshrrev_b32 v6, 6, v0")
    A("v_and_b32 v7, 63, v0")
    A("v_readfirstlane_b32 s25, v6")
    A("s_barrier")
    A(f"s_waitcnt vmcnt({5 if P.k1pf==1 else 4})")
    ST.mark("ld")
    for i in range(4):
        d=8+i; s=12+i
        A(f"v_mul_u32_u24 v44, 0xcccd, v{d}")
        A("v_lshrrev_b32 v44, 21, v44")
        A(f"v_mad_i32_i24 v45, v44, s24, v{d}")
        A(f"v_lshlrev_b32 v{36+i}, 2, v44")
        A(f"ds_add_rtn_u32 v{40+i}, v{36+i}, v5")
        A("v_mul_u32_u24 v46, 0xcd, v45")
        A("v_lshrrev_b32 v46, 10, v46")
        A("v_mad_i32_i24 v47, v46, -5, v45")
        A(f"v_mul_u32_u24 v48, {blkmul}, v{s}")
        A("v_lshrrev_b32 v48, 16, v48")
        if P.rot:
            A("v_mul_u32_u24 v49, 2098, v44"); A("v_lshrrev_b32 v49, 16, v49")
            A(f"v_mul_u32_u24 v49, {(B//8)*P.rot}, v49")
            A("v_add_u32 v48, v48, v49")
            A(f"v_and_b32 v48, {B-1}, v48")
        sh={16:4,32:5,64:6}[B]
        A(f"v_lshl_add_u32 v48, v46, {sh}, v48")
        A(f"v_lshl_or_b32 v{32+i}, v47, 14, v{s}")
        A(f"v_lshl_or_b32 v{32+i}, v48, 17, v{32+i}")
    A(f"s_waitcnt vmcnt({1 if P.k1pf==1 else 0})")
    A("v_swap_b32 v18, v24"); A("v_swap_b32 v19, v25"); A("v_swap_b32 v22, v28"); A("v_swap_b32 v23, v29")
    pay=[16,24,20,28]
    A("v_lshlrev_b32 v50, 4, v7")
    A("s_waitcnt lgkmcnt(0)")
    A("s_barrier")
    ST.mark("hist")
    if P.k1pf==2: k1pf()
    A("ds_read_b128 v[52:55], v50")
    A("s_waitcnt lgkmcnt(0)")
    A("v_add_u32 v56, v52, v53")
    A("v_add_u32 v57, v56, v54")
    A("v_add_u32 v58, v57, v55")
    A("v_mov_b32 v59, v58")
    dpp_scan(A,59)
    A("v_sub_u32 v60, v59, v58")
    A("v_add_u32 v61, v60, v52")
    A("v_add_u32 v62, v60, v56")
    A("v_add_u32 v63, v60, v57")
    A("ds_write_b128 v50, v[60:63] offset:1024")
    for i in range(4):
        A(f"s_cmp_lg_u32 s25, {i}")
        A(f"s_cbranch_scc1 K1_CS{i}")
        A(f"v_lshl_or_b32 v64, v{52+i}, 16, v{60+i}")
        A(f"v_lshlrev_b32 v65, 12, v7")
        if i: A(f"v_add_u32 v65, {i*1024}, v65")
        A(f"v_cmp_gt_u32 vcc, {(NB-i+3)//4}, v7")
        A("s_and_saveexec_b64 s[16:17], vcc")
        A("global_store_dword v65, v64, s[22:23]")
        A(f"s_cmp_ge_u32 s2, {256-NC}")
        A(f"s_cbranch_scc1 K1_CZ{i}")
        A(f"global_store_dword v65, v4, s[22:23] offset:{NC*4}")
        A.label(f"K1_CZ{i}")
        A("s_mov_b64 exec, s[16:17]")
        A.label(f"K1_CS{i}")
    A("s_waitcnt lgkmcnt(0)")
    for i in range(4): A(f"ds_read_b32 v{44+i}, v{36+i} offset:1024")
    if not P.k1stage:
        for i in range(4):
            A(f"s_waitcnt lgkmcnt({3-i})")
            A(f"v_add_u32 v{44+i}, v{44+i}, v{40+i}")
            A(f"v_lshlrev_b32 v48, 2, v{44+i}")
            A(f"v_lshlrev_b32 v49, 4, v{44+i}")
            A(f"global_store_dwordx4 v49, v[{pay[i]}:{pay[i]+3}], s[20:21]")
            A(f"global_store_dword v48, v{32+i}, s[18:19]")
            A("s_nop 1")
    else:
        KST=2048; PST=KST+CH*4
        fl={0:"",1:" sc1",2:" sc0 sc1",3:" nt"}[P.k1wt]
        for i in range(4):
            A(f"s_waitcnt lgkmcnt({3-i+2*i})")
            A(f"v_add_u32 v{44+i}, v{44+i}, v{40+i}")
            A(f"v_lshlrev_b32 v48, 2, v{44+i}")
            A(f"v_lshlrev_b32 v49, 4, v{44+i}")
            A(f"ds_write_b128 v49, v[{pay[i]}:{pay[i]+3}] offset:{PST}")
            A(f"ds_write_b32 v48, v{32+i} offset:{KST}")
        A("v_lshlrev_b32 v50, 4, v0")
        A("s_waitcnt lgkmcnt(0)")
        A("s_barrier")
        A(f"ds_read_b128 v[8:11], v50 offset:{KST}")
        for q in range(4): A(f"ds_read_b128 v[{12+4*q}:{15+4*q}], v50 offset:{PST+q*5120}")
        A("v_add_u32 v51, 5120, v50"); A("v_add_u32 v52, 10240, v50"); A("v_add_u32 v53, 15360, v50")
        A("s_waitcnt lgkmcnt(4)")
        A(f"global_store_dwordx4 v50, v[8:11], s[18:19]{fl}")
        for q in range(4):
            A(f"s_waitcnt lgkmcnt({3-q})")
            A(f"global_store_dwordx4 v{50+q}, v[{12+4*q}:{15+4*q}], s[20:21]{fl}")
    if P.k1pf==3: k1pf()
    if P.tl:
        A("s_waitcnt vmcnt(0)"); A("s_memrealtime s[34:35]"); A("s_waitcnt lgkmcnt(0)")
        A("s_cmp_lg_u32 s25, 0"); A("s_cbranch_scc1 K1_TLX")
        A("s_lshl_b32 s36, s2, 3"); A("s_add_u32 s36, s36, 0x7F0000")
        A("v_mov_b32 v68, s38"); A("v_mov_b32 v69, s34"); A("v_mov_b32 v70, s36")
        A("global_store_dwordx2 v70, v[68:69], s[12:13]")
        A.label("K1_TLX")
    ST.mark("iss")
    if P.stamps:
        A("s_waitcnt vmcnt(0)")
        ST.mark("done")
        ST.dump(12,0,2,25,66)
    A("s_endpgm")
    A.label("K1_CONST")
    A("s_load_dwordx2 s[26:27], s[0:1], 40")
    A("s_load_dwordx4 s[28:31], s[0:1], 48")
    A("v_lshrrev_b32 v6, 6, v0")
    A("s_nop 0")
    A("v_readfirstlane_b32 s25, v6")
    A(f"s_sub_u32 s14, s2, {NC}")
    A("v_and_b32 v7, 63, v0")
    A("s_waitcnt lgkmcnt(0)")
    A(f"s_add_u32 s18, s12, {WS_CONST}"); A("s_addc_u32 s19, s13, 0")
    A("s_cmp_eq_u32 s25, 4")
    A("s_cbranch_scc1 K1_CW4")
    A("s_and_b32 s15, s14, 1")
    A("s_lshr_b32 s16, s14, 1")
    A("s_lshl_b32 s16, s16, 5"); A("s_add_u32 s16, s16, s15")
    A("v_and_b32 v1, 15, v7"); A("v_lshlrev_b32 v1, 1, v1"); A("v_add_u32 v1, s16, v1")
    A("v_lshrrev_b32 v2, 4, v7"); A("v_lshlrev_b32 v2, 3, v2")
    A("s_lshl_b32 s17, s25, 5"); A("v_add_u32 v2, s17, v2")
    A("v_lshlrev_b32 v2, 7, v2"); A("v_add_u32 v2, v2, v1"); A("v_lshlrev_b32 v2, 1, v2")
    for r in range(8): A(f"global_load_ushort v{8+r}, v2, s[30:31] offset:{r*256}")
    A("s_lshl_b32 s17, s14, 12")
    A("v_lshlrev_b32 v3, 4, v0"); A("v_add_u32 v3, s17, v3"); A(f"v_add_u32 v3, {CONST_WM}, v3")
    A("s_waitcnt vmcnt(0)")
    for r in range(4): A(f"v_lshl_or_b32 v{16+r}, v{9+2*r}, 16, v{8+2*r}")
    A("global_store_dwordx4 v3, v[16:19], s[18:19]")
    A("s_endpgm")
    A.label("K1_CW4")
    A("s_cmp_eq_u32 s14, 0"); A("s_cbranch_scc1 K1_WF")
    A("s_cmp_eq_u32 s14, 1"); A("s_cbranch_scc1 K1_CG")
    if P.codepf&1:
        A("s_cmp_eq_u32 s14, 2"); A("s_cbranch_scc0 K1_CPX")
        A("s_getpc_b64 s[34:35]")
        A.label("K1_PC")
        A("s_add_u32 s34, s34, standalone__tensor_product_equiv_tfn__graph_kernel-K1_PC"); A("s_addc_u32 s35, s35, 0")
        A("v_lshlrev_b32 v1, 7, v7")
        for q in range(2):
            A(f"v_add_u32 v2, {q*8192}, v1")
            A(f"v_cmp_gt_u32 vcc, K2_CODE_END-standalone__tensor_product_equiv_tfn__graph_kernel, v2")
            A("s_and_saveexec_b64 s[36:37], vcc")
            A(f"s_cbranch_execz K1_CPS{q}")
            A(f"global_load_dword v{8+q}, v2, s[34:35]")
            A.label(f"K1_CPS{q}")
            A("s_mov_b64 exec, s[36:37]")
        A.label("K1_CPX")
    A("s_endpgm")
    A.label("K1_WF")
    A("v_lshlrev_b32 v1, 2, v7")
    for k in range(4): A(f"global_load_dword v{8+k}, v1, s[26:27] offset:{k*256}")
    A(f"s_mov_b32 s15, 0x{f2u(-LOG2E):08x}")
    A("s_mov_b32 s16, 0xffff0000")
    A("s_waitcnt vmcnt(0)")
    for k in range(4):
        A(f"v_lshlrev_b32 v{12+k}, 16, v{8+k}")
        A(f"v_and_b32 v{16+k}, s16, v{8+k}")
    for k in range(8): A(f"v_mul_f32 v{12+k}, s15, v{12+k}")
    A("v_cvt_pk_bf16_f32 v20, v12, v13"); A("v_cvt_pk_bf16_f32 v21, v14, v15")
    A("v_cvt_pk_bf16_f32 v22, v16, v17"); A("v_cvt_pk_bf16_f32 v23, v18, v19")
    for q in range(4):
        A(f"v_lshlrev_b32 v28, 16, v{20+q}")
        A(f"v_and_b32 v29, s16, v{20+q}")
        A(f"v_sub_f32 v28, v{12+2*q}, v28")
        A(f"v_sub_f32 v29, v{13+2*q}, v29")
        A(f"v_cvt_pk_bf16_f32 v{24+q}, v28, v29")
    A("v_lshlrev_b32 v3, 5, v7")
    A(f"global_store_dwordx4 v3, v[20:23], s[18:19] offset:{CONST_WF}")
    A(f"global_store_dwordx4 v3, v[24:27], s[18:19] offset:{CONST_WF+16}")
    A("s_endpgm")
    A.label("K1_CG")
    A("v_and_b32 v1, 3, v7"); A("v_lshlrev_b32 v1, 5, v1")
    for f in range(4): A(f"global_load_dwordx2 v[{8+2*f}:{9+2*f}], v1, s[28:29] offset:{f*8}")
    A("s_mov_b32 s15, 0x05040100"); A("s_mov_b32 s16, 0x07060302")
    A("s_waitcnt vmcnt(0)")
    for o in range(4):
        sel="s15" if o%2==0 else "s16"; h=o//2
        A(f"v_perm_b32 v{16+2*o}, v{10+h}, v{8+h}, {sel}")
        A(f"v_perm_b32 v{17+2*o}, v{14+h}, v{12+h}, {sel}")
    A("v_lshlrev_b32 v3, 5, v7"); A(f"v_add_u32 v3, {CONST_CG}, v3")
    A("global_store_dwordx4 v3, v[16:19], s[18:19]")
    A("global_store_dwordx4 v3, v[20:23], s[18:19] offset:16")
    A.label("K1_END")
    A("s_endpgm")


def gen_phase1(A,P,ST):
    B=P.B
    blkmul={32:209,16:104,64:419}[B]
    A("s_load_dwordx4 s[4:7], s[0:1], 8")
    A("s_load_dwordx4 s[8:11], s[0:1], 24")
    A("s_load_dwordx2 s[12:13], s[0:1], 80")
    A("s_load_dwordx2 s[26:27], s[0:1], 40")
    A("s_load_dwordx4 s[28:31], s[0:1], 48")
    A("s_load_dwordx2 s[32:33], s[0:1], 0")
    A("s_load_dwordx2 s[72:73], s[0:1], 72")
    A("v_lshrrev_b32 v6, 6, v0")
    A("v_and_b32 v7, 63, v0")
    A("v_readfirstlane_b32 s25, v6")
    A("s_nop 3")
    A("s_cmp_ge_u32 s25, 5")
    A("s_cbranch_scc1 F_OTHER")
    A(f"s_mul_i32 s14, s2, {CH*4}")
    A("v_lshlrev_b32 v1, 4, v0")
    A("v_add_u32 v1, s14, v1")
    A("v_lshlrev_b32 v2, 1, v1")
    A("v_lshlrev_b32 v3, 2, v0")
    A("v_mov_b32 v4, 0")
    A("v_mov_b32 v5, 1")
    A("v_cmp_gt_u32 vcc, 0x100, v0")
    A("s_and_saveexec_b64 s[16:17], vcc")
    A("s_cbranch_execz F_NOZ")
    A("ds_write_b32 v3, v4")
    A.label("F_NOZ")
    A("s_mov_b64 exec, s[16:17]")
    A("s_waitcnt lgkmcnt(0)")
    A("global_load_dwordx4 v[8:11], v1, s[6:7]")
    A("global_load_dwordx4 v[12:15], v1, s[4:5]")
    A("global_load_dwordx4 v[16:19], v2, s[8:9]")
    A("global_load_dwordx4 v[20:23], v2, s[8:9] offset:16")
    A("global_load_dwordx4 v[24:27], v2, s[10:11]")
    A("global_load_dwordx4 v[28:31], v2, s[10:11] offset:16")
    A(f"s_mul_i32 s15, s2, {CH*16}")
    A(f"s_add_u32 s18, s12, {WS_KEYS}"); A("s_addc_u32 s19, s13, 0")
    A("s_add_u32 s18, s18, s14"); A("s_addc_u32 s19, s19, 0")
    A(f"s_add_u32 s20, s12, {WS_PAY}"); A("s_addc_u32 s21, s13, 0")
    A("s_add_u32 s20, s20, s15"); A("s_addc_u32 s21, s21, 0")
    A("s_lshl_b32 s15, s2, 10")
    A(f"s_add_u32 s22, s12, {WS_CELL}"); A("s_addc_u32 s23, s13, 0")
    A("s_add_u32 s22, s22, s15"); A("s_addc_u32 s23, s23, 0")
    A("s_movk_i32 s24, -40")
    A("s_barrier")
    A("s_waitcnt vmcnt(4)")
    for i in range(4):
        d=8+i; s=12+i
        A(f"v_mul_u32_u24 v44, 0xcccd, v{d}")
        A("v_lshrrev_b32 v44, 21, v44")
        A(f"v_mad_i32_i24 v45, v44, s24, v{d}")
        A(f"v_lshlrev_b32 v{36+i}, 2, v44")
        A(f"ds_add_rtn_u32 v{40+i}, v{36+i}, v5")
        A("v_mul_u32_u24 v46, 0xcd, v45")
        A("v_lshrrev_b32 v46, 10, v46")
        A("v_mad_i32_i24 v47, v46, -5, v45")
        A(f"v_mul_u32_u24 v48, {blkmul}, v{s}")
        A("v_lshrrev_b32 v48, 16, v48")
        sh={16:4,32:5,64:6}[B]
        A(f"v_lshl_add_u32 v48, v46, {sh}, v48")
        A(f"v_lshl_or_b32 v{32+i}, v47, 14, v{s}")
        A(f"v_lshl_or_b32 v{32+i}, v48, 17, v{32+i}")
    A("s_waitcnt vmcnt(0)")
    A("v_swap_b32 v18, v24"); A("v_swap_b32 v19, v25"); A("v_swap_b32 v22, v28"); A("v_swap_b32 v23, v29")
    pay=[16,24,20,28]
    A("v_lshlrev_b32 v50, 4, v7")
    A("s_waitcnt lgkmcnt(0)")
    A("s_barrier")
    ST.mark("hist")
    A("ds_read_b128 v[52:55], v50")
    A("s_waitcnt lgkmcnt(0)")
    A("v_add_u32 v56, v52, v53"); A("v_add_u32 v57, v56, v54"); A("v_add_u32 v58, v57, v55"); A("v_mov_b32 v59, v58")
    dpp_scan(A,59)
    A("v_sub_u32 v60, v59, v58"); A("v_add_u32 v61, v60, v52"); A("v_add_u32 v62, v60, v56"); A("v_add_u32 v63, v60, v57")
    A("ds_write_b128 v50, v[60:63] offset:1024")
    A("s_cmp_lg_u32 s25, 0")
    A("s_cbranch_scc1 F_CS")
    for i in range(4): A(f"v_lshl_or_b32 v{64+i}, v{52+i}, 16, v{60+i}")
    A("global_store_dwordx4 v50, v[64:67], s[22:23] sc1")
    A.label("F_CS")
    A("s_waitcnt lgkmcnt(0)")
    for i in range(4): A(f"ds_read_b32 v{44+i}, v{36+i} offset:1024")
    KST=2048; PST=KST+CH*4
    for i in range(4):
        A(f"s_waitcnt lgkmcnt({3-i+2*i})")
        A(f"v_add_u32 v{44+i}, v{44+i}, v{40+i}")
        A(f"v_lshlrev_b32 v48, 2, v{44+i}")
        A(f"v_lshlrev_b32 v49, 4, v{44+i}")
        A(f"ds_write_b128 v49, v[{pay[i]}:{pay[i]+3}] offset:{PST}")
        A(f"ds_write_b32 v48, v{32+i} offset:{KST}")
    A("v_lshlrev_b32 v50, 4, v0")
    A("s_waitcnt lgkmcnt(0)")
    A("s_barrier")
    A(f"ds_read_b128 v[8:11], v50 offset:{KST}")
    for q in range(4): A(f"ds_read_b128 v[{12+4*q}:{15+4*q}], v50 offset:{PST+q*5120}")
    A("v_add_u32 v51, 5120, v50"); A("v_add_u32 v52, 10240, v50"); A("v_add_u32 v53, 15360, v50")
    A("s_waitcnt lgkmcnt(4)")
    A("global_store_dwordx4 v50, v[8:11], s[18:19] sc1")
    for q in range(4):
        A(f"s_waitcnt lgkmcnt({3-q})")
        A(f"global_store_dwordx4 v{50+q}, v[{12+4*q}:{15+4*q}], s[20:21] sc1")
    ST.mark("iss1")
    A("s_branch F_JOIN")
    A.label("F_OTHER")
    A("s_waitcnt lgkmcnt(0)")
    A(f"s_add_u32 s18, s12, {WS_CONST}"); A("s_addc_u32 s19, s13, 0")
    A("s_mov_b32 s36, 0")
    A("s_cmp_ge_u32 s25, 9"); A("s_cbranch_scc1 F_R0")
    A("s_cmp_lt_u32 s2, 8"); A("s_cbranch_scc1 F_RW")
    A("s_cmp_lg_u32 s25, 5"); A("s_cbranch_scc1 F_R0")
    A("s_cmp_eq_u32 s2, 8"); A("s_cbranch_scc1 F_RF")
    A("s_cmp_eq_u32 s2, 9"); A("s_cbranch_scc1 F_RC")
    A("s_branch F_R0")
    A.label("F_RW")
    A("s_mov_b32 s36, 1")
    A("s_sub_u32 s14, s25, 5")
    A("s_and_b32 s15, s2, 1"); A("s_lshr_b32 s16, s2, 1"); A("s_lshl_b32 s16, s16, 5"); A("s_add_u32 s16, s16, s15")
    A("v_and_b32 v1, 15, v7"); A("v_lshlrev_b32 v1, 1, v1"); A("v_add_u32 v1, s16, v1")
    A("v_lshrrev_b32 v2, 4, v7"); A("v_lshlrev_b32 v2, 3, v2")
    A("s_lshl_b32 s17, s14, 5"); A("v_add_u32 v2, s17, v2")
    A("v_lshlrev_b32 v2, 7, v2"); A("v_add_u32 v2, v2, v1"); A("v_lshlrev_b32 v2, 1, v2")
    for r in range(8): A(f"global_load_ushort v{8+r}, v2, s[30:31] offset:{r*256}")
    A("s_branch F_R0")
    A.label("F_RF")
    A("s_mov_b32 s36, 2")
    A("v_lshlrev_b32 v1, 2, v7")
    for k in range(4): A(f"global_load_dword v{8+k}, v1, s[26:27] offset:{k*256}")
    A("s_branch F_R0")
    A.label("F_RC")
    A("s_mov_b32 s36, 3")
    A("v_and_b32 v1, 3, v7"); A("v_lshlrev_b32 v1, 5, v1")
    for f in range(4): A(f"global_load_dwordx2 v[{8+2*f}:{9+2*f}], v1, s[28:29] offset:{f*8}")
    A.label("F_R0")
    A("s_barrier")
    A("s_barrier")
    A("s_cmp_eq_u32 s36, 0"); A("s_cbranch_scc1 F_RD")
    A("s_waitcnt vmcnt(0)")
    A("s_cmp_eq_u32 s36, 2"); A("s_cbranch_scc1 F_RF2")
    A("s_cmp_eq_u32 s36, 3"); A("s_cbranch_scc1 F_RC2")
    A("s_lshl_b32 s17, s2, 12"); A("s_lshl_b32 s15, s14, 10"); A("s_add_u32 s17, s17, s15"); A(f"s_add_u32 s17, s17, {CONST_WM}")
    A("v_lshlrev_b32 v3, 4, v7"); A("v_add_u32 v3, s17, v3")
    for r in range(4): A(f"v_lshl_or_b32 v{16+r}, v{9+2*r}, 16, v{8+2*r}")
    A("global_store_dwordx4 v3, v[16:19], s[18:19] sc1")
    A("s_branch F_RD")
    A.label("F_RF2")
    A(f"s_mov_b32 s15, 0x{f2u(-LOG2E):08x}"); A("s_mov_b32 s16, 0xffff0000")
    for k in range(4):
        A(f"v_lshlrev_b32 v{12+k}, 16, v{8+k}"); A(f"v_and_b32 v{16+k}, s16, v{8+k}")
    for k in range(8): A(f"v_mul_f32 v{12+k}, s15, v{12+k}")
    A("v_cvt_pk_bf16_f32 v20, v12, v13"); A("v_cvt_pk_bf16_f32 v21, v14, v15")
    A("v_cvt_pk_bf16_f32 v22, v16, v17"); A("v_cvt_pk_bf16_f32 v23, v18, v19")
    for q in range(4):
        A(f"v_lshlrev_b32 v28, 16, v{20+q}"); A(f"v_and_b32 v29, s16, v{20+q}")
        A(f"v_sub_f32 v28, v{12+2*q}, v28"); A(f"v_sub_f32 v29, v{13+2*q}, v29")
        A(f"v_cvt_pk_bf16_f32 v{24+q}, v28, v29")
    A("v_lshlrev_b32 v3, 5, v7")
    A(f"global_store_dwordx4 v3, v[20:23], s[18:19] offset:{CONST_WF} sc1")
    A(f"global_store_dwordx4 v3, v[24:27], s[18:19] offset:{CONST_WF+16} sc1")
    A("s_branch F_RD")
    A.label("F_RC2")
    A("s_mov_b32 s15, 0x05040100"); A("s_mov_b32 s16, 0x07060302")
    for o in range(4):
        sel="s15" if o%2==0 else "s16"; h=o//2
        A(f"v_perm_b32 v{16+2*o}, v{10+h}, v{8+h}, {sel}")
        A(f"v_perm_b32 v{17+2*o}, v{14+h}, v{12+h}, {sel}")
    A("v_lshlrev_b32 v3, 5, v7"); A(f"v_add_u32 v3, {CONST_CG}, v3")
    A("global_store_dwordx4 v3, v[16:19], s[18:19] sc1")
    A("global_store_dwordx4 v3, v[20:23], s[18:19] offset:16 sc1")
    A.label("F_RD")
    A("s_barrier")
    if P.fpf:
        A("s_cmp_lt_u32 s25, 9"); A("s_cbranch_scc1 F_JOIN")
        A("s_cmp_ge_u32 s25, 14"); A("s_cbranch_scc1 F_JOIN")
        A(f"s_mul_i32 s14, s2, {320*128}"); A("s_sub_u32 s15, s25, 9"); A("s_lshl_b32 s15, s15, 13"); A("s_add_u32 s14, s14, s15")
        A("v_lshlrev_b32 v126, 7, v7"); A("v_add_u32 v126, s14, v126")
        A("global_load_dword v127, v126, s[32:33]")
        A("s_branch F_JOIN2")
    A.label("F_JOIN")
    A("s_waitcnt vmcnt(0)")
    A.label("F_JOIN2")
    A("s_barrier")
    ST.mark("barD")
    A("s_cmp_lg_u32 s25, 0"); A("s_cbranch_scc1 F_WAIT")
    A("s_and_b32 s14, s2, 3"); A("s_lshl_b32 s14, s14, 6")
    A("v_mov_b32 v1, s14"); A("v_mov_b32 v2, 1")
    A("v_cmp_eq_u32 vcc, 0, v7"); A("s_and_saveexec_b64 s[16:17], vcc")
    A("global_atomic_add v1, v2, s[72:73]")
    A("s_mov_b64 exec, s[16:17]")
    A.label("F_WAIT")

NW=16; CAPW=160
LDS_IDX=0x0000
LDS_K=LDS_IDX+NW*CAPW*4
LDS_HIST=LDS_K+NW*CAPW
LDS_BASE=LDS_HIST+2048
LDS_FLAG=LDS_BASE+4096
LDS_MARK=LDS_FLAG+64
LDS_EF=LDS_MARK+8192+64
LDS_A=LDS_EF+NW*CAPW*8
LDS_CELL=LDS_A+NW*CAPW*32+1024
K2_LDS=LDS_CELL+1024
WINBIG=2048; WINSMALL=200; TOTMAX=CAPW-8
AGG_STRIDE=272
assert LDS_A%16==0 and LDS_EF%16==0 and LDS_MARK%4==0 and K2_LDS<=163840

def gen_k2(A,P):
    U=4; B=P.B
    SC=" sc1" if P.fused else ""
    nbins=8*B
    assert nbins*4<=2048 and nbins*8<=4096
    vTID=0; vLANE=1; vT0=2
    vAad=3; vEad=4; vIad=5; vKad=6; vK=7
    ACC=8
    WF=48
    PAIR=56
    X=64
    TP=80
    AOP=88; AOPN=90; EOP=92; EOPN=94
    UU=[96,104]; EE=112; RR=120
    NV=128
    REC0=64; CNT=68; BASEC=72; AT=64
    CG=80; KEY=88; RANK=90; PAY=92; AP=100; MK=116; BINA=118
    T=[2,3,4,5,6,7,120,121,122,123,124,125,126,127]
    WM=96
    sX=4; sOUT=6; sWS=8; sSRD=12; sW=16; sB=17; sT=18; sLO=19; sWIN=20; sNR=21; sKK=22; sH=23; sEX=24; sM=26; sG8=28; sWB=29
    sK=[32,33]; sN=34; sTOT=35; sTMP=36; sC=40; sLN2=44; sRG=46; sCGP=47; sKEY=48; sPAY=52; sCELL=56; sCONST=58; sRAW=60; sPFO=65; sPFT=66; sNB=67; sGB=68; sGM=69; sQ=70; sCHI=40
    name="standalone__tensor_product_equiv_tfn__graph_kernel"
    A(".p2align 8")
    A(f".type {name},@function")
    A.label(name)
    A(f"s_cmp_ge_u32 s2, {NB}")
    A("s_cbranch_scc1 K2_END")
    ST=Stamps(A,P.stamps,"K2")
    ST.mark("start")
    tlc=[0]
    def tl(off,inv=False):
        if not P.tl: return
        tlc[0]+=1
        A("s_memrealtime s[74:75]"); A("s_waitcnt lgkmcnt(0)")
        if inv: A("s_not_b32 s74, s74")
        A("v_mov_b32 v2, s74"); A("v_mov_b32 v3, 0")
        A("v_cmp_eq_u32 vcc, 0, v0"); A("s_and_saveexec_b64 s[76:77], vcc"); A(f"s_cbranch_execz K2_TL{tlc[0]}")
        A(f"global_atomic_umax v3, v2, s[72:73] offset:{off}")
        A.label(f"K2_TL{tlc[0]}"); A("s_mov_b64 exec, s[76:77]")
    if P.tl:
        A("s_load_dwordx2 s[72:73], s[0:1], 72"); A("s_waitcnt lgkmcnt(0)")
        tl(0,True)
    if P.fused: gen_phase1(A,P,ST)
    A(f"s_load_dwordx2 s[{sX}:{sX+1}], s[0:1], 0")
    A(f"s_load_dwordx2 s[{sOUT}:{sOUT+1}], s[0:1], 64")
    A(f"s_load_dwordx2 s[{sWS}:{sWS+1}], s[0:1], 80")
    A(f"v_and_b32 v{vLANE}, 63, v0")
    A(f"v_lshrrev_b32 v{T[0]}, 6, v0")
    A(f"v_lshlrev_b32 v{PAIR+1}, 4, v{vLANE}")
    A(f"v_readfirstlane_b32 s{sW}, v{T[0]}")
    for p in (3,5,7): A(f"v_mov_b32 v{PAIR+p}, v{PAIR+1}")
    if P.xmap:
        A(f"s_and_b32 s{sTMP}, s2, 7"); A(f"s_mul_i32 s{sB}, s{sTMP}, 31"); A(f"s_min_u32 s{sTMP}, s{sTMP}, 2")
        A(f"s_add_u32 s{sB}, s{sB}, s{sTMP}"); A(f"s_lshr_b32 s{sTMP}, s2, 3"); A(f"s_add_u32 s{sB}, s{sB}, s{sTMP}")
    else:
        A(f"s_mov_b32 s{sB}, s2")
    A(f"s_lshr_b32 s{sG8}, s{sW}, 1"); A(f"s_and_b32 s{sH}, s{sW}, 1"); A(f"s_mul_i32 s{sWB}, s{sW}, {CAPW}")
    for i in range(40): A(f"v_mov_b32 v{ACC+i}, 0")
    A("s_waitcnt lgkmcnt(0)")
    A(f"s_lshl_b32 s{sTMP}, s{sB}, {2 if P.fused else 10}")
    A(f"s_add_u32 s{sCELL}, s{sWS}, {WS_CELL}"); A(f"s_addc_u32 s{sCELL+1}, s{sWS+1}, 0")
    A(f"s_add_u32 s{sCELL}, s{sCELL}, s{sTMP}"); A(f"s_addc_u32 s{sCELL+1}, s{sCELL+1}, 0")
    A(f"s_add_u32 s{sCONST}, s{sWS}, {WS_CONST}"); A(f"s_addc_u32 s{sCONST+1}, s{sWS+1}, 0")
    A(f"s_mov_b32 s{sLO}, 0")
    A(f"s_mov_b32 s{sWIN}, {WINBIG}")
    for i in range(3): A(f"s_mov_b32 s{sCHI+i}, {(i+1)*CH}")
    if not P.fused:
        A(f"v_lshlrev_b32 v{T[1]}, 5, v{vLANE}")
        if P.fused:
            A(f"v_mov_b32 v{T[2]}, 0")
            A(f"s_cmp_ge_u32 s{sW}, 4"); A("s_cbranch_scc1 K2_NOCL")
            A(f"v_lshlrev_b32 v{T[3]}, 10, v0")
            A(f"v_cmp_gt_u32 vcc, {NC}, v0"); A(f"s_and_saveexec_b64 s[{sEX}:{sEX+1}], vcc")
            A(f"global_load_dword v{T[2]}, v{T[3]}, s[{sCELL}:{sCELL+1}] sc1")
            A("s_mov_b64 exec, -1")
            A.label("K2_NOCL")
        else:
            A(f"global_load_dwordx4 v[{CNT}:{CNT+3}], v{PAIR+1}, s[{sCELL}:{sCELL+1}]"+SC)
        A(f"global_load_dwordx4 v[{WF}:{WF+3}], v{T[1]}, s[{sCONST}:{sCONST+1}] offset:{CONST_WF}"+SC)
        A(f"global_load_dwordx4 v[{WF+4}:{WF+7}], v{T[1]}, s[{sCONST}:{sCONST+1}] offset:{CONST_WF+16}"+SC)
        A(f"global_load_dwordx4 v[{CG}:{CG+3}], v{T[1]}, s[{sCONST}:{sCONST+1}] offset:{CONST_CG}"+SC)
        A(f"global_load_dwordx4 v[{CG+4}:{CG+7}], v{T[1]}, s[{sCONST}:{sCONST+1}] offset:{CONST_CG+16}"+SC)
    if P.codepf&2:
        A(f"s_cmp_eq_u32 s{sW}, 15"); A("s_cbranch_scc0 K2_CPX")
        A(f"s_getpc_b64 s[{sTMP}:{sTMP+1}]")
        A.label("K2_PC")
        A(f"s_sub_u32 s{sTMP}, s{sTMP}, K2_PC-standalone__tensor_product_equiv_tfn__graph_kernel"); A(f"s_subb_u32 s{sTMP+1}, s{sTMP+1}, 0")
        A(f"v_lshlrev_b32 v{T[8]}, 7, v{vLANE}")
        for q in range(2):
            A(f"v_add_u32 v{T[9]}, {q*8192}, v{T[8]}")
            A(f"v_cmp_gt_u32 vcc, K2_CODE_END-standalone__tensor_product_equiv_tfn__graph_kernel, v{T[9]}")
            A(f"s_and_saveexec_b64 s[{sEX}:{sEX+1}], vcc")
            A(f"s_cbranch_execz K2_CPS{q}")
            A(f"global_load_dword v{127-q}, v{T[9]}, s[{sTMP}:{sTMP+1}]")
            A.label(f"K2_CPS{q}")
            A("s_mov_b64 exec, -1")
        A.label("K2_CPX")
    A(f"s_mov_b32 s{sSRD}, s{sX}")
    A(f"s_and_b32 s{sSRD+1}, s{sX+1}, 0xffff")
    A(f"s_or_b32 s{sSRD+1}, s{sSRD+1}, {1024<<16}")
    A(f"s_mov_b32 s{sSRD+2}, {N}")
    A(f"s_mov_b32 s{sSRD+3}, 0x00020000")
    A(f"s_add_u32 s{sKEY}, s{sWS}, {WS_KEYS}"); A(f"s_addc_u32 s{sKEY+1}, s{sWS+1}, 0")
    A(f"s_and_b32 s{sKEY+1}, s{sKEY+1}, 0xffff"); A(f"s_mov_b32 s{sKEY+2}, {E*4}"); A(f"s_mov_b32 s{sKEY+3}, 0x00020000")
    A(f"s_add_u32 s{sPAY}, s{sWS}, {WS_PAY}"); A(f"s_addc_u32 s{sPAY+1}, s{sWS+1}, 0")
    A(f"s_and_b32 s{sPAY+1}, s{sPAY+1}, 0xffff"); A(f"s_mov_b32 s{sPAY+2}, {E*16}"); A(f"s_mov_b32 s{sPAY+3}, 0x00020000")
    A(f"s_mov_b32 s{sLN2}, 0x{f2u(-LN2):08x}"); A(f"s_mov_b32 s{sLN2+1}, 0x{f2u(-LN2):08x}")
    def burst(vaddr,vdst=2):
        for q in range(4):
            A(f"buffer_load_dword v{vdst}, v{vaddr}, s[{sRAW}:{sRAW+3}], s{sPFO} offen")
            if q<3: A(f"s_add_u32 s{sPFO}, s{sPFO}, 8192")
    def pf_row0(rnd_sreg,dst):
        A(f"s_lshr_b32 s{sTMP+2}, s2, 3")
        A(f"s_and_b32 s{sTMP+3}, s{sTMP+2}, 1"); A(f"s_lshl_b32 s{sTMP+3}, s{sTMP+3}, 9")
        A(f"s_lshr_b32 s{sTMP+2}, s{sTMP+2}, 1"); A(f"s_lshl_b32 s{sTMP+2}, s{sTMP+2}, 5")
        A(f"s_add_u32 s{sTMP+2}, s{sTMP+2}, s{sTMP+3}")
        A(f"s_lshl_b32 s{dst}, s{rnd_sreg}, 10"); A(f"s_add_u32 s{dst}, s{dst}, s{sTMP+2}"); A(f"s_lshl_b32 s{dst}, s{dst}, 10")
    if P.pf:
        A(f"s_mov_b32 s{sRAW}, s{sX}"); A(f"s_and_b32 s{sRAW+1}, s{sX+1}, 0xffff"); A(f"s_mov_b32 s{sRAW+2}, {N*1024}"); A(f"s_mov_b32 s{sRAW+3}, 0x00020000")
    def propf(part=0):
        if P.pf==3:
            r0=(P.k1rows if P.k1pf else 0) if part==0 else P.pfsplit
            r1=P.pfsplit if (part==0 and P.pfsplit) else N
            per=((r1-r0)*8+249)//250; nw=(per+63)//64
            lab=f"K2_NOPF{part}"
            A(f"s_cmp_ge_u32 s{sW}, {nw}")
            A(f"s_cbranch_scc1 {lab}")
            A(f"s_mul_i32 s{sPFO}, s2, {per*128}"); A(f"s_lshl_b32 s{sTMP+2}, s{sW}, 13"); A(f"s_add_u32 s{sPFO}, s{sPFO}, s{sTMP+2}")
            if r0: A(f"s_add_u32 s{sPFO}, s{sPFO}, {r0*1024}")
            A(f"v_lshlrev_b32 v126, 7, v{vLANE}")
            A(f"buffer_load_dword v127, v126, s[{sRAW}:{sRAW+3}], s{sPFO} offen")
            A.label(lab)
            return
        A(f"s_cmp_ge_u32 s{sW}, {P.npro}")
        A("s_cbranch_scc1 K2_NOPF0")
        pf_row0(sW,sPFO)
        A(f"v_lshlrev_b32 v126, 7, v{vLANE}")
        burst(126,127)
        A.label("K2_NOPF0")
    if P.fused:
        A(f"s_cmp_lg_u32 s{sW}, 0"); A("s_cbranch_scc1 F_REL")
        A(f"v_lshlrev_b32 v{T[1]}, 6, v{vLANE}")
        A(f"s_mov_b32 s{sTMP}, 0")
        A.label("F_POLL")
        A(f"v_mov_b32 v{T[2]}, 0")
        A(f"v_cmp_gt_u32 vcc, 4, v{vLANE}"); A(f"s_and_saveexec_b64 s[{sEX}:{sEX+1}], vcc")
        A(f"global_load_dword v{T[2]}, v{T[1]}, s[72:73] sc1")
        A("s_mov_b64 exec, -1")
        A("s_waitcnt vmcnt(0)")
        A("s_nop 1"); A(f"v_add_u32_dpp v{T[2]}, v{T[2]}, v{T[2]} row_shr:1 row_mask:0xf bank_mask:0xf bound_ctrl:1")
        A("s_nop 1"); A(f"v_add_u32_dpp v{T[2]}, v{T[2]}, v{T[2]} row_shr:2 row_mask:0xf bank_mask:0xf bound_ctrl:1")
        A("s_nop 1"); A(f"v_readlane_b32 s{sTMP+1}, v{T[2]}, 3")
        A(f"s_add_u32 s{sTMP}, s{sTMP}, 1")
        A(f"s_cmp_ge_u32 s{sTMP}, 0x100000"); A("s_cbranch_scc1 F_REL")
        if P.sleep<0:
            A(f"s_cmp_ge_u32 s{sTMP+1}, {NB}"); A("s_cbranch_scc1 F_REL")
            A(f"s_cmp_ge_u32 s{sTMP+1}, {P.nfast}"); A("s_cbranch_scc1 F_FAST")
            A(f"s_sleep {-P.sleep}")
            A("s_branch F_POLL")
            A.label("F_FAST")
            A(f"s_sleep {P.sfast}")
            A("s_branch F_POLL")
        elif P.sleep:
            A(f"s_cmp_ge_u32 s{sTMP+1}, {NB}"); A("s_cbranch_scc1 F_REL")
            A(f"s_sleep {P.sleep}")
            A("s_branch F_POLL")
        else:
            A(f"s_cmp_lt_u32 s{sTMP+1}, {NB}"); A("s_cbranch_scc1 F_POLL")
        A.label("F_REL")
        A("s_barrier")
        ST.mark("rel")
    A(f"v_lshlrev_b32 v{T[1]}, 5, v{vLANE}")
    if P.fused:
        A(f"v_mov_b32 v{T[2]}, 0")
        A(f"s_cmp_ge_u32 s{sW}, 4"); A("s_cbranch_scc1 K2_NOCL")
        A(f"v_lshlrev_b32 v{T[3]}, 10, v0")
        A(f"v_cmp_gt_u32 vcc, {NC}, v0"); A(f"s_and_saveexec_b64 s[{sEX}:{sEX+1}], vcc")
        A(f"global_load_dword v{T[2]}, v{T[3]}, s[{sCELL}:{sCELL+1}] sc1")
        A("s_mov_b64 exec, -1")
        A.label("K2_NOCL")
    else:
        A(f"global_load_dwordx4 v[{CNT}:{CNT+3}], v{PAIR+1}, s[{sCELL}:{sCELL+1}]"+SC)
    A(f"global_load_dwordx4 v[{WF}:{WF+3}], v{T[1]}, s[{sCONST}:{sCONST+1}] offset:{CONST_WF}"+SC)
    A(f"global_load_dwordx4 v[{WF+4}:{WF+7}], v{T[1]}, s[{sCONST}:{sCONST+1}] offset:{CONST_WF+16}"+SC)
    A(f"global_load_dwordx4 v[{CG}:{CG+3}], v{T[1]}, s[{sCONST}:{sCONST+1}] offset:{CONST_CG}"+SC)
    A(f"global_load_dwordx4 v[{CG+4}:{CG+7}], v{T[1]}, s[{sCONST}:{sCONST+1}] offset:{CONST_CG+16}"+SC)
    if P.fused:
        A(f"s_cmp_ge_u32 s{sW}, 4"); A("s_cbranch_scc1 K2_NOCW")
        A("s_waitcnt vmcnt(4)")
        A(f"v_lshlrev_b32 v{T[3]}, 2, v0"); A(f"v_add_u32 v{T[3]}, {LDS_CELL}, v{T[3]}")
        A(f"ds_write_b32 v{T[3]}, v{T[2]}")
        A("s_waitcnt lgkmcnt(0)")
        A.label("K2_NOCW")
        A("s_barrier")
        A(f"v_add_u32 v{T[3]}, {LDS_CELL}, v{PAIR+1}")
        A(f"ds_read_b128 v[{CNT}:{CNT+3}], v{T[3]}")
    A("s_branch K2_ROUND1")
    A.label("K2_ROUND")
    A(f"v_lshlrev_b32 v{T[1]}, 5, v{vLANE}")
    if P.fused:
        A(f"v_add_u32 v{T[3]}, {LDS_CELL}, v{PAIR+1}")
        A(f"ds_read_b128 v[{CNT}:{CNT+3}], v{T[3]}")
    else:
        A(f"global_load_dwordx4 v[{CNT}:{CNT+3}], v{PAIR+1}, s[{sCELL}:{sCELL+1}]"+SC)
    A(f"global_load_dwordx4 v[{CG}:{CG+3}], v{T[1]}, s[{sCONST}:{sCONST+1}] offset:{CONST_CG}"+SC)
    A(f"global_load_dwordx4 v[{CG+4}:{CG+7}], v{T[1]}, s[{sCONST}:{sCONST+1}] offset:{CONST_CG+16}"+SC)
    A("s_waitcnt vmcnt(0)")
    A.label("K2_ROUND1")
    A(f"v_lshlrev_b32 v{T[0]}, 2, v0")
    A(f"v_mov_b32 v{T[1]}, 0")
    A(f"v_cmp_gt_u32 vcc, {nbins}, v0")
    A(f"s_and_saveexec_b64 s[{sEX}:{sEX+1}], vcc")
    A("s_cbranch_execz K2_NOZ")
    A(f"ds_write_b32 v{T[0]}, v{T[1]} offset:{LDS_HIST}")
    A.label("K2_NOZ")
    A(f"s_mov_b64 exec, -1")
    A("s_waitcnt lgkmcnt(0)" if P.fused else "s_waitcnt vmcnt(4)")
    ST.mark("cell")
    if P.pf and P.pfat=="cell": propf()
    A(f"v_mul_u32_u24 v{T[0]}, {4*CH}, v{vLANE}")
    for i in range(4):
        A(f"v_and_b32 v{REC0+i}, 0xffff, v{CNT+i}")
        A(f"v_lshrrev_b32 v{CNT+i}, 16, v{CNT+i}")
        if i: A(f"v_add3_u32 v{REC0+i}, v{REC0+i}, v{T[0]}, s{sCHI+i-1}")
        else: A(f"v_add_u32 v{REC0+i}, v{REC0+i}, v{T[0]}")
    A(f"v_add_u32 v{T[1]}, v{CNT}, v{CNT+1}")
    A(f"v_add_u32 v{T[2]}, v{T[1]}, v{CNT+2}")
    A(f"v_add_u32 v{T[3]}, v{T[2]}, v{CNT+3}")
    A(f"v_max3_u32 v{T[5]}, v{CNT}, v{CNT+1}, v{CNT+2}")
    A(f"v_mov_b32 v{T[4]}, v{T[3]}")
    A(f"v_max_u32 v{T[5]}, v{T[5]}, v{CNT+3}")
    dpp_scan(A,T[4])
    A(f"v_sub_u32 v{BASEC}, v{T[4]}, v{T[3]}")
    A(f"v_add_u32 v{BASEC+1}, v{BASEC}, v{CNT}")
    A(f"v_add_u32 v{BASEC+2}, v{BASEC}, v{T[1]}")
    A(f"v_add_u32 v{BASEC+3}, v{BASEC}, v{T[2]}")
    A(f"v_readlane_b32 s{sT}, v{T[4]}, 63")
    A(f"v_mov_b32 v{T[6]}, 8192")
    A(f"s_mov_b32 s{sKK}, s{sW}")
    A(f"s_cmp_eq_u32 s{sT}, 0")
    A("s_cbranch_scc1 K2_EPI")
    A.label("K2_EX")
    A(f"v_cmp_lt_u32 vcc, s{sKK}, v{T[5]}")
    A(f"s_cbranch_vccz K2_EXD")
    A(f"s_sub_u32 s{sTMP}, s{sKK}, s{sLO}")
    for i in range(4):
        A(f"v_add_u32 v{T[0]}, s{sTMP}, v{BASEC+i}")
        A(f"v_cmp_lt_u32 vcc, s{sKK}, v{CNT+i}")
        A(f"v_cmp_gt_u32 s[{sM}:{sM+1}], s{sWIN}, v{T[0]}")
        A(f"v_lshlrev_b32 v{T[0]}, 2, v{T[0]}")
        A(f"v_add_u32 v{T[1]}, s{sKK}, v{REC0+i}")
        A(f"s_and_b64 vcc, vcc, s[{sM}:{sM+1}]")
        A(f"v_cndmask_b32 v{T[0]}, v{T[6]}, v{T[0]}, vcc")
        A(f"ds_write_b32 v{T[0]}, v{T[1]} offset:{LDS_MARK}")
    A(f"s_add_u32 s{sKK}, s{sKK}, {NW}")
    A("s_branch K2_EX")
    A.label("K2_EXD")
    A("s_waitcnt lgkmcnt(0)")
    A("s_barrier")
    ST.mark("bar1")
    A(f"v_lshlrev_b32 v{T[0]}, 2, v0")
    for s in range(2): A(f"ds_read_b32 v{MK+s}, v{T[0]} offset:{LDS_MARK+s*4096}")
    A(f"v_mov_b32 v{T[2]}, 0"); A(f"v_mov_b32 v{T[3]}, 0"); A(f"v_mov_b32 v{T[1]}, {LDS_FLAG}")
    A(f"ds_write_b64 v{T[1]}, v[{T[2]}:{T[3]}]")
    A(f"s_sub_u32 s{sNR}, s{sT}, s{sLO}")
    A(f"s_min_u32 s{sNR}, s{sNR}, s{sWIN}")
    A(f"s_lshl_b32 s{sTMP}, s{sW}, 6")
    A("s_waitcnt lgkmcnt(1)")
    for s in range(2):
        A(f"s_add_u32 s{sTMP+1}, s{sTMP}, {s*1024}")
        A(f"s_cmp_ge_u32 s{sTMP+1}, s{sNR}")
        A(f"s_cbranch_scc1 K2_LD_DONE")
        A(f"v_add_u32 v{T[1]}, {s*1024}, v0")
        A(f"v_cmp_gt_u32 vcc, s{sNR}, v{T[1]}")
        A(f"v_lshlrev_b32 v{T[2]}, 2, v{MK+s}")
        A(f"v_lshlrev_b32 v{T[3]}, 4, v{MK+s}")
        A(f"s_and_saveexec_b64 s[{sEX}:{sEX+1}], vcc")
        A(f"buffer_load_dword v{KEY+s}, v{T[2]}, s[{sKEY}:{sKEY+3}], 0 offen"+SC)
        A(f"buffer_load_dwordx4 v[{PAY+4*s}:{PAY+4*s+3}], v{T[3]}, s[{sPAY}:{sPAY+3}], 0 offen"+SC)
        A(f"s_mov_b64 exec, -1")
    A.label("K2_LD_DONE")
    A(f"v_mov_b32 v{T[4]}, 1")
    A("s_waitcnt vmcnt(0)")
    ST.mark("recs")
    if P.pf and P.pfat=="recs": propf()
    for s in range(2):
        A(f"s_add_u32 s{sTMP+1}, s{sTMP}, {s*1024}")
        A(f"s_cmp_ge_u32 s{sTMP+1}, s{sNR}")
        A(f"s_cbranch_scc1 K2_H_DONE")
        A(f"v_add_u32 v{T[1]}, {s*1024}, v0")
        A(f"v_lshrrev_b32 v{BINA+s}, 17, v{KEY+s}")
        A(f"v_cmp_gt_u32 vcc, s{sNR}, v{T[1]}")
        A(f"v_lshlrev_b32 v{T[2]}, 2, v{BINA+s}")
        A(f"s_and_saveexec_b64 s[{sEX}:{sEX+1}], vcc")
        A(f"ds_add_rtn_u32 v{RANK+s}, v{T[2]}, v{T[4]} offset:{LDS_HIST}")
        A(f"s_mov_b64 exec, -1")
        for o in range(4):
            A(f"v_mfma_f32_4x4x4_16b_bf16 v[{AT+4*o}:{AT+4*o+3}], v[{CG+2*o}:{CG+2*o+1}], v[{PAY+4*s}:{PAY+4*s+1}], 0")
        A("s_nop 4")
        for o in range(4):
            A(f"v_cvt_pk_bf16_f32 v{AP+8*s+2*o}, v{AT+4*o}, v{AT+4*o+1}")
            A(f"v_cvt_pk_bf16_f32 v{AP+8*s+2*o+1}, v{AT+4*o+2}, v{AT+4*o+3}")
    A.label("K2_H_DONE")
    A("s_waitcnt lgkmcnt(0)")
    A("s_barrier")
    ST.mark("bar2")
    if P.pf and P.pfat=="bar2": propf()
    A(f"s_lshl_b32 s{sTMP+1}, s{sG8}, {(B*4).bit_length()-1}")
    A(f"v_lshlrev_b32 v{T[0]}, 2, v{vLANE}")
    A(f"v_add_u32 v{T[0]}, s{sTMP+1}, v{T[0]}")
    if B<64:
        A(f"v_mov_b32 v{T[1]}, 0")
        A(f"v_cmp_gt_u32 vcc, {B}, v{vLANE}")
        A(f"s_and_saveexec_b64 s[{sEX}:{sEX+1}], vcc")
    A(f"ds_read_b32 v{T[1]}, v{T[0]} offset:{LDS_HIST}")
    A(f"s_mov_b64 exec, -1")
    A(f"v_add_u32 v{T[2]}, s{sH}, v{vLANE}"); A(f"v_and_b32 v{T[2]}, 1, v{T[2]}")
    A(f"v_lshlrev_b32 v{T[0]}, 1, v{T[0]}"); A(f"s_lshl_b32 s{sTMP+2}, s{sH}, 2"); A(f"v_add_u32 v{T[0]}, s{sTMP+2}, v{T[0]}")
    A("s_waitcnt lgkmcnt(0)")
    A(f"v_sub_u32 v{T[1]}, v{T[1]}, v{T[2]}"); A(f"v_add_u32 v{T[1]}, 1, v{T[1]}"); A(f"v_lshrrev_b32 v{T[1]}, 1, v{T[1]}")
    A(f"v_mov_b32 v{T[2]}, v{T[1]}")
    dpp_scan(A,T[2],nrows={16:1,32:2,64:4}[B])
    A(f"s_nop 0")
    A(f"v_readlane_b32 s{sTOT}, v{T[2]}, {B-1}")
    A(f"v_sub_u32 v{T[2]}, v{T[2]}, v{T[1]}")
    A(f"v_add_u32 v{T[2]}, s{sWB}, v{T[2]}")
    if B<64:
        A(f"v_cmp_gt_u32 vcc, {B}, v{vLANE}")
        A(f"s_and_saveexec_b64 s[{sEX}:{sEX+1}], vcc")
    A(f"ds_write_b32 v{T[0]}, v{T[2]} offset:{LDS_BASE}")
    A(f"s_mov_b64 exec, -1")
    if P.bar:
        A(f"v_mov_b32 v{T[0]}, s{sTOT}"); A(f"v_mov_b32 v{T[1]}, {LDS_FLAG}")
        A(f"ds_max_u32 v{T[1]}, v{T[0]} offset:4")
    A(f"s_cmp_gt_u32 s{sTOT}, {TOTMAX}")
    A("s_cbranch_scc0 K2_NOOVF")
    A(f"v_mov_b32 v{T[0]}, 1"); A(f"v_mov_b32 v{T[1]}, {LDS_FLAG}")
    A(f"ds_write_b32 v{T[1]}, v{T[0]}")
    A("s_branch K2_PADDONE")
    A.label("K2_NOOVF")
    A.label("K2_PADDONE")
    A("s_waitcnt lgkmcnt(0)")
    A("s_barrier")
    ST.mark("bar3")
    if P.pf and P.pfat=="bar3": propf()
    if P.pf==3 and P.pfsplit and P.pfat2=="bar3": propf(1)
    A(f"v_mov_b32 v{T[1]}, {LDS_FLAG}")
    A(f"ds_read_b32 v{T[0]}, v{T[1]}")
    if P.bar: A(f"ds_read_b32 v{T[5]}, v{T[1]} offset:4")
    for s in range(2):
        A(f"v_add_u32 v{T[2]}, v{RANK+s}, v{BINA+s}"); A(f"v_and_b32 v{T[2]}, 1, v{T[2]}")
        A(f"v_lshl_add_u32 v{T[2]}, v{BINA+s}, 1, v{T[2]}"); A(f"v_lshlrev_b32 v{T[2]}, 2, v{T[2]}")
        A(f"ds_read_b32 v{MK+s}, v{T[2]} offset:{LDS_BASE}")
    A("s_waitcnt lgkmcnt(0)")
    A(f"v_readfirstlane_b32 s{sTMP+1}, v{T[0]}")
    if P.bar:
        A(f"v_readfirstlane_b32 s{sGM}, v{T[5]}")
        A(f"s_add_u32 s{sGM}, s{sGM}, 15"); A(f"s_lshr_b32 s{sGM}, s{sGM}, 4"); A(f"s_mov_b32 s{sGB}, 0")
    A("s_nop 3")
    A(f"s_cmp_eq_u32 s{sTMP+1}, 0")
    A("s_cbranch_scc1 K2_PLACE")
    A(f"s_mov_b32 s{sWIN}, {WINSMALL}")
    A("s_branch K2_ROUND")
    A.label("K2_PLACE")
    A(f"s_add_u32 s{sTMP+2}, s{sWB}, s{sTOT}")
    A(f"v_add_u32 v{T[0]}, s{sTMP+2}, v{vLANE}")
    A(f"v_lshlrev_b32 v{T[1]}, 2, v{T[0]}")
    A(f"v_lshlrev_b32 v{T[2]}, 3, v{T[0]}")
    A(f"v_lshlrev_b32 v{T[3]}, 5, v{T[0]}"); A(f"v_add_u32 v{T[3]}, {LDS_A}, v{T[3]}")
    for q in range(4): A(f"v_mov_b32 v{T[6+q]}, 0")
    assert T[6]%2==0 and T[9]==T[6]+3
    A(f"v_cmp_gt_u32 vcc, 8, v{vLANE}")
    A(f"s_and_saveexec_b64 s[{sEX}:{sEX+1}], vcc")
    A(f"ds_write_b32 v{T[1]}, v{T[6]} offset:{LDS_IDX}")
    A(f"ds_write_b8 v{T[0]}, v{T[6]} offset:{LDS_K}")
    A(f"v_cmp_gt_u32 vcc, 4, v{vLANE}")
    A(f"s_and_b64 exec, exec, vcc")
    A(f"ds_write_b64 v{T[2]}, v[{T[6]}:{T[6]+1}] offset:{LDS_EF}")
    A(f"ds_write_b128 v{T[3]}, v[{T[6]}:{T[6]+3}]")
    A(f"ds_write_b128 v{T[3]}, v[{T[6]}:{T[6]+3}] offset:16")
    A(f"s_mov_b64 exec, -1")
    for s in range(2):
        A(f"s_add_u32 s{sTMP+1}, s{sTMP}, {s*1024}")
        A(f"s_cmp_ge_u32 s{sTMP+1}, s{sNR}")
        A(f"s_cbranch_scc1 K2_P_DONE")
        A(f"v_add_u32 v{T[1]}, {s*1024}, v0")
        A(f"v_cmp_gt_u32 vcc, s{sNR}, v{T[1]}")
        A(f"v_lshrrev_b32 v{T[0]}, 1, v{RANK+s}")
        A(f"v_add_u32 v{MK+s}, v{MK+s}, v{T[0]}")
        A(f"v_lshlrev_b32 v{T[0]}, 2, v{MK+s}")
        A(f"v_lshlrev_b32 v{T[1]}, 3, v{MK+s}")
        A(f"v_lshlrev_b32 v{T[2]}, 5, v{MK+s}")
        A(f"v_add_u32 v{T[2]}, {LDS_A}, v{T[2]}")
        A(f"v_and_b32 v{T[3]}, {hex(P.srcmask)}, v{KEY+s}")
        A(f"v_lshrrev_b32 v{T[4]}, 11, v{KEY+s}")
        A(f"v_and_b32 v{T[4]}, 0x38, v{T[4]}")
        A(f"s_and_saveexec_b64 s[{sEX}:{sEX+1}], vcc")
        A(f"ds_write_b128 v{T[2]}, v[{AP+8*s}:{AP+8*s+3}]")
        A(f"ds_write_b128 v{T[2]}, v[{AP+8*s+4}:{AP+8*s+7}] offset:16")
        A(f"ds_write_b64 v{T[1]}, v[{PAY+4*s+2}:{PAY+4*s+3}] offset:{LDS_EF}")
        A(f"ds_write_b32 v{T[0]}, v{T[3]} offset:{LDS_IDX}")
        A(f"ds_write_b8 v{MK+s}, v{T[4]} offset:{LDS_K}")
        A(f"s_mov_b64 exec, -1")
    A.label("K2_P_DONE")
    A("s_waitcnt lgkmcnt(0)")
    A("s_barrier")
    ST.mark("bar4")
    tl(4)
    if P.pf==3 and P.pfsplit and P.pfat2=="bar4": propf(1)
    ST.markc("c0")
    A(f"s_cmp_eq_u32 s{sTOT}, 0")
    A("s_cbranch_scc1 K2_MAIN_DONE")
    A(f"s_add_u32 s{sNB}, s{sTOT}, 3"); A(f"s_lshr_b32 s{sNB}, s{sNB}, 2"); A(f"s_sub_u32 s{sN}, 0, s{sNB}")
    A(f"s_lshl_b32 s{sTMP}, s{sWB}, 2"); A(f"v_mov_b32 v{vIad}, s{sTMP}")
    A(f"v_mov_b32 v{vKad}, s{sWB}")
    A(f"s_lshl_b32 s{sTMP}, s{sWB}, 5"); A(f"s_add_u32 s{sTMP}, s{sTMP}, {LDS_A}")
    A(f"v_lshlrev_b32 v{vT0}, 3, v{vLANE}")
    A(f"v_add_u32 v{vAad}, s{sTMP}, v{vT0}")
    A(f"s_lshl_b32 s{sTMP}, s{sWB}, 3"); A(f"s_add_u32 s{sTMP}, s{sTMP}, {LDS_EF}")
    A(f"v_add_u32 v{vEad}, s{sTMP}, v{vT0}")
    if P.pf and P.nrounds:
        pf_row0(sW,sPFO)
        A(f"s_lshl_b32 s{sTMP}, s{sW}, 10"); A(f"s_add_u32 s{sTMP}, s{sTMP}, s{sTMP+3}"); A(f"s_sub_i32 s{sTMP}, s{sTMP}, {P.lead}")
        A(f"s_max_i32 s{sTMP}, s{sTMP}, 0"); A(f"s_mul_i32 s{sTMP}, s{sTMP}, s{sNB}"); A(f"s_mul_i32 s{sTMP}, s{sTMP}, 6711"); A(f"s_lshr_b32 s{sTMP}, s{sTMP}, 26")
        A(f"s_sub_u32 s{sPFT}, s{sTMP}, s{sNB}")
        A(f"s_min_i32 s{sPFT}, s{sPFT}, -2")
        A(f"s_cmp_lt_u32 s{sW}, {P.npro}"); A(f"s_cselect_b32 s{sPFT}, 1, s{sPFT}")
        A(f"s_cmp_ge_u32 s{sW}, {P.nrounds}"); A(f"s_cselect_b32 s{sPFT}, 1, s{sPFT}")
        A(f"v_lshlrev_b32 v0, 7, v{vLANE}")
    def mf(d,a,b,abid,c="0"): return f"v_mfma_f32_4x4x4_16b_bf16 v[{d}:{d+3}], v[{a}:{a+1}], v[{b}:{b+1}], {c} cbsz:4 abid:{abid}"
    def xload(slot,pair): return f"buffer_load_dwordx4 v[{X+4*(slot%U)}:{X+4*(slot%U)+3}], v[{PAIR+2*pair}:{PAIR+2*pair+1}], s[{sSRD}:{sSRD+3}], 0 idxen offen"
    if P.prio==4: A("s_setprio 3")
    for p in range(4): A(f"ds_read_b32 v{PAIR+2*p}, v{vIad} offset:{LDS_IDX+4*p}")
    A(f"ds_read_b64 v[{AOP}:{AOP+1}], v{vAad}")
    A(f"ds_read_b64 v[{EOP}:{EOP+1}], v{vEad}")
    A(f"ds_read_b32 v{vK}, v{vKad} offset:{LDS_K}")
    A("s_waitcnt lgkmcnt(3)")
    for p in range(4): A(xload(p,p))
    for p in range(4): A(f"ds_read_b32 v{PAIR+2*p}, v{vIad} offset:{LDS_IDX+4*(4+p)}")
    hi_e,hi_o,lo_e,lo_o=WF,WF+2,WF+4,WF+6
    A("s_waitcnt lgkmcnt(5)")
    for t in (0,1):
        u=UU[t]
        A(mf(u,EOP,hi_e,t)); A(mf(u+4,EOP,hi_o,t))
        A("s_nop 1")
        A(mf(u,EOP,lo_e,t,f"v[{u}:{u+3}]")); A(mf(u+4,EOP,lo_o,t,f"v[{u+4}:{u+7}]"))
    A("s_nop 2")
    u=UU[0]
    for q in range(8): A(f"v_exp_f32 v{EE+q}, v{u+q}")
    A("s_nop 0")
    for q in range(4): A(f"v_pk_add_f32 v[{EE+2*q}:{EE+2*q+1}], v[{EE+2*q}:{EE+2*q+1}], 1.0 op_sel_hi:[1,0]")
    for q in range(8): A(f"v_rcp_f32 v{EE+q}, v{EE+q}")
    A("s_nop 0")
    for q in range(2): A(f"v_pk_mul_f32 v[{RR+2*q}:{RR+2*q+1}], v[{u+2*q}:{u+2*q+1}], v[{EE+2*q}:{EE+2*q+1}]")
    body=[]
    for t in range(4):
        cur=t%2; nxt=(t+1)%2
        if P.prio==1: body.append(('s',f"s_setprio {3-t}"))
        body.append(('s',"s_waitcnt lgkmcnt(0)"))
        body.append(('s',f"v_readfirstlane_b32 s{sK[0]}, v{vK}"))
        if P.pf and P.nrounds:
            body.append(('s',f"s_cmp_eq_u32 s{sN}, s{sPFT}"))
            body.append(('s',f"s_cbranch_scc1 K2_PF{t}"))
            body.append(('l',f"K2_PFR{t}"))
        body.append(('s',f"ds_read_b32 v{vK}, v{vKad} offset:{LDS_K+4*(t+1)}"))
        if t==0:
            body.append(('s',f"ds_read_b64 v[{EOPN}:{EOPN+1}], v{vEad} offset:128"))
            body.append(('s',f"ds_read_b64 v[{AOPN}:{AOPN+1}], v{vAad} offset:512"))
        for i in range(4):
            j=4*t+i
            x=X+4*(j%U)
            if P.prio==2 and i%2==0: body.append(('s',f"s_setprio {3-(j//2)%4}"))
            if P.prio==3: body.append(('s',f"s_setprio {3-i}"))
            un=UU[nxt]; uw=UU[cur]
            if i==0: TR=[f"v_exp_f32 v{EE+q}, v{un+q}" for q in range(4)]
            if i==1: TR=[f"v_exp_f32 v{EE+4+q}, v{un+4+q}" for q in range(4)]
            if i==2: TR=[f"v_rcp_f32 v{EE+q}, v{EE+q}" for q in range(4)]
            if i==3: TR=[f"v_rcp_f32 v{EE+4+q}, v{EE+4+q}" for q in range(4)]
            PKpre=[];PKpost=[]
            if i==0: PKpre=[f"v_pk_mul_f32 v[{RR+4+2*q}:{RR+4+2*q+1}], v[{uw+4+2*q}:{uw+4+2*q+1}], v[{EE+4+2*q}:{EE+4+2*q+1}]" for q in range(2)]
            if i==1: PKpre=[f"v_pk_add_f32 v[{EE+2*q}:{EE+2*q+1}], v[{EE+2*q}:{EE+2*q+1}], 1.0 op_sel_hi:[1,0]" for q in range(2)]
            if i==2: PKpre=[f"v_pk_add_f32 v[{EE+4+2*q}:{EE+4+2*q+1}], v[{EE+4+2*q}:{EE+4+2*q+1}], 1.0 op_sel_hi:[1,0]" for q in range(2)]
            if i==3: PKpost=[f"v_pk_mul_f32 v[{RR+2*q}:{RR+2*q+1}], v[{un+2*q}:{un+2*q+1}], v[{EE+2*q}:{EE+2*q+1}]" for q in range(2)]
            eop,ab=(EOP,t+2) if t<2 else (EOPN,t-2)
            if i==0: UM=mf(uw,eop,hi_e,ab)
            if i==1: UM=mf(uw+4,eop,hi_o,ab)
            if i==2: UM=mf(uw,eop,lo_e,ab,f"v[{uw}:{uw+3}]")
            if i==3: UM=mf(uw+4,eop,lo_o,ab,f"v[{uw+4}:{uw+7}]")
            body.append(('s',f"s_waitcnt vmcnt({U-1})"))
            body.append(('s',mf(TP,AOP,x,j)))
            body.append(('s',TR[0]))
            body.append(('s',mf(TP+4,AOP,x+2,j)))
            body.append(('s',TR[1]))
            body.append(('s',xload(j,i)))
            body.append(('s',f"ds_read_b32 v{PAIR+2*i}, v{vIad} offset:{LDS_IDX+4*(j+2*U)}"))
            body.append(('s',UM))
            body.append(('s',TR[2])); body.append(('s',TR[3]))
            for q in PKpre: body.append(('s',q))
            body.append(('s',f"s_set_gpr_idx_on s{sK[0]}, gpr_idx(SRC2,DST)"))
            sel=i%2; pr=i//2
            for h in range(4):
                R=RR+(0 if h<2 else 4)+2*pr
                a=ACC+2*h; tp=TP+2*h
                mod = "op_sel_hi:[1,0,1]" if sel==0 else "op_sel:[0,1,0] op_sel_hi:[1,1,1]"
                body.append(('s',f"v_pk_fma_f32 v[{a}:{a+1}], v[{tp}:{tp+1}], v[{R}:{R+1}], v[{a}:{a+1}] {mod}"))
            body.append(('s',"s_set_gpr_idx_off"))
            for q in PKpost: body.append(('s',q))
            if i<3: body.append(('s',f"s_lshr_b32 s{sK[0]}, s{sK[0]}, 8"))
        body.append(('s',f"s_add_u32 s{sN}, s{sN}, 1"))
        body.append(('s',"s_cbranch_scc1 K2_MAIN_DONE"))
    if P.bar:
        body.append(('s',"s_barrier")); body.append(('s',f"s_add_u32 s{sGB}, s{sGB}, 1"))
    if P.prio==4:
        body.append(('s',f"s_sub_u32 s{sQ}, 0, s{sN}")); body.append(('s',f"s_lshl_b32 s{sQ}, s{sQ}, 2"))
        for lv in (3,2,1):
            pass
        body.append(('s',f"s_mul_i32 s{sQ+1}, s{sNB}, 3")); body.append(('s',f"s_cmp_ge_u32 s{sQ}, s{sQ+1}")); body.append(('s',"s_cbranch_scc1 K2_LOOPB"))
        body.append(('s',"s_setprio 2")); body.append(('s',f"s_lshl_b32 s{sQ+1}, s{sNB}, 1")); body.append(('s',f"s_cmp_ge_u32 s{sQ}, s{sQ+1}")); body.append(('s',"s_cbranch_scc1 K2_LOOPB"))
        body.append(('s',"s_setprio 1")); body.append(('s',f"s_cmp_ge_u32 s{sQ}, s{sNB}")); body.append(('s',"s_cbranch_scc1 K2_LOOPB"))
        body.append(('s',"s_setprio 0")); body.append(('l',"K2_LOOPB"))
    body.append(('s',f"v_mov_b32 v{AOP}, v{AOPN}")); body.append(('s',f"v_mov_b32 v{AOP+1}, v{AOPN+1}"))
    body.append(('s',f"v_mov_b32 v{EOP}, v{EOPN}")); body.append(('s',f"v_mov_b32 v{EOP+1}, v{EOPN+1}"))
    body.append(('s',f"v_add_u32 v{vAad}, 512, v{vAad}")); body.append(('s',f"v_add_u32 v{vEad}, 128, v{vEad}"))
    body.append(('s',f"v_add_u32 v{vIad}, 64, v{vIad}")); body.append(('s',f"v_add_u32 v{vKad}, 16, v{vKad}"))
    body.append(('s',"s_branch K2_LOOP"))
    if "noload" in P.dbg: body=[b for b in body if not (b[0]=='s' and (b[1].startswith("buffer_load") or b[1].startswith("s_waitcnt vmcnt")))]
    if "noidx" in P.dbg: body=[b for b in body if not (b[0]=='s' and b[1].startswith("s_set_gpr"))]
    if "notrans" in P.dbg: body=[b for b in body if not (b[0]=='s' and (b[1].startswith("v_exp") or b[1].startswith("v_rcp")))]
    if "nofma" in P.dbg: body=[b for b in body if not (b[0]=='s' and b[1].startswith("v_pk_fma"))]
    if "nolo" in P.dbg: body=[b for b in body if not (b[0]=='s' and b[1].startswith("v_mfma") and (f"v[{WF+4}:{WF+5}]" in b[1] or f"v[{WF+6}:{WF+7}]" in b[1]))]
    if "nomfma" in P.dbg: body=[b for b in body if not (b[0]=='s' and b[1].startswith("v_mfma"))]
    A.label("K2_LOOP")
    for i,b in enumerate(body):
        if b[0]=='s': A(b[1])
        elif b[0]=='l': A.label(b[1])
        elif b[0]=='lds': A(b[2])
        else:
            cnt=0; found=False
            for step in range(len(body)):
                kk=(i-1-step)%len(body)
                if body[kk][0]=='lds':
                    if body[kk][1]==b[1]: found=True; break
                    cnt+=1
            assert found,b
            A(f"s_waitcnt lgkmcnt({min(cnt,15)})")
    if P.pf and P.nrounds:
        for t in range(4):
            A.label(f"K2_PF{t}")
            burst(0)
            A(f"s_branch K2_PFR{t}")
    A.label("K2_MAIN_DONE")
    if P.prio: A("s_setprio 0")
    if P.bar:
        A.label("K2_BARL")
        A(f"s_cmp_ge_u32 s{sGB}, s{sGM}"); A("s_cbranch_scc1 K2_BARD")
        A("s_barrier"); A(f"s_add_u32 s{sGB}, s{sGB}, 1"); A("s_branch K2_BARL")
        A.label("K2_BARD")
    if P.pf and P.nrounds:
        A(f"s_lshl_b32 s{sTMP}, s{sW}, 6"); A(f"v_add_u32 v0, s{sTMP}, v{vLANE}")
    A(f"s_add_u32 s{sLO}, s{sLO}, s{sWIN}")
    A(f"s_cmp_lt_u32 s{sLO}, s{sT}")
    A("s_cbranch_scc0 K2_EPI")
    A("s_waitcnt vmcnt(0) lgkmcnt(0)")
    A("s_branch K2_ROUND")
    A.label("K2_EPI")
    A("s_waitcnt lgkmcnt(0)")
    ST.mark("main")
    tl(8)
    ST.markc("c1")
    A(f"s_and_b32 s{sCGP}, s{sW}, 3"); A(f"s_lshr_b32 s{sRG}, s{sW}, 2")
    A(f"s_lshl_b32 s{sTMP}, s{sCGP}, 13"); A(f"s_add_u32 s{sTMP}, s{sTMP}, {CONST_WM}")
    A(f"v_add_u32 v{2}, s{sTMP}, v{PAIR+1}")
    A(f"v_add_u32 v{3}, 4096, v{2}")
    for f in range(8):
        base=2 if f<4 else 3
        A(f"global_load_dwordx4 v[{WM+4*f}:{WM+4*f+3}], v{base}, s[{sCONST}:{sCONST+1}] offset:{(f%4)*1024}"+SC)
    RSZ=CAPW*32
    A(f"s_mul_i32 s{sTMP}, s{sW}, {RSZ}"); A(f"s_add_u32 s{sTMP}, s{sTMP}, {LDS_A}")
    A(f"s_xor_b32 s{sTMP+1}, s{sW}, 1"); A(f"s_mul_i32 s{sTMP+1}, s{sTMP+1}, {RSZ}"); A(f"s_add_u32 s{sTMP+1}, s{sTMP+1}, {LDS_A}")
    A(f"v_lshlrev_b32 v4, 3, v{vLANE}")
    A(f"v_add_u32 v5, s{sTMP}, v4"); A(f"v_add_u32 v6, 2048, v5"); A(f"v_add_u32 v7, 4096, v5")
    EX=64
    def xaddr(k,regs):
        r=regs[k//2]; o=(k%2)*128
        return r,o,o+64
    A(f"s_cmp_eq_u32 s{sH}, 0")
    A("s_cbranch_scc0 K2_EXW1")
    for k in range(5):
        r,o0,o1=xaddr(k,[5,6,7]); a=ACC+8*k
        A(f"ds_write2_b64 v{r}, v[{a+2}:{a+3}], v[{a+6}:{a+7}] offset0:{o0} offset1:{o1}")
    A("s_branch K2_EXW2")
    A.label("K2_EXW1")
    for k in range(5):
        r,o0,o1=xaddr(k,[5,6,7]); a=ACC+8*k
        A(f"ds_write2_b64 v{r}, v[{a}:{a+1}], v[{a+4}:{a+5}] offset0:{o0} offset1:{o1}")
    A.label("K2_EXW2")
    pr0,pr1,pr2,vRW=PAIR,PAIR+2,PAIR+4,PAIR+6
    A(f"v_add_u32 v{pr0}, s{sTMP+1}, v4"); A(f"v_add_u32 v{pr1}, 2048, v{pr0}"); A(f"v_add_u32 v{pr2}, 4096, v{pr0}")
    A(f"s_mul_i32 s{sTMP+2}, s{sG8}, 20"); A(f"s_lshl_b32 s{sTMP+3}, s{sH}, 1"); A(f"s_add_u32 s{sTMP+2}, s{sTMP+2}, s{sTMP+3}"); A(f"s_mul_i32 s{sTMP+2}, s{sTMP+2}, {AGG_STRIDE}")
    A(f"v_lshlrev_b32 v4, 2, v{vLANE}"); A(f"v_add_u32 v{vRW}, s{sTMP+2}, v4")
    A(f"s_mul_i32 s{sTMP}, s{sRG}, 3"); A(f"s_lshl_b32 s{sTMP+1}, s{sRG}, 1"); A(f"s_add_u32 s{sTMP+1}, s{sTMP+1}, 2")
    A(f"s_cmp_lt_u32 s{sRG}, 2"); A(f"s_cselect_b32 s{sTMP}, s{sTMP}, s{sTMP+1}")
    A(f"s_mul_i32 s{sTMP+1}, s{sTMP}, {16*AGG_STRIDE}")
    A(f"v_and_b32 v3, 15, v{vLANE}"); A(f"v_lshrrev_b32 v4, 4, v{vLANE}")
    A(f"v_mul_u32_u24 v7, {AGG_STRIDE}, v3"); A(f"v_lshl_add_u32 v7, v4, 4, v7"); A(f"v_add_u32 v{PAIR+1}, s{sTMP+1}, v7")
    vMR=PAIR+1; vOUT=PAIR+3
    A(f"v_lshlrev_b32 v3, 4, v3"); A(f"v_lshl_add_u32 v{vOUT}, v4, 10, v3")
    A(f"s_lshl_b32 s{sTMP}, s{sTMP}, 2")
    A(f"s_mul_i32 s{sTMP+1}, s{sB}, {NPB}"); A(f"s_add_u32 s{sTMP+1}, s{sTMP+1}, s{sTMP}")
    A(f"s_lshl_b32 s{sTMP+1}, s{sTMP+1}, 10"); A(f"s_lshl_b32 s{sTMP+2}, s{sCGP}, 8"); A(f"s_add_u32 s{sTMP+1}, s{sTMP+1}, s{sTMP+2}")
    A(f"s_add_u32 s{sOUT}, s{sOUT}, s{sTMP+1}"); A(f"s_addc_u32 s{sOUT+1}, s{sOUT+1}, 0")
    A("s_waitcnt vmcnt(8) lgkmcnt(0)")
    A("s_barrier")
    ST.mark("barY")
    for k in range(5):
        r,o0,o1=xaddr(k,[pr0,pr1,pr2])
        A(f"ds_read2_b64 v[{EX+4*k}:{EX+4*k+3}], v{r} offset0:{o0} offset1:{o1}")
    A(f"s_cmp_eq_u32 s{sH}, 0")
    A("s_cbranch_scc0 K2_CB1")
    for hh in range(2):
        if hh==1: A.label("K2_CB1")
        off=0 if hh==0 else 2
        for k in range(5):
            a=ACC+8*k+off; e=EX+4*k
            A(f"s_waitcnt lgkmcnt({min(4-k+2*k,15)})")
            A(f"v_pk_add_f32 v[{a}:{a+1}], v[{a}:{a+1}], v[{e}:{e+1}]")
            A(f"v_pk_add_f32 v[{a+4}:{a+5}], v[{a+4}:{a+5}], v[{e+2}:{e+3}]")
            A(f"v_pk_mul_f32 v[{a}:{a+1}], v[{a}:{a+1}], s[{sLN2}:{sLN2+1}]")
            A(f"v_pk_mul_f32 v[{a+4}:{a+5}], v[{a+4}:{a+5}], s[{sLN2}:{sLN2+1}]")
            A(f"v_cvt_pk_bf16_f32 v{2+2*(k%2)}, v{a}, v{a+4}")
            A(f"v_cvt_pk_bf16_f32 v{3+2*(k%2)}, v{a+1}, v{a+5}")
            A(f"ds_write_b32 v{vRW}, v{2+2*(k%2)} offset:{(4*k)*AGG_STRIDE}")
            A(f"ds_write_b32 v{vRW}, v{3+2*(k%2)} offset:{(4*k+1)*AGG_STRIDE}")
        if hh==0: A("s_branch K2_CB2")
    A.label("K2_CB2")
    A("s_waitcnt lgkmcnt(0)")
    A("s_barrier")
    ST.mark("barZ")
    D=ACC; FR=64
    fl={0:"",1:" sc1",2:" sc0 sc1",3:" nt"}[P.outwt]
    def rd(q):
        for ks in range(4): A(f"ds_read_b128 v[{FR+16*(q%2)+4*ks}:{FR+16*(q%2)+4*ks+3}], v{vMR} offset:{q*16*AGG_STRIDE+ks*64}")
    def mm(q):
        for ks in range(4):
            for p in range(2):
                d=D+8*q+4*p; f=FR+16*(q%2)+4*ks; w=WM+4*(4*p+ks)
                c="0" if ks==0 else f"v[{d}:{d+3}]"
                A(f"v_mfma_f32_16x16x32_bf16 v[{d}:{d+3}], v[{f}:{f+3}], v[{w}:{w+3}], {c}")
    def st(q):
        d=D+8*q; o=D+24+4*q
        A(f"v_cvt_pk_bf16_f32 v{o}, v{d}, v{d+1}"); A(f"v_cvt_pk_bf16_f32 v{o+1}, v{d+2}, v{d+3}")
        A(f"v_cvt_pk_bf16_f32 v{o+2}, v{d+4}, v{d+5}"); A(f"v_cvt_pk_bf16_f32 v{o+3}, v{d+6}, v{d+7}")
        if q: A(f"v_add_u32 v{vOUT}, 4096, v{vOUT}")
        A(f"global_store_dwordx4 v{vOUT}, v[{o}:{o+3}], s[{sOUT}:{sOUT+1}]"+fl)
    rd(0); rd(1)
    A("s_waitcnt vmcnt(0) lgkmcnt(4)")
    mm(0)
    A(f"s_cmp_lt_u32 s{sRG}, 2")
    A("s_cbranch_scc0 K2_MIX2")
    rd(2)
    A("s_waitcnt lgkmcnt(4)")
    mm(1)
    st(0)
    A("s_waitcnt lgkmcnt(0)")
    mm(2)
    st(1)
    A("s_nop 4")
    st(2)
    A("s_branch K2_MIXD")
    A.label("K2_MIX2")
    A("s_waitcnt lgkmcnt(0)")
    mm(1)
    st(0)
    A("s_nop 4")
    st(1)
    A.label("K2_MIXD")
    if P.tl:
        A("s_waitcnt vmcnt(0)"); tl(12)
        if not P.fused:
            A(f"s_lshl_b32 s74, s2, 3"); A("s_add_u32 s74, s74, 0x7F0000"); A("v_mov_b32 v4, s74")
            A("v_cmp_eq_u32 vcc, 0, v0"); A("s_and_saveexec_b64 s[76:77], vcc"); A("s_cbranch_execz K2_TLZ")
            A(f"global_load_dwordx2 v[6:7], v4, s[{sWS}:{sWS+1}]"); A("s_waitcnt vmcnt(0)")
            A("v_not_b32 v6, v6"); A("v_mov_b32 v3, 0")
            A("global_atomic_umax v3, v6, s[72:73] offset:16"); A("global_atomic_umax v3, v7, s[72:73] offset:20")
            A.label("K2_TLZ"); A("s_mov_b64 exec, s[76:77]")
    ST.mark("iss")
    if P.stamps:
        A("s_waitcnt vmcnt(0)")
        ST.mark("done")
        ST.dump(sWS,1,2,sW,2)
    A.label("K2_END")
    A("s_endpgm")
    A.label("K2_CODE_END")
    return NV

def kd(name,nv,ns):
    nv8=(nv+3)//4*4
    return f""".amdhsa_kernel {name}
  .amdhsa_next_free_vgpr {nv8}
  .amdhsa_next_free_sgpr {ns}
  .amdhsa_accum_offset {nv8}
  .amdhsa_group_segment_fixed_size 0
  .amdhsa_kernarg_size 88
  .amdhsa_user_sgpr_count 2
  .amdhsa_user_sgpr_kernarg_segment_ptr 1
  .amdhsa_system_sgpr_workgroup_id_x 1
  .amdhsa_float_denorm_mode_32 3
.end_amdhsa_kernel
"""

def main():
    ap=argparse.ArgumentParser()
    ap.add_argument("-o",default="standalone__tensor_product_equiv_tfn__graph.s")
    ap.add_argument("--U",type=int,default=8)
    ap.add_argument("--B",type=int,default=32)
    ap.add_argument("--rot",type=int,default=0)
    ap.add_argument("--stamps",type=int,default=0)
    ap.add_argument("--srcmask",type=lambda x:int(x,0),default=0x3fff)
    ap.add_argument("--dbg",default="")
    ap.add_argument("--xmap",type=int,default=1)
    ap.add_argument("--prio",type=int,default=4)
    ap.add_argument("--pf",type=int,default=3)
    ap.add_argument("--npro",type=int,default=2)
    ap.add_argument("--lead",type=int,default=1500)
    ap.add_argument("--nrounds",type=int,default=0)
    ap.add_argument("--bar",type=int,default=0)
    ap.add_argument("--k1stage",type=int,default=1)
    ap.add_argument("--k1wt",type=int,default=1)
    ap.add_argument("--k1pf",type=int,default=0)
    ap.add_argument("--pfat",default="recs")
    ap.add_argument("--k1l2",type=int,default=0)
    ap.add_argument("--outwt",type=int,default=1)
    ap.add_argument("--codepf",type=int,default=1)
    ap.add_argument("--k1rows",type=int,default=10000)
    ap.add_argument("--fused",type=int,default=0)
    ap.add_argument("--fpf",type=int,default=1)
    ap.add_argument("--sleep",type=int,default=0)
    ap.add_argument("--nfast",type=int,default=245)
    ap.add_argument("--pfsplit",type=int,default=0)
    ap.add_argument("--tl",type=int,default=0)
    ap.add_argument("--pfat2",default="bar4")
    ap.add_argument("--sfast",type=int,default=8)
    P=ap.parse_args()
    hdr=open("standalone__tensor_product_equiv_tfn__graph.s.ref").read().split("; Override")[0]
    A=Asm()
    A.L.append(hdr.rstrip("\n"))
    if P.fused:
        A.L.append(f"; @launch grid=({NB},1,1) block=(1024,1,1) lds={K2_LDS}")
    else:
        A.L.append(f"; @launch kernel=tfn_bin_kernel grid=({NC+K1_CONST_WGS},1,1) block=({K1_THREADS},1,1) lds={2048+CH*20 if P.k1stage else 2048}")
        A.L.append(f"; @launch kernel=standalone__tensor_product_equiv_tfn__graph_kernel grid=({NB},1,1) block=(1024,1,1) lds={K2_LDS}")
    A('.amdgcn_target "amdgcn-amd-amdhsa--gfx950"')
    A(".text")
    if not P.fused: A(".globl tfn_bin_kernel")
    A(".globl standalone__tensor_product_equiv_tfn__graph_kernel")
    if not P.fused: gen_k1(A,P)
    nv=gen_k2(A,P)
    A('.section .rodata,"a"')
    A(".p2align 6")
    s=A.text()+("" if P.fused else kd("tfn_bin_kernel",72,102 if P.stamps else 40)+".p2align 6\n")+kd("standalone__tensor_product_equiv_tfn__graph_kernel",nv,102 if P.stamps else 80)
    open(P.o,"w").write(s)
    print("wrote",P.o,len(s),"bytes")
main()
```

```python
import sys, struct, argparse

N=10000; E=320000; C=128
NPB=40
NB=250
NC=250
CH=1280
K1_THREADS=320
K1_CONST_WGS=8
import os
WS_BASE=int(os.environ.get("WSBASE","0"),0)
WS_KEYS=WS_BASE; WS_PAY=WS_BASE+0x140000; WS_CELL=WS_BASE+0x630000; WS_CONST=WS_BASE+0x680000; WS_FLAG=WS_BASE+0x6A0000
CONST_WF=0; CONST_CG=2048; CONST_WM=4096
LOG2E=1.4426950408889634; LN2=0.6931471805599453
def f2u(f): return struct.unpack("<I",struct.pack("<f",f))[0]

class Asm:
    def __init__(s): s.L=[]
    def __call__(s,x=""):
        for l in x.split("\n"):
            s.L.append(l if (l.endswith(":") or l.startswith(".") or l=="" ) else "    "+l)
    def c(s,x): s.L.append("    ; "+x)
    def label(s,x): s.L.append(x+":")
    def text(s): return "\n".join(s.L)+"\n"

def vr(a,n=1): return f"v{a}" if n==1 else f"v[{a}:{a+n-1}]"
def sr(a,n=1): return f"s{a}" if n==1 else f"s[{a}:{a+n-1}]"

WS_STAMP=0x800000
class Stamps:
    def __init__(s,A,on,kn,base_sgpr=int(os.environ.get('STBASE','82')),tmp=int(os.environ.get('STTMP','80'))): s.A=A; s.on=on; s.n=0; s.base=base_sgpr; s.tmp=tmp; s.kn=kn
    def mark(s,name=""):
        if not s.on: return
        A=s.A
        A(f"s_memrealtime s[{s.tmp}:{s.tmp+1}]")
        A("s_waitcnt lgkmcnt(0)")
        A(f"s_mov_b32 s{s.base+s.n}, s{s.tmp}")
        s.n+=1
    def markc(s,name=""):
        if not s.on: return
        A=s.A
        A(f"s_memtime s[{s.tmp}:{s.tmp+1}]")
        A("s_waitcnt lgkmcnt(0)")
        A(f"s_mov_b32 s{s.base+s.n}, s{s.tmp}")
        s.n+=1
    def dump(s,wsreg,kernel,wgreg,wavereg,vtmp):
        if not s.on: return
        A=s.A
        A(f"s_lshl_b32 s{s.tmp}, s{wgreg}, 4"); A(f"s_add_u32 s{s.tmp}, s{s.tmp}, s{wavereg}"); A(f"s_lshl_b32 s{s.tmp}, s{s.tmp}, 7")
        A(f"s_add_u32 s{s.tmp}, s{s.tmp}, {WS_STAMP+kernel*0x100000}")
        A(f"s_add_u32 s{s.tmp}, s{wsreg}, s{s.tmp}"); A(f"s_addc_u32 s{s.tmp+1}, s{wsreg+1}, 0")
        A(f"v_mov_b32 v{vtmp}, 0")
        for i in range(s.n):
            A(f"v_mov_b32 v{vtmp+1}, s{s.base+i}")
            A(f"global_store_dword v{vtmp}, v{vtmp+1}, s[{s.tmp}:{s.tmp+1}] offset:{4*i}")
            A("s_nop 1")

def dpp_scan(A,v,nrows=4):
    for sh in (1,2,4,8):
        A("s_nop 1")
        A(f"v_add_u32_dpp v{v}, v{v}, v{v} row_shr:{sh} row_mask:0xf bank_mask:0xf bound_ctrl:1")
    if nrows>=2:
        A("s_nop 1")
        A(f"v_add_u32_dpp v{v}, v{v}, v{v} row_bcast:15 row_mask:0xa bank_mask:0xf")
    if nrows>=4:
        A("s_nop 1")
        A(f"v_add_u32_dpp v{v}, v{v}, v{v} row_bcast:31 row_mask:0xc bank_mask:0xf")

def gen_k1(A,P):
    B=P.B
    blkmul={32:209,16:104,64:419}[B]
    assert ((N-1)*blkmul)>>16 < B
    for d in range(N):
        b=(d*52429)>>21; assert b==d//40
    for dl in range(40): assert (dl*205)>>10==dl//5
    A(".p2align 8")
    A(".type tfn_bin_kernel,@function")
    A.label("tfn_bin_kernel")
    A(f"s_cmp_ge_u32 s2, {NC+K1_CONST_WGS}")
    A("s_cbranch_scc1 K1_END")
    A("s_load_dwordx4 s[4:7], s[0:1], 8")
    A("s_load_dwordx4 s[8:11], s[0:1], 24")
    A("s_load_dwordx2 s[12:13], s[0:1], 80")
    if P.k1pf: A("s_load_dwordx2 s[32:33], s[0:1], 0")
    A(f"s_cmp_ge_u32 s2, {NC}")
    A("s_cbranch_scc1 K1_CONST")
    ST=Stamps(A,P.stamps,"K1")
    ST.mark("start")
    if P.tl:
        A("s_memrealtime s[38:39]"); A("s_waitcnt lgkmcnt(0)")
    A(f"s_mul_i32 s14, s2, {CH*4}")
    A("v_lshlrev_b32 v1, 4, v0")
    A("v_add_u32 v1, s14, v1")
    A("v_lshlrev_b32 v2, 1, v1")
    A("v_lshlrev_b32 v3, 2, v0")
    A("v_mov_b32 v4, 0")
    A("v_mov_b32 v5, 1")
    A("v_cmp_gt_u32 vcc, 0x100, v0")
    A("s_and_saveexec_b64 s[16:17], vcc")
    A("s_cbranch_execz K1_NOZ")
    A("ds_write_b32 v3, v4")
    A.label("K1_NOZ")
    A("s_mov_b64 exec, s[16:17]")
    A("s_waitcnt lgkmcnt(0)")
    A("global_load_dwordx4 v[8:11], v1, s[6:7]")
    A("global_load_dwordx4 v[12:15], v1, s[4:5]")
    A("global_load_dwordx4 v[16:19], v2, s[8:9]")
    A("global_load_dwordx4 v[20:23], v2, s[8:9] offset:16")
    A("global_load_dwordx4 v[24:27], v2, s[10:11]")
    A("global_load_dwordx4 v[28:31], v2, s[10:11] offset:16")
    def k1pf():
        if P.k1l2==0:
            per=(P.k1rows*8+249)//250
            A(f"s_mul_i32 s34, s2, {per*128}")
            A("v_lshlrev_b32 v68, 7, v0"); A("v_add_u32 v68, s34, v68")
            if per<320:
                A(f"v_cmp_gt_u32 vcc, {per}, v0"); A("s_and_saveexec_b64 s[36:37], vcc"); A("s_cbranch_execz K1_NOPF")
            A("global_load_dword v69, v68, s[32:33]")
            if per<320:
                A.label("K1_NOPF"); A("s_mov_b64 exec, s[36:37]")
        else:
            A("s_lshr_b32 s34, s2, 3"); A(f"s_mul_i32 s34, s34, {320*128}")
            A("v_lshlrev_b32 v68, 7, v0"); A("v_add_u32 v68, s34, v68")
            for q in range(P.k1l2):
                A("global_load_dword v69, v68, s[32:33]")
                A(f"v_add_u32 v68, {10240*128}, v68")
            rem=80000-10240*P.k1l2; per=(rem+249)//250
            assert per<=320
            A(f"s_mul_i32 s34, s2, {per}"); A(f"s_add_u32 s34, s34, {10240*P.k1l2}")
            A("v_add_u32 v70, s34, v0")
            A(f"v_cmp_gt_u32 vcc, {per}, v0"); A(f"s_mov_b32 s35, 80000"); A("v_cmp_gt_u32 s[36:37], s35, v70"); A("s_and_b64 vcc, vcc, s[36:37]")
            A("v_lshlrev_b32 v70, 7, v70")
            A("s_and_saveexec_b64 s[36:37], vcc")
            A("s_cbranch_execz K1_NOPF")
            A("global_load_dword v71, v70, s[32:33]")
            A.label("K1_NOPF")
            A("s_mov_b64 exec, s[36:37]")
    if P.k1pf==1: k1pf()
    A(f"s_mul_i32 s15, s2, {CH*16}")
    A(f"s_add_u32 s18, s12, {WS_KEYS}"); A("s_addc_u32 s19, s13, 0")
    A("s_add_u32 s18, s18, s14"); A("s_addc_u32 s19, s19, 0")
    A(f"s_add_u32 s20, s12, {WS_PAY}"); A("s_addc_u32 s21, s13, 0")
    A("s_add_u32 s20, s20, s15"); A("s_addc_u32 s21, s21, 0")
    A("s_lshl_b32 s15, s2, 2")
    A(f"s_add_u32 s22, s12, {WS_CELL}"); A("s_addc_u32 s23, s13, 0")
    A("s_add_u32 s22, s22, s15"); A("s_addc_u32 s23, s23, 0")
    A("s_movk_i32 s24, -40")
    A("v_lshrrev_b32 v6, 6, v0")
    A("v_and_b32 v7, 63, v0")
    A("v_readfirstlane_b32 s25, v6")
    A("s_barrier")
    A(f"s_waitcnt vmcnt({5 if P.k1pf==1 else 4})")
    ST.mark("ld")
    for i in range(4):
        d=8+i; s=12+i
        A(f"v_mul_u32_u24 v44, 0xcccd, v{d}")
        A("v_lshrrev_b32 v44, 21, v44")
        A(f"v_mad_i32_i24 v45, v44, s24, v{d}")
        A(f"v_lshlrev_b32 v{36+i}, 2, v44")
        A(f"ds_add_rtn_u32 v{40+i}, v{36+i}, v5")
        A("v_mul_u32_u24 v46, 0xcd, v45")
        A("v_lshrrev_b32 v46, 10, v46")
        A("v_mad_i32_i24 v47, v46, -5, v45")
        A(f"v_mul_u32_u24 v48, {blkmul}, v{s}")
        A("v_lshrrev_b32 v48, 16, v48")
        if P.rot:
            A("v_mul_u32_u24 v49, 2098, v44"); A("v_lshrrev_b32 v49, 16, v49")
            A(f"v_mul_u32_u24 v49, {(B//8)*P.rot}, v49")
            A("v_add_u32 v48, v48, v49")
            A(f"v_and_b32 v48, {B-1}, v48")
        sh={16:4,32:5,64:6}[B]
        A(f"v_lshl_add_u32 v48, v46, {sh}, v48")
        A(f"v_lshl_or_b32 v{32+i}, v47, 14, v{s}")
        A(f"v_lshl_or_b32 v{32+i}, v48, 17, v{32+i}")
    A(f"s_waitcnt vmcnt({1 if P.k1pf==1 else 0})")
    A("v_swap_b32 v18, v24"); A("v_swap_b32 v19, v25"); A("v_swap_b32 v22, v28"); A("v_swap_b32 v23, v29")
    pay=[16,24,20,28]
    A("v_lshlrev_b32 v50, 4, v7")
    A("s_waitcnt lgkmcnt(0)")
    A("s_barrier")
    ST.mark("hist")
    if P.k1pf==2: k1pf()
    A("ds_read_b128 v[52:55], v50")
    A("s_waitcnt lgkmcnt(0)")
    A("v_add_u32 v56, v52, v53")
    A("v_add_u32 v57, v56, v54")
    A("v_add_u32 v58, v57, v55")
    A("v_mov_b32 v59, v58")
    dpp_scan(A,59)
    A("v_sub_u32 v60, v59, v58")
    A("v_add_u32 v61, v60, v52")
    A("v_add_u32 v62, v60, v56")
    A("v_add_u32 v63, v60, v57")
    A("ds_write_b128 v50, v[60:63] offset:1024")
    for i in range(4):
        A(f"s_cmp_lg_u32 s25, {i}")
        A(f"s_cbranch_scc1 K1_CS{i}")
        A(f"v_lshl_or_b32 v64, v{52+i}, 16, v{60+i}")
        A(f"v_lshlrev_b32 v65, 12, v7")
        if i: A(f"v_add_u32 v65, {i*1024}, v65")
        A(f"v_cmp_gt_u32 vcc, {(NB-i+3)//4}, v7")
        A("s_and_saveexec_b64 s[16:17], vcc")
        A("global_store_dword v65, v64, s[22:23]")
        A(f"s_cmp_ge_u32 s2, {256-NC}")
        A(f"s_cbranch_scc1 K1_CZ{i}")
        A(f"global_store_dword v65, v4, s[22:23] offset:{NC*4}")
        A.label(f"K1_CZ{i}")
        A("s_mov_b64 exec, s[16:17]")
        A.label(f"K1_CS{i}")
    A("s_waitcnt lgkmcnt(0)")
    for i in range(4): A(f"ds_read_b32 v{44+i}, v{36+i} offset:1024")
    if not P.k1stage:
        for i in range(4):
            A(f"s_waitcnt lgkmcnt({3-i})")
            A(f"v_add_u32 v{44+i}, v{44+i}, v{40+i}")
            A(f"v_lshlrev_b32 v48, 2, v{44+i}")
            A(f"v_lshlrev_b32 v49, 4, v{44+i}")
            A(f"global_store_dwordx4 v49, v[{pay[i]}:{pay[i]+3}], s[20:21]")
            A(f"global_store_dword v48, v{32+i}, s[18:19]")
            A("s_nop 1")
    else:
        KST=2048; PST=KST+CH*4
        fl={0:"",1:" sc1",2:" sc0 sc1",3:" nt"}[P.k1wt]
        for i in range(4):
            A(f"s_waitcnt lgkmcnt({3-i+2*i})")
            A(f"v_add_u32 v{44+i}, v{44+i}, v{40+i}")
            A(f"v_lshlrev_b32 v48, 2, v{44+i}")
            A(f"v_lshlrev_b32 v49, 4, v{44+i}")
            A(f"ds_write_b128 v49, v[{pay[i]}:{pay[i]+3}] offset:{PST}")
            A(f"ds_write_b32 v48, v{32+i} offset:{KST}")
        A("v_lshlrev_b32 v50, 4, v0")
        A("s_waitcnt lgkmcnt(0)")
        A("s_barrier")
        A(f"ds_read_b128 v[8:11], v50 offset:{KST}")
        for q in range(4): A(f"ds_read_b128 v[{12+4*q}:{15+4*q}], v50 offset:{PST+q*5120}")
        A("v_add_u32 v51, 5120, v50"); A("v_add_u32 v52, 10240, v50"); A("v_add_u32 v53, 15360, v50")
        A("s_waitcnt lgkmcnt(4)")
        A(f"global_store_dwordx4 v50, v[8:11], s[18:19]{fl}")
        for q in range(4):
            A(f"s_waitcnt lgkmcnt({3-q})")
            A(f"global_store_dwordx4 v{50+q}, v[{12+4*q}:{15+4*q}], s[20:21]{fl}")
    if P.k1pf==3: k1pf()
    if P.tl:
        A("s_waitcnt vmcnt(0)"); A("s_memrealtime s[34:35]"); A("s_waitcnt lgkmcnt(0)")
        A("s_cmp_lg_u32 s25, 0"); A("s_cbranch_scc1 K1_TLX")
        A("s_lshl_b32 s36, s2, 3"); A("s_add_u32 s36, s36, 0x7F0000")
        A("v_mov_b32 v68, s38"); A("v_mov_b32 v69, s34"); A("v_mov_b32 v70, s36")
        A("global_store_dwordx2 v70, v[68:69], s[12:13]")
        A.label("K1_TLX")
    ST.mark("iss")
    if P.stamps:
        A("s_waitcnt vmcnt(0)")
        ST.mark("done")
        ST.dump(12,0,2,25,66)
    A("s_endpgm")
    A.label("K1_CONST")
    A("s_load_dwordx2 s[26:27], s[0:1], 40")
    A("s_load_dwordx4 s[28:31], s[0:1], 48")
    A("v_lshrrev_b32 v6, 6, v0")
    A("s_nop 0")
    A("v_readfirstlane_b32 s25, v6")
    A(f"s_sub_u32 s14, s2, {NC}")
    A("v_and_b32 v7, 63, v0")
    A("s_waitcnt lgkmcnt(0)")
    A(f"s_add_u32 s18, s12, {WS_CONST}"); A("s_addc_u32 s19, s13, 0")
    A("s_cmp_eq_u32 s25, 4")
    A("s_cbranch_scc1 K1_CW4")
    A("s_and_b32 s15, s14, 1")
    A("s_lshr_b32 s16, s14, 1")
    A("s_lshl_b32 s16, s16, 5"); A("s_add_u32 s16, s16, s15")
    A("v_and_b32 v1, 15, v7"); A("v_lshlrev_b32 v1, 1, v1"); A("v_add_u32 v1, s16, v1")
    A("v_lshrrev_b32 v2, 4, v7"); A("v_lshlrev_b32 v2, 3, v2")
    A("s_lshl_b32 s17, s25, 5"); A("v_add_u32 v2, s17, v2")
    A("v_lshlrev_b32 v2, 7, v2"); A("v_add_u32 v2, v2, v1"); A("v_lshlrev_b32 v2, 1, v2")
    for r in range(8): A(f"global_load_ushort v{8+r}, v2, s[30:31] offset:{r*256}")
    A("s_lshl_b32 s17, s14, 12")
    A("v_lshlrev_b32 v3, 4, v0"); A("v_add_u32 v3, s17, v3"); A(f"v_add_u32 v3, {CONST_WM}, v3")
    A("s_waitcnt vmcnt(0)")
    for r in range(4): A(f"v_lshl_or_b32 v{16+r}, v{9+2*r}, 16, v{8+2*r}")
    A("global_store_dwordx4 v3, v[16:19], s[18:19]")
    A("s_endpgm")
    A.label("K1_CW4")
    A("s_cmp_eq_u32 s14, 0"); A("s_cbranch_scc1 K1_WF")
    A("s_cmp_eq_u32 s14, 1"); A("s_cbranch_scc1 K1_CG")
    if P.codepf&1:
        A("s_cmp_eq_u32 s14, 2"); A("s_cbranch_scc0 K1_CPX")
        A("s_getpc_b64 s[34:35]")
        A.label("K1_PC")
        A("s_add_u32 s34, s34, standalone__tensor_product_equiv_tfn__graph_kernel-K1_PC"); A("s_addc_u32 s35, s35, 0")
        A("v_lshlrev_b32 v1, 7, v7")
        for q in range(2):
            A(f"v_add_u32 v2, {q*8192}, v1")
            A(f"v_cmp_gt_u32 vcc, K2_CODE_END-standalone__tensor_product_equiv_tfn__graph_kernel, v2")
            A("s_and_saveexec_b64 s[36:37], vcc")
            A(f"s_cbranch_execz K1_CPS{q}")
            A(f"global_load_dword v{8+q}, v2, s[34:35]")
            A.label(f"K1_CPS{q}")
            A("s_mov_b64 exec, s[36:37]")
        A.label("K1_CPX")
    A("s_endpgm")
    A.label("K1_WF")
    A("v_lshlrev_b32 v1, 2, v7")
    for k in range(4): A(f"global_load_dword v{8+k}, v1, s[26:27] offset:{k*256}")
    A(f"s_mov_b32 s15, 0x{f2u(-LOG2E):08x}")
    A("s_mov_b32 s16, 0xffff0000")
    A("s_waitcnt vmcnt(0)")
    for k in range(4):
        A(f"v_lshlrev_b32 v{12+k}, 16, v{8+k}")
        A(f"v_and_b32 v{16+k}, s16, v{8+k}")
    for k in range(8): A(f"v_mul_f32 v{12+k}, s15, v{12+k}")
    A("v_cvt_pk_bf16_f32 v20, v12, v13"); A("v_cvt_pk_bf16_f32 v21, v14, v15")
    A("v_cvt_pk_bf16_f32 v22, v16, v17"); A("v_cvt_pk_bf16_f32 v23, v18, v19")
    for q in range(4):
        A(f"v_lshlrev_b32 v28, 16, v{20+q}")
        A(f"v_and_b32 v29, s16, v{20+q}")
        A(f"v_sub_f32 v28, v{12+2*q}, v28")
        A(f"v_sub_f32 v29, v{13+2*q}, v29")
        A(f"v_cvt_pk_bf16_f32 v{24+q}, v28, v29")
    A("v_lshlrev_b32 v3, 5, v7")
    A(f"global_store_dwordx4 v3, v[20:23], s[18:19] offset:{CONST_WF}")
    A(f"global_store_dwordx4 v3, v[24:27], s[18:19] offset:{CONST_WF+16}")
    A("s_endpgm")
    A.label("K1_CG")
    A("v_and_b32 v1, 3, v7"); A("v_lshlrev_b32 v1, 5, v1")
    for f in range(4): A(f"global_load_dwordx2 v[{8+2*f}:{9+2*f}], v1, s[28:29] offset:{f*8}")
    A("s_mov_b32 s15, 0x05040100"); A("s_mov_b32 s16, 0x07060302")
    A("s_waitcnt vmcnt(0)")
    for o in range(4):
        sel="s15" if o%2==0 else "s16"; h=o//2
        A(f"v_perm_b32 v{16+2*o}, v{10+h}, v{8+h}, {sel}")
        A(f"v_perm_b32 v{17+2*o}, v{14+h}, v{12+h}, {sel}")
    A("v_lshlrev_b32 v3, 5, v7"); A(f"v_add_u32 v3, {CONST_CG}, v3")
    A("global_store_dwordx4 v3, v[16:19], s[18:19]")
    A("global_store_dwordx4 v3, v[20:23], s[18:19] offset:16")
    A.label("K1_END")
    A("s_endpgm")


def gen_phase1(A,P,ST):
    B=P.B
    blkmul={32:209,16:104,64:419}[B]
    A("s_load_dwordx4 s[4:7], s[0:1], 8")
    A("s_load_dwordx4 s[8:11], s[0:1], 24")
    A("s_load_dwordx2 s[12:13], s[0:1], 80")
    A("s_load_dwordx2 s[26:27], s[0:1], 40")
    A("s_load_dwordx4 s[28:31], s[0:1], 48")
    A("s_load_dwordx2 s[32:33], s[0:1], 0")
    A("s_load_dwordx2 s[72:73], s[0:1], 72")
    A("v_lshrrev_b32 v6, 6, v0")
    A("v_and_b32 v7, 63, v0")
    A("v_readfirstlane_b32 s25, v6")
    A("s_nop 3")
    A("s_cmp_ge_u32 s25, 5")
    A("s_cbranch_scc1 F_OTHER")
    A(f"s_mul_i32 s14, s2, {CH*4}")
    A("v_lshlrev_b32 v1, 4, v0")
    A("v_add_u32 v1, s14, v1")
    A("v_lshlrev_b32 v2, 1, v1")
    A("v_lshlrev_b32 v3, 2, v0")
    A("v_mov_b32 v4, 0")
    A("v_mov_b32 v5, 1")
    A("v_cmp_gt_u32 vcc, 0x100, v0")
    A("s_and_saveexec_b64 s[16:17], vcc")
    A("s_cbranch_execz F_NOZ")
    A("ds_write_b32 v3, v4")
    A.label("F_NOZ")
    A("s_mov_b64 exec, s[16:17]")
    A("s_waitcnt lgkmcnt(0)")
    A("global_load_dwordx4 v[8:11], v1, s[6:7]")
    A("global_load_dwordx4 v[12:15], v1, s[4:5]")
    A("global_load_dwordx4 v[16:19], v2, s[8:9]")
    A("global_load_dwordx4 v[20:23], v2, s[8:9] offset:16")
    A("global_load_dwordx4 v[24:27], v2, s[10:11]")
    A("global_load_dwordx4 v[28:31], v2, s[10:11] offset:16")
    A(f"s_mul_i32 s15, s2, {CH*16}")
    A(f"s_add_u32 s18, s12, {WS_KEYS}"); A("s_addc_u32 s19, s13, 0")
    A("s_add_u32 s18, s18, s14"); A("s_addc_u32 s19, s19, 0")
    A(f"s_add_u32 s20, s12, {WS_PAY}"); A("s_addc_u32 s21, s13, 0")
    A("s_add_u32 s20, s20, s15"); A("s_addc_u32 s21, s21, 0")
    A("s_lshl_b32 s15, s2, 10")
    A(f"s_add_u32 s22, s12, {WS_CELL}"); A("s_addc_u32 s23, s13, 0")
    A("s_add_u32 s22, s22, s15"); A("s_addc_u32 s23, s23, 0")
    A("s_movk_i32 s24, -40")
    A("s_barrier")
    A("s_waitcnt vmcnt(4)")
    for i in range(4):
        d=8+i; s=12+i
        A(f"v_mul_u32_u24 v44, 0xcccd, v{d}")
        A("v_lshrrev_b32 v44, 21, v44")
        A(f"v_mad_i32_i24 v45, v44, s24, v{d}")
        A(f"v_lshlrev_b32 v{36+i}, 2, v44")
        A(f"ds_add_rtn_u32 v{40+i}, v{36+i}, v5")
        A("v_mul_u32_u24 v46, 0xcd, v45")
        A("v_lshrrev_b32 v46, 10, v46")
        A("v_mad_i32_i24 v47, v46, -5, v45")
        A(f"v_mul_u32_u24 v48, {blkmul}, v{s}")
        A("v_lshrrev_b32 v48, 16, v48")
        sh={16:4,32:5,64:6}[B]
        A(f"v_lshl_add_u32 v48, v46, {sh}, v48")
        A(f"v_lshl_or_b32 v{32+i}, v47, 14, v{s}")
        A(f"v_lshl_or_b32 v{32+i}, v48, 17, v{32+i}")
    A("s_waitcnt vmcnt(0)")
    A("v_swap_b32 v18, v24"); A("v_swap_b32 v19, v25"); A("v_swap_b32 v22, v28"); A("v_swap_b32 v23, v29")
    pay=[16,24,20,28]
    A("v_lshlrev_b32 v50, 4, v7")
    A("s_waitcnt lgkmcnt(0)")
    A("s_barrier")
    ST.mark("hist")
    A("ds_read_b128 v[52:55], v50")
    A("s_waitcnt lgkmcnt(0)")
    A("v_add_u32 v56, v52, v53"); A("v_add_u32 v57, v56, v54"); A("v_add_u32 v58, v57, v55"); A("v_mov_b32 v59, v58")
    dpp_scan(A,59)
    A("v_sub_u32 v60, v59, v58"); A("v_add_u32 v61, v60, v52"); A("v_add_u32 v62, v60, v56"); A("v_add_u32 v63, v60, v57")
    A("ds_write_b128 v50, v[60:63] offset:1024")
    A("s_cmp_lg_u32 s25, 0")
    A("s_cbranch_scc1 F_CS")
    for i in range(4): A(f"v_lshl_or_b32 v{64+i}, v{52+i}, 16, v{60+i}")
    A("global_store_dwordx4 v50, v[64:67], s[22:23] sc1")
    A.label("F_CS")
    A("s_waitcnt lgkmcnt(0)")
    for i in range(4): A(f"ds_read_b32 v{44+i}, v{36+i} offset:1024")
    KST=2048; PST=KST+CH*4
    for i in range(4):
        A(f"s_waitcnt lgkmcnt({3-i+2*i})")
        A(f"v_add_u32 v{44+i}, v{44+i}, v{40+i}")
        A(f"v_lshlrev_b32 v48, 2, v{44+i}")
        A(f"v_lshlrev_b32 v49, 4, v{44+i}")
        A(f"ds_write_b128 v49, v[{pay[i]}:{pay[i]+3}] offset:{PST}")
        A(f"ds_write_b32 v48, v{32+i} offset:{KST}")
    A("v_lshlrev_b32 v50, 4, v0")
    A("s_waitcnt lgkmcnt(0)")
    A("s_barrier")
    A(f"ds_read_b128 v[8:11], v50 offset:{KST}")
    for q in range(4): A(f"ds_read_b128 v[{12+4*q}:{15+4*q}], v50 offset:{PST+q*5120}")
    A("v_add_u32 v51, 5120, v50"); A("v_add_u32 v52, 10240, v50"); A("v_add_u32 v53, 15360, v50")
    A("s_waitcnt lgkmcnt(4)")
    A("global_store_dwordx4 v50, v[8:11], s[18:19] sc1")
    for q in range(4):
        A(f"s_waitcnt lgkmcnt({3-q})")
        A(f"global_store_dwordx4 v{50+q}, v[{12+4*q}:{15+4*q}], s[20:21] sc1")
    if P.flags:
        A("s_cmp_lg_u32 s25, 0"); A("s_cbranch_scc1 F_JOIN")
        A("v_mov_b32 v66, 0"); A("global_load_dword v67, v66, s[72:73] sc1")
    ST.mark("iss1")
    A("s_branch F_JOIN")
    A.label("F_OTHER")
    A("s_waitcnt lgkmcnt(0)")
    A(f"s_add_u32 s18, s12, {WS_CONST}"); A("s_addc_u32 s19, s13, 0")
    if P.flags:
        A("s_cmp_lg_u32 s2, 0"); A("s_cbranch_scc1 F_NN"); A("s_cmp_lg_u32 s25, 9"); A("s_cbranch_scc1 F_NN")
        A("s_memrealtime s[38:39]"); A("s_waitcnt lgkmcnt(0)"); A("s_or_b32 s38, s38, 1")
        A("v_mov_b32 v1, 0"); A("v_mov_b32 v2, s38")
        A("v_cmp_eq_u32 vcc, 0, v7"); A("s_and_saveexec_b64 s[16:17], vcc")
        A("global_store_dword v1, v2, s[72:73] sc1")
        A("s_mov_b64 exec, s[16:17]")
        A.label("F_NN")
    A("s_mov_b32 s36, 0")
    A("s_cmp_ge_u32 s25, 9"); A("s_cbranch_scc1 F_R0")
    A("s_cmp_lt_u32 s2, 8"); A("s_cbranch_scc1 F_RW")
    A("s_cmp_lg_u32 s25, 5"); A("s_cbranch_scc1 F_R0")
    A("s_cmp_eq_u32 s2, 8"); A("s_cbranch_scc1 F_RF")
    A("s_cmp_eq_u32 s2, 9"); A("s_cbranch_scc1 F_RC")
    A("s_branch F_R0")
    A.label("F_RW")
    A("s_mov_b32 s36, 1")
    A("s_sub_u32 s14, s25, 5")
    A("s_and_b32 s15, s2, 1"); A("s_lshr_b32 s16, s2, 1"); A("s_lshl_b32 s16, s16, 5"); A("s_add_u32 s16, s16, s15")
    A("v_and_b32 v1, 15, v7"); A("v_lshlrev_b32 v1, 1, v1"); A("v_add_u32 v1, s16, v1")
    A("v_lshrrev_b32 v2, 4, v7"); A("v_lshlrev_b32 v2, 3, v2")
    A("s_lshl_b32 s17, s14, 5"); A("v_add_u32 v2, s17, v2")
    A("v_lshlrev_b32 v2, 7, v2"); A("v_add_u32 v2, v2, v1"); A("v_lshlrev_b32 v2, 1, v2")
    for r in range(8): A(f"global_load_ushort v{8+r}, v2, s[30:31] offset:{r*256}")
    A("s_branch F_R0")
    A.label("F_RF")
    A("s_mov_b32 s36, 2")
    A("v_lshlrev_b32 v1, 2, v7")
    for k in range(4): A(f"global_load_dword v{8+k}, v1, s[26:27] offset:{k*256}")
    A("s_branch F_R0")
    A.label("F_RC")
    A("s_mov_b32 s36, 3")
    A("v_and_b32 v1, 3, v7"); A("v_lshlrev_b32 v1, 5, v1")
    for f in range(4): A(f"global_load_dwordx2 v[{8+2*f}:{9+2*f}], v1, s[28:29] offset:{f*8}")
    A.label("F_R0")
    A("s_barrier")
    A("s_barrier")
    A("s_cmp_eq_u32 s36, 0"); A("s_cbranch_scc1 F_RD")
    A("s_waitcnt vmcnt(0)")
    A("s_cmp_eq_u32 s36, 2"); A("s_cbranch_scc1 F_RF2")
    A("s_cmp_eq_u32 s36, 3"); A("s_cbranch_scc1 F_RC2")
    A("s_lshl_b32 s17, s2, 12"); A("s_lshl_b32 s15, s14, 10"); A("s_add_u32 s17, s17, s15"); A(f"s_add_u32 s17, s17, {CONST_WM}")
    A("v_lshlrev_b32 v3, 4, v7"); A("v_add_u32 v3, s17, v3")
    for r in range(4): A(f"v_lshl_or_b32 v{16+r}, v{9+2*r}, 16, v{8+2*r}")
    A("global_store_dwordx4 v3, v[16:19], s[18:19] sc1")
    A("s_branch F_RD")
    A.label("F_RF2")
    A(f"s_mov_b32 s15, 0x{f2u(-LOG2E):08x}"); A("s_mov_b32 s16, 0xffff0000")
    for k in range(4):
        A(f"v_lshlrev_b32 v{12+k}, 16, v{8+k}"); A(f"v_and_b32 v{16+k}, s16, v{8+k}")
    for k in range(8): A(f"v_mul_f32 v{12+k}, s15, v{12+k}")
    A("v_cvt_pk_bf16_f32 v20, v12, v13"); A("v_cvt_pk_bf16_f32 v21, v14, v15")
    A("v_cvt_pk_bf16_f32 v22, v16, v17"); A("v_cvt_pk_bf16_f32 v23, v18, v19")
    for q in range(4):
        A(f"v_lshlrev_b32 v28, 16, v{20+q}"); A(f"v_and_b32 v29, s16, v{20+q}")
        A(f"v_sub_f32 v28, v{12+2*q}, v28"); A(f"v_sub_f32 v29, v{13+2*q}, v29")
        A(f"v_cvt_pk_bf16_f32 v{24+q}, v28, v29")
    A("v_lshlrev_b32 v3, 5, v7")
    A(f"global_store_dwordx4 v3, v[20:23], s[18:19] offset:{CONST_WF} sc1")
    A(f"global_store_dwordx4 v3, v[24:27], s[18:19] offset:{CONST_WF+16} sc1")
    A("s_branch F_RD")
    A.label("F_RC2")
    A("s_mov_b32 s15, 0x05040100"); A("s_mov_b32 s16, 0x07060302")
    for o in range(4):
        sel="s15" if o%2==0 else "s16"; h=o//2
        A(f"v_perm_b32 v{16+2*o}, v{10+h}, v{8+h}, {sel}")
        A(f"v_perm_b32 v{17+2*o}, v{14+h}, v{12+h}, {sel}")
    A("v_lshlrev_b32 v3, 5, v7"); A(f"v_add_u32 v3, {CONST_CG}, v3")
    A("global_store_dwordx4 v3, v[16:19], s[18:19] sc1")
    A("global_store_dwordx4 v3, v[20:23], s[18:19] offset:16 sc1")
    A.label("F_RD")
    A("s_barrier")
    if P.fpf:
        A("s_cmp_lt_u32 s25, 9"); A("s_cbranch_scc1 F_JOIN")
        A("s_cmp_ge_u32 s25, 14"); A("s_cbranch_scc1 F_JOIN")
        A(f"s_mul_i32 s14, s2, {320*128}"); A("s_sub_u32 s15, s25, 9"); A("s_lshl_b32 s15, s15, 13"); A("s_add_u32 s14, s14, s15")
        A("v_lshlrev_b32 v126, 7, v7"); A("v_add_u32 v126, s14, v126")
        A("global_load_dword v127, v126, s[32:33]")
        A("s_branch F_JOIN2")
    A.label("F_JOIN")
    A("s_waitcnt vmcnt(0)")
    A.label("F_JOIN2")
    A("s_barrier")
    ST.mark("barD")
    A("s_cmp_lg_u32 s25, 0"); A("s_cbranch_scc1 F_WAIT")
    if P.flags:
        A("s_mov_b32 s14, 0"); A("v_mov_b32 v1, 0")
        A("v_readfirstlane_b32 s74, v67"); A("s_nop 3"); A("s_cmp_lg_u32 s74, 0"); A("s_cbranch_scc1 F_GOTN")
        A.label("F_GETN")
        A("global_load_dword v2, v1, s[72:73] sc1"); A("s_waitcnt vmcnt(0)")
        A("v_readfirstlane_b32 s74, v2"); A("s_add_u32 s14, s14, 1")
        A("s_cmp_ge_u32 s14, 0x100000"); A("s_cbranch_scc1 F_GOTN")
        A("s_cmp_eq_u32 s74, 0"); A("s_cbranch_scc1 F_GETN")
        A.label("F_GOTN")
        A(f"s_add_u32 s76, s12, {WS_FLAG}"); A("s_addc_u32 s77, s13, 0")
        A("s_lshl_b32 s14, s2, 2"); A("v_lshlrev_b32 v1, 10, v7"); A("v_add_u32 v1, s14, v1"); A("v_mov_b32 v2, s74")
        A("v_cmp_gt_u32 vcc, 8, v7"); A("s_and_saveexec_b64 s[16:17], vcc")
        A("global_store_dword v1, v2, s[76:77] sc1")
        A("s_mov_b64 exec, s[16:17]")
    else:
        A("s_and_b32 s14, s2, 3"); A("s_lshl_b32 s14, s14, 6")
        A("v_mov_b32 v1, s14"); A("v_mov_b32 v2, 1")
        A("v_cmp_eq_u32 vcc, 0, v7"); A("s_and_saveexec_b64 s[16:17], vcc")
        A("global_atomic_add v1, v2, s[72:73]")
        A("s_mov_b64 exec, s[16:17]")
    A.label("F_WAIT")

NW=16; CAPW=160
LDS_IDX=0x0000
LDS_K=LDS_IDX+NW*CAPW*4
LDS_HIST=LDS_K+NW*CAPW
LDS_BASE=LDS_HIST+2048
LDS_FLAG=LDS_BASE+4096
LDS_MARK=LDS_FLAG+64
LDS_EF=LDS_MARK+8192+64
LDS_A=LDS_EF+NW*CAPW*8
LDS_CELL=LDS_A+NW*CAPW*32+1024
K2_LDS=LDS_CELL+1024
WINBIG=2048; WINSMALL=200; TOTMAX=CAPW-8
AGG_STRIDE=272
assert LDS_A%16==0 and LDS_EF%16==0 and LDS_MARK%4==0 and K2_LDS<=163840

def gen_k2(A,P):
    U=4; B=P.B
    SC=" sc1" if P.fused else ""
    nbins=8*B
    assert nbins*4<=2048 and nbins*8<=4096
    vTID=0; vLANE=1; vT0=2
    vAad=3; vEad=4; vIad=5; vKad=6; vK=7
    ACC=8
    WF=48
    PAIR=56
    X=64
    TP=80
    AOP=88; AOPN=90; EOP=92; EOPN=94
    UU=[96,104]; EE=112; RR=120
    NV=128
    REC0=64; CNT=68; BASEC=72; AT=64
    CG=80; KEY=88; RANK=90; PAY=92; AP=100; MK=116; BINA=118
    T=[2,3,4,5,6,7,120,121,122,123,124,125,126,127]
    WM=96
    sX=4; sOUT=6; sWS=8; sSRD=12; sW=16; sB=17; sT=18; sLO=19; sWIN=20; sNR=21; sKK=22; sH=23; sEX=24; sM=26; sG8=28; sWB=29
    sK=[32,33]; sN=34; sTOT=35; sTMP=36; sC=40; sLN2=44; sRG=46; sCGP=47; sKEY=48; sPAY=52; sCELL=56; sCONST=58; sRAW=60; sPFO=65; sPFT=66; sNB=67; sGB=68; sGM=69; sQ=70; sCHI=40
    name="standalone__tensor_product_equiv_tfn__graph_kernel"
    A(".p2align 8")
    A(f".type {name},@function")
    A.label(name)
    A(f"s_cmp_ge_u32 s2, {NB}")
    A("s_cbranch_scc1 K2_END")
    ST=Stamps(A,P.stamps,"K2")
    ST.mark("start")
    tlc=[0]
    def tl(off,inv=False):
        if not P.tl: return
        tlc[0]+=1
        A("s_memrealtime s[74:75]"); A("s_waitcnt lgkmcnt(0)")
        if inv: A("s_not_b32 s74, s74")
        A("v_mov_b32 v2, s74"); A("v_mov_b32 v3, 0")
        A("v_cmp_eq_u32 vcc, 0, v0"); A("s_and_saveexec_b64 s[76:77], vcc"); A(f"s_cbranch_execz K2_TL{tlc[0]}")
        A(f"global_atomic_umax v3, v2, s[72:73] offset:{off}")
        A.label(f"K2_TL{tlc[0]}"); A("s_mov_b64 exec, s[76:77]")
    if P.tl:
        A("s_load_dwordx2 s[72:73], s[0:1], 72"); A("s_waitcnt lgkmcnt(0)")
        tl(0,True)
    if P.fused: gen_phase1(A,P,ST)
    A(f"s_load_dwordx2 s[{sX}:{sX+1}], s[0:1], 0")
    A(f"s_load_dwordx2 s[{sOUT}:{sOUT+1}], s[0:1], 64")
    A(f"s_load_dwordx2 s[{sWS}:{sWS+1}], s[0:1], 80")
    A(f"v_and_b32 v{vLANE}, 63, v0")
    A(f"v_lshrrev_b32 v{T[0]}, 6, v0")
    A(f"v_lshlrev_b32 v{PAIR+1}, 4, v{vLANE}")
    A(f"v_readfirstlane_b32 s{sW}, v{T[0]}")
    for p in (3,5,7): A(f"v_mov_b32 v{PAIR+p}, v{PAIR+1}")
    if P.xmap:
        A(f"s_and_b32 s{sTMP}, s2, 7"); A(f"s_mul_i32 s{sB}, s{sTMP}, 31"); A(f"s_min_u32 s{sTMP}, s{sTMP}, 2")
        A(f"s_add_u32 s{sB}, s{sB}, s{sTMP}"); A(f"s_lshr_b32 s{sTMP}, s2, 3"); A(f"s_add_u32 s{sB}, s{sB}, s{sTMP}")
    else:
        A(f"s_mov_b32 s{sB}, s2")
    A(f"s_lshr_b32 s{sG8}, s{sW}, 1"); A(f"s_and_b32 s{sH}, s{sW}, 1"); A(f"s_mul_i32 s{sWB}, s{sW}, {CAPW}")
    for i in range(40): A(f"v_mov_b32 v{ACC+i}, 0")
    A("s_waitcnt lgkmcnt(0)")
    A(f"s_lshl_b32 s{sTMP}, s{sB}, {2 if P.fused else 10}")
    A(f"s_add_u32 s{sCELL}, s{sWS}, {WS_CELL}"); A(f"s_addc_u32 s{sCELL+1}, s{sWS+1}, 0")
    A(f"s_add_u32 s{sCELL}, s{sCELL}, s{sTMP}"); A(f"s_addc_u32 s{sCELL+1}, s{sCELL+1}, 0")
    A(f"s_add_u32 s{sCONST}, s{sWS}, {WS_CONST}"); A(f"s_addc_u32 s{sCONST+1}, s{sWS+1}, 0")
    A(f"s_mov_b32 s{sLO}, 0")
    A(f"s_mov_b32 s{sWIN}, {WINBIG}")
    for i in range(3): A(f"s_mov_b32 s{sCHI+i}, {(i+1)*CH}")
    if not P.fused:
        A(f"v_lshlrev_b32 v{T[1]}, 5, v{vLANE}")
        if P.fused:
            A(f"v_mov_b32 v{T[2]}, 0")
            A(f"s_cmp_ge_u32 s{sW}, 4"); A("s_cbranch_scc1 K2_NOCL")
            A(f"v_lshlrev_b32 v{T[3]}, 10, v0")
            A(f"v_cmp_gt_u32 vcc, {NC}, v0"); A(f"s_and_saveexec_b64 s[{sEX}:{sEX+1}], vcc")
            A(f"global_load_dword v{T[2]}, v{T[3]}, s[{sCELL}:{sCELL+1}] sc1")
            A("s_mov_b64 exec, -1")
            A.label("K2_NOCL")
        else:
            A(f"global_load_dwordx4 v[{CNT}:{CNT+3}], v{PAIR+1}, s[{sCELL}:{sCELL+1}]"+SC)
        A(f"global_load_dwordx4 v[{WF}:{WF+3}], v{T[1]}, s[{sCONST}:{sCONST+1}] offset:{CONST_WF}"+SC)
        A(f"global_load_dwordx4 v[{WF+4}:{WF+7}], v{T[1]}, s[{sCONST}:{sCONST+1}] offset:{CONST_WF+16}"+SC)
        A(f"global_load_dwordx4 v[{CG}:{CG+3}], v{T[1]}, s[{sCONST}:{sCONST+1}] offset:{CONST_CG}"+SC)
        A(f"global_load_dwordx4 v[{CG+4}:{CG+7}], v{T[1]}, s[{sCONST}:{sCONST+1}] offset:{CONST_CG+16}"+SC)
    if P.codepf&2:
        A(f"s_cmp_eq_u32 s{sW}, 15"); A("s_cbranch_scc0 K2_CPX")
        A(f"s_getpc_b64 s[{sTMP}:{sTMP+1}]")
        A.label("K2_PC")
        A(f"s_sub_u32 s{sTMP}, s{sTMP}, K2_PC-standalone__tensor_product_equiv_tfn__graph_kernel"); A(f"s_subb_u32 s{sTMP+1}, s{sTMP+1}, 0")
        A(f"v_lshlrev_b32 v{T[8]}, 7, v{vLANE}")
        for q in range(2):
            A(f"v_add_u32 v{T[9]}, {q*8192}, v{T[8]}")
            A(f"v_cmp_gt_u32 vcc, K2_CODE_END-standalone__tensor_product_equiv_tfn__graph_kernel, v{T[9]}")
            A(f"s_and_saveexec_b64 s[{sEX}:{sEX+1}], vcc")
            A(f"s_cbranch_execz K2_CPS{q}")
            A(f"global_load_dword v{127-q}, v{T[9]}, s[{sTMP}:{sTMP+1}]")
            A.label(f"K2_CPS{q}")
            A("s_mov_b64 exec, -1")
        A.label("K2_CPX")
    A(f"s_mov_b32 s{sSRD}, s{sX}")
    A(f"s_and_b32 s{sSRD+1}, s{sX+1}, 0xffff")
    A(f"s_or_b32 s{sSRD+1}, s{sSRD+1}, {1024<<16}")
    A(f"s_mov_b32 s{sSRD+2}, {N}")
    A(f"s_mov_b32 s{sSRD+3}, 0x00020000")
    A(f"s_add_u32 s{sKEY}, s{sWS}, {WS_KEYS}"); A(f"s_addc_u32 s{sKEY+1}, s{sWS+1}, 0")
    A(f"s_and_b32 s{sKEY+1}, s{sKEY+1}, 0xffff"); A(f"s_mov_b32 s{sKEY+2}, {E*4}"); A(f"s_mov_b32 s{sKEY+3}, 0x00020000")
    A(f"s_add_u32 s{sPAY}, s{sWS}, {WS_PAY}"); A(f"s_addc_u32 s{sPAY+1}, s{sWS+1}, 0")
    A(f"s_and_b32 s{sPAY+1}, s{sPAY+1}, 0xffff"); A(f"s_mov_b32 s{sPAY+2}, {E*16}"); A(f"s_mov_b32 s{sPAY+3}, 0x00020000")
    A(f"s_mov_b32 s{sLN2}, 0x{f2u(-LN2):08x}"); A(f"s_mov_b32 s{sLN2+1}, 0x{f2u(-LN2):08x}")
    def burst(vaddr,vdst=2):
        for q in range(4):
            A(f"buffer_load_dword v{vdst}, v{vaddr}, s[{sRAW}:{sRAW+3}], s{sPFO} offen")
            if q<3: A(f"s_add_u32 s{sPFO}, s{sPFO}, 8192")
    def pf_row0(rnd_sreg,dst):
        A(f"s_lshr_b32 s{sTMP+2}, s2, 3")
        A(f"s_and_b32 s{sTMP+3}, s{sTMP+2}, 1"); A(f"s_lshl_b32 s{sTMP+3}, s{sTMP+3}, 9")
        A(f"s_lshr_b32 s{sTMP+2}, s{sTMP+2}, 1"); A(f"s_lshl_b32 s{sTMP+2}, s{sTMP+2}, 5")
        A(f"s_add_u32 s{sTMP+2}, s{sTMP+2}, s{sTMP+3}")
        A(f"s_lshl_b32 s{dst}, s{rnd_sreg}, 10"); A(f"s_add_u32 s{dst}, s{dst}, s{sTMP+2}"); A(f"s_lshl_b32 s{dst}, s{dst}, 10")
    if P.pf:
        A(f"s_mov_b32 s{sRAW}, s{sX}"); A(f"s_and_b32 s{sRAW+1}, s{sX+1}, 0xffff"); A(f"s_mov_b32 s{sRAW+2}, {N*1024}"); A(f"s_mov_b32 s{sRAW+3}, 0x00020000")
    def propf(part=0):
        if P.pf==3:
            r0=(P.k1rows if P.k1pf else 0) if part==0 else P.pfsplit
            r1=P.pfsplit if (part==0 and P.pfsplit) else N
            per=((r1-r0)*8+249)//250; nw=(per+63)//64
            lab=f"K2_NOPF{part}"
            A(f"s_cmp_ge_u32 s{sW}, {nw}")
            A(f"s_cbranch_scc1 {lab}")
            A(f"s_mul_i32 s{sPFO}, s2, {per*128}"); A(f"s_lshl_b32 s{sTMP+2}, s{sW}, 13"); A(f"s_add_u32 s{sPFO}, s{sPFO}, s{sTMP+2}")
            if r0: A(f"s_add_u32 s{sPFO}, s{sPFO}, {r0*1024}")
            A(f"v_lshlrev_b32 v126, 7, v{vLANE}")
            A(f"buffer_load_dword v127, v126, s[{sRAW}:{sRAW+3}], s{sPFO} offen")
            A.label(lab)
            return
        A(f"s_cmp_ge_u32 s{sW}, {P.npro}")
        A("s_cbranch_scc1 K2_NOPF0")
        pf_row0(sW,sPFO)
        A(f"v_lshlrev_b32 v126, 7, v{vLANE}")
        burst(126,127)
        A.label("K2_NOPF0")
    if P.fused:
        if P.flags:
            A(f"s_add_u32 s76, s{sWS}, {WS_FLAG}"); A(f"s_addc_u32 s77, s{sWS+1}, 0")
        A(f"s_cmp_lg_u32 s{sW}, 0"); A("s_cbranch_scc1 F_REL")
        A(f"s_mov_b32 s{sTMP}, 0")
        if P.flags:
            A(f"s_and_b32 s{sTMP+1}, s2, 7"); A(f"s_lshl_b32 s{sTMP+1}, s{sTMP+1}, 10"); A(f"v_add_u32 v{T[1]}, s{sTMP+1}, v{PAIR+1}")
            A(f"v_cmp_gt_u32 s[64:65], 63, v{vLANE}"); A(f"v_cmp_gt_u32 s[66:67], 62, v{vLANE}")
            A.label("F_POLL")
            A(f"global_load_dwordx4 v[{X}:{X+3}], v{T[1]}, s[76:77] sc1")
            A("s_waitcnt vmcnt(0)")
            for q in range(4):
                A(f"v_cmp_eq_u32 vcc, s74, v{X+q}")
                m="s[64:65]" if q<2 else "s[66:67]"
                d=["s[68:69]","s[70:71]","s[32:33]","s[34:35]"][q]
                A(f"s_andn2_b64 {d}, {m}, vcc")
            A("s_or_b64 s[68:69], s[68:69], s[70:71]"); A("s_or_b64 s[32:33], s[32:33], s[34:35]"); A("s_or_b64 s[68:69], s[68:69], s[32:33]")
            A(f"s_add_u32 s{sTMP}, s{sTMP}, 1")
            A(f"s_cmp_ge_u32 s{sTMP}, 0x100000"); A("s_cbranch_scc1 F_REL")
            A("s_cmp_eq_u64 s[68:69], 0"); A("s_cbranch_scc1 F_REL")
            if P.sleep>0: A(f"s_sleep {P.sleep}")
            A("s_branch F_POLL")
        else:
            A(f"v_lshlrev_b32 v{T[1]}, 6, v{vLANE}")
            A.label("F_POLL")
            A(f"v_mov_b32 v{T[2]}, 0")
            A(f"v_cmp_gt_u32 vcc, 4, v{vLANE}"); A(f"s_and_saveexec_b64 s[{sEX}:{sEX+1}], vcc")
            A(f"global_load_dword v{T[2]}, v{T[1]}, s[72:73] sc1")
            A("s_mov_b64 exec, -1")
            A("s_waitcnt vmcnt(0)")
            A("s_nop 1"); A(f"v_add_u32_dpp v{T[2]}, v{T[2]}, v{T[2]} row_shr:1 row_mask:0xf bank_mask:0xf bound_ctrl:1")
            A("s_nop 1"); A(f"v_add_u32_dpp v{T[2]}, v{T[2]}, v{T[2]} row_shr:2 row_mask:0xf bank_mask:0xf bound_ctrl:1")
            A("s_nop 1"); A(f"v_readlane_b32 s{sTMP+1}, v{T[2]}, 3")
            A(f"s_add_u32 s{sTMP}, s{sTMP}, 1")
            A(f"s_cmp_ge_u32 s{sTMP}, 0x100000"); A("s_cbranch_scc1 F_REL")
        if P.flags:
            pass
        elif P.sleep<0:
            A(f"s_cmp_ge_u32 s{sTMP+1}, {NB}"); A("s_cbranch_scc1 F_REL")
            A(f"s_cmp_ge_u32 s{sTMP+1}, {P.nfast}"); A("s_cbranch_scc1 F_FAST")
            A(f"s_sleep {-P.sleep}")
            A("s_branch F_POLL")
            A.label("F_FAST")
            A(f"s_sleep {P.sfast}")
            A("s_branch F_POLL")
        elif P.sleep:
            A(f"s_cmp_ge_u32 s{sTMP+1}, {NB}"); A("s_cbranch_scc1 F_REL")
            A(f"s_sleep {P.sleep}")
            A("s_branch F_POLL")
        else:
            A(f"s_cmp_lt_u32 s{sTMP+1}, {NB}"); A("s_cbranch_scc1 F_POLL")
        A.label("F_REL")
        A("s_barrier")
        ST.mark("rel")
    A(f"v_lshlrev_b32 v{T[1]}, 5, v{vLANE}")
    if P.fused:
        A(f"v_mov_b32 v{T[2]}, 0")
        A(f"s_cmp_ge_u32 s{sW}, 4"); A("s_cbranch_scc1 K2_NOCL")
        A(f"v_lshlrev_b32 v{T[3]}, 10, v0")
        A(f"v_cmp_gt_u32 vcc, {NC}, v0"); A(f"s_and_saveexec_b64 s[{sEX}:{sEX+1}], vcc")
        A(f"global_load_dword v{T[2]}, v{T[3]}, s[{sCELL}:{sCELL+1}] sc1")
        A("s_mov_b64 exec, -1")
        A.label("K2_NOCL")
    else:
        A(f"global_load_dwordx4 v[{CNT}:{CNT+3}], v{PAIR+1}, s[{sCELL}:{sCELL+1}]"+SC)
    A(f"global_load_dwordx4 v[{WF}:{WF+3}], v{T[1]}, s[{sCONST}:{sCONST+1}] offset:{CONST_WF}"+SC)
    A(f"global_load_dwordx4 v[{WF+4}:{WF+7}], v{T[1]}, s[{sCONST}:{sCONST+1}] offset:{CONST_WF+16}"+SC)
    A(f"global_load_dwordx4 v[{CG}:{CG+3}], v{T[1]}, s[{sCONST}:{sCONST+1}] offset:{CONST_CG}"+SC)
    A(f"global_load_dwordx4 v[{CG+4}:{CG+7}], v{T[1]}, s[{sCONST}:{sCONST+1}] offset:{CONST_CG+16}"+SC)
    if P.fused:
        A(f"s_cmp_ge_u32 s{sW}, 4"); A("s_cbranch_scc1 K2_NOCW")
        A("s_waitcnt vmcnt(4)")
        A(f"v_lshlrev_b32 v{T[3]}, 2, v0"); A(f"v_add_u32 v{T[3]}, {LDS_CELL}, v{T[3]}")
        A(f"ds_write_b32 v{T[3]}, v{T[2]}")
        A("s_waitcnt lgkmcnt(0)")
        A.label("K2_NOCW")
        A("s_barrier")
        A(f"v_add_u32 v{T[3]}, {LDS_CELL}, v{PAIR+1}")
        A(f"ds_read_b128 v[{CNT}:{CNT+3}], v{T[3]}")
    A("s_branch K2_ROUND1")
    A.label("K2_ROUND")
    A(f"v_lshlrev_b32 v{T[1]}, 5, v{vLANE}")
    if P.fused:
        A(f"v_add_u32 v{T[3]}, {LDS_CELL}, v{PAIR+1}")
        A(f"ds_read_b128 v[{CNT}:{CNT+3}], v{T[3]}")
    else:
        A(f"global_load_dwordx4 v[{CNT}:{CNT+3}], v{PAIR+1}, s[{sCELL}:{sCELL+1}]"+SC)
    A(f"global_load_dwordx4 v[{CG}:{CG+3}], v{T[1]}, s[{sCONST}:{sCONST+1}] offset:{CONST_CG}"+SC)
    A(f"global_load_dwordx4 v[{CG+4}:{CG+7}], v{T[1]}, s[{sCONST}:{sCONST+1}] offset:{CONST_CG+16}"+SC)
    A("s_waitcnt vmcnt(0)")
    A.label("K2_ROUND1")
    A(f"v_lshlrev_b32 v{T[0]}, 2, v0")
    A(f"v_mov_b32 v{T[1]}, 0")
    A(f"v_cmp_gt_u32 vcc, {nbins}, v0")
    A(f"s_and_saveexec_b64 s[{sEX}:{sEX+1}], vcc")
    A("s_cbranch_execz K2_NOZ")
    A(f"ds_write_b32 v{T[0]}, v{T[1]} offset:{LDS_HIST}")
    A.label("K2_NOZ")
    A(f"s_mov_b64 exec, -1")
    A("s_waitcnt lgkmcnt(0)" if P.fused else "s_waitcnt vmcnt(4)")
    ST.mark("cell")
    if P.pf and P.pfat=="cell": propf()
    A(f"v_mul_u32_u24 v{T[0]}, {4*CH}, v{vLANE}")
    for i in range(4):
        A(f"v_and_b32 v{REC0+i}, 0xffff, v{CNT+i}")
        A(f"v_lshrrev_b32 v{CNT+i}, 16, v{CNT+i}")
        if i: A(f"v_add3_u32 v{REC0+i}, v{REC0+i}, v{T[0]}, s{sCHI+i-1}")
        else: A(f"v_add_u32 v{REC0+i}, v{REC0+i}, v{T[0]}")
    A(f"v_add_u32 v{T[1]}, v{CNT}, v{CNT+1}")
    A(f"v_add_u32 v{T[2]}, v{T[1]}, v{CNT+2}")
    A(f"v_add_u32 v{T[3]}, v{T[2]}, v{CNT+3}")
    A(f"v_max3_u32 v{T[5]}, v{CNT}, v{CNT+1}, v{CNT+2}")
    A(f"v_mov_b32 v{T[4]}, v{T[3]}")
    A(f"v_max_u32 v{T[5]}, v{T[5]}, v{CNT+3}")
    dpp_scan(A,T[4])
    A(f"v_sub_u32 v{BASEC}, v{T[4]}, v{T[3]}")
    A(f"v_add_u32 v{BASEC+1}, v{BASEC}, v{CNT}")
    A(f"v_add_u32 v{BASEC+2}, v{BASEC}, v{T[1]}")
    A(f"v_add_u32 v{BASEC+3}, v{BASEC}, v{T[2]}")
    A(f"v_readlane_b32 s{sT}, v{T[4]}, 63")
    A(f"v_mov_b32 v{T[6]}, 8192")
    A(f"s_mov_b32 s{sKK}, s{sW}")
    A(f"s_cmp_eq_u32 s{sT}, 0")
    A("s_cbranch_scc1 K2_EPI")
    A.label("K2_EX")
    A(f"v_cmp_lt_u32 vcc, s{sKK}, v{T[5]}")
    A(f"s_cbranch_vccz K2_EXD")
    A(f"s_sub_u32 s{sTMP}, s{sKK}, s{sLO}")
    for i in range(4):
        A(f"v_add_u32 v{T[0]}, s{sTMP}, v{BASEC+i}")
        A(f"v_cmp_lt_u32 vcc, s{sKK}, v{CNT+i}")
        A(f"v_cmp_gt_u32 s[{sM}:{sM+1}], s{sWIN}, v{T[0]}")
        A(f"v_lshlrev_b32 v{T[0]}, 2, v{T[0]}")
        A(f"v_add_u32 v{T[1]}, s{sKK}, v{REC0+i}")
        A(f"s_and_b64 vcc, vcc, s[{sM}:{sM+1}]")
        A(f"v_cndmask_b32 v{T[0]}, v{T[6]}, v{T[0]}, vcc")
        A(f"ds_write_b32 v{T[0]}, v{T[1]} offset:{LDS_MARK}")
    A(f"s_add_u32 s{sKK}, s{sKK}, {NW}")
    A("s_branch K2_EX")
    A.label("K2_EXD")
    A("s_waitcnt lgkmcnt(0)")
    A("s_barrier")
    ST.mark("bar1")
    A(f"v_lshlrev_b32 v{T[0]}, 2, v0")
    for s in range(2): A(f"ds_read_b32 v{MK+s}, v{T[0]} offset:{LDS_MARK+s*4096}")
    A(f"v_mov_b32 v{T[2]}, 0"); A(f"v_mov_b32 v{T[3]}, 0"); A(f"v_mov_b32 v{T[1]}, {LDS_FLAG}")
    A(f"ds_write_b64 v{T[1]}, v[{T[2]}:{T[3]}]")
    A(f"s_sub_u32 s{sNR}, s{sT}, s{sLO}")
    A(f"s_min_u32 s{sNR}, s{sNR}, s{sWIN}")
    A(f"s_lshl_b32 s{sTMP}, s{sW}, 6")
    A("s_waitcnt lgkmcnt(1)")
    for s in range(2):
        A(f"s_add_u32 s{sTMP+1}, s{sTMP}, {s*1024}")
        A(f"s_cmp_ge_u32 s{sTMP+1}, s{sNR}")
        A(f"s_cbranch_scc1 K2_LD_DONE")
        A(f"v_add_u32 v{T[1]}, {s*1024}, v0")
        A(f"v_cmp_gt_u32 vcc, s{sNR}, v{T[1]}")
        A(f"v_lshlrev_b32 v{T[2]}, 2, v{MK+s}")
        A(f"v_lshlrev_b32 v{T[3]}, 4, v{MK+s}")
        A(f"s_and_saveexec_b64 s[{sEX}:{sEX+1}], vcc")
        A(f"buffer_load_dword v{KEY+s}, v{T[2]}, s[{sKEY}:{sKEY+3}], 0 offen"+SC)
        A(f"buffer_load_dwordx4 v[{PAY+4*s}:{PAY+4*s+3}], v{T[3]}, s[{sPAY}:{sPAY+3}], 0 offen"+SC)
        A(f"s_mov_b64 exec, -1")
    A.label("K2_LD_DONE")
    A(f"v_mov_b32 v{T[4]}, 1")
    A("s_waitcnt vmcnt(0)")
    ST.mark("recs")
    if P.pf and P.pfat=="recs": propf()
    for s in range(2):
        A(f"s_add_u32 s{sTMP+1}, s{sTMP}, {s*1024}")
        A(f"s_cmp_ge_u32 s{sTMP+1}, s{sNR}")
        A(f"s_cbranch_scc1 K2_H_DONE")
        A(f"v_add_u32 v{T[1]}, {s*1024}, v0")
        A(f"v_lshrrev_b32 v{BINA+s}, 17, v{KEY+s}")
        A(f"v_cmp_gt_u32 vcc, s{sNR}, v{T[1]}")
        A(f"v_lshlrev_b32 v{T[2]}, 2, v{BINA+s}")
        A(f"s_and_saveexec_b64 s[{sEX}:{sEX+1}], vcc")
        A(f"ds_add_rtn_u32 v{RANK+s}, v{T[2]}, v{T[4]} offset:{LDS_HIST}")
        A(f"s_mov_b64 exec, -1")
        for o in range(4):
            A(f"v_mfma_f32_4x4x4_16b_bf16 v[{AT+4*o}:{AT+4*o+3}], v[{CG+2*o}:{CG+2*o+1}], v[{PAY+4*s}:{PAY+4*s+1}], 0")
        A("s_nop 4")
        for o in range(4):
            A(f"v_cvt_pk_bf16_f32 v{AP+8*s+2*o}, v{AT+4*o}, v{AT+4*o+1}")
            A(f"v_cvt_pk_bf16_f32 v{AP+8*s+2*o+1}, v{AT+4*o+2}, v{AT+4*o+3}")
    A.label("K2_H_DONE")
    A("s_waitcnt lgkmcnt(0)")
    A("s_barrier")
    ST.mark("bar2")
    if P.pf and P.pfat=="bar2": propf()
    A(f"s_lshl_b32 s{sTMP+1}, s{sG8}, {(B*4).bit_length()-1}")
    A(f"v_lshlrev_b32 v{T[0]}, 2, v{vLANE}")
    A(f"v_add_u32 v{T[0]}, s{sTMP+1}, v{T[0]}")
    if B<64:
        A(f"v_mov_b32 v{T[1]}, 0")
        A(f"v_cmp_gt_u32 vcc, {B}, v{vLANE}")
        A(f"s_and_saveexec_b64 s[{sEX}:{sEX+1}], vcc")
    A(f"ds_read_b32 v{T[1]}, v{T[0]} offset:{LDS_HIST}")
    A(f"s_mov_b64 exec, -1")
    A(f"v_add_u32 v{T[2]}, s{sH}, v{vLANE}"); A(f"v_and_b32 v{T[2]}, 1, v{T[2]}")
    A(f"v_lshlrev_b32 v{T[0]}, 1, v{T[0]}"); A(f"s_lshl_b32 s{sTMP+2}, s{sH}, 2"); A(f"v_add_u32 v{T[0]}, s{sTMP+2}, v{T[0]}")
    A("s_waitcnt lgkmcnt(0)")
    A(f"v_sub_u32 v{T[1]}, v{T[1]}, v{T[2]}"); A(f"v_add_u32 v{T[1]}, 1, v{T[1]}"); A(f"v_lshrrev_b32 v{T[1]}, 1, v{T[1]}")
    A(f"v_mov_b32 v{T[2]}, v{T[1]}")
    dpp_scan(A,T[2],nrows={16:1,32:2,64:4}[B])
    A(f"s_nop 0")
    A(f"v_readlane_b32 s{sTOT}, v{T[2]}, {B-1}")
    A(f"v_sub_u32 v{T[2]}, v{T[2]}, v{T[1]}")
    A(f"v_add_u32 v{T[2]}, s{sWB}, v{T[2]}")
    if B<64:
        A(f"v_cmp_gt_u32 vcc, {B}, v{vLANE}")
        A(f"s_and_saveexec_b64 s[{sEX}:{sEX+1}], vcc")
    A(f"ds_write_b32 v{T[0]}, v{T[2]} offset:{LDS_BASE}")
    A(f"s_mov_b64 exec, -1")
    if P.bar:
        A(f"v_mov_b32 v{T[0]}, s{sTOT}"); A(f"v_mov_b32 v{T[1]}, {LDS_FLAG}")
        A(f"ds_max_u32 v{T[1]}, v{T[0]} offset:4")
    A(f"s_cmp_gt_u32 s{sTOT}, {TOTMAX}")
    A("s_cbranch_scc0 K2_NOOVF")
    A(f"v_mov_b32 v{T[0]}, 1"); A(f"v_mov_b32 v{T[1]}, {LDS_FLAG}")
    A(f"ds_write_b32 v{T[1]}, v{T[0]}")
    A("s_branch K2_PADDONE")
    A.label("K2_NOOVF")
    A.label("K2_PADDONE")
    A("s_waitcnt lgkmcnt(0)")
    A("s_barrier")
    ST.mark("bar3")
    if P.pf and P.pfat=="bar3": propf()
    if P.pf==3 and P.pfsplit and P.pfat2=="bar3": propf(1)
    A(f"v_mov_b32 v{T[1]}, {LDS_FLAG}")
    A(f"ds_read_b32 v{T[0]}, v{T[1]}")
    if P.bar: A(f"ds_read_b32 v{T[5]}, v{T[1]} offset:4")
    for s in range(2):
        A(f"v_add_u32 v{T[2]}, v{RANK+s}, v{BINA+s}"); A(f"v_and_b32 v{T[2]}, 1, v{T[2]}")
        A(f"v_lshl_add_u32 v{T[2]}, v{BINA+s}, 1, v{T[2]}"); A(f"v_lshlrev_b32 v{T[2]}, 2, v{T[2]}")
        A(f"ds_read_b32 v{MK+s}, v{T[2]} offset:{LDS_BASE}")
    A("s_waitcnt lgkmcnt(0)")
    A(f"v_readfirstlane_b32 s{sTMP+1}, v{T[0]}")
    if P.bar:
        A(f"v_readfirstlane_b32 s{sGM}, v{T[5]}")
        A(f"s_add_u32 s{sGM}, s{sGM}, 15"); A(f"s_lshr_b32 s{sGM}, s{sGM}, 4"); A(f"s_mov_b32 s{sGB}, 0")
    A("s_nop 3")
    A(f"s_cmp_eq_u32 s{sTMP+1}, 0")
    A("s_cbranch_scc1 K2_PLACE")
    A(f"s_mov_b32 s{sWIN}, {WINSMALL}")
    A("s_branch K2_ROUND")
    A.label("K2_PLACE")
    A(f"s_add_u32 s{sTMP+2}, s{sWB}, s{sTOT}")
    A(f"v_add_u32 v{T[0]}, s{sTMP+2}, v{vLANE}")
    A(f"v_lshlrev_b32 v{T[1]}, 2, v{T[0]}")
    A(f"v_lshlrev_b32 v{T[2]}, 3, v{T[0]}")
    A(f"v_lshlrev_b32 v{T[3]}, 5, v{T[0]}"); A(f"v_add_u32 v{T[3]}, {LDS_A}, v{T[3]}")
    for q in range(4): A(f"v_mov_b32 v{T[6+q]}, 0")
    assert T[6]%2==0 and T[9]==T[6]+3
    A(f"v_cmp_gt_u32 vcc, 8, v{vLANE}")
    A(f"s_and_saveexec_b64 s[{sEX}:{sEX+1}], vcc")
    A(f"ds_write_b32 v{T[1]}, v{T[6]} offset:{LDS_IDX}")
    A(f"ds_write_b8 v{T[0]}, v{T[6]} offset:{LDS_K}")
    A(f"v_cmp_gt_u32 vcc, 4, v{vLANE}")
    A(f"s_and_b64 exec, exec, vcc")
    A(f"ds_write_b64 v{T[2]}, v[{T[6]}:{T[6]+1}] offset:{LDS_EF}")
    A(f"ds_write_b128 v{T[3]}, v[{T[6]}:{T[6]+3}]")
    A(f"ds_write_b128 v{T[3]}, v[{T[6]}:{T[6]+3}] offset:16")
    A(f"s_mov_b64 exec, -1")
    for s in range(2):
        A(f"s_add_u32 s{sTMP+1}, s{sTMP}, {s*1024}")
        A(f"s_cmp_ge_u32 s{sTMP+1}, s{sNR}")
        A(f"s_cbranch_scc1 K2_P_DONE")
        A(f"v_add_u32 v{T[1]}, {s*1024}, v0")
        A(f"v_cmp_gt_u32 vcc, s{sNR}, v{T[1]}")
        A(f"v_lshrrev_b32 v{T[0]}, 1, v{RANK+s}")
        A(f"v_add_u32 v{MK+s}, v{MK+s}, v{T[0]}")
        A(f"v_lshlrev_b32 v{T[0]}, 2, v{MK+s}")
        A(f"v_lshlrev_b32 v{T[1]}, 3, v{MK+s}")
        A(f"v_lshlrev_b32 v{T[2]}, 5, v{MK+s}")
        A(f"v_add_u32 v{T[2]}, {LDS_A}, v{T[2]}")
        A(f"v_and_b32 v{T[3]}, {hex(P.srcmask)}, v{KEY+s}")
        A(f"v_lshrrev_b32 v{T[4]}, 11, v{KEY+s}")
        A(f"v_and_b32 v{T[4]}, 0x38, v{T[4]}")
        A(f"s_and_saveexec_b64 s[{sEX}:{sEX+1}], vcc")
        A(f"ds_write_b128 v{T[2]}, v[{AP+8*s}:{AP+8*s+3}]")
        A(f"ds_write_b128 v{T[2]}, v[{AP+8*s+4}:{AP+8*s+7}] offset:16")
        A(f"ds_write_b64 v{T[1]}, v[{PAY+4*s+2}:{PAY+4*s+3}] offset:{LDS_EF}")
        A(f"ds_write_b32 v{T[0]}, v{T[3]} offset:{LDS_IDX}")
        A(f"ds_write_b8 v{MK+s}, v{T[4]} offset:{LDS_K}")
        A(f"s_mov_b64 exec, -1")
    A.label("K2_P_DONE")
    A("s_waitcnt lgkmcnt(0)")
    A("s_barrier")
    ST.mark("bar4")
    tl(4)
    if P.pf==3 and P.pfsplit and P.pfat2=="bar4": propf(1)
    ST.markc("c0")
    A(f"s_cmp_eq_u32 s{sTOT}, 0")
    A("s_cbranch_scc1 K2_MAIN_DONE")
    A(f"s_add_u32 s{sNB}, s{sTOT}, 3"); A(f"s_lshr_b32 s{sNB}, s{sNB}, 2"); A(f"s_sub_u32 s{sN}, 0, s{sNB}")
    A(f"s_lshl_b32 s{sTMP}, s{sWB}, 2"); A(f"v_mov_b32 v{vIad}, s{sTMP}")
    A(f"v_mov_b32 v{vKad}, s{sWB}")
    A(f"s_lshl_b32 s{sTMP}, s{sWB}, 5"); A(f"s_add_u32 s{sTMP}, s{sTMP}, {LDS_A}")
    A(f"v_lshlrev_b32 v{vT0}, 3, v{vLANE}")
    A(f"v_add_u32 v{vAad}, s{sTMP}, v{vT0}")
    A(f"s_lshl_b32 s{sTMP}, s{sWB}, 3"); A(f"s_add_u32 s{sTMP}, s{sTMP}, {LDS_EF}")
    A(f"v_add_u32 v{vEad}, s{sTMP}, v{vT0}")
    if P.pf and P.nrounds:
        pf_row0(sW,sPFO)
        A(f"s_lshl_b32 s{sTMP}, s{sW}, 10"); A(f"s_add_u32 s{sTMP}, s{sTMP}, s{sTMP+3}"); A(f"s_sub_i32 s{sTMP}, s{sTMP}, {P.lead}")
        A(f"s_max_i32 s{sTMP}, s{sTMP}, 0"); A(f"s_mul_i32 s{sTMP}, s{sTMP}, s{sNB}"); A(f"s_mul_i32 s{sTMP}, s{sTMP}, 6711"); A(f"s_lshr_b32 s{sTMP}, s{sTMP}, 26")
        A(f"s_sub_u32 s{sPFT}, s{sTMP}, s{sNB}")
        A(f"s_min_i32 s{sPFT}, s{sPFT}, -2")
        A(f"s_cmp_lt_u32 s{sW}, {P.npro}"); A(f"s_cselect_b32 s{sPFT}, 1, s{sPFT}")
        A(f"s_cmp_ge_u32 s{sW}, {P.nrounds}"); A(f"s_cselect_b32 s{sPFT}, 1, s{sPFT}")
        A(f"v_lshlrev_b32 v0, 7, v{vLANE}")
    def mf(d,a,b,abid,c="0"): return f"v_mfma_f32_4x4x4_16b_bf16 v[{d}:{d+3}], v[{a}:{a+1}], v[{b}:{b+1}], {c} cbsz:4 abid:{abid}"
    def xload(slot,pair): return f"buffer_load_dwordx4 v[{X+4*(slot%U)}:{X+4*(slot%U)+3}], v[{PAIR+2*pair}:{PAIR+2*pair+1}], s[{sSRD}:{sSRD+3}], 0 idxen offen"
    if P.prio==4: A("s_setprio 3")
    for p in range(4): A(f"ds_read_b32 v{PAIR+2*p}, v{vIad} offset:{LDS_IDX+4*p}")
    A(f"ds_read_b64 v[{AOP}:{AOP+1}], v{vAad}")
    A(f"ds_read_b64 v[{EOP}:{EOP+1}], v{vEad}")
    A(f"ds_read_b32 v{vK}, v{vKad} offset:{LDS_K}")
    A("s_waitcnt lgkmcnt(3)")
    for p in range(4): A(xload(p,p))
    for p in range(4): A(f"ds_read_b32 v{PAIR+2*p}, v{vIad} offset:{LDS_IDX+4*(4+p)}")
    hi_e,hi_o,lo_e,lo_o=WF,WF+2,WF+4,WF+6
    A("s_waitcnt lgkmcnt(5)")
    for t in (0,1):
        u=UU[t]
        A(mf(u,EOP,hi_e,t)); A(mf(u+4,EOP,hi_o,t))
        A("s_nop 1")
        A(mf(u,EOP,lo_e,t,f"v[{u}:{u+3}]")); A(mf(u+4,EOP,lo_o,t,f"v[{u+4}:{u+7}]"))
    A("s_nop 2")
    u=UU[0]
    for q in range(8): A(f"v_exp_f32 v{EE+q}, v{u+q}")
    A("s_nop 0")
    for q in range(4): A(f"v_pk_add_f32 v[{EE+2*q}:{EE+2*q+1}], v[{EE+2*q}:{EE+2*q+1}], 1.0 op_sel_hi:[1,0]")
    for q in range(8): A(f"v_rcp_f32 v{EE+q}, v{EE+q}")
    A("s_nop 0")
    for q in range(2): A(f"v_pk_mul_f32 v[{RR+2*q}:{RR+2*q+1}], v[{u+2*q}:{u+2*q+1}], v[{EE+2*q}:{EE+2*q+1}]")
    body=[]
    for t in range(4):
        cur=t%2; nxt=(t+1)%2
        if P.prio==1: body.append(('s',f"s_setprio {3-t}"))
        body.append(('s',"s_waitcnt lgkmcnt(0)"))
        body.append(('s',f"v_readfirstlane_b32 s{sK[0]}, v{vK}"))
        if P.pf and P.nrounds:
            body.append(('s',f"s_cmp_eq_u32 s{sN}, s{sPFT}"))
            body.append(('s',f"s_cbranch_scc1 K2_PF{t}"))
            body.append(('l',f"K2_PFR{t}"))
        body.append(('s',f"ds_read_b32 v{vK}, v{vKad} offset:{LDS_K+4*(t+1)}"))
        if t==0:
            body.append(('s',f"ds_read_b64 v[{EOPN}:{EOPN+1}], v{vEad} offset:128"))
            body.append(('s',f"ds_read_b64 v[{AOPN}:{AOPN+1}], v{vAad} offset:512"))
        for i in range(4):
            j=4*t+i
            x=X+4*(j%U)
            if P.prio==2 and i%2==0: body.append(('s',f"s_setprio {3-(j//2)%4}"))
            if P.prio==3: body.append(('s',f"s_setprio {3-i}"))
            un=UU[nxt]; uw=UU[cur]
            if i==0: TR=[f"v_exp_f32 v{EE+q}, v{un+q}" for q in range(4)]
            if i==1: TR=[f"v_exp_f32 v{EE+4+q}, v{un+4+q}" for q in range(4)]
            if i==2: TR=[f"v_rcp_f32 v{EE+q}, v{EE+q}" for q in range(4)]
            if i==3: TR=[f"v_rcp_f32 v{EE+4+q}, v{EE+4+q}" for q in range(4)]
            PKpre=[];PKpost=[]
            if i==0: PKpre=[f"v_pk_mul_f32 v[{RR+4+2*q}:{RR+4+2*q+1}], v[{uw+4+2*q}:{uw+4+2*q+1}], v[{EE+4+2*q}:{EE+4+2*q+1}]" for q in range(2)]
            if i==1: PKpre=[f"v_pk_add_f32 v[{EE+2*q}:{EE+2*q+1}], v[{EE+2*q}:{EE+2*q+1}], 1.0 op_sel_hi:[1,0]" for q in range(2)]
            if i==2: PKpre=[f"v_pk_add_f32 v[{EE+4+2*q}:{EE+4+2*q+1}], v[{EE+4+2*q}:{EE+4+2*q+1}], 1.0 op_sel_hi:[1,0]" for q in range(2)]
            if i==3: PKpost=[f"v_pk_mul_f32 v[{RR+2*q}:{RR+2*q+1}], v[{un+2*q}:{un+2*q+1}], v[{EE+2*q}:{EE+2*q+1}]" for q in range(2)]
            eop,ab=(EOP,t+2) if t<2 else (EOPN,t-2)
            if i==0: UM=mf(uw,eop,hi_e,ab)
            if i==1: UM=mf(uw+4,eop,hi_o,ab)
            if i==2: UM=mf(uw,eop,lo_e,ab,f"v[{uw}:{uw+3}]")
            if i==3: UM=mf(uw+4,eop,lo_o,ab,f"v[{uw+4}:{uw+7}]")
            body.append(('s',f"s_waitcnt vmcnt({U-1})"))
            body.append(('s',mf(TP,AOP,x,j)))
            body.append(('s',TR[0]))
            body.append(('s',mf(TP+4,AOP,x+2,j)))
            body.append(('s',TR[1]))
            body.append(('s',xload(j,i)))
            body.append(('s',f"ds_read_b32 v{PAIR+2*i}, v{vIad} offset:{LDS_IDX+4*(j+2*U)}"))
            body.append(('s',UM))
            body.append(('s',TR[2])); body.append(('s',TR[3]))
            for q in PKpre: body.append(('s',q))
            body.append(('s',f"s_set_gpr_idx_on s{sK[0]}, gpr_idx(SRC2,DST)"))
            sel=i%2; pr=i//2
            for h in range(4):
                R=RR+(0 if h<2 else 4)+2*pr
                a=ACC+2*h; tp=TP+2*h
                mod = "op_sel_hi:[1,0,1]" if sel==0 else "op_sel:[0,1,0] op_sel_hi:[1,1,1]"
                body.append(('s',f"v_pk_fma_f32 v[{a}:{a+1}], v[{tp}:{tp+1}], v[{R}:{R+1}], v[{a}:{a+1}] {mod}"))
            body.append(('s',"s_set_gpr_idx_off"))
            for q in PKpost: body.append(('s',q))
            if i<3: body.append(('s',f"s_lshr_b32 s{sK[0]}, s{sK[0]}, 8"))
        body.append(('s',f"s_add_u32 s{sN}, s{sN}, 1"))
        body.append(('s',"s_cbranch_scc1 K2_MAIN_DONE"))
    if P.bar:
        body.append(('s',"s_barrier")); body.append(('s',f"s_add_u32 s{sGB}, s{sGB}, 1"))
    if P.prio==4:
        body.append(('s',f"s_sub_u32 s{sQ}, 0, s{sN}")); body.append(('s',f"s_lshl_b32 s{sQ}, s{sQ}, 2"))
        for lv in (3,2,1):
            pass
        body.append(('s',f"s_mul_i32 s{sQ+1}, s{sNB}, 3")); body.append(('s',f"s_cmp_ge_u32 s{sQ}, s{sQ+1}")); body.append(('s',"s_cbranch_scc1 K2_LOOPB"))
        body.append(('s',"s_setprio 2")); body.append(('s',f"s_lshl_b32 s{sQ+1}, s{sNB}, 1")); body.append(('s',f"s_cmp_ge_u32 s{sQ}, s{sQ+1}")); body.append(('s',"s_cbranch_scc1 K2_LOOPB"))
        body.append(('s',"s_setprio 1")); body.append(('s',f"s_cmp_ge_u32 s{sQ}, s{sNB}")); body.append(('s',"s_cbranch_scc1 K2_LOOPB"))
        body.append(('s',"s_setprio 0")); body.append(('l',"K2_LOOPB"))
    body.append(('s',f"v_mov_b32 v{AOP}, v{AOPN}")); body.append(('s',f"v_mov_b32 v{AOP+1}, v{AOPN+1}"))
    body.append(('s',f"v_mov_b32 v{EOP}, v{EOPN}")); body.append(('s',f"v_mov_b32 v{EOP+1}, v{EOPN+1}"))
    body.append(('s',f"v_add_u32 v{vAad}, 512, v{vAad}")); body.append(('s',f"v_add_u32 v{vEad}, 128, v{vEad}"))
    body.append(('s',f"v_add_u32 v{vIad}, 64, v{vIad}")); body.append(('s',f"v_add_u32 v{vKad}, 16, v{vKad}"))
    body.append(('s',"s_branch K2_LOOP"))
    if "noload" in P.dbg: body=[b for b in body if not (b[0]=='s' and (b[1].startswith("buffer_load") or b[1].startswith("s_waitcnt vmcnt")))]
    if "noidx" in P.dbg: body=[b for b in body if not (b[0]=='s' and b[1].startswith("s_set_gpr"))]
    if "notrans" in P.dbg: body=[b for b in body if not (b[0]=='s' and (b[1].startswith("v_exp") or b[1].startswith("v_rcp")))]
    if "nofma" in P.dbg: body=[b for b in body if not (b[0]=='s' and b[1].startswith("v_pk_fma"))]
    if "nolo" in P.dbg: body=[b for b in body if not (b[0]=='s' and b[1].startswith("v_mfma") and (f"v[{WF+4}:{WF+5}]" in b[1] or f"v[{WF+6}:{WF+7}]" in b[1]))]
    if "nomfma" in P.dbg: body=[b for b in body if not (b[0]=='s' and b[1].startswith("v_mfma"))]
    A.label("K2_LOOP")
    for i,b in enumerate(body):
        if b[0]=='s': A(b[1])
        elif b[0]=='l': A.label(b[1])
        elif b[0]=='lds': A(b[2])
        else:
            cnt=0; found=False
            for step in range(len(body)):
                kk=(i-1-step)%len(body)
                if body[kk][0]=='lds':
                    if body[kk][1]==b[1]: found=True; break
                    cnt+=1
            assert found,b
            A(f"s_waitcnt lgkmcnt({min(cnt,15)})")
    if P.pf and P.nrounds:
        for t in range(4):
            A.label(f"K2_PF{t}")
            burst(0)
            A(f"s_branch K2_PFR{t}")
    A.label("K2_MAIN_DONE")
    if P.prio: A("s_setprio 0")
    if P.bar:
        A.label("K2_BARL")
        A(f"s_cmp_ge_u32 s{sGB}, s{sGM}"); A("s_cbranch_scc1 K2_BARD")
        A("s_barrier"); A(f"s_add_u32 s{sGB}, s{sGB}, 1"); A("s_branch K2_BARL")
        A.label("K2_BARD")
    if P.pf and P.nrounds:
        A(f"s_lshl_b32 s{sTMP}, s{sW}, 6"); A(f"v_add_u32 v0, s{sTMP}, v{vLANE}")
    A(f"s_add_u32 s{sLO}, s{sLO}, s{sWIN}")
    A(f"s_cmp_lt_u32 s{sLO}, s{sT}")
    A("s_cbranch_scc0 K2_EPI")
    A("s_waitcnt vmcnt(0) lgkmcnt(0)")
    A("s_branch K2_ROUND")
    A.label("K2_EPI")
    A("s_waitcnt lgkmcnt(0)")
    ST.mark("main")
    tl(8)
    ST.markc("c1")
    A(f"s_and_b32 s{sCGP}, s{sW}, 3"); A(f"s_lshr_b32 s{sRG}, s{sW}, 2")
    A(f"s_lshl_b32 s{sTMP}, s{sCGP}, 13"); A(f"s_add_u32 s{sTMP}, s{sTMP}, {CONST_WM}")
    A(f"v_add_u32 v{2}, s{sTMP}, v{PAIR+1}")
    A(f"v_add_u32 v{3}, 4096, v{2}")
    for f in range(8):
        base=2 if f<4 else 3
        A(f"global_load_dwordx4 v[{WM+4*f}:{WM+4*f+3}], v{base}, s[{sCONST}:{sCONST+1}] offset:{(f%4)*1024}"+SC)
    RSZ=CAPW*32
    A(f"s_mul_i32 s{sTMP}, s{sW}, {RSZ}"); A(f"s_add_u32 s{sTMP}, s{sTMP}, {LDS_A}")
    A(f"s_xor_b32 s{sTMP+1}, s{sW}, 1"); A(f"s_mul_i32 s{sTMP+1}, s{sTMP+1}, {RSZ}"); A(f"s_add_u32 s{sTMP+1}, s{sTMP+1}, {LDS_A}")
    A(f"v_lshlrev_b32 v4, 3, v{vLANE}")
    A(f"v_add_u32 v5, s{sTMP}, v4"); A(f"v_add_u32 v6, 2048, v5"); A(f"v_add_u32 v7, 4096, v5")
    EX=64
    def xaddr(k,regs):
        r=regs[k//2]; o=(k%2)*128
        return r,o,o+64
    A(f"s_cmp_eq_u32 s{sH}, 0")
    A("s_cbranch_scc0 K2_EXW1")
    for k in range(5):
        r,o0,o1=xaddr(k,[5,6,7]); a=ACC+8*k
        A(f"ds_write2_b64 v{r}, v[{a+2}:{a+3}], v[{a+6}:{a+7}] offset0:{o0} offset1:{o1}")
    A("s_branch K2_EXW2")
    A.label("K2_EXW1")
    for k in range(5):
        r,o0,o1=xaddr(k,[5,6,7]); a=ACC+8*k
        A(f"ds_write2_b64 v{r}, v[{a}:{a+1}], v[{a+4}:{a+5}] offset0:{o0} offset1:{o1}")
    A.label("K2_EXW2")
    pr0,pr1,pr2,vRW=PAIR,PAIR+2,PAIR+4,PAIR+6
    A(f"v_add_u32 v{pr0}, s{sTMP+1}, v4"); A(f"v_add_u32 v{pr1}, 2048, v{pr0}"); A(f"v_add_u32 v{pr2}, 4096, v{pr0}")
    A(f"s_mul_i32 s{sTMP+2}, s{sG8}, 20"); A(f"s_lshl_b32 s{sTMP+3}, s{sH}, 1"); A(f"s_add_u32 s{sTMP+2}, s{sTMP+2}, s{sTMP+3}"); A(f"s_mul_i32 s{sTMP+2}, s{sTMP+2}, {AGG_STRIDE}")
    A(f"v_lshlrev_b32 v4, 2, v{vLANE}"); A(f"v_add_u32 v{vRW}, s{sTMP+2}, v4")
    A(f"s_mul_i32 s{sTMP}, s{sRG}, 3"); A(f"s_lshl_b32 s{sTMP+1}, s{sRG}, 1"); A(f"s_add_u32 s{sTMP+1}, s{sTMP+1}, 2")
    A(f"s_cmp_lt_u32 s{sRG}, 2"); A(f"s_cselect_b32 s{sTMP}, s{sTMP}, s{sTMP+1}")
    A(f"s_mul_i32 s{sTMP+1}, s{sTMP}, {16*AGG_STRIDE}")
    A(f"v_and_b32 v3, 15, v{vLANE}"); A(f"v_lshrrev_b32 v4, 4, v{vLANE}")
    A(f"v_mul_u32_u24 v7, {AGG_STRIDE}, v3"); A(f"v_lshl_add_u32 v7, v4, 4, v7"); A(f"v_add_u32 v{PAIR+1}, s{sTMP+1}, v7")
    vMR=PAIR+1; vOUT=PAIR+3
    A(f"v_lshlrev_b32 v3, 4, v3"); A(f"v_lshl_add_u32 v{vOUT}, v4, 10, v3")
    A(f"s_lshl_b32 s{sTMP}, s{sTMP}, 2")
    A(f"s_mul_i32 s{sTMP+1}, s{sB}, {NPB}"); A(f"s_add_u32 s{sTMP+1}, s{sTMP+1}, s{sTMP}")
    A(f"s_lshl_b32 s{sTMP+1}, s{sTMP+1}, 10"); A(f"s_lshl_b32 s{sTMP+2}, s{sCGP}, 8"); A(f"s_add_u32 s{sTMP+1}, s{sTMP+1}, s{sTMP+2}")
    A(f"s_add_u32 s{sOUT}, s{sOUT}, s{sTMP+1}"); A(f"s_addc_u32 s{sOUT+1}, s{sOUT+1}, 0")
    A("s_waitcnt vmcnt(8) lgkmcnt(0)")
    A("s_barrier")
    ST.mark("barY")
    for k in range(5):
        r,o0,o1=xaddr(k,[pr0,pr1,pr2])
        A(f"ds_read2_b64 v[{EX+4*k}:{EX+4*k+3}], v{r} offset0:{o0} offset1:{o1}")
    A(f"s_cmp_eq_u32 s{sH}, 0")
    A("s_cbranch_scc0 K2_CB1")
    for hh in range(2):
        if hh==1: A.label("K2_CB1")
        off=0 if hh==0 else 2
        for k in range(5):
            a=ACC+8*k+off; e=EX+4*k
            A(f"s_waitcnt lgkmcnt({min(4-k+2*k,15)})")
            A(f"v_pk_add_f32 v[{a}:{a+1}], v[{a}:{a+1}], v[{e}:{e+1}]")
            A(f"v_pk_add_f32 v[{a+4}:{a+5}], v[{a+4}:{a+5}], v[{e+2}:{e+3}]")
            A(f"v_pk_mul_f32 v[{a}:{a+1}], v[{a}:{a+1}], s[{sLN2}:{sLN2+1}]")
            A(f"v_pk_mul_f32 v[{a+4}:{a+5}], v[{a+4}:{a+5}], s[{sLN2}:{sLN2+1}]")
            A(f"v_cvt_pk_bf16_f32 v{2+2*(k%2)}, v{a}, v{a+4}")
            A(f"v_cvt_pk_bf16_f32 v{3+2*(k%2)}, v{a+1}, v{a+5}")
            A(f"ds_write_b32 v{vRW}, v{2+2*(k%2)} offset:{(4*k)*AGG_STRIDE}")
            A(f"ds_write_b32 v{vRW}, v{3+2*(k%2)} offset:{(4*k+1)*AGG_STRIDE}")
        if hh==0: A("s_branch K2_CB2")
    A.label("K2_CB2")
    A("s_waitcnt lgkmcnt(0)")
    A("s_barrier")
    ST.mark("barZ")
    D=ACC; FR=64
    fl={0:"",1:" sc1",2:" sc0 sc1",3:" nt"}[P.outwt]
    def rd(q):
        for ks in range(4): A(f"ds_read_b128 v[{FR+16*(q%2)+4*ks}:{FR+16*(q%2)+4*ks+3}], v{vMR} offset:{q*16*AGG_STRIDE+ks*64}")
    def mm(q):
        for ks in range(4):
            for p in range(2):
                d=D+8*q+4*p; f=FR+16*(q%2)+4*ks; w=WM+4*(4*p+ks)
                c="0" if ks==0 else f"v[{d}:{d+3}]"
                A(f"v_mfma_f32_16x16x32_bf16 v[{d}:{d+3}], v[{f}:{f+3}], v[{w}:{w+3}], {c}")
    def st(q):
        d=D+8*q; o=D+24+4*q
        A(f"v_cvt_pk_bf16_f32 v{o}, v{d}, v{d+1}"); A(f"v_cvt_pk_bf16_f32 v{o+1}, v{d+2}, v{d+3}")
        A(f"v_cvt_pk_bf16_f32 v{o+2}, v{d+4}, v{d+5}"); A(f"v_cvt_pk_bf16_f32 v{o+3}, v{d+6}, v{d+7}")
        if q: A(f"v_add_u32 v{vOUT}, 4096, v{vOUT}")
        A(f"global_store_dwordx4 v{vOUT}, v[{o}:{o+3}], s[{sOUT}:{sOUT+1}]"+fl)
    rd(0); rd(1)
    A("s_waitcnt vmcnt(0) lgkmcnt(4)")
    mm(0)
    A(f"s_cmp_lt_u32 s{sRG}, 2")
    A("s_cbranch_scc0 K2_MIX2")
    rd(2)
    A("s_waitcnt lgkmcnt(4)")
    mm(1)
    st(0)
    A("s_waitcnt lgkmcnt(0)")
    mm(2)
    st(1)
    A("s_nop 4")
    st(2)
    A("s_branch K2_MIXD")
    A.label("K2_MIX2")
    A("s_waitcnt lgkmcnt(0)")
    mm(1)
    st(0)
    A("s_nop 4")
    st(1)
    A.label("K2_MIXD")
    if P.tl:
        A("s_waitcnt vmcnt(0)"); tl(12)
        if not P.fused:
            A(f"s_lshl_b32 s74, s2, 3"); A("s_add_u32 s74, s74, 0x7F0000"); A("v_mov_b32 v4, s74")
            A("v_cmp_eq_u32 vcc, 0, v0"); A("s_and_saveexec_b64 s[76:77], vcc"); A("s_cbranch_execz K2_TLZ")
            A(f"global_load_dwordx2 v[6:7], v4, s[{sWS}:{sWS+1}]"); A("s_waitcnt vmcnt(0)")
            A("v_not_b32 v6, v6"); A("v_mov_b32 v3, 0")
            A("global_atomic_umax v3, v6, s[72:73] offset:16"); A("global_atomic_umax v3, v7, s[72:73] offset:20")
            A.label("K2_TLZ"); A("s_mov_b64 exec, s[76:77]")
    ST.mark("iss")
    if P.stamps:
        A("s_waitcnt vmcnt(0)")
        ST.mark("done")
        ST.dump(sWS,1,2,sW,2)
    A.label("K2_END")
    A("s_endpgm")
    A.label("K2_CODE_END")
    return NV

def kd(name,nv,ns):
    nv8=(nv+3)//4*4
    return f""".amdhsa_kernel {name}
  .amdhsa_next_free_vgpr {nv8}
  .amdhsa_next_free_sgpr {ns}
  .amdhsa_accum_offset {nv8}
  .amdhsa_group_segment_fixed_size 0
  .amdhsa_kernarg_size 88
  .amdhsa_user_sgpr_count 2
  .amdhsa_user_sgpr_kernarg_segment_ptr 1
  .amdhsa_system_sgpr_workgroup_id_x 1
  .amdhsa_float_denorm_mode_32 3
.end_amdhsa_kernel
"""

def main():
    ap=argparse.ArgumentParser()
    ap.add_argument("-o",default="standalone__tensor_product_equiv_tfn__graph.s")
    ap.add_argument("--U",type=int,default=8)
    ap.add_argument("--B",type=int,default=32)
    ap.add_argument("--rot",type=int,default=0)
    ap.add_argument("--stamps",type=int,default=0)
    ap.add_argument("--srcmask",type=lambda x:int(x,0),default=0x3fff)
    ap.add_argument("--dbg",default="")
    ap.add_argument("--xmap",type=int,default=1)
    ap.add_argument("--prio",type=int,default=4)
    ap.add_argument("--pf",type=int,default=3)
    ap.add_argument("--npro",type=int,default=2)
    ap.add_argument("--lead",type=int,default=1500)
    ap.add_argument("--nrounds",type=int,default=0)
    ap.add_argument("--bar",type=int,default=0)
    ap.add_argument("--k1stage",type=int,default=1)
    ap.add_argument("--k1wt",type=int,default=1)
    ap.add_argument("--k1pf",type=int,default=0)
    ap.add_argument("--pfat",default="recs")
    ap.add_argument("--k1l2",type=int,default=0)
    ap.add_argument("--outwt",type=int,default=1)
    ap.add_argument("--codepf",type=int,default=1)
    ap.add_argument("--k1rows",type=int,default=10000)
    ap.add_argument("--fused",type=int,default=0)
    ap.add_argument("--fpf",type=int,default=1)
    ap.add_argument("--sleep",type=int,default=0)
    ap.add_argument("--nfast",type=int,default=245)
    ap.add_argument("--pfsplit",type=int,default=0)
    ap.add_argument("--tl",type=int,default=0)
    ap.add_argument("--flags",type=int,default=0)
    ap.add_argument("--pfat2",default="bar4")
    ap.add_argument("--sfast",type=int,default=8)
    P=ap.parse_args()
    hdr=open("standalone__tensor_product_equiv_tfn__graph.s.ref").read().split("; Override")[0]
    A=Asm()
    A.L.append(hdr.rstrip("\n"))
    if P.fused:
        A.L.append(f"; @launch grid=({NB},1,1) block=(1024,1,1) lds={K2_LDS}")
    else:
        A.L.append(f"; @launch kernel=tfn_bin_kernel grid=({NC+K1_CONST_WGS},1,1) block=({K1_THREADS},1,1) lds={2048+CH*20 if P.k1stage else 2048}")
        A.L.append(f"; @launch kernel=standalone__tensor_product_equiv_tfn__graph_kernel grid=({NB},1,1) block=(1024,1,1) lds={K2_LDS}")
    A('.amdgcn_target "amdgcn-amd-amdhsa--gfx950"')
    A(".text")
    if not P.fused: A(".globl tfn_bin_kernel")
    A(".globl standalone__tensor_product_equiv_tfn__graph_kernel")
    if not P.fused: gen_k1(A,P)
    nv=gen_k2(A,P)
    A('.section .rodata,"a"')
    A(".p2align 6")
    s=A.text()+("" if P.fused else kd("tfn_bin_kernel",72,102 if P.stamps else 40)+".p2align 6\n")+kd("standalone__tensor_product_equiv_tfn__graph_kernel",nv,102 if P.stamps else 80)
    open(P.o,"w").write(s)
    print("wrote",P.o,len(s),"bytes")
main()
```

```python
import sys, struct, argparse

N=10000; E=320000; C=128
NPB=40
NB=250
NC=250
CH=1280
K1_THREADS=320
K1_CONST_WGS=8
import os
WS_BASE=int(os.environ.get("WSBASE","0"),0)
WS_KEYS=WS_BASE; WS_PAY=WS_BASE+0x140000; WS_CELL=WS_BASE+0x630000; WS_CONST=WS_BASE+0x680000; WS_FLAG=WS_BASE+0x6A0000
CONST_WF=0; CONST_CG=2048; CONST_WM=4096
LOG2E=1.4426950408889634; LN2=0.6931471805599453
def f2u(f): return struct.unpack("<I",struct.pack("<f",f))[0]

class Asm:
    def __init__(s): s.L=[]
    def __call__(s,x=""):
        for l in x.split("\n"):
            s.L.append(l if (l.endswith(":") or l.startswith(".") or l=="" ) else "    "+l)
    def c(s,x): s.L.append("    ; "+x)
    def label(s,x): s.L.append(x+":")
    def text(s): return "\n".join(s.L)+"\n"

def vr(a,n=1): return f"v{a}" if n==1 else f"v[{a}:{a+n-1}]"
def sr(a,n=1): return f"s{a}" if n==1 else f"s[{a}:{a+n-1}]"

WS_STAMP=0x800000
class Stamps:
    def __init__(s,A,on,kn,base_sgpr=int(os.environ.get('STBASE','82')),tmp=int(os.environ.get('STTMP','80'))): s.A=A; s.on=on; s.n=0; s.base=base_sgpr; s.tmp=tmp; s.kn=kn
    def mark(s,name=""):
        if not s.on: return
        A=s.A
        A(f"s_memrealtime s[{s.tmp}:{s.tmp+1}]")
        A("s_waitcnt lgkmcnt(0)")
        A(f"s_mov_b32 s{s.base+s.n}, s{s.tmp}")
        s.n+=1
    def markc(s,name=""):
        if not s.on: return
        A=s.A
        A(f"s_memtime s[{s.tmp}:{s.tmp+1}]")
        A("s_waitcnt lgkmcnt(0)")
        A(f"s_mov_b32 s{s.base+s.n}, s{s.tmp}")
        s.n+=1
    def dump(s,wsreg,kernel,wgreg,wavereg,vtmp):
        if not s.on: return
        A=s.A
        A(f"s_lshl_b32 s{s.tmp}, s{wgreg}, 4"); A(f"s_add_u32 s{s.tmp}, s{s.tmp}, s{wavereg}"); A(f"s_lshl_b32 s{s.tmp}, s{s.tmp}, 7")
        A(f"s_add_u32 s{s.tmp}, s{s.tmp}, {WS_STAMP+kernel*0x100000}")
        A(f"s_add_u32 s{s.tmp}, s{wsreg}, s{s.tmp}"); A(f"s_addc_u32 s{s.tmp+1}, s{wsreg+1}, 0")
        A(f"v_mov_b32 v{vtmp}, 0")
        for i in range(s.n):
            A(f"v_mov_b32 v{vtmp+1}, s{s.base+i}")
            A(f"global_store_dword v{vtmp}, v{vtmp+1}, s[{s.tmp}:{s.tmp+1}] offset:{4*i}")
            A("s_nop 1")

def dpp_scan(A,v,nrows=4):
    for sh in (1,2,4,8):
        A("s_nop 1")
        A(f"v_add_u32_dpp v{v}, v{v}, v{v} row_shr:{sh} row_mask:0xf bank_mask:0xf bound_ctrl:1")
    if nrows>=2:
        A("s_nop 1")
        A(f"v_add_u32_dpp v{v}, v{v}, v{v} row_bcast:15 row_mask:0xa bank_mask:0xf")
    if nrows>=4:
        A("s_nop 1")
        A(f"v_add_u32_dpp v{v}, v{v}, v{v} row_bcast:31 row_mask:0xc bank_mask:0xf")

def gen_k1(A,P):
    B=P.B
    blkmul={32:209,16:104,64:419}[B]
    assert ((N-1)*blkmul)>>16 < B
    for d in range(N):
        b=(d*52429)>>21; assert b==d//40
    for dl in range(40): assert (dl*205)>>10==dl//5
    A(".p2align 8")
    A(".type tfn_bin_kernel,@function")
    A.label("tfn_bin_kernel")
    A(f"s_cmp_ge_u32 s2, {NC+K1_CONST_WGS}")
    A("s_cbranch_scc1 K1_END")
    A("s_load_dwordx4 s[4:7], s[0:1], 8")
    A("s_load_dwordx4 s[8:11], s[0:1], 24")
    A("s_load_dwordx2 s[12:13], s[0:1], 80")
    if P.k1pf: A("s_load_dwordx2 s[32:33], s[0:1], 0")
    A(f"s_cmp_ge_u32 s2, {NC}")
    A("s_cbranch_scc1 K1_CONST")
    ST=Stamps(A,P.stamps,"K1")
    ST.mark("start")
    if P.tl:
        A("s_memrealtime s[38:39]"); A("s_waitcnt lgkmcnt(0)")
    A(f"s_mul_i32 s14, s2, {CH*4}")
    A("v_lshlrev_b32 v1, 4, v0")
    A("v_add_u32 v1, s14, v1")
    A("v_lshlrev_b32 v2, 1, v1")
    A("v_lshlrev_b32 v3, 2, v0")
    A("v_mov_b32 v4, 0")
    A("v_mov_b32 v5, 1")
    A("v_cmp_gt_u32 vcc, 0x100, v0")
    A("s_and_saveexec_b64 s[16:17], vcc")
    A("s_cbranch_execz K1_NOZ")
    A("ds_write_b32 v3, v4")
    A.label("K1_NOZ")
    A("s_mov_b64 exec, s[16:17]")
    A("s_waitcnt lgkmcnt(0)")
    A("global_load_dwordx4 v[8:11], v1, s[6:7]")
    A("global_load_dwordx4 v[12:15], v1, s[4:5]")
    A("global_load_dwordx4 v[16:19], v2, s[8:9]")
    A("global_load_dwordx4 v[20:23], v2, s[8:9] offset:16")
    A("global_load_dwordx4 v[24:27], v2, s[10:11]")
    A("global_load_dwordx4 v[28:31], v2, s[10:11] offset:16")
    def k1pf():
        if P.k1l2==0:
            per=(P.k1rows*8+249)//250
            A(f"s_mul_i32 s34, s2, {per*128}")
            A("v_lshlrev_b32 v68, 7, v0"); A("v_add_u32 v68, s34, v68")
            if per<320:
                A(f"v_cmp_gt_u32 vcc, {per}, v0"); A("s_and_saveexec_b64 s[36:37], vcc"); A("s_cbranch_execz K1_NOPF")
            A("global_load_dword v69, v68, s[32:33]")
            if per<320:
                A.label("K1_NOPF"); A("s_mov_b64 exec, s[36:37]")
        else:
            A("s_lshr_b32 s34, s2, 3"); A(f"s_mul_i32 s34, s34, {320*128}")
            A("v_lshlrev_b32 v68, 7, v0"); A("v_add_u32 v68, s34, v68")
            for q in range(P.k1l2):
                A("global_load_dword v69, v68, s[32:33]")
                A(f"v_add_u32 v68, {10240*128}, v68")
            rem=80000-10240*P.k1l2; per=(rem+249)//250
            assert per<=320
            A(f"s_mul_i32 s34, s2, {per}"); A(f"s_add_u32 s34, s34, {10240*P.k1l2}")
            A("v_add_u32 v70, s34, v0")
            A(f"v_cmp_gt_u32 vcc, {per}, v0"); A(f"s_mov_b32 s35, 80000"); A("v_cmp_gt_u32 s[36:37], s35, v70"); A("s_and_b64 vcc, vcc, s[36:37]")
            A("v_lshlrev_b32 v70, 7, v70")
            A("s_and_saveexec_b64 s[36:37], vcc")
            A("s_cbranch_execz K1_NOPF")
            A("global_load_dword v71, v70, s[32:33]")
            A.label("K1_NOPF")
            A("s_mov_b64 exec, s[36:37]")
    if P.k1pf==1: k1pf()
    A(f"s_mul_i32 s15, s2, {CH*16}")
    A(f"s_add_u32 s18, s12, {WS_KEYS}"); A("s_addc_u32 s19, s13, 0")
    A("s_add_u32 s18, s18, s14"); A("s_addc_u32 s19, s19, 0")
    A(f"s_add_u32 s20, s12, {WS_PAY}"); A("s_addc_u32 s21, s13, 0")
    A("s_add_u32 s20, s20, s15"); A("s_addc_u32 s21, s21, 0")
    A("s_lshl_b32 s15, s2, 2")
    A(f"s_add_u32 s22, s12, {WS_CELL}"); A("s_addc_u32 s23, s13, 0")
    A("s_add_u32 s22, s22, s15"); A("s_addc_u32 s23, s23, 0")
    A("s_movk_i32 s24, -40")
    A("v_lshrrev_b32 v6, 6, v0")
    A("v_and_b32 v7, 63, v0")
    A("v_readfirstlane_b32 s25, v6")
    A("s_barrier")
    A(f"s_waitcnt vmcnt({5 if P.k1pf==1 else 4})")
    ST.mark("ld")
    for i in range(4):
        d=8+i; s=12+i
        A(f"v_mul_u32_u24 v44, 0xcccd, v{d}")
        A("v_lshrrev_b32 v44, 21, v44")
        A(f"v_mad_i32_i24 v45, v44, s24, v{d}")
        A(f"v_lshlrev_b32 v{36+i}, 2, v44")
        A(f"ds_add_rtn_u32 v{40+i}, v{36+i}, v5")
        A("v_mul_u32_u24 v46, 0xcd, v45")
        A("v_lshrrev_b32 v46, 10, v46")
        A("v_mad_i32_i24 v47, v46, -5, v45")
        A(f"v_mul_u32_u24 v48, {blkmul}, v{s}")
        A("v_lshrrev_b32 v48, 16, v48")
        if P.rot:
            A("v_mul_u32_u24 v49, 2098, v44"); A("v_lshrrev_b32 v49, 16, v49")
            A(f"v_mul_u32_u24 v49, {(B//8)*P.rot}, v49")
            A("v_add_u32 v48, v48, v49")
            A(f"v_and_b32 v48, {B-1}, v48")
        sh={16:4,32:5,64:6}[B]
        A(f"v_lshl_add_u32 v48, v46, {sh}, v48")
        A(f"v_lshl_or_b32 v{32+i}, v47, 14, v{s}")
        A(f"v_lshl_or_b32 v{32+i}, v48, 17, v{32+i}")
    A(f"s_waitcnt vmcnt({1 if P.k1pf==1 else 0})")
    A("v_swap_b32 v18, v24"); A("v_swap_b32 v19, v25"); A("v_swap_b32 v22, v28"); A("v_swap_b32 v23, v29")
    pay=[16,24,20,28]
    A("v_lshlrev_b32 v50, 4, v7")
    A("s_waitcnt lgkmcnt(0)")
    A("s_barrier")
    ST.mark("hist")
    if P.k1pf==2: k1pf()
    A("ds_read_b128 v[52:55], v50")
    A("s_waitcnt lgkmcnt(0)")
    A("v_add_u32 v56, v52, v53")
    A("v_add_u32 v57, v56, v54")
    A("v_add_u32 v58, v57, v55")
    A("v_mov_b32 v59, v58")
    dpp_scan(A,59)
    A("v_sub_u32 v60, v59, v58")
    A("v_add_u32 v61, v60, v52")
    A("v_add_u32 v62, v60, v56")
    A("v_add_u32 v63, v60, v57")
    A("ds_write_b128 v50, v[60:63] offset:1024")
    for i in range(4):
        A(f"s_cmp_lg_u32 s25, {i}")
        A(f"s_cbranch_scc1 K1_CS{i}")
        A(f"v_lshl_or_b32 v64, v{52+i}, 16, v{60+i}")
        A(f"v_lshlrev_b32 v65, 12, v7")
        if i: A(f"v_add_u32 v65, {i*1024}, v65")
        A(f"v_cmp_gt_u32 vcc, {(NB-i+3)//4}, v7")
        A("s_and_saveexec_b64 s[16:17], vcc")
        A("global_store_dword v65, v64, s[22:23]")
        A(f"s_cmp_ge_u32 s2, {256-NC}")
        A(f"s_cbranch_scc1 K1_CZ{i}")
        A(f"global_store_dword v65, v4, s[22:23] offset:{NC*4}")
        A.label(f"K1_CZ{i}")
        A("s_mov_b64 exec, s[16:17]")
        A.label(f"K1_CS{i}")
    A("s_waitcnt lgkmcnt(0)")
    for i in range(4): A(f"ds_read_b32 v{44+i}, v{36+i} offset:1024")
    if not P.k1stage:
        for i in range(4):
            A(f"s_waitcnt lgkmcnt({3-i})")
            A(f"v_add_u32 v{44+i}, v{44+i}, v{40+i}")
            A(f"v_lshlrev_b32 v48, 2, v{44+i}")
            A(f"v_lshlrev_b32 v49, 4, v{44+i}")
            A(f"global_store_dwordx4 v49, v[{pay[i]}:{pay[i]+3}], s[20:21]")
            A(f"global_store_dword v48, v{32+i}, s[18:19]")
            A("s_nop 1")
    else:
        KST=2048; PST=KST+CH*4
        fl={0:"",1:" sc1",2:" sc0 sc1",3:" nt"}[P.k1wt]
        for i in range(4):
            A(f"s_waitcnt lgkmcnt({3-i+2*i})")
            A(f"v_add_u32 v{44+i}, v{44+i}, v{40+i}")
            A(f"v_lshlrev_b32 v48, 2, v{44+i}")
            A(f"v_lshlrev_b32 v49, 4, v{44+i}")
            A(f"ds_write_b128 v49, v[{pay[i]}:{pay[i]+3}] offset:{PST}")
            A(f"ds_write_b32 v48, v{32+i} offset:{KST}")
        A("v_lshlrev_b32 v50, 4, v0")
        A("s_waitcnt lgkmcnt(0)")
        A("s_barrier")
        A(f"ds_read_b128 v[8:11], v50 offset:{KST}")
        for q in range(4): A(f"ds_read_b128 v[{12+4*q}:{15+4*q}], v50 offset:{PST+q*5120}")
        A("v_add_u32 v51, 5120, v50"); A("v_add_u32 v52, 10240, v50"); A("v_add_u32 v53, 15360, v50")
        A("s_waitcnt lgkmcnt(4)")
        A(f"global_store_dwordx4 v50, v[8:11], s[18:19]{fl}")
        for q in range(4):
            A(f"s_waitcnt lgkmcnt({3-q})")
            A(f"global_store_dwordx4 v{50+q}, v[{12+4*q}:{15+4*q}], s[20:21]{fl}")
    if P.k1pf==3: k1pf()
    if P.tl:
        A("s_waitcnt vmcnt(0)"); A("s_memrealtime s[34:35]"); A("s_waitcnt lgkmcnt(0)")
        A("s_cmp_lg_u32 s25, 0"); A("s_cbranch_scc1 K1_TLX")
        A("s_lshl_b32 s36, s2, 3"); A("s_add_u32 s36, s36, 0x7F0000")
        A("v_mov_b32 v68, s38"); A("v_mov_b32 v69, s34"); A("v_mov_b32 v70, s36")
        A("global_store_dwordx2 v70, v[68:69], s[12:13]")
        A.label("K1_TLX")
    ST.mark("iss")
    if P.stamps:
        A("s_waitcnt vmcnt(0)")
        ST.mark("done")
        ST.dump(12,0,2,25,66)
    A("s_endpgm")
    A.label("K1_CONST")
    A("s_load_dwordx2 s[26:27], s[0:1], 40")
    A("s_load_dwordx4 s[28:31], s[0:1], 48")
    A("v_lshrrev_b32 v6, 6, v0")
    A("s_nop 0")
    A("v_readfirstlane_b32 s25, v6")
    A(f"s_sub_u32 s14, s2, {NC}")
    A("v_and_b32 v7, 63, v0")
    A("s_waitcnt lgkmcnt(0)")
    A(f"s_add_u32 s18, s12, {WS_CONST}"); A("s_addc_u32 s19, s13, 0")
    A("s_cmp_eq_u32 s25, 4")
    A("s_cbranch_scc1 K1_CW4")
    A("s_and_b32 s15, s14, 1")
    A("s_lshr_b32 s16, s14, 1")
    A("s_lshl_b32 s16, s16, 5"); A("s_add_u32 s16, s16, s15")
    A("v_and_b32 v1, 15, v7"); A("v_lshlrev_b32 v1, 1, v1"); A("v_add_u32 v1, s16, v1")
    A("v_lshrrev_b32 v2, 4, v7"); A("v_lshlrev_b32 v2, 3, v2")
    A("s_lshl_b32 s17, s25, 5"); A("v_add_u32 v2, s17, v2")
    A("v_lshlrev_b32 v2, 7, v2"); A("v_add_u32 v2, v2, v1"); A("v_lshlrev_b32 v2, 1, v2")
    for r in range(8): A(f"global_load_ushort v{8+r}, v2, s[30:31] offset:{r*256}")
    A("s_lshl_b32 s17, s14, 12")
    A("v_lshlrev_b32 v3, 4, v0"); A("v_add_u32 v3, s17, v3"); A(f"v_add_u32 v3, {CONST_WM}, v3")
    A("s_waitcnt vmcnt(0)")
    for r in range(4): A(f"v_lshl_or_b32 v{16+r}, v{9+2*r}, 16, v{8+2*r}")
    A("global_store_dwordx4 v3, v[16:19], s[18:19]")
    A("s_endpgm")
    A.label("K1_CW4")
    A("s_cmp_eq_u32 s14, 0"); A("s_cbranch_scc1 K1_WF")
    A("s_cmp_eq_u32 s14, 1"); A("s_cbranch_scc1 K1_CG")
    if P.codepf&1:
        A("s_cmp_eq_u32 s14, 2"); A("s_cbranch_scc0 K1_CPX")
        A("s_getpc_b64 s[34:35]")
        A.label("K1_PC")
        A("s_add_u32 s34, s34, standalone__tensor_product_equiv_tfn__graph_kernel-K1_PC"); A("s_addc_u32 s35, s35, 0")
        A("v_lshlrev_b32 v1, 7, v7")
        for q in range(2):
            A(f"v_add_u32 v2, {q*8192}, v1")
            A(f"v_cmp_gt_u32 vcc, K2_CODE_END-standalone__tensor_product_equiv_tfn__graph_kernel, v2")
            A("s_and_saveexec_b64 s[36:37], vcc")
            A(f"s_cbranch_execz K1_CPS{q}")
            A(f"global_load_dword v{8+q}, v2, s[34:35]")
            A.label(f"K1_CPS{q}")
            A("s_mov_b64 exec, s[36:37]")
        A.label("K1_CPX")
    A("s_endpgm")
    A.label("K1_WF")
    A("v_lshlrev_b32 v1, 2, v7")
    for k in range(4): A(f"global_load_dword v{8+k}, v1, s[26:27] offset:{k*256}")
    A(f"s_mov_b32 s15, 0x{f2u(-LOG2E):08x}")
    A("s_mov_b32 s16, 0xffff0000")
    A("s_waitcnt vmcnt(0)")
    for k in range(4):
        A(f"v_lshlrev_b32 v{12+k}, 16, v{8+k}")
        A(f"v_and_b32 v{16+k}, s16, v{8+k}")
    for k in range(8): A(f"v_mul_f32 v{12+k}, s15, v{12+k}")
    A("v_cvt_pk_bf16_f32 v20, v12, v13"); A("v_cvt_pk_bf16_f32 v21, v14, v15")
    A("v_cvt_pk_bf16_f32 v22, v16, v17"); A("v_cvt_pk_bf16_f32 v23, v18, v19")
    for q in range(4):
        A(f"v_lshlrev_b32 v28, 16, v{20+q}")
        A(f"v_and_b32 v29, s16, v{20+q}")
        A(f"v_sub_f32 v28, v{12+2*q}, v28")
        A(f"v_sub_f32 v29, v{13+2*q}, v29")
        A(f"v_cvt_pk_bf16_f32 v{24+q}, v28, v29")
    A("v_lshlrev_b32 v3, 5, v7")
    A(f"global_store_dwordx4 v3, v[20:23], s[18:19] offset:{CONST_WF}")
    A(f"global_store_dwordx4 v3, v[24:27], s[18:19] offset:{CONST_WF+16}")
    A("s_endpgm")
    A.label("K1_CG")
    A("v_and_b32 v1, 3, v7"); A("v_lshlrev_b32 v1, 5, v1")
    for f in range(4): A(f"global_load_dwordx2 v[{8+2*f}:{9+2*f}], v1, s[28:29] offset:{f*8}")
    A("s_mov_b32 s15, 0x05040100"); A("s_mov_b32 s16, 0x07060302")
    A("s_waitcnt vmcnt(0)")
    for o in range(4):
        sel="s15" if o%2==0 else "s16"; h=o//2
        A(f"v_perm_b32 v{16+2*o}, v{10+h}, v{8+h}, {sel}")
        A(f"v_perm_b32 v{17+2*o}, v{14+h}, v{12+h}, {sel}")
    A("v_lshlrev_b32 v3, 5, v7"); A(f"v_add_u32 v3, {CONST_CG}, v3")
    A("global_store_dwordx4 v3, v[16:19], s[18:19]")
    A("global_store_dwordx4 v3, v[20:23], s[18:19] offset:16")
    A.label("K1_END")
    A("s_endpgm")


def gen_phase1(A,P,ST):
    B=P.B
    blkmul={32:209,16:104,64:419}[B]
    A("s_load_dwordx4 s[4:7], s[0:1], 8")
    A("s_load_dwordx4 s[8:11], s[0:1], 24")
    A("s_load_dwordx2 s[12:13], s[0:1], 80")
    A("s_load_dwordx2 s[26:27], s[0:1], 40")
    A("s_load_dwordx4 s[28:31], s[0:1], 48")
    A("s_load_dwordx2 s[32:33], s[0:1], 0")
    A("s_load_dwordx2 s[72:73], s[0:1], 72")
    A("v_lshrrev_b32 v6, 6, v0")
    A("v_and_b32 v7, 63, v0")
    A("v_readfirstlane_b32 s25, v6")
    A("s_nop 3")
    A("s_cmp_ge_u32 s25, 5")
    A("s_cbranch_scc1 F_OTHER")
    A(f"s_mul_i32 s14, s2, {CH*4}")
    A("v_lshlrev_b32 v1, 4, v0")
    A("v_add_u32 v1, s14, v1")
    A("v_lshlrev_b32 v2, 1, v1")
    A("v_lshlrev_b32 v3, 2, v0")
    A("v_mov_b32 v4, 0")
    A("v_mov_b32 v5, 1")
    A("v_cmp_gt_u32 vcc, 0x100, v0")
    A("s_and_saveexec_b64 s[16:17], vcc")
    A("s_cbranch_execz F_NOZ")
    A("ds_write_b32 v3, v4")
    A.label("F_NOZ")
    A("s_mov_b64 exec, s[16:17]")
    A("s_waitcnt lgkmcnt(0)")
    A("global_load_dwordx4 v[8:11], v1, s[6:7]")
    A("global_load_dwordx4 v[12:15], v1, s[4:5]")
    A("global_load_dwordx4 v[16:19], v2, s[8:9]")
    A("global_load_dwordx4 v[20:23], v2, s[8:9] offset:16")
    A("global_load_dwordx4 v[24:27], v2, s[10:11]")
    A("global_load_dwordx4 v[28:31], v2, s[10:11] offset:16")
    A(f"s_mul_i32 s15, s2, {CH*16}")
    A(f"s_add_u32 s18, s12, {WS_KEYS}"); A("s_addc_u32 s19, s13, 0")
    A("s_add_u32 s18, s18, s14"); A("s_addc_u32 s19, s19, 0")
    A(f"s_add_u32 s20, s12, {WS_PAY}"); A("s_addc_u32 s21, s13, 0")
    A("s_add_u32 s20, s20, s15"); A("s_addc_u32 s21, s21, 0")
    A("s_lshl_b32 s15, s2, 10")
    A(f"s_add_u32 s22, s12, {WS_CELL}"); A("s_addc_u32 s23, s13, 0")
    A("s_add_u32 s22, s22, s15"); A("s_addc_u32 s23, s23, 0")
    A("s_movk_i32 s24, -40")
    A("s_barrier")
    A("s_waitcnt vmcnt(4)")
    for i in range(4):
        d=8+i; s=12+i
        A(f"v_mul_u32_u24 v44, 0xcccd, v{d}")
        A("v_lshrrev_b32 v44, 21, v44")
        A(f"v_mad_i32_i24 v45, v44, s24, v{d}")
        A(f"v_lshlrev_b32 v{36+i}, 2, v44")
        A(f"ds_add_rtn_u32 v{40+i}, v{36+i}, v5")
        A("v_mul_u32_u24 v46, 0xcd, v45")
        A("v_lshrrev_b32 v46, 10, v46")
        A("v_mad_i32_i24 v47, v46, -5, v45")
        A(f"v_mul_u32_u24 v48, {blkmul}, v{s}")
        A("v_lshrrev_b32 v48, 16, v48")
        sh={16:4,32:5,64:6}[B]
        A(f"v_lshl_add_u32 v48, v46, {sh}, v48")
        A(f"v_lshl_or_b32 v{32+i}, v47, 14, v{s}")
        A(f"v_lshl_or_b32 v{32+i}, v48, 17, v{32+i}")
    A("s_waitcnt vmcnt(0)")
    A("v_swap_b32 v18, v24"); A("v_swap_b32 v19, v25"); A("v_swap_b32 v22, v28"); A("v_swap_b32 v23, v29")
    pay=[16,24,20,28]
    A("v_lshlrev_b32 v50, 4, v7")
    A("s_waitcnt lgkmcnt(0)")
    A("s_barrier")
    ST.mark("hist")
    A("ds_read_b128 v[52:55], v50")
    A("s_waitcnt lgkmcnt(0)")
    A("v_add_u32 v56, v52, v53"); A("v_add_u32 v57, v56, v54"); A("v_add_u32 v58, v57, v55"); A("v_mov_b32 v59, v58")
    dpp_scan(A,59)
    A("v_sub_u32 v60, v59, v58"); A("v_add_u32 v61, v60, v52"); A("v_add_u32 v62, v60, v56"); A("v_add_u32 v63, v60, v57")
    A("ds_write_b128 v50, v[60:63] offset:1024")
    A("s_cmp_lg_u32 s25, 0")
    A("s_cbranch_scc1 F_CS")
    for i in range(4): A(f"v_lshl_or_b32 v{64+i}, v{52+i}, 16, v{60+i}")
    A("global_store_dwordx4 v50, v[64:67], s[22:23] sc1")
    A.label("F_CS")
    A("s_waitcnt lgkmcnt(0)")
    for i in range(4): A(f"ds_read_b32 v{44+i}, v{36+i} offset:1024")
    KST=2048; PST=KST+CH*4
    for i in range(4):
        A(f"s_waitcnt lgkmcnt({3-i+2*i})")
        A(f"v_add_u32 v{44+i}, v{44+i}, v{40+i}")
        A(f"v_lshlrev_b32 v48, 2, v{44+i}")
        A(f"v_lshlrev_b32 v49, 4, v{44+i}")
        A(f"ds_write_b128 v49, v[{pay[i]}:{pay[i]+3}] offset:{PST}")
        A(f"ds_write_b32 v48, v{32+i} offset:{KST}")
    A("v_lshlrev_b32 v50, 4, v0")
    A("s_waitcnt lgkmcnt(0)")
    A("s_barrier")
    A(f"ds_read_b128 v[8:11], v50 offset:{KST}")
    for q in range(4): A(f"ds_read_b128 v[{12+4*q}:{15+4*q}], v50 offset:{PST+q*5120}")
    A("v_add_u32 v51, 5120, v50"); A("v_add_u32 v52, 10240, v50"); A("v_add_u32 v53, 15360, v50")
    A("s_waitcnt lgkmcnt(4)")
    A("global_store_dwordx4 v50, v[8:11], s[18:19] sc1")
    for q in range(4):
        A(f"s_waitcnt lgkmcnt({3-q})")
        A(f"global_store_dwordx4 v{50+q}, v[{12+4*q}:{15+4*q}], s[20:21] sc1")
    if P.flags:
        A("s_cmp_lg_u32 s25, 0"); A("s_cbranch_scc1 F_JOIN")
        A("v_mov_b32 v66, 0"); A("global_load_dword v67, v66, s[72:73] sc1")
    ST.mark("iss1")
    A("s_branch F_JOIN")
    A.label("F_OTHER")
    A("s_waitcnt lgkmcnt(0)")
    A(f"s_add_u32 s18, s12, {WS_CONST}"); A("s_addc_u32 s19, s13, 0")
    if P.flags:
        A("s_cmp_lg_u32 s2, 0"); A("s_cbranch_scc1 F_NN"); A("s_cmp_lg_u32 s25, 9"); A("s_cbranch_scc1 F_NN")
        A("s_memrealtime s[38:39]"); A("s_waitcnt lgkmcnt(0)"); A("s_or_b32 s38, s38, 1")
        A("v_mov_b32 v1, 0"); A("v_mov_b32 v2, s38")
        A("v_cmp_eq_u32 vcc, 0, v7"); A("s_and_saveexec_b64 s[16:17], vcc")
        A("global_store_dword v1, v2, s[72:73] sc1")
        A("s_mov_b64 exec, s[16:17]")
        A.label("F_NN")
    A("s_mov_b32 s36, 0")
    A("s_cmp_ge_u32 s25, 9"); A("s_cbranch_scc1 F_R0")
    A("s_cmp_lt_u32 s2, 8"); A("s_cbranch_scc1 F_RW")
    A("s_cmp_lg_u32 s25, 5"); A("s_cbranch_scc1 F_R0")
    A("s_cmp_eq_u32 s2, 8"); A("s_cbranch_scc1 F_RF")
    A("s_cmp_eq_u32 s2, 9"); A("s_cbranch_scc1 F_RC")
    A("s_branch F_R0")
    A.label("F_RW")
    A("s_mov_b32 s36, 1")
    A("s_sub_u32 s14, s25, 5")
    A("s_and_b32 s15, s2, 1"); A("s_lshr_b32 s16, s2, 1"); A("s_lshl_b32 s16, s16, 5"); A("s_add_u32 s16, s16, s15")
    A("v_and_b32 v1, 15, v7"); A("v_lshlrev_b32 v1, 1, v1"); A("v_add_u32 v1, s16, v1")
    A("v_lshrrev_b32 v2, 4, v7"); A("v_lshlrev_b32 v2, 3, v2")
    A("s_lshl_b32 s17, s14, 5"); A("v_add_u32 v2, s17, v2")
    A("v_lshlrev_b32 v2, 7, v2"); A("v_add_u32 v2, v2, v1"); A("v_lshlrev_b32 v2, 1, v2")
    for r in range(8): A(f"global_load_ushort v{8+r}, v2, s[30:31] offset:{r*256}")
    A("s_branch F_R0")
    A.label("F_RF")
    A("s_mov_b32 s36, 2")
    A("v_lshlrev_b32 v1, 2, v7")
    for k in range(4): A(f"global_load_dword v{8+k}, v1, s[26:27] offset:{k*256}")
    A("s_branch F_R0")
    A.label("F_RC")
    A("s_mov_b32 s36, 3")
    A("v_and_b32 v1, 3, v7"); A("v_lshlrev_b32 v1, 5, v1")
    for f in range(4): A(f"global_load_dwordx2 v[{8+2*f}:{9+2*f}], v1, s[28:29] offset:{f*8}")
    A.label("F_R0")
    A("s_barrier")
    A("s_barrier")
    A("s_cmp_eq_u32 s36, 0"); A("s_cbranch_scc1 F_RD")
    A("s_waitcnt vmcnt(0)")
    A("s_cmp_eq_u32 s36, 2"); A("s_cbranch_scc1 F_RF2")
    A("s_cmp_eq_u32 s36, 3"); A("s_cbranch_scc1 F_RC2")
    A("s_lshl_b32 s17, s2, 12"); A("s_lshl_b32 s15, s14, 10"); A("s_add_u32 s17, s17, s15"); A(f"s_add_u32 s17, s17, {CONST_WM}")
    A("v_lshlrev_b32 v3, 4, v7"); A("v_add_u32 v3, s17, v3")
    for r in range(4): A(f"v_lshl_or_b32 v{16+r}, v{9+2*r}, 16, v{8+2*r}")
    A("global_store_dwordx4 v3, v[16:19], s[18:19] sc1")
    A("s_branch F_RD")
    A.label("F_RF2")
    A(f"s_mov_b32 s15, 0x{f2u(-LOG2E):08x}"); A("s_mov_b32 s16, 0xffff0000")
    for k in range(4):
        A(f"v_lshlrev_b32 v{12+k}, 16, v{8+k}"); A(f"v_and_b32 v{16+k}, s16, v{8+k}")
    for k in range(8): A(f"v_mul_f32 v{12+k}, s15, v{12+k}")
    A("v_cvt_pk_bf16_f32 v20, v12, v13"); A("v_cvt_pk_bf16_f32 v21, v14, v15")
    A("v_cvt_pk_bf16_f32 v22, v16, v17"); A("v_cvt_pk_bf16_f32 v23, v18, v19")
    for q in range(4):
        A(f"v_lshlrev_b32 v28, 16, v{20+q}"); A(f"v_and_b32 v29, s16, v{20+q}")
        A(f"v_sub_f32 v28, v{12+2*q}, v28"); A(f"v_sub_f32 v29, v{13+2*q}, v29")
        A(f"v_cvt_pk_bf16_f32 v{24+q}, v28, v29")
    A("v_lshlrev_b32 v3, 5, v7")
    A(f"global_store_dwordx4 v3, v[20:23], s[18:19] offset:{CONST_WF} sc1")
    A(f"global_store_dwordx4 v3, v[24:27], s[18:19] offset:{CONST_WF+16} sc1")
    A("s_branch F_RD")
    A.label("F_RC2")
    A("s_mov_b32 s15, 0x05040100"); A("s_mov_b32 s16, 0x07060302")
    for o in range(4):
        sel="s15" if o%2==0 else "s16"; h=o//2
        A(f"v_perm_b32 v{16+2*o}, v{10+h}, v{8+h}, {sel}")
        A(f"v_perm_b32 v{17+2*o}, v{14+h}, v{12+h}, {sel}")
    A("v_lshlrev_b32 v3, 5, v7"); A(f"v_add_u32 v3, {CONST_CG}, v3")
    A("global_store_dwordx4 v3, v[16:19], s[18:19] sc1")
    A("global_store_dwordx4 v3, v[20:23], s[18:19] offset:16 sc1")
    A.label("F_RD")
    A("s_barrier")
    if P.fpf==1:
        A("s_cmp_lt_u32 s25, 9"); A("s_cbranch_scc1 F_JOIN")
        A("s_cmp_ge_u32 s25, 14"); A("s_cbranch_scc1 F_JOIN")
        A(f"s_mul_i32 s14, s2, {320*128}"); A("s_sub_u32 s15, s25, 9"); A("s_lshl_b32 s15, s15, 13"); A("s_add_u32 s14, s14, s15")
        A("v_lshlrev_b32 v126, 7, v7"); A("v_add_u32 v126, s14, v126")
        A("global_load_dword v127, v126, s[32:33]")
        A("s_branch F_JOIN2")
    A.label("F_JOIN")
    A("s_waitcnt vmcnt(0)")
    A.label("F_JOIN2")
    A("s_barrier")
    ST.mark("barD")
    if P.fpf==2:
        A("s_cmp_lt_u32 s25, 9"); A("s_cbranch_scc1 F_NPF2")
        A("s_cmp_ge_u32 s25, 14"); A("s_cbranch_scc1 F_NPF2")
        A(f"s_mul_i32 s14, s2, {320*128}"); A("s_sub_u32 s15, s25, 9"); A("s_lshl_b32 s15, s15, 13"); A("s_add_u32 s14, s14, s15")
        A("v_lshlrev_b32 v126, 7, v7"); A("v_add_u32 v126, s14, v126")
        A("global_load_dword v127, v126, s[32:33]")
        A.label("F_NPF2")
    A("s_cmp_lg_u32 s25, 0"); A("s_cbranch_scc1 F_WAIT")
    if P.flags:
        A("s_mov_b32 s14, 0"); A("v_mov_b32 v1, 0")
        A("v_readfirstlane_b32 s74, v67"); A("s_nop 3"); A("s_cmp_lg_u32 s74, 0"); A("s_cbranch_scc1 F_GOTN")
        A.label("F_GETN")
        A("global_load_dword v2, v1, s[72:73] sc1"); A("s_waitcnt vmcnt(0)")
        A("v_readfirstlane_b32 s74, v2"); A("s_add_u32 s14, s14, 1")
        A("s_cmp_ge_u32 s14, 0x100000"); A("s_cbranch_scc1 F_GOTN")
        A("s_cmp_eq_u32 s74, 0"); A("s_cbranch_scc1 F_GETN")
        A.label("F_GOTN")
        A(f"s_add_u32 s76, s12, {WS_FLAG}"); A("s_addc_u32 s77, s13, 0")
        A("s_lshl_b32 s14, s2, 2"); A("v_lshlrev_b32 v1, 10, v7"); A("v_add_u32 v1, s14, v1"); A("v_mov_b32 v2, s74")
        A("v_cmp_gt_u32 vcc, 8, v7"); A("s_and_saveexec_b64 s[16:17], vcc")
        A("global_store_dword v1, v2, s[76:77] sc1")
        A("s_mov_b64 exec, s[16:17]")
    else:
        A("s_and_b32 s14, s2, 3"); A("s_lshl_b32 s14, s14, 6")
        A("v_mov_b32 v1, s14"); A("v_mov_b32 v2, 1")
        A("v_cmp_eq_u32 vcc, 0, v7"); A("s_and_saveexec_b64 s[16:17], vcc")
        A("global_atomic_add v1, v2, s[72:73]")
        A("s_mov_b64 exec, s[16:17]")
    A.label("F_WAIT")

NW=16; CAPW=160
LDS_IDX=0x0000
LDS_K=LDS_IDX+NW*CAPW*4
LDS_HIST=LDS_K+NW*CAPW
LDS_BASE=LDS_HIST+2048
LDS_FLAG=LDS_BASE+4096
LDS_MARK=LDS_FLAG+64
LDS_EF=LDS_MARK+8192+64
LDS_A=LDS_EF+NW*CAPW*8
LDS_CELL=LDS_A+NW*CAPW*32+1024
K2_LDS=LDS_CELL+1024
WINBIG=2048; WINSMALL=200; TOTMAX=CAPW-8
AGG_STRIDE=272
assert LDS_A%16==0 and LDS_EF%16==0 and LDS_MARK%4==0 and K2_LDS<=163840

def gen_k2(A,P):
    U=4; B=P.B
    SC=" sc1" if P.fused else ""
    nbins=8*B
    assert nbins*4<=2048 and nbins*8<=4096
    vTID=0; vLANE=1; vT0=2
    vAad=3; vEad=4; vIad=5; vKad=6; vK=7
    ACC=8
    WF=48
    PAIR=56
    X=64
    TP=80
    AOP=88; AOPN=90; EOP=92; EOPN=94
    UU=[96,104]; EE=112; RR=120
    NV=128
    REC0=64; CNT=68; BASEC=72; AT=64
    CG=80; KEY=88; RANK=90; PAY=92; AP=100; MK=116; BINA=118
    T=[2,3,4,5,6,7,120,121,122,123,124,125,126,127]
    WM=96
    sX=4; sOUT=6; sWS=8; sSRD=12; sW=16; sB=17; sT=18; sLO=19; sWIN=20; sNR=21; sKK=22; sH=23; sEX=24; sM=26; sG8=28; sWB=29
    sK=[32,33]; sN=34; sTOT=35; sTMP=36; sC=40; sLN2=44; sRG=46; sCGP=47; sKEY=48; sPAY=52; sCELL=56; sCONST=58; sRAW=60; sPFO=65; sPFT=66; sNB=67; sGB=68; sGM=69; sQ=70; sCHI=40
    name="standalone__tensor_product_equiv_tfn__graph_kernel"
    A(".p2align 8")
    A(f".type {name},@function")
    A.label(name)
    A(f"s_cmp_ge_u32 s2, {NB}")
    A("s_cbranch_scc1 K2_END")
    ST=Stamps(A,P.stamps,"K2")
    ST.mark("start")
    tlc=[0]
    def tl(off,inv=False):
        if not P.tl: return
        tlc[0]+=1
        A("s_memrealtime s[74:75]"); A("s_waitcnt lgkmcnt(0)")
        if inv: A("s_not_b32 s74, s74")
        A("v_mov_b32 v2, s74"); A("v_mov_b32 v3, 0")
        A("v_cmp_eq_u32 vcc, 0, v0"); A("s_and_saveexec_b64 s[76:77], vcc"); A(f"s_cbranch_execz K2_TL{tlc[0]}")
        A(f"global_atomic_umax v3, v2, s[72:73] offset:{off}")
        A.label(f"K2_TL{tlc[0]}"); A("s_mov_b64 exec, s[76:77]")
    if P.tl:
        A("s_load_dwordx2 s[72:73], s[0:1], 72"); A("s_waitcnt lgkmcnt(0)")
        tl(0,True)
    if P.fused: gen_phase1(A,P,ST)
    A(f"s_load_dwordx2 s[{sX}:{sX+1}], s[0:1], 0")
    A(f"s_load_dwordx2 s[{sOUT}:{sOUT+1}], s[0:1], 64")
    A(f"s_load_dwordx2 s[{sWS}:{sWS+1}], s[0:1], 80")
    A(f"v_and_b32 v{vLANE}, 63, v0")
    A(f"v_lshrrev_b32 v{T[0]}, 6, v0")
    A(f"v_lshlrev_b32 v{PAIR+1}, 4, v{vLANE}")
    A(f"v_readfirstlane_b32 s{sW}, v{T[0]}")
    for p in (3,5,7): A(f"v_mov_b32 v{PAIR+p}, v{PAIR+1}")
    if P.xmap:
        A(f"s_and_b32 s{sTMP}, s2, 7"); A(f"s_mul_i32 s{sB}, s{sTMP}, 31"); A(f"s_min_u32 s{sTMP}, s{sTMP}, 2")
        A(f"s_add_u32 s{sB}, s{sB}, s{sTMP}"); A(f"s_lshr_b32 s{sTMP}, s2, 3"); A(f"s_add_u32 s{sB}, s{sB}, s{sTMP}")
    else:
        A(f"s_mov_b32 s{sB}, s2")
    A(f"s_lshr_b32 s{sG8}, s{sW}, 1"); A(f"s_and_b32 s{sH}, s{sW}, 1"); A(f"s_mul_i32 s{sWB}, s{sW}, {CAPW}")
    for i in range(40): A(f"v_mov_b32 v{ACC+i}, 0")
    A("s_waitcnt lgkmcnt(0)")
    A(f"s_lshl_b32 s{sTMP}, s{sB}, {2 if P.fused else 10}")
    A(f"s_add_u32 s{sCELL}, s{sWS}, {WS_CELL}"); A(f"s_addc_u32 s{sCELL+1}, s{sWS+1}, 0")
    A(f"s_add_u32 s{sCELL}, s{sCELL}, s{sTMP}"); A(f"s_addc_u32 s{sCELL+1}, s{sCELL+1}, 0")
    A(f"s_add_u32 s{sCONST}, s{sWS}, {WS_CONST}"); A(f"s_addc_u32 s{sCONST+1}, s{sWS+1}, 0")
    A(f"s_mov_b32 s{sLO}, 0")
    A(f"s_mov_b32 s{sWIN}, {WINBIG}")
    for i in range(3): A(f"s_mov_b32 s{sCHI+i}, {(i+1)*CH}")
    if not P.fused:
        A(f"v_lshlrev_b32 v{T[1]}, 5, v{vLANE}")
        if P.fused:
            A(f"v_mov_b32 v{T[2]}, 0")
            A(f"s_cmp_ge_u32 s{sW}, 4"); A("s_cbranch_scc1 K2_NOCL")
            A(f"v_lshlrev_b32 v{T[3]}, 10, v0")
            A(f"v_cmp_gt_u32 vcc, {NC}, v0"); A(f"s_and_saveexec_b64 s[{sEX}:{sEX+1}], vcc")
            A(f"global_load_dword v{T[2]}, v{T[3]}, s[{sCELL}:{sCELL+1}] sc1")
            A("s_mov_b64 exec, -1")
            A.label("K2_NOCL")
        else:
            A(f"global_load_dwordx4 v[{CNT}:{CNT+3}], v{PAIR+1}, s[{sCELL}:{sCELL+1}]"+SC)
        A(f"global_load_dwordx4 v[{WF}:{WF+3}], v{T[1]}, s[{sCONST}:{sCONST+1}] offset:{CONST_WF}"+SC)
        A(f"global_load_dwordx4 v[{WF+4}:{WF+7}], v{T[1]}, s[{sCONST}:{sCONST+1}] offset:{CONST_WF+16}"+SC)
        A(f"global_load_dwordx4 v[{CG}:{CG+3}], v{T[1]}, s[{sCONST}:{sCONST+1}] offset:{CONST_CG}"+SC)
        A(f"global_load_dwordx4 v[{CG+4}:{CG+7}], v{T[1]}, s[{sCONST}:{sCONST+1}] offset:{CONST_CG+16}"+SC)
    if P.codepf&2:
        A(f"s_cmp_eq_u32 s{sW}, 15"); A("s_cbranch_scc0 K2_CPX")
        A(f"s_getpc_b64 s[{sTMP}:{sTMP+1}]")
        A.label("K2_PC")
        A(f"s_sub_u32 s{sTMP}, s{sTMP}, K2_PC-standalone__tensor_product_equiv_tfn__graph_kernel"); A(f"s_subb_u32 s{sTMP+1}, s{sTMP+1}, 0")
        A(f"v_lshlrev_b32 v{T[8]}, 7, v{vLANE}")
        for q in range(2):
            A(f"v_add_u32 v{T[9]}, {q*8192}, v{T[8]}")
            A(f"v_cmp_gt_u32 vcc, K2_CODE_END-standalone__tensor_product_equiv_tfn__graph_kernel, v{T[9]}")
            A(f"s_and_saveexec_b64 s[{sEX}:{sEX+1}], vcc")
            A(f"s_cbranch_execz K2_CPS{q}")
            A(f"global_load_dword v{127-q}, v{T[9]}, s[{sTMP}:{sTMP+1}]")
            A.label(f"K2_CPS{q}")
            A("s_mov_b64 exec, -1")
        A.label("K2_CPX")
    A(f"s_mov_b32 s{sSRD}, s{sX}")
    A(f"s_and_b32 s{sSRD+1}, s{sX+1}, 0xffff")
    A(f"s_or_b32 s{sSRD+1}, s{sSRD+1}, {1024<<16}")
    A(f"s_mov_b32 s{sSRD+2}, {N}")
    A(f"s_mov_b32 s{sSRD+3}, 0x00020000")
    A(f"s_add_u32 s{sKEY}, s{sWS}, {WS_KEYS}"); A(f"s_addc_u32 s{sKEY+1}, s{sWS+1}, 0")
    A(f"s_and_b32 s{sKEY+1}, s{sKEY+1}, 0xffff"); A(f"s_mov_b32 s{sKEY+2}, {E*4}"); A(f"s_mov_b32 s{sKEY+3}, 0x00020000")
    A(f"s_add_u32 s{sPAY}, s{sWS}, {WS_PAY}"); A(f"s_addc_u32 s{sPAY+1}, s{sWS+1}, 0")
    A(f"s_and_b32 s{sPAY+1}, s{sPAY+1}, 0xffff"); A(f"s_mov_b32 s{sPAY+2}, {E*16}"); A(f"s_mov_b32 s{sPAY+3}, 0x00020000")
    A(f"s_mov_b32 s{sLN2}, 0x{f2u(-LN2):08x}"); A(f"s_mov_b32 s{sLN2+1}, 0x{f2u(-LN2):08x}")
    def burst(vaddr,vdst=2):
        for q in range(4):
            A(f"buffer_load_dword v{vdst}, v{vaddr}, s[{sRAW}:{sRAW+3}], s{sPFO} offen")
            if q<3: A(f"s_add_u32 s{sPFO}, s{sPFO}, 8192")
    def pf_row0(rnd_sreg,dst):
        A(f"s_lshr_b32 s{sTMP+2}, s2, 3")
        A(f"s_and_b32 s{sTMP+3}, s{sTMP+2}, 1"); A(f"s_lshl_b32 s{sTMP+3}, s{sTMP+3}, 9")
        A(f"s_lshr_b32 s{sTMP+2}, s{sTMP+2}, 1"); A(f"s_lshl_b32 s{sTMP+2}, s{sTMP+2}, 5")
        A(f"s_add_u32 s{sTMP+2}, s{sTMP+2}, s{sTMP+3}")
        A(f"s_lshl_b32 s{dst}, s{rnd_sreg}, 10"); A(f"s_add_u32 s{dst}, s{dst}, s{sTMP+2}"); A(f"s_lshl_b32 s{dst}, s{dst}, 10")
    if P.pf:
        A(f"s_mov_b32 s{sRAW}, s{sX}"); A(f"s_and_b32 s{sRAW+1}, s{sX+1}, 0xffff"); A(f"s_mov_b32 s{sRAW+2}, {N*1024}"); A(f"s_mov_b32 s{sRAW+3}, 0x00020000")
    def propf(part=0):
        if P.pf==3:
            r0=(P.k1rows if P.k1pf else 0) if part==0 else P.pfsplit
            r1=P.pfsplit if (part==0 and P.pfsplit) else N
            per=((r1-r0)*8+249)//250; nw=(per+63)//64
            lab=f"K2_NOPF{part}"
            A(f"s_cmp_ge_u32 s{sW}, {nw}")
            A(f"s_cbranch_scc1 {lab}")
            A(f"s_mul_i32 s{sPFO}, s2, {per*128}"); A(f"s_lshl_b32 s{sTMP+2}, s{sW}, 13"); A(f"s_add_u32 s{sPFO}, s{sPFO}, s{sTMP+2}")
            if r0: A(f"s_add_u32 s{sPFO}, s{sPFO}, {r0*1024}")
            A(f"v_lshlrev_b32 v126, 7, v{vLANE}")
            A(f"buffer_load_dword v127, v126, s[{sRAW}:{sRAW+3}], s{sPFO} offen")
            A.label(lab)
            return
        A(f"s_cmp_ge_u32 s{sW}, {P.npro}")
        A("s_cbranch_scc1 K2_NOPF0")
        pf_row0(sW,sPFO)
        A(f"v_lshlrev_b32 v126, 7, v{vLANE}")
        burst(126,127)
        A.label("K2_NOPF0")
    if P.fused:
        if P.flags:
            A(f"s_add_u32 s76, s{sWS}, {WS_FLAG}"); A(f"s_addc_u32 s77, s{sWS+1}, 0")
        A(f"s_cmp_lg_u32 s{sW}, 0"); A("s_cbranch_scc1 F_REL")
        A(f"s_mov_b32 s{sTMP}, 0")
        if P.flags:
            A(f"s_and_b32 s{sTMP+1}, s2, 7"); A(f"s_lshl_b32 s{sTMP+1}, s{sTMP+1}, 10"); A(f"v_add_u32 v{T[1]}, s{sTMP+1}, v{PAIR+1}")
            A(f"v_cmp_gt_u32 s[64:65], 63, v{vLANE}"); A(f"v_cmp_gt_u32 s[66:67], 62, v{vLANE}")
            A.label("F_POLL")
            A(f"global_load_dwordx4 v[{X}:{X+3}], v{T[1]}, s[76:77] sc1")
            A("s_waitcnt vmcnt(0)")
            for q in range(4):
                A(f"v_cmp_eq_u32 vcc, s74, v{X+q}")
                m="s[64:65]" if q<2 else "s[66:67]"
                d=["s[68:69]","s[70:71]","s[32:33]","s[34:35]"][q]
                A(f"s_andn2_b64 {d}, {m}, vcc")
            A("s_or_b64 s[68:69], s[68:69], s[70:71]"); A("s_or_b64 s[32:33], s[32:33], s[34:35]"); A("s_or_b64 s[68:69], s[68:69], s[32:33]")
            A(f"s_add_u32 s{sTMP}, s{sTMP}, 1")
            A(f"s_cmp_ge_u32 s{sTMP}, 0x100000"); A("s_cbranch_scc1 F_REL")
            A("s_cmp_eq_u64 s[68:69], 0"); A("s_cbranch_scc1 F_REL")
            if P.sleep>0: A(f"s_sleep {P.sleep}")
            A("s_branch F_POLL")
        else:
            A(f"v_lshlrev_b32 v{T[1]}, 6, v{vLANE}")
            A.label("F_POLL")
            A(f"v_mov_b32 v{T[2]}, 0")
            A(f"v_cmp_gt_u32 vcc, 4, v{vLANE}"); A(f"s_and_saveexec_b64 s[{sEX}:{sEX+1}], vcc")
            A(f"global_load_dword v{T[2]}, v{T[1]}, s[72:73] sc1")
            A("s_mov_b64 exec, -1")
            A("s_waitcnt vmcnt(0)")
            A("s_nop 1"); A(f"v_add_u32_dpp v{T[2]}, v{T[2]}, v{T[2]} row_shr:1 row_mask:0xf bank_mask:0xf bound_ctrl:1")
            A("s_nop 1"); A(f"v_add_u32_dpp v{T[2]}, v{T[2]}, v{T[2]} row_shr:2 row_mask:0xf bank_mask:0xf bound_ctrl:1")
            A("s_nop 1"); A(f"v_readlane_b32 s{sTMP+1}, v{T[2]}, 3")
            A(f"s_add_u32 s{sTMP}, s{sTMP}, 1")
            A(f"s_cmp_ge_u32 s{sTMP}, 0x100000"); A("s_cbranch_scc1 F_REL")
        if P.flags:
            pass
        elif P.sleep<0:
            A(f"s_cmp_ge_u32 s{sTMP+1}, {NB}"); A("s_cbranch_scc1 F_REL")
            A(f"s_cmp_ge_u32 s{sTMP+1}, {P.nfast}"); A("s_cbranch_scc1 F_FAST")
            A(f"s_sleep {-P.sleep}")
            A("s_branch F_POLL")
            A.label("F_FAST")
            A(f"s_sleep {P.sfast}")
            A("s_branch F_POLL")
        elif P.sleep:
            A(f"s_cmp_ge_u32 s{sTMP+1}, {NB}"); A("s_cbranch_scc1 F_REL")
            A(f"s_sleep {P.sleep}")
            A("s_branch F_POLL")
        else:
            A(f"s_cmp_lt_u32 s{sTMP+1}, {NB}"); A("s_cbranch_scc1 F_POLL")
        A.label("F_REL")
        A("s_barrier")
        ST.mark("rel")
    A(f"v_lshlrev_b32 v{T[1]}, 5, v{vLANE}")
    if P.fused:
        A(f"v_mov_b32 v{T[2]}, 0")
        A(f"s_cmp_ge_u32 s{sW}, 4"); A("s_cbranch_scc1 K2_NOCL")
        A(f"v_lshlrev_b32 v{T[3]}, 10, v0")
        A(f"v_cmp_gt_u32 vcc, {NC}, v0"); A(f"s_and_saveexec_b64 s[{sEX}:{sEX+1}], vcc")
        A(f"global_load_dword v{T[2]}, v{T[3]}, s[{sCELL}:{sCELL+1}] sc1")
        A("s_mov_b64 exec, -1")
        A.label("K2_NOCL")
    else:
        A(f"global_load_dwordx4 v[{CNT}:{CNT+3}], v{PAIR+1}, s[{sCELL}:{sCELL+1}]"+SC)
    A(f"global_load_dwordx4 v[{WF}:{WF+3}], v{T[1]}, s[{sCONST}:{sCONST+1}] offset:{CONST_WF}"+SC)
    A(f"global_load_dwordx4 v[{WF+4}:{WF+7}], v{T[1]}, s[{sCONST}:{sCONST+1}] offset:{CONST_WF+16}"+SC)
    A(f"global_load_dwordx4 v[{CG}:{CG+3}], v{T[1]}, s[{sCONST}:{sCONST+1}] offset:{CONST_CG}"+SC)
    A(f"global_load_dwordx4 v[{CG+4}:{CG+7}], v{T[1]}, s[{sCONST}:{sCONST+1}] offset:{CONST_CG+16}"+SC)
    if P.fused:
        A(f"s_cmp_ge_u32 s{sW}, 4"); A("s_cbranch_scc1 K2_NOCW")
        A("s_waitcnt vmcnt(4)")
        A(f"v_lshlrev_b32 v{T[3]}, 2, v0"); A(f"v_add_u32 v{T[3]}, {LDS_CELL}, v{T[3]}")
        A(f"ds_write_b32 v{T[3]}, v{T[2]}")
        A("s_waitcnt lgkmcnt(0)")
        A.label("K2_NOCW")
        A("s_barrier")
        A(f"v_add_u32 v{T[3]}, {LDS_CELL}, v{PAIR+1}")
        A(f"ds_read_b128 v[{CNT}:{CNT+3}], v{T[3]}")
    A("s_branch K2_ROUND1")
    A.label("K2_ROUND")
    A(f"v_lshlrev_b32 v{T[1]}, 5, v{vLANE}")
    if P.fused:
        A(f"v_add_u32 v{T[3]}, {LDS_CELL}, v{PAIR+1}")
        A(f"ds_read_b128 v[{CNT}:{CNT+3}], v{T[3]}")
    else:
        A(f"global_load_dwordx4 v[{CNT}:{CNT+3}], v{PAIR+1}, s[{sCELL}:{sCELL+1}]"+SC)
    A(f"global_load_dwordx4 v[{CG}:{CG+3}], v{T[1]}, s[{sCONST}:{sCONST+1}] offset:{CONST_CG}"+SC)
    A(f"global_load_dwordx4 v[{CG+4}:{CG+7}], v{T[1]}, s[{sCONST}:{sCONST+1}] offset:{CONST_CG+16}"+SC)
    A("s_waitcnt vmcnt(0)")
    A.label("K2_ROUND1")
    A(f"v_lshlrev_b32 v{T[0]}, 2, v0")
    A(f"v_mov_b32 v{T[1]}, 0")
    A(f"v_cmp_gt_u32 vcc, {nbins}, v0")
    A(f"s_and_saveexec_b64 s[{sEX}:{sEX+1}], vcc")
    A("s_cbranch_execz K2_NOZ")
    A(f"ds_write_b32 v{T[0]}, v{T[1]} offset:{LDS_HIST}")
    A.label("K2_NOZ")
    A(f"s_mov_b64 exec, -1")
    A("s_waitcnt lgkmcnt(0)" if P.fused else "s_waitcnt vmcnt(4)")
    ST.mark("cell")
    if P.pf and P.pfat=="cell": propf()
    A(f"v_mul_u32_u24 v{T[0]}, {4*CH}, v{vLANE}")
    for i in range(4):
        A(f"v_and_b32 v{REC0+i}, 0xffff, v{CNT+i}")
        A(f"v_lshrrev_b32 v{CNT+i}, 16, v{CNT+i}")
        if i: A(f"v_add3_u32 v{REC0+i}, v{REC0+i}, v{T[0]}, s{sCHI+i-1}")
        else: A(f"v_add_u32 v{REC0+i}, v{REC0+i}, v{T[0]}")
    A(f"v_add_u32 v{T[1]}, v{CNT}, v{CNT+1}")
    A(f"v_add_u32 v{T[2]}, v{T[1]}, v{CNT+2}")
    A(f"v_add_u32 v{T[3]}, v{T[2]}, v{CNT+3}")
    A(f"v_max3_u32 v{T[5]}, v{CNT}, v{CNT+1}, v{CNT+2}")
    A(f"v_mov_b32 v{T[4]}, v{T[3]}")
    A(f"v_max_u32 v{T[5]}, v{T[5]}, v{CNT+3}")
    dpp_scan(A,T[4])
    A(f"v_sub_u32 v{BASEC}, v{T[4]}, v{T[3]}")
    A(f"v_add_u32 v{BASEC+1}, v{BASEC}, v{CNT}")
    A(f"v_add_u32 v{BASEC+2}, v{BASEC}, v{T[1]}")
    A(f"v_add_u32 v{BASEC+3}, v{BASEC}, v{T[2]}")
    A(f"v_readlane_b32 s{sT}, v{T[4]}, 63")
    A(f"v_mov_b32 v{T[6]}, 8192")
    A(f"s_mov_b32 s{sKK}, s{sW}")
    A(f"s_cmp_eq_u32 s{sT}, 0")
    A("s_cbranch_scc1 K2_EPI")
    A.label("K2_EX")
    A(f"v_cmp_lt_u32 vcc, s{sKK}, v{T[5]}")
    A(f"s_cbranch_vccz K2_EXD")
    A(f"s_sub_u32 s{sTMP}, s{sKK}, s{sLO}")
    for i in range(4):
        A(f"v_add_u32 v{T[0]}, s{sTMP}, v{BASEC+i}")
        A(f"v_cmp_lt_u32 vcc, s{sKK}, v{CNT+i}")
        A(f"v_cmp_gt_u32 s[{sM}:{sM+1}], s{sWIN}, v{T[0]}")
        A(f"v_lshlrev_b32 v{T[0]}, 2, v{T[0]}")
        A(f"v_add_u32 v{T[1]}, s{sKK}, v{REC0+i}")
        A(f"s_and_b64 vcc, vcc, s[{sM}:{sM+1}]")
        A(f"v_cndmask_b32 v{T[0]}, v{T[6]}, v{T[0]}, vcc")
        A(f"ds_write_b32 v{T[0]}, v{T[1]} offset:{LDS_MARK}")
    A(f"s_add_u32 s{sKK}, s{sKK}, {NW}")
    A("s_branch K2_EX")
    A.label("K2_EXD")
    A("s_waitcnt lgkmcnt(0)")
    A("s_barrier")
    ST.mark("bar1")
    A(f"v_lshlrev_b32 v{T[0]}, 2, v0")
    for s in range(2): A(f"ds_read_b32 v{MK+s}, v{T[0]} offset:{LDS_MARK+s*4096}")
    A(f"v_mov_b32 v{T[2]}, 0"); A(f"v_mov_b32 v{T[3]}, 0"); A(f"v_mov_b32 v{T[1]}, {LDS_FLAG}")
    A(f"ds_write_b64 v{T[1]}, v[{T[2]}:{T[3]}]")
    A(f"s_sub_u32 s{sNR}, s{sT}, s{sLO}")
    A(f"s_min_u32 s{sNR}, s{sNR}, s{sWIN}")
    A(f"s_lshl_b32 s{sTMP}, s{sW}, 6")
    A("s_waitcnt lgkmcnt(1)")
    for s in range(2):
        A(f"s_add_u32 s{sTMP+1}, s{sTMP}, {s*1024}")
        A(f"s_cmp_ge_u32 s{sTMP+1}, s{sNR}")
        A(f"s_cbranch_scc1 K2_LD_DONE")
        A(f"v_add_u32 v{T[1]}, {s*1024}, v0")
        A(f"v_cmp_gt_u32 vcc, s{sNR}, v{T[1]}")
        A(f"v_lshlrev_b32 v{T[2]}, 2, v{MK+s}")
        A(f"v_lshlrev_b32 v{T[3]}, 4, v{MK+s}")
        A(f"s_and_saveexec_b64 s[{sEX}:{sEX+1}], vcc")
        A(f"buffer_load_dword v{KEY+s}, v{T[2]}, s[{sKEY}:{sKEY+3}], 0 offen"+SC)
        A(f"buffer_load_dwordx4 v[{PAY+4*s}:{PAY+4*s+3}], v{T[3]}, s[{sPAY}:{sPAY+3}], 0 offen"+SC)
        A(f"s_mov_b64 exec, -1")
    A.label("K2_LD_DONE")
    A(f"v_mov_b32 v{T[4]}, 1")
    A("s_waitcnt vmcnt(0)")
    ST.mark("recs")
    if P.pf and P.pfat=="recs": propf()
    for s in range(2):
        A(f"s_add_u32 s{sTMP+1}, s{sTMP}, {s*1024}")
        A(f"s_cmp_ge_u32 s{sTMP+1}, s{sNR}")
        A(f"s_cbranch_scc1 K2_H_DONE")
        A(f"v_add_u32 v{T[1]}, {s*1024}, v0")
        A(f"v_lshrrev_b32 v{BINA+s}, 17, v{KEY+s}")
        A(f"v_cmp_gt_u32 vcc, s{sNR}, v{T[1]}")
        A(f"v_lshlrev_b32 v{T[2]}, 2, v{BINA+s}")
        A(f"s_and_saveexec_b64 s[{sEX}:{sEX+1}], vcc")
        A(f"ds_add_rtn_u32 v{RANK+s}, v{T[2]}, v{T[4]} offset:{LDS_HIST}")
        A(f"s_mov_b64 exec, -1")
        for o in range(4):
            A(f"v_mfma_f32_4x4x4_16b_bf16 v[{AT+4*o}:{AT+4*o+3}], v[{CG+2*o}:{CG+2*o+1}], v[{PAY+4*s}:{PAY+4*s+1}], 0")
        A("s_nop 4")
        for o in range(4):
            A(f"v_cvt_pk_bf16_f32 v{AP+8*s+2*o}, v{AT+4*o}, v{AT+4*o+1}")
            A(f"v_cvt_pk_bf16_f32 v{AP+8*s+2*o+1}, v{AT+4*o+2}, v{AT+4*o+3}")
    A.label("K2_H_DONE")
    A("s_waitcnt lgkmcnt(0)")
    A("s_barrier")
    ST.mark("bar2")
    if P.pf and P.pfat=="bar2": propf()
    A(f"s_lshl_b32 s{sTMP+1}, s{sG8}, {(B*4).bit_length()-1}")
    A(f"v_lshlrev_b32 v{T[0]}, 2, v{vLANE}")
    A(f"v_add_u32 v{T[0]}, s{sTMP+1}, v{T[0]}")
    if B<64:
        A(f"v_mov_b32 v{T[1]}, 0")
        A(f"v_cmp_gt_u32 vcc, {B}, v{vLANE}")
        A(f"s_and_saveexec_b64 s[{sEX}:{sEX+1}], vcc")
    A(f"ds_read_b32 v{T[1]}, v{T[0]} offset:{LDS_HIST}")
    A(f"s_mov_b64 exec, -1")
    A(f"v_add_u32 v{T[2]}, s{sH}, v{vLANE}"); A(f"v_and_b32 v{T[2]}, 1, v{T[2]}")
    A(f"v_lshlrev_b32 v{T[0]}, 1, v{T[0]}"); A(f"s_lshl_b32 s{sTMP+2}, s{sH}, 2"); A(f"v_add_u32 v{T[0]}, s{sTMP+2}, v{T[0]}")
    A("s_waitcnt lgkmcnt(0)")
    A(f"v_sub_u32 v{T[1]}, v{T[1]}, v{T[2]}"); A(f"v_add_u32 v{T[1]}, 1, v{T[1]}"); A(f"v_lshrrev_b32 v{T[1]}, 1, v{T[1]}")
    A(f"v_mov_b32 v{T[2]}, v{T[1]}")
    dpp_scan(A,T[2],nrows={16:1,32:2,64:4}[B])
    A(f"s_nop 0")
    A(f"v_readlane_b32 s{sTOT}, v{T[2]}, {B-1}")
    A(f"v_sub_u32 v{T[2]}, v{T[2]}, v{T[1]}")
    A(f"v_add_u32 v{T[2]}, s{sWB}, v{T[2]}")
    if B<64:
        A(f"v_cmp_gt_u32 vcc, {B}, v{vLANE}")
        A(f"s_and_saveexec_b64 s[{sEX}:{sEX+1}], vcc")
    A(f"ds_write_b32 v{T[0]}, v{T[2]} offset:{LDS_BASE}")
    A(f"s_mov_b64 exec, -1")
    if P.bar:
        A(f"v_mov_b32 v{T[0]}, s{sTOT}"); A(f"v_mov_b32 v{T[1]}, {LDS_FLAG}")
        A(f"ds_max_u32 v{T[1]}, v{T[0]} offset:4")
    A(f"s_cmp_gt_u32 s{sTOT}, {TOTMAX}")
    A("s_cbranch_scc0 K2_NOOVF")
    A(f"v_mov_b32 v{T[0]}, 1"); A(f"v_mov_b32 v{T[1]}, {LDS_FLAG}")
    A(f"ds_write_b32 v{T[1]}, v{T[0]}")
    A("s_branch K2_PADDONE")
    A.label("K2_NOOVF")
    A.label("K2_PADDONE")
    A("s_waitcnt lgkmcnt(0)")
    A("s_barrier")
    ST.mark("bar3")
    if P.pf and P.pfat=="bar3": propf()
    if P.pf==3 and P.pfsplit and P.pfat2=="bar3": propf(1)
    A(f"v_mov_b32 v{T[1]}, {LDS_FLAG}")
    A(f"ds_read_b32 v{T[0]}, v{T[1]}")
    if P.bar: A(f"ds_read_b32 v{T[5]}, v{T[1]} offset:4")
    for s in range(2):
        A(f"v_add_u32 v{T[2]}, v{RANK+s}, v{BINA+s}"); A(f"v_and_b32 v{T[2]}, 1, v{T[2]}")
        A(f"v_lshl_add_u32 v{T[2]}, v{BINA+s}, 1, v{T[2]}"); A(f"v_lshlrev_b32 v{T[2]}, 2, v{T[2]}")
        A(f"ds_read_b32 v{MK+s}, v{T[2]} offset:{LDS_BASE}")
    A("s_waitcnt lgkmcnt(0)")
    A(f"v_readfirstlane_b32 s{sTMP+1}, v{T[0]}")
    if P.bar:
        A(f"v_readfirstlane_b32 s{sGM}, v{T[5]}")
        A(f"s_add_u32 s{sGM}, s{sGM}, 15"); A(f"s_lshr_b32 s{sGM}, s{sGM}, 4"); A(f"s_mov_b32 s{sGB}, 0")
    A("s_nop 3")
    A(f"s_cmp_eq_u32 s{sTMP+1}, 0")
    A("s_cbranch_scc1 K2_PLACE")
    A(f"s_mov_b32 s{sWIN}, {WINSMALL}")
    A("s_branch K2_ROUND")
    A.label("K2_PLACE")
    A(f"s_add_u32 s{sTMP+2}, s{sWB}, s{sTOT}")
    A(f"v_add_u32 v{T[0]}, s{sTMP+2}, v{vLANE}")
    A(f"v_lshlrev_b32 v{T[1]}, 2, v{T[0]}")
    A(f"v_lshlrev_b32 v{T[2]}, 3, v{T[0]}")
    A(f"v_lshlrev_b32 v{T[3]}, 5, v{T[0]}"); A(f"v_add_u32 v{T[3]}, {LDS_A}, v{T[3]}")
    for q in range(4): A(f"v_mov_b32 v{T[6+q]}, 0")
    assert T[6]%2==0 and T[9]==T[6]+3
    A(f"v_cmp_gt_u32 vcc, 8, v{vLANE}")
    A(f"s_and_saveexec_b64 s[{sEX}:{sEX+1}], vcc")
    A(f"ds_write_b32 v{T[1]}, v{T[6]} offset:{LDS_IDX}")
    A(f"ds_write_b8 v{T[0]}, v{T[6]} offset:{LDS_K}")
    A(f"v_cmp_gt_u32 vcc, 4, v{vLANE}")
    A(f"s_and_b64 exec, exec, vcc")
    A(f"ds_write_b64 v{T[2]}, v[{T[6]}:{T[6]+1}] offset:{LDS_EF}")
    A(f"ds_write_b128 v{T[3]}, v[{T[6]}:{T[6]+3}]")
    A(f"ds_write_b128 v{T[3]}, v[{T[6]}:{T[6]+3}] offset:16")
    A(f"s_mov_b64 exec, -1")
    for s in range(2):
        A(f"s_add_u32 s{sTMP+1}, s{sTMP}, {s*1024}")
        A(f"s_cmp_ge_u32 s{sTMP+1}, s{sNR}")
        A(f"s_cbranch_scc1 K2_P_DONE")
        A(f"v_add_u32 v{T[1]}, {s*1024}, v0")
        A(f"v_cmp_gt_u32 vcc, s{sNR}, v{T[1]}")
        A(f"v_lshrrev_b32 v{T[0]}, 1, v{RANK+s}")
        A(f"v_add_u32 v{MK+s}, v{MK+s}, v{T[0]}")
        A(f"v_lshlrev_b32 v{T[0]}, 2, v{MK+s}")
        A(f"v_lshlrev_b32 v{T[1]}, 3, v{MK+s}")
        A(f"v_lshlrev_b32 v{T[2]}, 5, v{MK+s}")
        A(f"v_add_u32 v{T[2]}, {LDS_A}, v{T[2]}")
        A(f"v_and_b32 v{T[3]}, {hex(P.srcmask)}, v{KEY+s}")
        A(f"v_lshrrev_b32 v{T[4]}, 11, v{KEY+s}")
        A(f"v_and_b32 v{T[4]}, 0x38, v{T[4]}")
        A(f"s_and_saveexec_b64 s[{sEX}:{sEX+1}], vcc")
        A(f"ds_write_b128 v{T[2]}, v[{AP+8*s}:{AP+8*s+3}]")
        A(f"ds_write_b128 v{T[2]}, v[{AP+8*s+4}:{AP+8*s+7}] offset:16")
        A(f"ds_write_b64 v{T[1]}, v[{PAY+4*s+2}:{PAY+4*s+3}] offset:{LDS_EF}")
        A(f"ds_write_b32 v{T[0]}, v{T[3]} offset:{LDS_IDX}")
        A(f"ds_write_b8 v{MK+s}, v{T[4]} offset:{LDS_K}")
        A(f"s_mov_b64 exec, -1")
    A.label("K2_P_DONE")
    A("s_waitcnt lgkmcnt(0)")
    A("s_barrier")
    ST.mark("bar4")
    tl(4)
    if P.pf==3 and P.pfsplit and P.pfat2=="bar4": propf(1)
    ST.markc("c0")
    A(f"s_cmp_eq_u32 s{sTOT}, 0")
    A("s_cbranch_scc1 K2_MAIN_DONE")
    A(f"s_add_u32 s{sNB}, s{sTOT}, 3"); A(f"s_lshr_b32 s{sNB}, s{sNB}, 2"); A(f"s_sub_u32 s{sN}, 0, s{sNB}")
    A(f"s_lshl_b32 s{sTMP}, s{sWB}, 2"); A(f"v_mov_b32 v{vIad}, s{sTMP}")
    A(f"v_mov_b32 v{vKad}, s{sWB}")
    A(f"s_lshl_b32 s{sTMP}, s{sWB}, 5"); A(f"s_add_u32 s{sTMP}, s{sTMP}, {LDS_A}")
    A(f"v_lshlrev_b32 v{vT0}, 3, v{vLANE}")
    A(f"v_add_u32 v{vAad}, s{sTMP}, v{vT0}")
    A(f"s_lshl_b32 s{sTMP}, s{sWB}, 3"); A(f"s_add_u32 s{sTMP}, s{sTMP}, {LDS_EF}")
    A(f"v_add_u32 v{vEad}, s{sTMP}, v{vT0}")
    if P.pf and P.nrounds:
        pf_row0(sW,sPFO)
        A(f"s_lshl_b32 s{sTMP}, s{sW}, 10"); A(f"s_add_u32 s{sTMP}, s{sTMP}, s{sTMP+3}"); A(f"s_sub_i32 s{sTMP}, s{sTMP}, {P.lead}")
        A(f"s_max_i32 s{sTMP}, s{sTMP}, 0"); A(f"s_mul_i32 s{sTMP}, s{sTMP}, s{sNB}"); A(f"s_mul_i32 s{sTMP}, s{sTMP}, 6711"); A(f"s_lshr_b32 s{sTMP}, s{sTMP}, 26")
        A(f"s_sub_u32 s{sPFT}, s{sTMP}, s{sNB}")
        A(f"s_min_i32 s{sPFT}, s{sPFT}, -2")
        A(f"s_cmp_lt_u32 s{sW}, {P.npro}"); A(f"s_cselect_b32 s{sPFT}, 1, s{sPFT}")
        A(f"s_cmp_ge_u32 s{sW}, {P.nrounds}"); A(f"s_cselect_b32 s{sPFT}, 1, s{sPFT}")
        A(f"v_lshlrev_b32 v0, 7, v{vLANE}")
    def mf(d,a,b,abid,c="0"): return f"v_mfma_f32_4x4x4_16b_bf16 v[{d}:{d+3}], v[{a}:{a+1}], v[{b}:{b+1}], {c} cbsz:4 abid:{abid}"
    def xload(slot,pair): return f"buffer_load_dwordx4 v[{X+4*(slot%U)}:{X+4*(slot%U)+3}], v[{PAIR+2*pair}:{PAIR+2*pair+1}], s[{sSRD}:{sSRD+3}], 0 idxen offen"
    if P.prio==4: A("s_setprio 3")
    for p in range(4): A(f"ds_read_b32 v{PAIR+2*p}, v{vIad} offset:{LDS_IDX+4*p}")
    A(f"ds_read_b64 v[{AOP}:{AOP+1}], v{vAad}")
    A(f"ds_read_b64 v[{EOP}:{EOP+1}], v{vEad}")
    A(f"ds_read_b32 v{vK}, v{vKad} offset:{LDS_K}")
    A("s_waitcnt lgkmcnt(3)")
    for p in range(4): A(xload(p,p))
    for p in range(4): A(f"ds_read_b32 v{PAIR+2*p}, v{vIad} offset:{LDS_IDX+4*(4+p)}")
    hi_e,hi_o,lo_e,lo_o=WF,WF+2,WF+4,WF+6
    A("s_waitcnt lgkmcnt(5)")
    for t in (0,1):
        u=UU[t]
        A(mf(u,EOP,hi_e,t)); A(mf(u+4,EOP,hi_o,t))
        A("s_nop 1")
        A(mf(u,EOP,lo_e,t,f"v[{u}:{u+3}]")); A(mf(u+4,EOP,lo_o,t,f"v[{u+4}:{u+7}]"))
    A("s_nop 2")
    u=UU[0]
    for q in range(8): A(f"v_exp_f32 v{EE+q}, v{u+q}")
    A("s_nop 0")
    for q in range(4): A(f"v_pk_add_f32 v[{EE+2*q}:{EE+2*q+1}], v[{EE+2*q}:{EE+2*q+1}], 1.0 op_sel_hi:[1,0]")
    for q in range(8): A(f"v_rcp_f32 v{EE+q}, v{EE+q}")
    A("s_nop 0")
    for q in range(2): A(f"v_pk_mul_f32 v[{RR+2*q}:{RR+2*q+1}], v[{u+2*q}:{u+2*q+1}], v[{EE+2*q}:{EE+2*q+1}]")
    body=[]
    for t in range(4):
        cur=t%2; nxt=(t+1)%2
        if P.prio==1: body.append(('s',f"s_setprio {3-t}"))
        body.append(('s',"s_waitcnt lgkmcnt(0)"))
        body.append(('s',f"v_readfirstlane_b32 s{sK[0]}, v{vK}"))
        if P.pf and P.nrounds:
            body.append(('s',f"s_cmp_eq_u32 s{sN}, s{sPFT}"))
            body.append(('s',f"s_cbranch_scc1 K2_PF{t}"))
            body.append(('l',f"K2_PFR{t}"))
        body.append(('s',f"ds_read_b32 v{vK}, v{vKad} offset:{LDS_K+4*(t+1)}"))
        if t==0:
            body.append(('s',f"ds_read_b64 v[{EOPN}:{EOPN+1}], v{vEad} offset:128"))
            body.append(('s',f"ds_read_b64 v[{AOPN}:{AOPN+1}], v{vAad} offset:512"))
        for i in range(4):
            j=4*t+i
            x=X+4*(j%U)
            if P.prio==2 and i%2==0: body.append(('s',f"s_setprio {3-(j//2)%4}"))
            if P.prio==3: body.append(('s',f"s_setprio {3-i}"))
            un=UU[nxt]; uw=UU[cur]
            if i==0: TR=[f"v_exp_f32 v{EE+q}, v{un+q}" for q in range(4)]
            if i==1: TR=[f"v_exp_f32 v{EE+4+q}, v{un+4+q}" for q in range(4)]
            if i==2: TR=[f"v_rcp_f32 v{EE+q}, v{EE+q}" for q in range(4)]
            if i==3: TR=[f"v_rcp_f32 v{EE+4+q}, v{EE+4+q}" for q in range(4)]
            PKpre=[];PKpost=[]
            if i==0: PKpre=[f"v_pk_mul_f32 v[{RR+4+2*q}:{RR+4+2*q+1}], v[{uw+4+2*q}:{uw+4+2*q+1}], v[{EE+4+2*q}:{EE+4+2*q+1}]" for q in range(2)]
            if i==1: PKpre=[f"v_pk_add_f32 v[{EE+2*q}:{EE+2*q+1}], v[{EE+2*q}:{EE+2*q+1}], 1.0 op_sel_hi:[1,0]" for q in range(2)]
            if i==2: PKpre=[f"v_pk_add_f32 v[{EE+4+2*q}:{EE+4+2*q+1}], v[{EE+4+2*q}:{EE+4+2*q+1}], 1.0 op_sel_hi:[1,0]" for q in range(2)]
            if i==3: PKpost=[f"v_pk_mul_f32 v[{RR+2*q}:{RR+2*q+1}], v[{un+2*q}:{un+2*q+1}], v[{EE+2*q}:{EE+2*q+1}]" for q in range(2)]
            eop,ab=(EOP,t+2) if t<2 else (EOPN,t-2)
            if i==0: UM=mf(uw,eop,hi_e,ab)
            if i==1: UM=mf(uw+4,eop,hi_o,ab)
            if i==2: UM=mf(uw,eop,lo_e,ab,f"v[{uw}:{uw+3}]")
            if i==3: UM=mf(uw+4,eop,lo_o,ab,f"v[{uw+4}:{uw+7}]")
            body.append(('s',f"s_waitcnt vmcnt({U-1})"))
            body.append(('s',mf(TP,AOP,x,j)))
            body.append(('s',TR[0]))
            body.append(('s',mf(TP+4,AOP,x+2,j)))
            body.append(('s',TR[1]))
            body.append(('s',xload(j,i)))
            body.append(('s',f"ds_read_b32 v{PAIR+2*i}, v{vIad} offset:{LDS_IDX+4*(j+2*U)}"))
            body.append(('s',UM))
            body.append(('s',TR[2])); body.append(('s',TR[3]))
            for q in PKpre: body.append(('s',q))
            body.append(('s',f"s_set_gpr_idx_on s{sK[0]}, gpr_idx(SRC2,DST)"))
            sel=i%2; pr=i//2
            for h in range(4):
                R=RR+(0 if h<2 else 4)+2*pr
                a=ACC+2*h; tp=TP+2*h
                mod = "op_sel_hi:[1,0,1]" if sel==0 else "op_sel:[0,1,0] op_sel_hi:[1,1,1]"
                body.append(('s',f"v_pk_fma_f32 v[{a}:{a+1}], v[{tp}:{tp+1}], v[{R}:{R+1}], v[{a}:{a+1}] {mod}"))
            body.append(('s',"s_set_gpr_idx_off"))
            for q in PKpost: body.append(('s',q))
            if i<3: body.append(('s',f"s_lshr_b32 s{sK[0]}, s{sK[0]}, 8"))
        body.append(('s',f"s_add_u32 s{sN}, s{sN}, 1"))
        body.append(('s',"s_cbranch_scc1 K2_MAIN_DONE"))
    if P.bar:
        body.append(('s',"s_barrier")); body.append(('s',f"s_add_u32 s{sGB}, s{sGB}, 1"))
    if P.prio==4:
        body.append(('s',f"s_sub_u32 s{sQ}, 0, s{sN}")); body.append(('s',f"s_lshl_b32 s{sQ}, s{sQ}, 2"))
        for lv in (3,2,1):
            pass
        body.append(('s',f"s_mul_i32 s{sQ+1}, s{sNB}, 3")); body.append(('s',f"s_cmp_ge_u32 s{sQ}, s{sQ+1}")); body.append(('s',"s_cbranch_scc1 K2_LOOPB"))
        body.append(('s',"s_setprio 2")); body.append(('s',f"s_lshl_b32 s{sQ+1}, s{sNB}, 1")); body.append(('s',f"s_cmp_ge_u32 s{sQ}, s{sQ+1}")); body.append(('s',"s_cbranch_scc1 K2_LOOPB"))
        body.append(('s',"s_setprio 1")); body.append(('s',f"s_cmp_ge_u32 s{sQ}, s{sNB}")); body.append(('s',"s_cbranch_scc1 K2_LOOPB"))
        body.append(('s',"s_setprio 0")); body.append(('l',"K2_LOOPB"))
    body.append(('s',f"v_mov_b32 v{AOP}, v{AOPN}")); body.append(('s',f"v_mov_b32 v{AOP+1}, v{AOPN+1}"))
    body.append(('s',f"v_mov_b32 v{EOP}, v{EOPN}")); body.append(('s',f"v_mov_b32 v{EOP+1}, v{EOPN+1}"))
    body.append(('s',f"v_add_u32 v{vAad}, 512, v{vAad}")); body.append(('s',f"v_add_u32 v{vEad}, 128, v{vEad}"))
    body.append(('s',f"v_add_u32 v{vIad}, 64, v{vIad}")); body.append(('s',f"v_add_u32 v{vKad}, 16, v{vKad}"))
    body.append(('s',"s_branch K2_LOOP"))
    if "noload" in P.dbg: body=[b for b in body if not (b[0]=='s' and (b[1].startswith("buffer_load") or b[1].startswith("s_waitcnt vmcnt")))]
    if "noidx" in P.dbg: body=[b for b in body if not (b[0]=='s' and b[1].startswith("s_set_gpr"))]
    if "notrans" in P.dbg: body=[b for b in body if not (b[0]=='s' and (b[1].startswith("v_exp") or b[1].startswith("v_rcp")))]
    if "nofma" in P.dbg: body=[b for b in body if not (b[0]=='s' and b[1].startswith("v_pk_fma"))]
    if "nolo" in P.dbg: body=[b for b in body if not (b[0]=='s' and b[1].startswith("v_mfma") and (f"v[{WF+4}:{WF+5}]" in b[1] or f"v[{WF+6}:{WF+7}]" in b[1]))]
    if "nomfma" in P.dbg: body=[b for b in body if not (b[0]=='s' and b[1].startswith("v_mfma"))]
    A.label("K2_LOOP")
    for i,b in enumerate(body):
        if b[0]=='s': A(b[1])
        elif b[0]=='l': A.label(b[1])
        elif b[0]=='lds': A(b[2])
        else:
            cnt=0; found=False
            for step in range(len(body)):
                kk=(i-1-step)%len(body)
                if body[kk][0]=='lds':
                    if body[kk][1]==b[1]: found=True; break
                    cnt+=1
            assert found,b
            A(f"s_waitcnt lgkmcnt({min(cnt,15)})")
    if P.pf and P.nrounds:
        for t in range(4):
            A.label(f"K2_PF{t}")
            burst(0)
            A(f"s_branch K2_PFR{t}")
    A.label("K2_MAIN_DONE")
    if P.prio: A("s_setprio 0")
    if P.bar:
        A.label("K2_BARL")
        A(f"s_cmp_ge_u32 s{sGB}, s{sGM}"); A("s_cbranch_scc1 K2_BARD")
        A("s_barrier"); A(f"s_add_u32 s{sGB}, s{sGB}, 1"); A("s_branch K2_BARL")
        A.label("K2_BARD")
    if P.pf and P.nrounds:
        A(f"s_lshl_b32 s{sTMP}, s{sW}, 6"); A(f"v_add_u32 v0, s{sTMP}, v{vLANE}")
    A(f"s_add_u32 s{sLO}, s{sLO}, s{sWIN}")
    A(f"s_cmp_lt_u32 s{sLO}, s{sT}")
    A("s_cbranch_scc0 K2_EPI")
    A("s_waitcnt vmcnt(0) lgkmcnt(0)")
    A("s_branch K2_ROUND")
    A.label("K2_EPI")
    A("s_waitcnt lgkmcnt(0)")
    ST.mark("main")
    tl(8)
    ST.markc("c1")
    A(f"s_and_b32 s{sCGP}, s{sW}, 3"); A(f"s_lshr_b32 s{sRG}, s{sW}, 2")
    A(f"s_lshl_b32 s{sTMP}, s{sCGP}, 13"); A(f"s_add_u32 s{sTMP}, s{sTMP}, {CONST_WM}")
    A(f"v_add_u32 v{2}, s{sTMP}, v{PAIR+1}")
    A(f"v_add_u32 v{3}, 4096, v{2}")
    for f in range(8):
        base=2 if f<4 else 3
        A(f"global_load_dwordx4 v[{WM+4*f}:{WM+4*f+3}], v{base}, s[{sCONST}:{sCONST+1}] offset:{(f%4)*1024}"+SC)
    RSZ=CAPW*32
    A(f"s_mul_i32 s{sTMP}, s{sW}, {RSZ}"); A(f"s_add_u32 s{sTMP}, s{sTMP}, {LDS_A}")
    A(f"s_xor_b32 s{sTMP+1}, s{sW}, 1"); A(f"s_mul_i32 s{sTMP+1}, s{sTMP+1}, {RSZ}"); A(f"s_add_u32 s{sTMP+1}, s{sTMP+1}, {LDS_A}")
    A(f"v_lshlrev_b32 v4, 3, v{vLANE}")
    A(f"v_add_u32 v5, s{sTMP}, v4"); A(f"v_add_u32 v6, 2048, v5"); A(f"v_add_u32 v7, 4096, v5")
    EX=64
    def xaddr(k,regs):
        r=regs[k//2]; o=(k%2)*128
        return r,o,o+64
    A(f"s_cmp_eq_u32 s{sH}, 0")
    A("s_cbranch_scc0 K2_EXW1")
    for k in range(5):
        r,o0,o1=xaddr(k,[5,6,7]); a=ACC+8*k
        A(f"ds_write2_b64 v{r}, v[{a+2}:{a+3}], v[{a+6}:{a+7}] offset0:{o0} offset1:{o1}")
    A("s_branch K2_EXW2")
    A.label("K2_EXW1")
    for k in range(5):
        r,o0,o1=xaddr(k,[5,6,7]); a=ACC+8*k
        A(f"ds_write2_b64 v{r}, v[{a}:{a+1}], v[{a+4}:{a+5}] offset0:{o0} offset1:{o1}")
    A.label("K2_EXW2")
    pr0,pr1,pr2,vRW=PAIR,PAIR+2,PAIR+4,PAIR+6
    A(f"v_add_u32 v{pr0}, s{sTMP+1}, v4"); A(f"v_add_u32 v{pr1}, 2048, v{pr0}"); A(f"v_add_u32 v{pr2}, 4096, v{pr0}")
    A(f"s_mul_i32 s{sTMP+2}, s{sG8}, 20"); A(f"s_lshl_b32 s{sTMP+3}, s{sH}, 1"); A(f"s_add_u32 s{sTMP+2}, s{sTMP+2}, s{sTMP+3}"); A(f"s_mul_i32 s{sTMP+2}, s{sTMP+2}, {AGG_STRIDE}")
    A(f"v_lshlrev_b32 v4, 2, v{vLANE}"); A(f"v_add_u32 v{vRW}, s{sTMP+2}, v4")
    A(f"s_mul_i32 s{sTMP}, s{sRG}, 3"); A(f"s_lshl_b32 s{sTMP+1}, s{sRG}, 1"); A(f"s_add_u32 s{sTMP+1}, s{sTMP+1}, 2")
    A(f"s_cmp_lt_u32 s{sRG}, 2"); A(f"s_cselect_b32 s{sTMP}, s{sTMP}, s{sTMP+1}")
    A(f"s_mul_i32 s{sTMP+1}, s{sTMP}, {16*AGG_STRIDE}")
    A(f"v_and_b32 v3, 15, v{vLANE}"); A(f"v_lshrrev_b32 v4, 4, v{vLANE}")
    A(f"v_mul_u32_u24 v7, {AGG_STRIDE}, v3"); A(f"v_lshl_add_u32 v7, v4, 4, v7"); A(f"v_add_u32 v{PAIR+1}, s{sTMP+1}, v7")
    vMR=PAIR+1; vOUT=PAIR+3
    A(f"v_lshlrev_b32 v3, 4, v3"); A(f"v_lshl_add_u32 v{vOUT}, v4, 10, v3")
    A(f"s_lshl_b32 s{sTMP}, s{sTMP}, 2")
    A(f"s_mul_i32 s{sTMP+1}, s{sB}, {NPB}"); A(f"s_add_u32 s{sTMP+1}, s{sTMP+1}, s{sTMP}")
    A(f"s_lshl_b32 s{sTMP+1}, s{sTMP+1}, 10"); A(f"s_lshl_b32 s{sTMP+2}, s{sCGP}, 8"); A(f"s_add_u32 s{sTMP+1}, s{sTMP+1}, s{sTMP+2}")
    A(f"s_add_u32 s{sOUT}, s{sOUT}, s{sTMP+1}"); A(f"s_addc_u32 s{sOUT+1}, s{sOUT+1}, 0")
    A("s_waitcnt vmcnt(8) lgkmcnt(0)")
    A("s_barrier")
    ST.mark("barY")
    for k in range(5):
        r,o0,o1=xaddr(k,[pr0,pr1,pr2])
        A(f"ds_read2_b64 v[{EX+4*k}:{EX+4*k+3}], v{r} offset0:{o0} offset1:{o1}")
    A(f"s_cmp_eq_u32 s{sH}, 0")
    A("s_cbranch_scc0 K2_CB1")
    for hh in range(2):
        if hh==1: A.label("K2_CB1")
        off=0 if hh==0 else 2
        for k in range(5):
            a=ACC+8*k+off; e=EX+4*k
            A(f"s_waitcnt lgkmcnt({min(4-k+2*k,15)})")
            A(f"v_pk_add_f32 v[{a}:{a+1}], v[{a}:{a+1}], v[{e}:{e+1}]")
            A(f"v_pk_add_f32 v[{a+4}:{a+5}], v[{a+4}:{a+5}], v[{e+2}:{e+3}]")
            A(f"v_pk_mul_f32 v[{a}:{a+1}], v[{a}:{a+1}], s[{sLN2}:{sLN2+1}]")
            A(f"v_pk_mul_f32 v[{a+4}:{a+5}], v[{a+4}:{a+5}], s[{sLN2}:{sLN2+1}]")
            A(f"v_cvt_pk_bf16_f32 v{2+2*(k%2)}, v{a}, v{a+4}")
            A(f"v_cvt_pk_bf16_f32 v{3+2*(k%2)}, v{a+1}, v{a+5}")
            A(f"ds_write_b32 v{vRW}, v{2+2*(k%2)} offset:{(4*k)*AGG_STRIDE}")
            A(f"ds_write_b32 v{vRW}, v{3+2*(k%2)} offset:{(4*k+1)*AGG_STRIDE}")
        if hh==0: A("s_branch K2_CB2")
    A.label("K2_CB2")
    A("s_waitcnt lgkmcnt(0)")
    A("s_barrier")
    ST.mark("barZ")
    D=ACC; FR=64
    fl={0:"",1:" sc1",2:" sc0 sc1",3:" nt"}[P.outwt]
    def rd(q):
        for ks in range(4): A(f"ds_read_b128 v[{FR+16*(q%2)+4*ks}:{FR+16*(q%2)+4*ks+3}], v{vMR} offset:{q*16*AGG_STRIDE+ks*64}")
    def mm(q):
        for ks in range(4):
            for p in range(2):
                d=D+8*q+4*p; f=FR+16*(q%2)+4*ks; w=WM+4*(4*p+ks)
                c="0" if ks==0 else f"v[{d}:{d+3}]"
                A(f"v_mfma_f32_16x16x32_bf16 v[{d}:{d+3}], v[{f}:{f+3}], v[{w}:{w+3}], {c}")
    def st(q):
        d=D+8*q; o=D+24+4*q
        A(f"v_cvt_pk_bf16_f32 v{o}, v{d}, v{d+1}"); A(f"v_cvt_pk_bf16_f32 v{o+1}, v{d+2}, v{d+3}")
        A(f"v_cvt_pk_bf16_f32 v{o+2}, v{d+4}, v{d+5}"); A(f"v_cvt_pk_bf16_f32 v{o+3}, v{d+6}, v{d+7}")
        if q: A(f"v_add_u32 v{vOUT}, 4096, v{vOUT}")
        A(f"global_store_dwordx4 v{vOUT}, v[{o}:{o+3}], s[{sOUT}:{sOUT+1}]"+fl)
    rd(0); rd(1)
    A("s_waitcnt vmcnt(0) lgkmcnt(4)")
    mm(0)
    A(f"s_cmp_lt_u32 s{sRG}, 2")
    A("s_cbranch_scc0 K2_MIX2")
    rd(2)
    A("s_waitcnt lgkmcnt(4)")
    mm(1)
    st(0)
    A("s_waitcnt lgkmcnt(0)")
    mm(2)
    st(1)
    A("s_nop 4")
    st(2)
    A("s_branch K2_MIXD")
    A.label("K2_MIX2")
    A("s_waitcnt lgkmcnt(0)")
    mm(1)
    st(0)
    A("s_nop 4")
    st(1)
    A.label("K2_MIXD")
    if P.tl:
        A("s_waitcnt vmcnt(0)"); tl(12)
        if not P.fused:
            A(f"s_lshl_b32 s74, s2, 3"); A("s_add_u32 s74, s74, 0x7F0000"); A("v_mov_b32 v4, s74")
            A("v_cmp_eq_u32 vcc, 0, v0"); A("s_and_saveexec_b64 s[76:77], vcc"); A("s_cbranch_execz K2_TLZ")
            A(f"global_load_dwordx2 v[6:7], v4, s[{sWS}:{sWS+1}]"); A("s_waitcnt vmcnt(0)")
            A("v_not_b32 v6, v6"); A("v_mov_b32 v3, 0")
            A("global_atomic_umax v3, v6, s[72:73] offset:16"); A("global_atomic_umax v3, v7, s[72:73] offset:20")
            A.label("K2_TLZ"); A("s_mov_b64 exec, s[76:77]")
    ST.mark("iss")
    if P.stamps:
        A("s_waitcnt vmcnt(0)")
        ST.mark("done")
        ST.dump(sWS,1,2,sW,2)
    A.label("K2_END")
    A("s_endpgm")
    A.label("K2_CODE_END")
    return NV

def kd(name,nv,ns):
    nv8=(nv+3)//4*4
    return f""".amdhsa_kernel {name}
  .amdhsa_next_free_vgpr {nv8}
  .amdhsa_next_free_sgpr {ns}
  .amdhsa_accum_offset {nv8}
  .amdhsa_group_segment_fixed_size 0
  .amdhsa_kernarg_size 88
  .amdhsa_user_sgpr_count 2
  .amdhsa_user_sgpr_kernarg_segment_ptr 1
  .amdhsa_system_sgpr_workgroup_id_x 1
  .amdhsa_float_denorm_mode_32 3
.end_amdhsa_kernel
"""

def main():
    ap=argparse.ArgumentParser()
    ap.add_argument("-o",default="standalone__tensor_product_equiv_tfn__graph.s")
    ap.add_argument("--U",type=int,default=8)
    ap.add_argument("--B",type=int,default=32)
    ap.add_argument("--rot",type=int,default=0)
    ap.add_argument("--stamps",type=int,default=0)
    ap.add_argument("--srcmask",type=lambda x:int(x,0),default=0x3fff)
    ap.add_argument("--dbg",default="")
    ap.add_argument("--xmap",type=int,default=1)
    ap.add_argument("--prio",type=int,default=4)
    ap.add_argument("--pf",type=int,default=3)
    ap.add_argument("--npro",type=int,default=2)
    ap.add_argument("--lead",type=int,default=1500)
    ap.add_argument("--nrounds",type=int,default=0)
    ap.add_argument("--bar",type=int,default=0)
    ap.add_argument("--k1stage",type=int,default=1)
    ap.add_argument("--k1wt",type=int,default=1)
    ap.add_argument("--k1pf",type=int,default=0)
    ap.add_argument("--pfat",default="recs")
    ap.add_argument("--k1l2",type=int,default=0)
    ap.add_argument("--outwt",type=int,default=1)
    ap.add_argument("--codepf",type=int,default=1)
    ap.add_argument("--k1rows",type=int,default=10000)
    ap.add_argument("--fused",type=int,default=1)
    ap.add_argument("--fpf",type=int,default=0)
    ap.add_argument("--sleep",type=int,default=0)
    ap.add_argument("--nfast",type=int,default=245)
    ap.add_argument("--pfsplit",type=int,default=0)
    ap.add_argument("--tl",type=int,default=0)
    ap.add_argument("--flags",type=int,default=1)
    ap.add_argument("--pfat2",default="bar4")
    ap.add_argument("--sfast",type=int,default=8)
    P=ap.parse_args()
    hdr=open("standalone__tensor_product_equiv_tfn__graph.s.ref").read().split("; Override")[0]
    A=Asm()
    A.L.append(hdr.rstrip("\n"))
    if P.fused:
        A.L.append(f"; @launch grid=({NB},1,1) block=(1024,1,1) lds={K2_LDS}")
    else:
        A.L.append(f"; @launch kernel=tfn_bin_kernel grid=({NC+K1_CONST_WGS},1,1) block=({K1_THREADS},1,1) lds={2048+CH*20 if P.k1stage else 2048}")
        A.L.append(f"; @launch kernel=standalone__tensor_product_equiv_tfn__graph_kernel grid=({NB},1,1) block=(1024,1,1) lds={K2_LDS}")
    A('.amdgcn_target "amdgcn-amd-amdhsa--gfx950"')
    A(".text")
    if not P.fused: A(".globl tfn_bin_kernel")
    A(".globl standalone__tensor_product_equiv_tfn__graph_kernel")
    if not P.fused: gen_k1(A,P)
    nv=gen_k2(A,P)
    A('.section .rodata,"a"')
    A(".p2align 6")
    s=A.text()+("" if P.fused else kd("tfn_bin_kernel",72,102 if P.stamps else 40)+".p2align 6\n")+kd("standalone__tensor_product_equiv_tfn__graph_kernel",nv,102 if P.stamps else 80)
    open(P.o,"w").write(s)
    print("wrote",P.o,len(s),"bytes")
main()
```

```python
import sys, struct, argparse

N=10000; E=320000; C=128
NPB=40
NB=250
NC=250
CH=1280
K1_THREADS=320
K1_CONST_WGS=8
import os
WS_BASE=int(os.environ.get("WSBASE","0"),0)
WS_KEYS=WS_BASE; WS_PAY=WS_BASE+0x140000; WS_CELL=WS_BASE+0x630000; WS_CONST=WS_BASE+0x680000; WS_FLAG=WS_BASE+0x6A0000
CONST_WF=0; CONST_CG=2048; CONST_WM=4096
LOG2E=1.4426950408889634; LN2=0.6931471805599453
def f2u(f): return struct.unpack("<I",struct.pack("<f",f))[0]

class Asm:
    def __init__(s): s.L=[]
    def __call__(s,x=""):
        for l in x.split("\n"):
            s.L.append(l if (l.endswith(":") or l.startswith(".") or l=="" ) else "    "+l)
    def c(s,x): s.L.append("    ; "+x)
    def label(s,x): s.L.append(x+":")
    def text(s): return "\n".join(s.L)+"\n"

def vr(a,n=1): return f"v{a}" if n==1 else f"v[{a}:{a+n-1}]"
def sr(a,n=1): return f"s{a}" if n==1 else f"s[{a}:{a+n-1}]"

WS_STAMP=0x800000
class Stamps:
    def __init__(s,A,on,kn,base_sgpr=int(os.environ.get('STBASE','82')),tmp=int(os.environ.get('STTMP','80'))): s.A=A; s.on=on; s.n=0; s.base=base_sgpr; s.tmp=tmp; s.kn=kn
    def mark(s,name=""):
        if not s.on: return
        A=s.A
        A(f"s_memrealtime s[{s.tmp}:{s.tmp+1}]")
        A("s_waitcnt lgkmcnt(0)")
        A(f"s_mov_b32 s{s.base+s.n}, s{s.tmp}")
        s.n+=1
    def markc(s,name=""):
        if not s.on: return
        A=s.A
        A(f"s_memtime s[{s.tmp}:{s.tmp+1}]")
        A("s_waitcnt lgkmcnt(0)")
        A(f"s_mov_b32 s{s.base+s.n}, s{s.tmp}")
        s.n+=1
    def dump(s,wsreg,kernel,wgreg,wavereg,vtmp):
        if not s.on: return
        A=s.A
        A(f"s_lshl_b32 s{s.tmp}, s{wgreg}, 4"); A(f"s_add_u32 s{s.tmp}, s{s.tmp}, s{wavereg}"); A(f"s_lshl_b32 s{s.tmp}, s{s.tmp}, 7")
        A(f"s_add_u32 s{s.tmp}, s{s.tmp}, {WS_STAMP+kernel*0x100000}")
        A(f"s_add_u32 s{s.tmp}, s{wsreg}, s{s.tmp}"); A(f"s_addc_u32 s{s.tmp+1}, s{wsreg+1}, 0")
        A(f"v_mov_b32 v{vtmp}, 0")
        for i in range(s.n):
            A(f"v_mov_b32 v{vtmp+1}, s{s.base+i}")
            A(f"global_store_dword v{vtmp}, v{vtmp+1}, s[{s.tmp}:{s.tmp+1}] offset:{4*i}")
            A("s_nop 1")

def dpp_scan(A,v,nrows=4):
    for sh in (1,2,4,8):
        A("s_nop 1")
        A(f"v_add_u32_dpp v{v}, v{v}, v{v} row_shr:{sh} row_mask:0xf bank_mask:0xf bound_ctrl:1")
    if nrows>=2:
        A("s_nop 1")
        A(f"v_add_u32_dpp v{v}, v{v}, v{v} row_bcast:15 row_mask:0xa bank_mask:0xf")
    if nrows>=4:
        A("s_nop 1")
        A(f"v_add_u32_dpp v{v}, v{v}, v{v} row_bcast:31 row_mask:0xc bank_mask:0xf")

def gen_k1(A,P):
    B=P.B
    blkmul={32:209,16:104,64:419}[B]
    assert ((N-1)*blkmul)>>16 < B
    for d in range(N):
        b=(d*52429)>>21; assert b==d//40
    for dl in range(40): assert (dl*205)>>10==dl//5
    A(".p2align 8")
    A(".type tfn_bin_kernel,@function")
    A.label("tfn_bin_kernel")
    A(f"s_cmp_ge_u32 s2, {NC+K1_CONST_WGS}")
    A("s_cbranch_scc1 K1_END")
    A("s_load_dwordx4 s[4:7], s[0:1], 8")
    A("s_load_dwordx4 s[8:11], s[0:1], 24")
    A("s_load_dwordx2 s[12:13], s[0:1], 80")
    if P.k1pf: A("s_load_dwordx2 s[32:33], s[0:1], 0")
    A(f"s_cmp_ge_u32 s2, {NC}")
    A("s_cbranch_scc1 K1_CONST")
    ST=Stamps(A,P.stamps,"K1")
    ST.mark("start")
    if P.tl:
        A("s_memrealtime s[38:39]"); A("s_waitcnt lgkmcnt(0)")
    A(f"s_mul_i32 s14, s2, {CH*4}")
    A("v_lshlrev_b32 v1, 4, v0")
    A("v_add_u32 v1, s14, v1")
    A("v_lshlrev_b32 v2, 1, v1")
    A("v_lshlrev_b32 v3, 2, v0")
    A("v_mov_b32 v4, 0")
    A("v_mov_b32 v5, 1")
    A("v_cmp_gt_u32 vcc, 0x100, v0")
    A("s_and_saveexec_b64 s[16:17], vcc")
    A("s_cbranch_execz K1_NOZ")
    A("ds_write_b32 v3, v4")
    A.label("K1_NOZ")
    A("s_mov_b64 exec, s[16:17]")
    A("s_waitcnt lgkmcnt(0)")
    A("global_load_dwordx4 v[8:11], v1, s[6:7]")
    A("global_load_dwordx4 v[12:15], v1, s[4:5]")
    A("global_load_dwordx4 v[16:19], v2, s[8:9]")
    A("global_load_dwordx4 v[20:23], v2, s[8:9] offset:16")
    A("global_load_dwordx4 v[24:27], v2, s[10:11]")
    A("global_load_dwordx4 v[28:31], v2, s[10:11] offset:16")
    def k1pf():
        if P.k1l2==0:
            per=(P.k1rows*8+249)//250
            A(f"s_mul_i32 s34, s2, {per*128}")
            A("v_lshlrev_b32 v68, 7, v0"); A("v_add_u32 v68, s34, v68")
            if per<320:
                A(f"v_cmp_gt_u32 vcc, {per}, v0"); A("s_and_saveexec_b64 s[36:37], vcc"); A("s_cbranch_execz K1_NOPF")
            A("global_load_dword v69, v68, s[32:33]")
            if per<320:
                A.label("K1_NOPF"); A("s_mov_b64 exec, s[36:37]")
        else:
            A("s_lshr_b32 s34, s2, 3"); A(f"s_mul_i32 s34, s34, {320*128}")
            A("v_lshlrev_b32 v68, 7, v0"); A("v_add_u32 v68, s34, v68")
            for q in range(P.k1l2):
                A("global_load_dword v69, v68, s[32:33]")
                A(f"v_add_u32 v68, {10240*128}, v68")
            rem=80000-10240*P.k1l2; per=(rem+249)//250
            assert per<=320
            A(f"s_mul_i32 s34, s2, {per}"); A(f"s_add_u32 s34, s34, {10240*P.k1l2}")
            A("v_add_u32 v70, s34, v0")
            A(f"v_cmp_gt_u32 vcc, {per}, v0"); A(f"s_mov_b32 s35, 80000"); A("v_cmp_gt_u32 s[36:37], s35, v70"); A("s_and_b64 vcc, vcc, s[36:37]")
            A("v_lshlrev_b32 v70, 7, v70")
            A("s_and_saveexec_b64 s[36:37], vcc")
            A("s_cbranch_execz K1_NOPF")
            A("global_load_dword v71, v70, s[32:33]")
            A.label("K1_NOPF")
            A("s_mov_b64 exec, s[36:37]")
    if P.k1pf==1: k1pf()
    A(f"s_mul_i32 s15, s2, {CH*16}")
    A(f"s_add_u32 s18, s12, {WS_KEYS}"); A("s_addc_u32 s19, s13, 0")
    A("s_add_u32 s18, s18, s14"); A("s_addc_u32 s19, s19, 0")
    A(f"s_add_u32 s20, s12, {WS_PAY}"); A("s_addc_u32 s21, s13, 0")
    A("s_add_u32 s20, s20, s15"); A("s_addc_u32 s21, s21, 0")
    A("s_lshl_b32 s15, s2, 2")
    A(f"s_add_u32 s22, s12, {WS_CELL}"); A("s_addc_u32 s23, s13, 0")
    A("s_add_u32 s22, s22, s15"); A("s_addc_u32 s23, s23, 0")
    A("s_movk_i32 s24, -40")
    A("v_lshrrev_b32 v6, 6, v0")
    A("v_and_b32 v7, 63, v0")
    A("v_readfirstlane_b32 s25, v6")
    A("s_barrier")
    A(f"s_waitcnt vmcnt({5 if P.k1pf==1 else 4})")
    ST.mark("ld")
    for i in range(4):
        d=8+i; s=12+i
        A(f"v_mul_u32_u24 v44, 0xcccd, v{d}")
        A("v_lshrrev_b32 v44, 21, v44")
        A(f"v_mad_i32_i24 v45, v44, s24, v{d}")
        A(f"v_lshlrev_b32 v{36+i}, 2, v44")
        A(f"ds_add_rtn_u32 v{40+i}, v{36+i}, v5")
        A("v_mul_u32_u24 v46, 0xcd, v45")
        A("v_lshrrev_b32 v46, 10, v46")
        A("v_mad_i32_i24 v47, v46, -5, v45")
        A(f"v_mul_u32_u24 v48, {blkmul}, v{s}")
        A("v_lshrrev_b32 v48, 16, v48")
        if P.rot:
            A("v_mul_u32_u24 v49, 2098, v44"); A("v_lshrrev_b32 v49, 16, v49")
            A(f"v_mul_u32_u24 v49, {(B//8)*P.rot}, v49")
            A("v_add_u32 v48, v48, v49")
            A(f"v_and_b32 v48, {B-1}, v48")
        sh={16:4,32:5,64:6}[B]
        A(f"v_lshl_add_u32 v48, v46, {sh}, v48")
        A(f"v_lshl_or_b32 v{32+i}, v47, 14, v{s}")
        A(f"v_lshl_or_b32 v{32+i}, v48, 17, v{32+i}")
    A(f"s_waitcnt vmcnt({1 if P.k1pf==1 else 0})")
    A("v_swap_b32 v18, v24"); A("v_swap_b32 v19, v25"); A("v_swap_b32 v22, v28"); A("v_swap_b32 v23, v29")
    pay=[16,24,20,28]
    A("v_lshlrev_b32 v50, 4, v7")
    A("s_waitcnt lgkmcnt(0)")
    A("s_barrier")
    ST.mark("hist")
    if P.k1pf==2: k1pf()
    A("ds_read_b128 v[52:55], v50")
    A("s_waitcnt lgkmcnt(0)")
    A("v_add_u32 v56, v52, v53")
    A("v_add_u32 v57, v56, v54")
    A("v_add_u32 v58, v57, v55")
    A("v_mov_b32 v59, v58")
    dpp_scan(A,59)
    A("v_sub_u32 v60, v59, v58")
    A("v_add_u32 v61, v60, v52")
    A("v_add_u32 v62, v60, v56")
    A("v_add_u32 v63, v60, v57")
    A("ds_write_b128 v50, v[60:63] offset:1024")
    for i in range(4):
        A(f"s_cmp_lg_u32 s25, {i}")
        A(f"s_cbranch_scc1 K1_CS{i}")
        A(f"v_lshl_or_b32 v64, v{52+i}, 16, v{60+i}")
        A(f"v_lshlrev_b32 v65, 12, v7")
        if i: A(f"v_add_u32 v65, {i*1024}, v65")
        A(f"v_cmp_gt_u32 vcc, {(NB-i+3)//4}, v7")
        A("s_and_saveexec_b64 s[16:17], vcc")
        A("global_store_dword v65, v64, s[22:23]")
        A(f"s_cmp_ge_u32 s2, {256-NC}")
        A(f"s_cbranch_scc1 K1_CZ{i}")
        A(f"global_store_dword v65, v4, s[22:23] offset:{NC*4}")
        A.label(f"K1_CZ{i}")
        A("s_mov_b64 exec, s[16:17]")
        A.label(f"K1_CS{i}")
    A("s_waitcnt lgkmcnt(0)")
    for i in range(4): A(f"ds_read_b32 v{44+i}, v{36+i} offset:1024")
    if not P.k1stage:
        for i in range(4):
            A(f"s_waitcnt lgkmcnt({3-i})")
            A(f"v_add_u32 v{44+i}, v{44+i}, v{40+i}")
            A(f"v_lshlrev_b32 v48, 2, v{44+i}")
            A(f"v_lshlrev_b32 v49, 4, v{44+i}")
            A(f"global_store_dwordx4 v49, v[{pay[i]}:{pay[i]+3}], s[20:21]")
            A(f"global_store_dword v48, v{32+i}, s[18:19]")
            A("s_nop 1")
    else:
        KST=2048; PST=KST+CH*4
        fl={0:"",1:" sc1",2:" sc0 sc1",3:" nt"}[P.k1wt]
        for i in range(4):
            A(f"s_waitcnt lgkmcnt({3-i+2*i})")
            A(f"v_add_u32 v{44+i}, v{44+i}, v{40+i}")
            A(f"v_lshlrev_b32 v48, 2, v{44+i}")
            A(f"v_lshlrev_b32 v49, 4, v{44+i}")
            A(f"ds_write_b128 v49, v[{pay[i]}:{pay[i]+3}] offset:{PST}")
            A(f"ds_write_b32 v48, v{32+i} offset:{KST}")
        A("v_lshlrev_b32 v50, 4, v0")
        A("s_waitcnt lgkmcnt(0)")
        A("s_barrier")
        A(f"ds_read_b128 v[8:11], v50 offset:{KST}")
        for q in range(4): A(f"ds_read_b128 v[{12+4*q}:{15+4*q}], v50 offset:{PST+q*5120}")
        A("v_add_u32 v51, 5120, v50"); A("v_add_u32 v52, 10240, v50"); A("v_add_u32 v53, 15360, v50")
        A("s_waitcnt lgkmcnt(4)")
        A(f"global_store_dwordx4 v50, v[8:11], s[18:19]{fl}")
        for q in range(4):
            A(f"s_waitcnt lgkmcnt({3-q})")
            A(f"global_store_dwordx4 v{50+q}, v[{12+4*q}:{15+4*q}], s[20:21]{fl}")
    if P.k1pf==3: k1pf()
    if P.tl:
        A("s_waitcnt vmcnt(0)"); A("s_memrealtime s[34:35]"); A("s_waitcnt lgkmcnt(0)")
        A("s_cmp_lg_u32 s25, 0"); A("s_cbranch_scc1 K1_TLX")
        A("s_lshl_b32 s36, s2, 3"); A("s_add_u32 s36, s36, 0x7F0000")
        A("v_mov_b32 v68, s38"); A("v_mov_b32 v69, s34"); A("v_mov_b32 v70, s36")
        A("global_store_dwordx2 v70, v[68:69], s[12:13]")
        A.label("K1_TLX")
    ST.mark("iss")
    if P.stamps:
        A("s_waitcnt vmcnt(0)")
        ST.mark("done")
        ST.dump(12,0,2,25,66)
    A("s_endpgm")
    A.label("K1_CONST")
    A("s_load_dwordx2 s[26:27], s[0:1], 40")
    A("s_load_dwordx4 s[28:31], s[0:1], 48")
    A("v_lshrrev_b32 v6, 6, v0")
    A("s_nop 0")
    A("v_readfirstlane_b32 s25, v6")
    A(f"s_sub_u32 s14, s2, {NC}")
    A("v_and_b32 v7, 63, v0")
    A("s_waitcnt lgkmcnt(0)")
    A(f"s_add_u32 s18, s12, {WS_CONST}"); A("s_addc_u32 s19, s13, 0")
    A("s_cmp_eq_u32 s25, 4")
    A("s_cbranch_scc1 K1_CW4")
    A("s_and_b32 s15, s14, 1")
    A("s_lshr_b32 s16, s14, 1")
    A("s_lshl_b32 s16, s16, 5"); A("s_add_u32 s16, s16, s15")
    A("v_and_b32 v1, 15, v7"); A("v_lshlrev_b32 v1, 1, v1"); A("v_add_u32 v1, s16, v1")
    A("v_lshrrev_b32 v2, 4, v7"); A("v_lshlrev_b32 v2, 3, v2")
    A("s_lshl_b32 s17, s25, 5"); A("v_add_u32 v2, s17, v2")
    A("v_lshlrev_b32 v2, 7, v2"); A("v_add_u32 v2, v2, v1"); A("v_lshlrev_b32 v2, 1, v2")
    for r in range(8): A(f"global_load_ushort v{8+r}, v2, s[30:31] offset:{r*256}")
    A("s_lshl_b32 s17, s14, 12")
    A("v_lshlrev_b32 v3, 4, v0"); A("v_add_u32 v3, s17, v3"); A(f"v_add_u32 v3, {CONST_WM}, v3")
    A("s_waitcnt vmcnt(0)")
    for r in range(4): A(f"v_lshl_or_b32 v{16+r}, v{9+2*r}, 16, v{8+2*r}")
    A("global_store_dwordx4 v3, v[16:19], s[18:19]")
    A("s_endpgm")
    A.label("K1_CW4")
    A("s_cmp_eq_u32 s14, 0"); A("s_cbranch_scc1 K1_WF")
    A("s_cmp_eq_u32 s14, 1"); A("s_cbranch_scc1 K1_CG")
    if P.codepf&1:
        A("s_cmp_eq_u32 s14, 2"); A("s_cbranch_scc0 K1_CPX")
        A("s_getpc_b64 s[34:35]")
        A.label("K1_PC")
        A("s_add_u32 s34, s34, standalone__tensor_product_equiv_tfn__graph_kernel-K1_PC"); A("s_addc_u32 s35, s35, 0")
        A("v_lshlrev_b32 v1, 7, v7")
        for q in range(2):
            A(f"v_add_u32 v2, {q*8192}, v1")
            A(f"v_cmp_gt_u32 vcc, K2_CODE_END-standalone__tensor_product_equiv_tfn__graph_kernel, v2")
            A("s_and_saveexec_b64 s[36:37], vcc")
            A(f"s_cbranch_execz K1_CPS{q}")
            A(f"global_load_dword v{8+q}, v2, s[34:35]")
            A.label(f"K1_CPS{q}")
            A("s_mov_b64 exec, s[36:37]")
        A.label("K1_CPX")
    A("s_endpgm")
    A.label("K1_WF")
    A("v_lshlrev_b32 v1, 2, v7")
    for k in range(4): A(f"global_load_dword v{8+k}, v1, s[26:27] offset:{k*256}")
    A(f"s_mov_b32 s15, 0x{f2u(-LOG2E):08x}")
    A("s_mov_b32 s16, 0xffff0000")
    A("s_waitcnt vmcnt(0)")
    for k in range(4):
        A(f"v_lshlrev_b32 v{12+k}, 16, v{8+k}")
        A(f"v_and_b32 v{16+k}, s16, v{8+k}")
    for k in range(8): A(f"v_mul_f32 v{12+k}, s15, v{12+k}")
    A("v_cvt_pk_bf16_f32 v20, v12, v13"); A("v_cvt_pk_bf16_f32 v21, v14, v15")
    A("v_cvt_pk_bf16_f32 v22, v16, v17"); A("v_cvt_pk_bf16_f32 v23, v18, v19")
    for q in range(4):
        A(f"v_lshlrev_b32 v28, 16, v{20+q}")
        A(f"v_and_b32 v29, s16, v{20+q}")
        A(f"v_sub_f32 v28, v{12+2*q}, v28")
        A(f"v_sub_f32 v29, v{13+2*q}, v29")
        A(f"v_cvt_pk_bf16_f32 v{24+q}, v28, v29")
    A("v_lshlrev_b32 v3, 5, v7")
    A(f"global_store_dwordx4 v3, v[20:23], s[18:19] offset:{CONST_WF}")
    A(f"global_store_dwordx4 v3, v[24:27], s[18:19] offset:{CONST_WF+16}")
    A("s_endpgm")
    A.label("K1_CG")
    A("v_and_b32 v1, 3, v7"); A("v_lshlrev_b32 v1, 5, v1")
    for f in range(4): A(f"global_load_dwordx2 v[{8+2*f}:{9+2*f}], v1, s[28:29] offset:{f*8}")
    A("s_mov_b32 s15, 0x05040100"); A("s_mov_b32 s16, 0x07060302")
    A("s_waitcnt vmcnt(0)")
    for o in range(4):
        sel="s15" if o%2==0 else "s16"; h=o//2
        A(f"v_perm_b32 v{16+2*o}, v{10+h}, v{8+h}, {sel}")
        A(f"v_perm_b32 v{17+2*o}, v{14+h}, v{12+h}, {sel}")
    A("v_lshlrev_b32 v3, 5, v7"); A(f"v_add_u32 v3, {CONST_CG}, v3")
    A("global_store_dwordx4 v3, v[16:19], s[18:19]")
    A("global_store_dwordx4 v3, v[20:23], s[18:19] offset:16")
    A.label("K1_END")
    A("s_endpgm")


def gen_phase1(A,P,ST):
    B=P.B
    blkmul={32:209,16:104,64:419}[B]
    A("s_load_dwordx4 s[4:7], s[0:1], 8")
    A("s_load_dwordx4 s[8:11], s[0:1], 24")
    A("s_load_dwordx2 s[12:13], s[0:1], 80")
    A("s_load_dwordx2 s[26:27], s[0:1], 40")
    A("s_load_dwordx4 s[28:31], s[0:1], 48")
    A("s_load_dwordx2 s[32:33], s[0:1], 0")
    A("s_load_dwordx2 s[72:73], s[0:1], 72")
    A("v_lshrrev_b32 v6, 6, v0")
    A("v_and_b32 v7, 63, v0")
    A("v_readfirstlane_b32 s25, v6")
    A("s_nop 3")
    A("s_cmp_ge_u32 s25, 5")
    A("s_cbranch_scc1 F_OTHER")
    A(f"s_mul_i32 s14, s2, {CH*4}")
    A("v_lshlrev_b32 v1, 4, v0")
    A("v_add_u32 v1, s14, v1")
    A("v_lshlrev_b32 v2, 1, v1")
    A("v_lshlrev_b32 v3, 2, v0")
    A("v_mov_b32 v4, 0")
    A("v_mov_b32 v5, 1")
    A("v_cmp_gt_u32 vcc, 0x100, v0")
    A("s_and_saveexec_b64 s[16:17], vcc")
    A("s_cbranch_execz F_NOZ")
    A("ds_write_b32 v3, v4")
    A.label("F_NOZ")
    A("s_mov_b64 exec, s[16:17]")
    A("s_waitcnt lgkmcnt(0)")
    A("global_load_dwordx4 v[8:11], v1, s[6:7]")
    A("global_load_dwordx4 v[12:15], v1, s[4:5]")
    A("global_load_dwordx4 v[16:19], v2, s[8:9]")
    A("global_load_dwordx4 v[20:23], v2, s[8:9] offset:16")
    A("global_load_dwordx4 v[24:27], v2, s[10:11]")
    A("global_load_dwordx4 v[28:31], v2, s[10:11] offset:16")
    A(f"s_mul_i32 s15, s2, {CH*16}")
    A(f"s_add_u32 s18, s12, {WS_KEYS}"); A("s_addc_u32 s19, s13, 0")
    A("s_add_u32 s18, s18, s14"); A("s_addc_u32 s19, s19, 0")
    A(f"s_add_u32 s20, s12, {WS_PAY}"); A("s_addc_u32 s21, s13, 0")
    A("s_add_u32 s20, s20, s15"); A("s_addc_u32 s21, s21, 0")
    A("s_lshl_b32 s15, s2, 10")
    A(f"s_add_u32 s22, s12, {WS_CELL}"); A("s_addc_u32 s23, s13, 0")
    A("s_add_u32 s22, s22, s15"); A("s_addc_u32 s23, s23, 0")
    A("s_movk_i32 s24, -40")
    A("s_barrier")
    A("s_waitcnt vmcnt(4)")
    for i in range(4):
        d=8+i; s=12+i
        A(f"v_mul_u32_u24 v44, 0xcccd, v{d}")
        A("v_lshrrev_b32 v44, 21, v44")
        A(f"v_mad_i32_i24 v45, v44, s24, v{d}")
        A(f"v_lshlrev_b32 v{36+i}, 2, v44")
        A(f"ds_add_rtn_u32 v{40+i}, v{36+i}, v5")
        A("v_mul_u32_u24 v46, 0xcd, v45")
        A("v_lshrrev_b32 v46, 10, v46")
        A("v_mad_i32_i24 v47, v46, -5, v45")
        A(f"v_mul_u32_u24 v48, {blkmul}, v{s}")
        A("v_lshrrev_b32 v48, 16, v48")
        sh={16:4,32:5,64:6}[B]
        A(f"v_lshl_add_u32 v48, v46, {sh}, v48")
        A(f"v_lshl_or_b32 v{32+i}, v47, 14, v{s}")
        A(f"v_lshl_or_b32 v{32+i}, v48, 17, v{32+i}")
    A("s_waitcnt vmcnt(0)")
    A("v_swap_b32 v18, v24"); A("v_swap_b32 v19, v25"); A("v_swap_b32 v22, v28"); A("v_swap_b32 v23, v29")
    pay=[16,24,20,28]
    A("v_lshlrev_b32 v50, 4, v7")
    A("s_waitcnt lgkmcnt(0)")
    A("s_barrier")
    ST.mark("hist")
    A("ds_read_b128 v[52:55], v50")
    A("s_waitcnt lgkmcnt(0)")
    A("v_add_u32 v56, v52, v53"); A("v_add_u32 v57, v56, v54"); A("v_add_u32 v58, v57, v55"); A("v_mov_b32 v59, v58")
    dpp_scan(A,59)
    A("v_sub_u32 v60, v59, v58"); A("v_add_u32 v61, v60, v52"); A("v_add_u32 v62, v60, v56"); A("v_add_u32 v63, v60, v57")
    A("ds_write_b128 v50, v[60:63] offset:1024")
    A("s_cmp_lg_u32 s25, 0")
    A("s_cbranch_scc1 F_CS")
    for i in range(4): A(f"v_lshl_or_b32 v{64+i}, v{52+i}, 16, v{60+i}")
    A("global_store_dwordx4 v50, v[64:67], s[22:23] sc1")
    A.label("F_CS")
    A("s_waitcnt lgkmcnt(0)")
    for i in range(4): A(f"ds_read_b32 v{44+i}, v{36+i} offset:1024")
    KST=2048; PST=KST+CH*4
    for i in range(4):
        A(f"s_waitcnt lgkmcnt({3-i+2*i})")
        A(f"v_add_u32 v{44+i}, v{44+i}, v{40+i}")
        A(f"v_lshlrev_b32 v48, 2, v{44+i}")
        A(f"v_lshlrev_b32 v49, 4, v{44+i}")
        A(f"ds_write_b128 v49, v[{pay[i]}:{pay[i]+3}] offset:{PST}")
        A(f"ds_write_b32 v48, v{32+i} offset:{KST}")
    A("v_lshlrev_b32 v50, 4, v0")
    A("s_waitcnt lgkmcnt(0)")
    A("s_barrier")
    A(f"ds_read_b128 v[8:11], v50 offset:{KST}")
    for q in range(4): A(f"ds_read_b128 v[{12+4*q}:{15+4*q}], v50 offset:{PST+q*5120}")
    A("v_add_u32 v51, 5120, v50"); A("v_add_u32 v52, 10240, v50"); A("v_add_u32 v53, 15360, v50")
    A("s_waitcnt lgkmcnt(4)")
    A("global_store_dwordx4 v50, v[8:11], s[18:19] sc1")
    for q in range(4):
        A(f"s_waitcnt lgkmcnt({3-q})")
        A(f"global_store_dwordx4 v{50+q}, v[{12+4*q}:{15+4*q}], s[20:21] sc1")
    if P.flags:
        A("s_cmp_lg_u32 s25, 0"); A("s_cbranch_scc1 F_JOIN")
        A("v_mov_b32 v66, 0"); A("global_load_dword v67, v66, s[72:73] sc1")
    ST.mark("iss1")
    A("s_branch F_JOIN")
    A.label("F_OTHER")
    A("s_waitcnt lgkmcnt(0)")
    A(f"s_add_u32 s18, s12, {WS_CONST}"); A("s_addc_u32 s19, s13, 0")
    if P.flags:
        A("s_cmp_lg_u32 s2, 0"); A("s_cbranch_scc1 F_NN"); A("s_cmp_lg_u32 s25, 9"); A("s_cbranch_scc1 F_NN")
        A("s_memrealtime s[38:39]"); A("s_waitcnt lgkmcnt(0)"); A("s_or_b32 s38, s38, 1")
        A("v_mov_b32 v1, 0"); A("v_mov_b32 v2, s38")
        A("v_cmp_eq_u32 vcc, 0, v7"); A("s_and_saveexec_b64 s[16:17], vcc")
        A("global_store_dword v1, v2, s[72:73] sc1")
        A("s_mov_b64 exec, s[16:17]")
        A.label("F_NN")
    A("s_mov_b32 s36, 0")
    A("s_cmp_ge_u32 s25, 9"); A("s_cbranch_scc1 F_R0")
    A("s_cmp_lt_u32 s2, 8"); A("s_cbranch_scc1 F_RW")
    A("s_cmp_lg_u32 s25, 5"); A("s_cbranch_scc1 F_R0")
    A("s_cmp_eq_u32 s2, 8"); A("s_cbranch_scc1 F_RF")
    A("s_cmp_eq_u32 s2, 9"); A("s_cbranch_scc1 F_RC")
    A("s_branch F_R0")
    A.label("F_RW")
    A("s_mov_b32 s36, 1")
    A("s_sub_u32 s14, s25, 5")
    A("s_and_b32 s15, s2, 1"); A("s_lshr_b32 s16, s2, 1"); A("s_lshl_b32 s16, s16, 5"); A("s_add_u32 s16, s16, s15")
    A("v_and_b32 v1, 15, v7"); A("v_lshlrev_b32 v1, 1, v1"); A("v_add_u32 v1, s16, v1")
    A("v_lshrrev_b32 v2, 4, v7"); A("v_lshlrev_b32 v2, 3, v2")
    A("s_lshl_b32 s17, s14, 5"); A("v_add_u32 v2, s17, v2")
    A("v_lshlrev_b32 v2, 7, v2"); A("v_add_u32 v2, v2, v1"); A("v_lshlrev_b32 v2, 1, v2")
    for r in range(8): A(f"global_load_ushort v{8+r}, v2, s[30:31] offset:{r*256}")
    A("s_branch F_R0")
    A.label("F_RF")
    A("s_mov_b32 s36, 2")
    A("v_lshlrev_b32 v1, 2, v7")
    for k in range(4): A(f"global_load_dword v{8+k}, v1, s[26:27] offset:{k*256}")
    A("s_branch F_R0")
    A.label("F_RC")
    A("s_mov_b32 s36, 3")
    A("v_and_b32 v1, 3, v7"); A("v_lshlrev_b32 v1, 5, v1")
    for f in range(4): A(f"global_load_dwordx2 v[{8+2*f}:{9+2*f}], v1, s[28:29] offset:{f*8}")
    A.label("F_R0")
    A("s_barrier")
    A("s_barrier")
    A("s_cmp_eq_u32 s36, 0"); A("s_cbranch_scc1 F_RD")
    A("s_waitcnt vmcnt(0)")
    A("s_cmp_eq_u32 s36, 2"); A("s_cbranch_scc1 F_RF2")
    A("s_cmp_eq_u32 s36, 3"); A("s_cbranch_scc1 F_RC2")
    A("s_lshl_b32 s17, s2, 12"); A("s_lshl_b32 s15, s14, 10"); A("s_add_u32 s17, s17, s15"); A(f"s_add_u32 s17, s17, {CONST_WM}")
    A("v_lshlrev_b32 v3, 4, v7"); A("v_add_u32 v3, s17, v3")
    for r in range(4): A(f"v_lshl_or_b32 v{16+r}, v{9+2*r}, 16, v{8+2*r}")
    A("global_store_dwordx4 v3, v[16:19], s[18:19] sc1")
    A("s_branch F_RD")
    A.label("F_RF2")
    A(f"s_mov_b32 s15, 0x{f2u(-LOG2E):08x}"); A("s_mov_b32 s16, 0xffff0000")
    for k in range(4):
        A(f"v_lshlrev_b32 v{12+k}, 16, v{8+k}"); A(f"v_and_b32 v{16+k}, s16, v{8+k}")
    for k in range(8): A(f"v_mul_f32 v{12+k}, s15, v{12+k}")
    A("v_cvt_pk_bf16_f32 v20, v12, v13"); A("v_cvt_pk_bf16_f32 v21, v14, v15")
    A("v_cvt_pk_bf16_f32 v22, v16, v17"); A("v_cvt_pk_bf16_f32 v23, v18, v19")
    for q in range(4):
        A(f"v_lshlrev_b32 v28, 16, v{20+q}"); A(f"v_and_b32 v29, s16, v{20+q}")
        A(f"v_sub_f32 v28, v{12+2*q}, v28"); A(f"v_sub_f32 v29, v{13+2*q}, v29")
        A(f"v_cvt_pk_bf16_f32 v{24+q}, v28, v29")
    A("v_lshlrev_b32 v3, 5, v7")
    A(f"global_store_dwordx4 v3, v[20:23], s[18:19] offset:{CONST_WF} sc1")
    A(f"global_store_dwordx4 v3, v[24:27], s[18:19] offset:{CONST_WF+16} sc1")
    A("s_branch F_RD")
    A.label("F_RC2")
    A("s_mov_b32 s15, 0x05040100"); A("s_mov_b32 s16, 0x07060302")
    for o in range(4):
        sel="s15" if o%2==0 else "s16"; h=o//2
        A(f"v_perm_b32 v{16+2*o}, v{10+h}, v{8+h}, {sel}")
        A(f"v_perm_b32 v{17+2*o}, v{14+h}, v{12+h}, {sel}")
    A("v_lshlrev_b32 v3, 5, v7"); A(f"v_add_u32 v3, {CONST_CG}, v3")
    A("global_store_dwordx4 v3, v[16:19], s[18:19] sc1")
    A("global_store_dwordx4 v3, v[20:23], s[18:19] offset:16 sc1")
    A.label("F_RD")
    A("s_barrier")
    if P.fpf==1:
        A("s_cmp_lt_u32 s25, 9"); A("s_cbranch_scc1 F_JOIN")
        A("s_cmp_ge_u32 s25, 14"); A("s_cbranch_scc1 F_JOIN")
        A(f"s_mul_i32 s14, s2, {320*128}"); A("s_sub_u32 s15, s25, 9"); A("s_lshl_b32 s15, s15, 13"); A("s_add_u32 s14, s14, s15")
        A("v_lshlrev_b32 v126, 7, v7"); A("v_add_u32 v126, s14, v126")
        A("global_load_dword v127, v126, s[32:33]")
        A("s_branch F_JOIN2")
    A.label("F_JOIN")
    A("s_waitcnt vmcnt(0)")
    A.label("F_JOIN2")
    A("s_barrier")
    ST.mark("barD")
    if P.fpf==2:
        A("s_cmp_lt_u32 s25, 9"); A("s_cbranch_scc1 F_NPF2")
        A("s_cmp_ge_u32 s25, 14"); A("s_cbranch_scc1 F_NPF2")
        A(f"s_mul_i32 s14, s2, {320*128}"); A("s_sub_u32 s15, s25, 9"); A("s_lshl_b32 s15, s15, 13"); A("s_add_u32 s14, s14, s15")
        A("v_lshlrev_b32 v126, 7, v7"); A("v_add_u32 v126, s14, v126")
        A("global_load_dword v127, v126, s[32:33]")
        A.label("F_NPF2")
    A("s_cmp_lg_u32 s25, 0"); A("s_cbranch_scc1 F_WAIT")
    if P.flags:
        A("s_mov_b32 s14, 0"); A("v_mov_b32 v1, 0")
        A("v_readfirstlane_b32 s74, v67"); A("s_nop 3"); A("s_cmp_lg_u32 s74, 0"); A("s_cbranch_scc1 F_GOTN")
        A.label("F_GETN")
        A("global_load_dword v2, v1, s[72:73] sc1"); A("s_waitcnt vmcnt(0)")
        A("v_readfirstlane_b32 s74, v2"); A("s_add_u32 s14, s14, 1")
        A("s_cmp_ge_u32 s14, 0x100000"); A("s_cbranch_scc1 F_GOTN")
        A("s_cmp_eq_u32 s74, 0"); A("s_cbranch_scc1 F_GETN")
        A.label("F_GOTN")
        A(f"s_add_u32 s76, s12, {WS_FLAG}"); A("s_addc_u32 s77, s13, 0")
        A("s_lshl_b32 s14, s2, 2"); A("v_lshlrev_b32 v1, 10, v7"); A("v_add_u32 v1, s14, v1"); A("v_mov_b32 v2, s74")
        A("v_cmp_gt_u32 vcc, 8, v7"); A("s_and_saveexec_b64 s[16:17], vcc")
        A("global_store_dword v1, v2, s[76:77] sc1")
        A("s_mov_b64 exec, s[16:17]")
    else:
        A("s_and_b32 s14, s2, 3"); A("s_lshl_b32 s14, s14, 6")
        A("v_mov_b32 v1, s14"); A("v_mov_b32 v2, 1")
        A("v_cmp_eq_u32 vcc, 0, v7"); A("s_and_saveexec_b64 s[16:17], vcc")
        A("global_atomic_add v1, v2, s[72:73]")
        A("s_mov_b64 exec, s[16:17]")
    A.label("F_WAIT")

NW=16; CAPW=160
LDS_IDX=0x0000
LDS_K=LDS_IDX+NW*CAPW*4
LDS_HIST=LDS_K+NW*CAPW
LDS_BASE=LDS_HIST+2048
LDS_FLAG=LDS_BASE+4096
LDS_MARK=LDS_FLAG+64
LDS_EF=LDS_MARK+8192+64
LDS_A=LDS_EF+NW*CAPW*8
LDS_CELL=LDS_A+NW*CAPW*32+1024
K2_LDS=LDS_CELL+1024
WINBIG=2048; WINSMALL=200; TOTMAX=CAPW-8
AGG_STRIDE=272
assert LDS_A%16==0 and LDS_EF%16==0 and LDS_MARK%4==0 and K2_LDS<=163840

def gen_k2(A,P):
    U=4; B=P.B
    SC=" sc1" if P.fused else ""
    nbins=8*B
    assert nbins*4<=2048 and nbins*8<=4096
    vTID=0; vLANE=1; vT0=2
    vAad=3; vEad=4; vIad=5; vKad=6; vK=7
    ACC=8
    WF=48
    PAIR=56
    X=64
    TP=80
    AOP=88; AOPN=90; EOP=92; EOPN=94
    UU=[96,104]; EE=112; RR=120
    NV=128
    REC0=64; CNT=68; BASEC=72; AT=64
    CG=80; KEY=88; RANK=90; PAY=92; AP=100; MK=116; BINA=118
    T=[2,3,4,5,6,7,120,121,122,123,124,125,126,127]
    WM=96
    sX=4; sOUT=6; sWS=8; sSRD=12; sW=16; sB=17; sT=18; sLO=19; sWIN=20; sNR=21; sKK=22; sH=23; sEX=24; sM=26; sG8=28; sWB=29
    sK=[32,33]; sN=34; sTOT=35; sTMP=36; sC=40; sLN2=44; sRG=46; sCGP=47; sKEY=48; sPAY=52; sCELL=56; sCONST=58; sRAW=60; sPFO=65; sPFT=66; sNB=67; sGB=68; sGM=69; sQ=70; sCHI=40
    name="standalone__tensor_product_equiv_tfn__graph_kernel"
    A(".p2align 8")
    A(f".type {name},@function")
    A.label(name)
    A(f"s_cmp_ge_u32 s2, {NB}")
    A("s_cbranch_scc1 K2_END")
    ST=Stamps(A,P.stamps,"K2")
    ST.mark("start")
    tlc=[0]
    def tl(off,inv=False):
        if not P.tl: return
        tlc[0]+=1
        A("s_memrealtime s[74:75]"); A("s_waitcnt lgkmcnt(0)")
        if inv: A("s_not_b32 s74, s74")
        A("v_mov_b32 v2, s74"); A("v_mov_b32 v3, 0")
        A("v_cmp_eq_u32 vcc, 0, v0"); A("s_and_saveexec_b64 s[76:77], vcc"); A(f"s_cbranch_execz K2_TL{tlc[0]}")
        A(f"global_atomic_umax v3, v2, s[72:73] offset:{off}")
        A.label(f"K2_TL{tlc[0]}"); A("s_mov_b64 exec, s[76:77]")
    if P.tl:
        A("s_load_dwordx2 s[72:73], s[0:1], 72"); A("s_waitcnt lgkmcnt(0)")
        tl(0,True)
    if P.fused: gen_phase1(A,P,ST)
    A(f"s_load_dwordx2 s[{sX}:{sX+1}], s[0:1], 0")
    A(f"s_load_dwordx2 s[{sOUT}:{sOUT+1}], s[0:1], 64")
    A(f"s_load_dwordx2 s[{sWS}:{sWS+1}], s[0:1], 80")
    A(f"v_and_b32 v{vLANE}, 63, v0")
    A(f"v_lshrrev_b32 v{T[0]}, 6, v0")
    A(f"v_lshlrev_b32 v{PAIR+1}, 4, v{vLANE}")
    A(f"v_readfirstlane_b32 s{sW}, v{T[0]}")
    for p in (3,5,7): A(f"v_mov_b32 v{PAIR+p}, v{PAIR+1}")
    if P.xmap:
        A(f"s_and_b32 s{sTMP}, s2, 7"); A(f"s_mul_i32 s{sB}, s{sTMP}, 31"); A(f"s_min_u32 s{sTMP}, s{sTMP}, 2")
        A(f"s_add_u32 s{sB}, s{sB}, s{sTMP}"); A(f"s_lshr_b32 s{sTMP}, s2, 3"); A(f"s_add_u32 s{sB}, s{sB}, s{sTMP}")
    else:
        A(f"s_mov_b32 s{sB}, s2")
    A(f"s_lshr_b32 s{sG8}, s{sW}, 1"); A(f"s_and_b32 s{sH}, s{sW}, 1"); A(f"s_mul_i32 s{sWB}, s{sW}, {CAPW}")
    for i in range(40): A(f"v_mov_b32 v{ACC+i}, 0")
    A("s_waitcnt lgkmcnt(0)")
    A(f"s_lshl_b32 s{sTMP}, s{sB}, {2 if P.fused else 10}")
    A(f"s_add_u32 s{sCELL}, s{sWS}, {WS_CELL}"); A(f"s_addc_u32 s{sCELL+1}, s{sWS+1}, 0")
    A(f"s_add_u32 s{sCELL}, s{sCELL}, s{sTMP}"); A(f"s_addc_u32 s{sCELL+1}, s{sCELL+1}, 0")
    A(f"s_add_u32 s{sCONST}, s{sWS}, {WS_CONST}"); A(f"s_addc_u32 s{sCONST+1}, s{sWS+1}, 0")
    A(f"s_mov_b32 s{sLO}, 0")
    A(f"s_mov_b32 s{sWIN}, {WINBIG}")
    for i in range(3): A(f"s_mov_b32 s{sCHI+i}, {(i+1)*CH}")
    if not P.fused:
        A(f"v_lshlrev_b32 v{T[1]}, 5, v{vLANE}")
        if P.fused:
            A(f"v_mov_b32 v{T[2]}, 0")
            A(f"s_cmp_ge_u32 s{sW}, 4"); A("s_cbranch_scc1 K2_NOCL")
            A(f"v_lshlrev_b32 v{T[3]}, 10, v0")
            A(f"v_cmp_gt_u32 vcc, {NC}, v0"); A(f"s_and_saveexec_b64 s[{sEX}:{sEX+1}], vcc")
            A(f"global_load_dword v{T[2]}, v{T[3]}, s[{sCELL}:{sCELL+1}] sc1")
            A("s_mov_b64 exec, -1")
            A.label("K2_NOCL")
        else:
            A(f"global_load_dwordx4 v[{CNT}:{CNT+3}], v{PAIR+1}, s[{sCELL}:{sCELL+1}]"+SC)
        A(f"global_load_dwordx4 v[{WF}:{WF+3}], v{T[1]}, s[{sCONST}:{sCONST+1}] offset:{CONST_WF}"+SC)
        A(f"global_load_dwordx4 v[{WF+4}:{WF+7}], v{T[1]}, s[{sCONST}:{sCONST+1}] offset:{CONST_WF+16}"+SC)
        A(f"global_load_dwordx4 v[{CG}:{CG+3}], v{T[1]}, s[{sCONST}:{sCONST+1}] offset:{CONST_CG}"+SC)
        A(f"global_load_dwordx4 v[{CG+4}:{CG+7}], v{T[1]}, s[{sCONST}:{sCONST+1}] offset:{CONST_CG+16}"+SC)
    if P.codepf&2:
        A(f"s_cmp_eq_u32 s{sW}, 15"); A("s_cbranch_scc0 K2_CPX")
        A(f"s_getpc_b64 s[{sTMP}:{sTMP+1}]")
        A.label("K2_PC")
        A(f"s_sub_u32 s{sTMP}, s{sTMP}, K2_PC-standalone__tensor_product_equiv_tfn__graph_kernel"); A(f"s_subb_u32 s{sTMP+1}, s{sTMP+1}, 0")
        A(f"v_lshlrev_b32 v{T[8]}, 7, v{vLANE}")
        for q in range(2):
            A(f"v_add_u32 v{T[9]}, {q*8192}, v{T[8]}")
            A(f"v_cmp_gt_u32 vcc, K2_CODE_END-standalone__tensor_product_equiv_tfn__graph_kernel, v{T[9]}")
            A(f"s_and_saveexec_b64 s[{sEX}:{sEX+1}], vcc")
            A(f"s_cbranch_execz K2_CPS{q}")
            A(f"global_load_dword v{127-q}, v{T[9]}, s[{sTMP}:{sTMP+1}]")
            A.label(f"K2_CPS{q}")
            A("s_mov_b64 exec, -1")
        A.label("K2_CPX")
    A(f"s_mov_b32 s{sSRD}, s{sX}")
    A(f"s_and_b32 s{sSRD+1}, s{sX+1}, 0xffff")
    A(f"s_or_b32 s{sSRD+1}, s{sSRD+1}, {1024<<16}")
    A(f"s_mov_b32 s{sSRD+2}, {N}")
    A(f"s_mov_b32 s{sSRD+3}, 0x00020000")
    A(f"s_add_u32 s{sKEY}, s{sWS}, {WS_KEYS}"); A(f"s_addc_u32 s{sKEY+1}, s{sWS+1}, 0")
    A(f"s_and_b32 s{sKEY+1}, s{sKEY+1}, 0xffff"); A(f"s_mov_b32 s{sKEY+2}, {E*4}"); A(f"s_mov_b32 s{sKEY+3}, 0x00020000")
    A(f"s_add_u32 s{sPAY}, s{sWS}, {WS_PAY}"); A(f"s_addc_u32 s{sPAY+1}, s{sWS+1}, 0")
    A(f"s_and_b32 s{sPAY+1}, s{sPAY+1}, 0xffff"); A(f"s_mov_b32 s{sPAY+2}, {E*16}"); A(f"s_mov_b32 s{sPAY+3}, 0x00020000")
    A(f"s_mov_b32 s{sLN2}, 0x{f2u(-LN2):08x}"); A(f"s_mov_b32 s{sLN2+1}, 0x{f2u(-LN2):08x}")
    def burst(vaddr,vdst=2):
        for q in range(4):
            A(f"buffer_load_dword v{vdst}, v{vaddr}, s[{sRAW}:{sRAW+3}], s{sPFO} offen")
            if q<3: A(f"s_add_u32 s{sPFO}, s{sPFO}, 8192")
    def pf_row0(rnd_sreg,dst):
        A(f"s_lshr_b32 s{sTMP+2}, s2, 3")
        A(f"s_and_b32 s{sTMP+3}, s{sTMP+2}, 1"); A(f"s_lshl_b32 s{sTMP+3}, s{sTMP+3}, 9")
        A(f"s_lshr_b32 s{sTMP+2}, s{sTMP+2}, 1"); A(f"s_lshl_b32 s{sTMP+2}, s{sTMP+2}, 5")
        A(f"s_add_u32 s{sTMP+2}, s{sTMP+2}, s{sTMP+3}")
        A(f"s_lshl_b32 s{dst}, s{rnd_sreg}, 10"); A(f"s_add_u32 s{dst}, s{dst}, s{sTMP+2}"); A(f"s_lshl_b32 s{dst}, s{dst}, 10")
    if P.pf:
        A(f"s_mov_b32 s{sRAW}, s{sX}"); A(f"s_and_b32 s{sRAW+1}, s{sX+1}, 0xffff"); A(f"s_mov_b32 s{sRAW+2}, {N*1024}"); A(f"s_mov_b32 s{sRAW+3}, 0x00020000")
    def propf(part=0):
        if P.pf==3:
            r0=(P.k1rows if P.k1pf else 0) if part==0 else P.pfsplit
            r1=P.pfsplit if (part==0 and P.pfsplit) else N
            per=((r1-r0)*8+249)//250; nw=(per+63)//64
            lab=f"K2_NOPF{part}"
            A(f"s_cmp_ge_u32 s{sW}, {nw}")
            A(f"s_cbranch_scc1 {lab}")
            A(f"s_mul_i32 s{sPFO}, s2, {per*128}"); A(f"s_lshl_b32 s{sTMP+2}, s{sW}, 13"); A(f"s_add_u32 s{sPFO}, s{sPFO}, s{sTMP+2}")
            if r0: A(f"s_add_u32 s{sPFO}, s{sPFO}, {r0*1024}")
            A(f"v_lshlrev_b32 v126, 7, v{vLANE}")
            A(f"buffer_load_dword v127, v126, s[{sRAW}:{sRAW+3}], s{sPFO} offen")
            A.label(lab)
            return
        A(f"s_cmp_ge_u32 s{sW}, {P.npro}")
        A("s_cbranch_scc1 K2_NOPF0")
        pf_row0(sW,sPFO)
        A(f"v_lshlrev_b32 v126, 7, v{vLANE}")
        burst(126,127)
        A.label("K2_NOPF0")
    if P.fused:
        if P.flags:
            A(f"s_add_u32 s76, s{sWS}, {WS_FLAG}"); A(f"s_addc_u32 s77, s{sWS+1}, 0")
        A(f"s_cmp_lg_u32 s{sW}, 0"); A("s_cbranch_scc1 F_REL")
        A(f"s_mov_b32 s{sTMP}, 0")
        if P.flags:
            A(f"s_and_b32 s{sTMP+1}, s2, 7"); A(f"s_lshl_b32 s{sTMP+1}, s{sTMP+1}, 10"); A(f"v_add_u32 v{T[1]}, s{sTMP+1}, v{PAIR+1}")
            A(f"v_cmp_gt_u32 s[64:65], 63, v{vLANE}"); A(f"v_cmp_gt_u32 s[66:67], 62, v{vLANE}")
            A.label("F_POLL")
            A(f"global_load_dwordx4 v[{X}:{X+3}], v{T[1]}, s[76:77] sc1")
            A("s_waitcnt vmcnt(0)")
            for q in range(4):
                A(f"v_cmp_eq_u32 vcc, s74, v{X+q}")
                m="s[64:65]" if q<2 else "s[66:67]"
                d=["s[68:69]","s[70:71]","s[32:33]","s[34:35]"][q]
                A(f"s_andn2_b64 {d}, {m}, vcc")
            A("s_or_b64 s[68:69], s[68:69], s[70:71]"); A("s_or_b64 s[32:33], s[32:33], s[34:35]"); A("s_or_b64 s[68:69], s[68:69], s[32:33]")
            A(f"s_add_u32 s{sTMP}, s{sTMP}, 1")
            A(f"s_cmp_ge_u32 s{sTMP}, 0x100000"); A("s_cbranch_scc1 F_REL")
            A("s_cmp_eq_u64 s[68:69], 0"); A("s_cbranch_scc1 F_REL")
            if P.sleep>0: A(f"s_sleep {P.sleep}")
            A("s_branch F_POLL")
        else:
            A(f"v_lshlrev_b32 v{T[1]}, 6, v{vLANE}")
            A.label("F_POLL")
            A(f"v_mov_b32 v{T[2]}, 0")
            A(f"v_cmp_gt_u32 vcc, 4, v{vLANE}"); A(f"s_and_saveexec_b64 s[{sEX}:{sEX+1}], vcc")
            A(f"global_load_dword v{T[2]}, v{T[1]}, s[72:73] sc1")
            A("s_mov_b64 exec, -1")
            A("s_waitcnt vmcnt(0)")
            A("s_nop 1"); A(f"v_add_u32_dpp v{T[2]}, v{T[2]}, v{T[2]} row_shr:1 row_mask:0xf bank_mask:0xf bound_ctrl:1")
            A("s_nop 1"); A(f"v_add_u32_dpp v{T[2]}, v{T[2]}, v{T[2]} row_shr:2 row_mask:0xf bank_mask:0xf bound_ctrl:1")
            A("s_nop 1"); A(f"v_readlane_b32 s{sTMP+1}, v{T[2]}, 3")
            A(f"s_add_u32 s{sTMP}, s{sTMP}, 1")
            A(f"s_cmp_ge_u32 s{sTMP}, 0x100000"); A("s_cbranch_scc1 F_REL")
        if P.flags:
            pass
        elif P.sleep<0:
            A(f"s_cmp_ge_u32 s{sTMP+1}, {NB}"); A("s_cbranch_scc1 F_REL")
            A(f"s_cmp_ge_u32 s{sTMP+1}, {P.nfast}"); A("s_cbranch_scc1 F_FAST")
            A(f"s_sleep {-P.sleep}")
            A("s_branch F_POLL")
            A.label("F_FAST")
            A(f"s_sleep {P.sfast}")
            A("s_branch F_POLL")
        elif P.sleep:
            A(f"s_cmp_ge_u32 s{sTMP+1}, {NB}"); A("s_cbranch_scc1 F_REL")
            A(f"s_sleep {P.sleep}")
            A("s_branch F_POLL")
        else:
            A(f"s_cmp_lt_u32 s{sTMP+1}, {NB}"); A("s_cbranch_scc1 F_POLL")
        A.label("F_REL")
        A("s_barrier")
        ST.mark("rel")
    A(f"v_lshlrev_b32 v{T[1]}, 5, v{vLANE}")
    if P.fused:
        A(f"v_mov_b32 v{T[2]}, 0")
        A(f"s_cmp_ge_u32 s{sW}, 4"); A("s_cbranch_scc1 K2_NOCL")
        A(f"v_lshlrev_b32 v{T[3]}, 10, v0")
        A(f"v_cmp_gt_u32 vcc, {NC}, v0"); A(f"s_and_saveexec_b64 s[{sEX}:{sEX+1}], vcc")
        A(f"global_load_dword v{T[2]}, v{T[3]}, s[{sCELL}:{sCELL+1}] sc1")
        A("s_mov_b64 exec, -1")
        A.label("K2_NOCL")
    else:
        A(f"global_load_dwordx4 v[{CNT}:{CNT+3}], v{PAIR+1}, s[{sCELL}:{sCELL+1}]"+SC)
    A(f"global_load_dwordx4 v[{WF}:{WF+3}], v{T[1]}, s[{sCONST}:{sCONST+1}] offset:{CONST_WF}"+SC)
    A(f"global_load_dwordx4 v[{WF+4}:{WF+7}], v{T[1]}, s[{sCONST}:{sCONST+1}] offset:{CONST_WF+16}"+SC)
    A(f"global_load_dwordx4 v[{CG}:{CG+3}], v{T[1]}, s[{sCONST}:{sCONST+1}] offset:{CONST_CG}"+SC)
    A(f"global_load_dwordx4 v[{CG+4}:{CG+7}], v{T[1]}, s[{sCONST}:{sCONST+1}] offset:{CONST_CG+16}"+SC)
    if P.fused:
        A(f"s_cmp_ge_u32 s{sW}, 4"); A("s_cbranch_scc1 K2_NOCW")
        A("s_waitcnt vmcnt(4)")
        A(f"v_lshlrev_b32 v{T[3]}, 2, v0"); A(f"v_add_u32 v{T[3]}, {LDS_CELL}, v{T[3]}")
        A(f"ds_write_b32 v{T[3]}, v{T[2]}")
        A("s_waitcnt lgkmcnt(0)")
        A.label("K2_NOCW")
        A("s_barrier")
        A(f"v_add_u32 v{T[3]}, {LDS_CELL}, v{PAIR+1}")
        A(f"ds_read_b128 v[{CNT}:{CNT+3}], v{T[3]}")
    A("s_branch K2_ROUND1")
    A.label("K2_ROUND")
    A(f"v_lshlrev_b32 v{T[1]}, 5, v{vLANE}")
    if P.fused:
        A(f"v_add_u32 v{T[3]}, {LDS_CELL}, v{PAIR+1}")
        A(f"ds_read_b128 v[{CNT}:{CNT+3}], v{T[3]}")
    else:
        A(f"global_load_dwordx4 v[{CNT}:{CNT+3}], v{PAIR+1}, s[{sCELL}:{sCELL+1}]"+SC)
    A(f"global_load_dwordx4 v[{CG}:{CG+3}], v{T[1]}, s[{sCONST}:{sCONST+1}] offset:{CONST_CG}"+SC)
    A(f"global_load_dwordx4 v[{CG+4}:{CG+7}], v{T[1]}, s[{sCONST}:{sCONST+1}] offset:{CONST_CG+16}"+SC)
    A("s_waitcnt vmcnt(0)")
    A.label("K2_ROUND1")
    A(f"v_lshlrev_b32 v{T[0]}, 2, v0")
    A(f"v_mov_b32 v{T[1]}, 0")
    A(f"v_cmp_gt_u32 vcc, {nbins}, v0")
    A(f"s_and_saveexec_b64 s[{sEX}:{sEX+1}], vcc")
    A("s_cbranch_execz K2_NOZ")
    A(f"ds_write_b32 v{T[0]}, v{T[1]} offset:{LDS_HIST}")
    A.label("K2_NOZ")
    A(f"s_mov_b64 exec, -1")
    A("s_waitcnt lgkmcnt(0)" if P.fused else "s_waitcnt vmcnt(4)")
    ST.mark("cell")
    if P.pf and P.pfat=="cell": propf()
    A(f"v_mul_u32_u24 v{T[0]}, {4*CH}, v{vLANE}")
    for i in range(4):
        A(f"v_and_b32 v{REC0+i}, 0xffff, v{CNT+i}")
        A(f"v_lshrrev_b32 v{CNT+i}, 16, v{CNT+i}")
        if i: A(f"v_add3_u32 v{REC0+i}, v{REC0+i}, v{T[0]}, s{sCHI+i-1}")
        else: A(f"v_add_u32 v{REC0+i}, v{REC0+i}, v{T[0]}")
    A(f"v_add_u32 v{T[1]}, v{CNT}, v{CNT+1}")
    A(f"v_add_u32 v{T[2]}, v{T[1]}, v{CNT+2}")
    A(f"v_add_u32 v{T[3]}, v{T[2]}, v{CNT+3}")
    A(f"v_max3_u32 v{T[5]}, v{CNT}, v{CNT+1}, v{CNT+2}")
    A(f"v_mov_b32 v{T[4]}, v{T[3]}")
    A(f"v_max_u32 v{T[5]}, v{T[5]}, v{CNT+3}")
    dpp_scan(A,T[4])
    A(f"v_sub_u32 v{BASEC}, v{T[4]}, v{T[3]}")
    A(f"v_add_u32 v{BASEC+1}, v{BASEC}, v{CNT}")
    A(f"v_add_u32 v{BASEC+2}, v{BASEC}, v{T[1]}")
    A(f"v_add_u32 v{BASEC+3}, v{BASEC}, v{T[2]}")
    A(f"v_readlane_b32 s{sT}, v{T[4]}, 63")
    A(f"v_mov_b32 v{T[6]}, 8192")
    A(f"s_mov_b32 s{sKK}, s{sW}")
    A(f"s_cmp_eq_u32 s{sT}, 0")
    A("s_cbranch_scc1 K2_EPI")
    A.label("K2_EX")
    A(f"v_cmp_lt_u32 vcc, s{sKK}, v{T[5]}")
    A(f"s_cbranch_vccz K2_EXD")
    A(f"s_sub_u32 s{sTMP}, s{sKK}, s{sLO}")
    for i in range(4):
        A(f"v_add_u32 v{T[0]}, s{sTMP}, v{BASEC+i}")
        A(f"v_cmp_lt_u32 vcc, s{sKK}, v{CNT+i}")
        A(f"v_cmp_gt_u32 s[{sM}:{sM+1}], s{sWIN}, v{T[0]}")
        A(f"v_lshlrev_b32 v{T[0]}, 2, v{T[0]}")
        A(f"v_add_u32 v{T[1]}, s{sKK}, v{REC0+i}")
        A(f"s_and_b64 vcc, vcc, s[{sM}:{sM+1}]")
        A(f"v_cndmask_b32 v{T[0]}, v{T[6]}, v{T[0]}, vcc")
        A(f"ds_write_b32 v{T[0]}, v{T[1]} offset:{LDS_MARK}")
    A(f"s_add_u32 s{sKK}, s{sKK}, {NW}")
    A("s_branch K2_EX")
    A.label("K2_EXD")
    A("s_waitcnt lgkmcnt(0)")
    A("s_barrier")
    ST.mark("bar1")
    A(f"v_lshlrev_b32 v{T[0]}, 2, v0")
    for s in range(2): A(f"ds_read_b32 v{MK+s}, v{T[0]} offset:{LDS_MARK+s*4096}")
    A(f"v_mov_b32 v{T[2]}, 0"); A(f"v_mov_b32 v{T[3]}, 0"); A(f"v_mov_b32 v{T[1]}, {LDS_FLAG}")
    A(f"ds_write_b64 v{T[1]}, v[{T[2]}:{T[3]}]")
    A(f"s_sub_u32 s{sNR}, s{sT}, s{sLO}")
    A(f"s_min_u32 s{sNR}, s{sNR}, s{sWIN}")
    A(f"s_lshl_b32 s{sTMP}, s{sW}, 6")
    A("s_waitcnt lgkmcnt(1)")
    for s in range(2):
        A(f"s_add_u32 s{sTMP+1}, s{sTMP}, {s*1024}")
        A(f"s_cmp_ge_u32 s{sTMP+1}, s{sNR}")
        A(f"s_cbranch_scc1 K2_LD_DONE")
        A(f"v_add_u32 v{T[1]}, {s*1024}, v0")
        A(f"v_cmp_gt_u32 vcc, s{sNR}, v{T[1]}")
        A(f"v_lshlrev_b32 v{T[2]}, 2, v{MK+s}")
        A(f"v_lshlrev_b32 v{T[3]}, 4, v{MK+s}")
        A(f"s_and_saveexec_b64 s[{sEX}:{sEX+1}], vcc")
        A(f"buffer_load_dword v{KEY+s}, v{T[2]}, s[{sKEY}:{sKEY+3}], 0 offen"+SC)
        A(f"buffer_load_dwordx4 v[{PAY+4*s}:{PAY+4*s+3}], v{T[3]}, s[{sPAY}:{sPAY+3}], 0 offen"+SC)
        A(f"s_mov_b64 exec, -1")
    A.label("K2_LD_DONE")
    A(f"v_mov_b32 v{T[4]}, 1")
    A("s_waitcnt vmcnt(0)")
    ST.mark("recs")
    if P.pf and P.pfat=="recs": propf()
    for s in range(2):
        A(f"s_add_u32 s{sTMP+1}, s{sTMP}, {s*1024}")
        A(f"s_cmp_ge_u32 s{sTMP+1}, s{sNR}")
        A(f"s_cbranch_scc1 K2_H_DONE")
        A(f"v_add_u32 v{T[1]}, {s*1024}, v0")
        A(f"v_lshrrev_b32 v{BINA+s}, 17, v{KEY+s}")
        A(f"v_cmp_gt_u32 vcc, s{sNR}, v{T[1]}")
        A(f"v_lshlrev_b32 v{T[2]}, 2, v{BINA+s}")
        A(f"s_and_saveexec_b64 s[{sEX}:{sEX+1}], vcc")
        A(f"ds_add_rtn_u32 v{RANK+s}, v{T[2]}, v{T[4]} offset:{LDS_HIST}")
        A(f"s_mov_b64 exec, -1")
        for o in range(4):
            A(f"v_mfma_f32_4x4x4_16b_bf16 v[{AT+4*o}:{AT+4*o+3}], v[{CG+2*o}:{CG+2*o+1}], v[{PAY+4*s}:{PAY+4*s+1}], 0")
        A("s_nop 4")
        for o in range(4):
            A(f"v_cvt_pk_bf16_f32 v{AP+8*s+2*o}, v{AT+4*o}, v{AT+4*o+1}")
            A(f"v_cvt_pk_bf16_f32 v{AP+8*s+2*o+1}, v{AT+4*o+2}, v{AT+4*o+3}")
    A.label("K2_H_DONE")
    A("s_waitcnt lgkmcnt(0)")
    A("s_barrier")
    ST.mark("bar2")
    if P.pf and P.pfat=="bar2": propf()
    A(f"s_lshl_b32 s{sTMP+1}, s{sG8}, {(B*4).bit_length()-1}")
    A(f"v_lshlrev_b32 v{T[0]}, 2, v{vLANE}")
    A(f"v_add_u32 v{T[0]}, s{sTMP+1}, v{T[0]}")
    if B<64:
        A(f"v_mov_b32 v{T[1]}, 0")
        A(f"v_cmp_gt_u32 vcc, {B}, v{vLANE}")
        A(f"s_and_saveexec_b64 s[{sEX}:{sEX+1}], vcc")
    A(f"ds_read_b32 v{T[1]}, v{T[0]} offset:{LDS_HIST}")
    A(f"s_mov_b64 exec, -1")
    A(f"v_add_u32 v{T[2]}, s{sH}, v{vLANE}"); A(f"v_and_b32 v{T[2]}, 1, v{T[2]}")
    A(f"v_lshlrev_b32 v{T[0]}, 1, v{T[0]}"); A(f"s_lshl_b32 s{sTMP+2}, s{sH}, 2"); A(f"v_add_u32 v{T[0]}, s{sTMP+2}, v{T[0]}")
    A("s_waitcnt lgkmcnt(0)")
    A(f"v_sub_u32 v{T[1]}, v{T[1]}, v{T[2]}"); A(f"v_add_u32 v{T[1]}, 1, v{T[1]}"); A(f"v_lshrrev_b32 v{T[1]}, 1, v{T[1]}")
    A(f"v_mov_b32 v{T[2]}, v{T[1]}")
    dpp_scan(A,T[2],nrows={16:1,32:2,64:4}[B])
    A(f"s_nop 0")
    A(f"v_readlane_b32 s{sTOT}, v{T[2]}, {B-1}")
    A(f"v_sub_u32 v{T[2]}, v{T[2]}, v{T[1]}")
    A(f"v_add_u32 v{T[2]}, s{sWB}, v{T[2]}")
    if B<64:
        A(f"v_cmp_gt_u32 vcc, {B}, v{vLANE}")
        A(f"s_and_saveexec_b64 s[{sEX}:{sEX+1}], vcc")
    A(f"ds_write_b32 v{T[0]}, v{T[2]} offset:{LDS_BASE}")
    A(f"s_mov_b64 exec, -1")
    if P.bar:
        A(f"v_mov_b32 v{T[0]}, s{sTOT}"); A(f"v_mov_b32 v{T[1]}, {LDS_FLAG}")
        A(f"ds_max_u32 v{T[1]}, v{T[0]} offset:4")
    A(f"s_cmp_gt_u32 s{sTOT}, {TOTMAX}")
    A("s_cbranch_scc0 K2_NOOVF")
    A(f"v_mov_b32 v{T[0]}, 1"); A(f"v_mov_b32 v{T[1]}, {LDS_FLAG}")
    A(f"ds_write_b32 v{T[1]}, v{T[0]}")
    A("s_branch K2_PADDONE")
    A.label("K2_NOOVF")
    A.label("K2_PADDONE")
    A("s_waitcnt lgkmcnt(0)")
    A("s_barrier")
    ST.mark("bar3")
    if P.l2w:
        A(f"s_cmp_lt_u32 s{sW}, 8"); A("s_cbranch_scc1 K2_NOL2W"); A(f"s_cmp_ge_u32 s{sW}, {8+P.l2w}"); A("s_cbranch_scc1 K2_NOL2W")
        A(f"s_sub_u32 s{sQ}, s{sW}, 8")
        pf_row0(sQ,sPFO)
        A(f"v_lshlrev_b32 v125, 7, v{vLANE}")
        burst(125,124)
        A.label("K2_NOL2W")
    if P.pf and P.pfat=="bar3": propf()
    if P.pf==3 and P.pfsplit and P.pfat2=="bar3": propf(1)
    A(f"v_mov_b32 v{T[1]}, {LDS_FLAG}")
    A(f"ds_read_b32 v{T[0]}, v{T[1]}")
    if P.bar: A(f"ds_read_b32 v{T[5]}, v{T[1]} offset:4")
    for s in range(2):
        A(f"v_add_u32 v{T[2]}, v{RANK+s}, v{BINA+s}"); A(f"v_and_b32 v{T[2]}, 1, v{T[2]}")
        A(f"v_lshl_add_u32 v{T[2]}, v{BINA+s}, 1, v{T[2]}"); A(f"v_lshlrev_b32 v{T[2]}, 2, v{T[2]}")
        A(f"ds_read_b32 v{MK+s}, v{T[2]} offset:{LDS_BASE}")
    A("s_waitcnt lgkmcnt(0)")
    A(f"v_readfirstlane_b32 s{sTMP+1}, v{T[0]}")
    if P.bar:
        A(f"v_readfirstlane_b32 s{sGM}, v{T[5]}")
        A(f"s_add_u32 s{sGM}, s{sGM}, 15"); A(f"s_lshr_b32 s{sGM}, s{sGM}, 4"); A(f"s_mov_b32 s{sGB}, 0")
    A("s_nop 3")
    A(f"s_cmp_eq_u32 s{sTMP+1}, 0")
    A("s_cbranch_scc1 K2_PLACE")
    A(f"s_mov_b32 s{sWIN}, {WINSMALL}")
    A("s_branch K2_ROUND")
    A.label("K2_PLACE")
    A(f"s_add_u32 s{sTMP+2}, s{sWB}, s{sTOT}")
    A(f"v_add_u32 v{T[0]}, s{sTMP+2}, v{vLANE}")
    A(f"v_lshlrev_b32 v{T[1]}, 2, v{T[0]}")
    A(f"v_lshlrev_b32 v{T[2]}, 3, v{T[0]}")
    A(f"v_lshlrev_b32 v{T[3]}, 5, v{T[0]}"); A(f"v_add_u32 v{T[3]}, {LDS_A}, v{T[3]}")
    for q in range(4): A(f"v_mov_b32 v{T[6+q]}, 0")
    assert T[6]%2==0 and T[9]==T[6]+3
    A(f"v_cmp_gt_u32 vcc, 8, v{vLANE}")
    A(f"s_and_saveexec_b64 s[{sEX}:{sEX+1}], vcc")
    A(f"ds_write_b32 v{T[1]}, v{T[6]} offset:{LDS_IDX}")
    A(f"ds_write_b8 v{T[0]}, v{T[6]} offset:{LDS_K}")
    A(f"v_cmp_gt_u32 vcc, 4, v{vLANE}")
    A(f"s_and_b64 exec, exec, vcc")
    A(f"ds_write_b64 v{T[2]}, v[{T[6]}:{T[6]+1}] offset:{LDS_EF}")
    A(f"ds_write_b128 v{T[3]}, v[{T[6]}:{T[6]+3}]")
    A(f"ds_write_b128 v{T[3]}, v[{T[6]}:{T[6]+3}] offset:16")
    A(f"s_mov_b64 exec, -1")
    for s in range(2):
        A(f"s_add_u32 s{sTMP+1}, s{sTMP}, {s*1024}")
        A(f"s_cmp_ge_u32 s{sTMP+1}, s{sNR}")
        A(f"s_cbranch_scc1 K2_P_DONE")
        A(f"v_add_u32 v{T[1]}, {s*1024}, v0")
        A(f"v_cmp_gt_u32 vcc, s{sNR}, v{T[1]}")
        A(f"v_lshrrev_b32 v{T[0]}, 1, v{RANK+s}")
        A(f"v_add_u32 v{MK+s}, v{MK+s}, v{T[0]}")
        A(f"v_lshlrev_b32 v{T[0]}, 2, v{MK+s}")
        A(f"v_lshlrev_b32 v{T[1]}, 3, v{MK+s}")
        A(f"v_lshlrev_b32 v{T[2]}, 5, v{MK+s}")
        A(f"v_add_u32 v{T[2]}, {LDS_A}, v{T[2]}")
        A(f"v_and_b32 v{T[3]}, {hex(P.srcmask)}, v{KEY+s}")
        A(f"v_lshrrev_b32 v{T[4]}, 11, v{KEY+s}")
        A(f"v_and_b32 v{T[4]}, 0x38, v{T[4]}")
        A(f"s_and_saveexec_b64 s[{sEX}:{sEX+1}], vcc")
        A(f"ds_write_b128 v{T[2]}, v[{AP+8*s}:{AP+8*s+3}]")
        A(f"ds_write_b128 v{T[2]}, v[{AP+8*s+4}:{AP+8*s+7}] offset:16")
        A(f"ds_write_b64 v{T[1]}, v[{PAY+4*s+2}:{PAY+4*s+3}] offset:{LDS_EF}")
        A(f"ds_write_b32 v{T[0]}, v{T[3]} offset:{LDS_IDX}")
        A(f"ds_write_b8 v{MK+s}, v{T[4]} offset:{LDS_K}")
        A(f"s_mov_b64 exec, -1")
    A.label("K2_P_DONE")
    A("s_waitcnt lgkmcnt(0)")
    A("s_barrier")
    ST.mark("bar4")
    tl(4)
    if P.pf==3 and P.pfsplit and P.pfat2=="bar4": propf(1)
    ST.markc("c0")
    A(f"s_cmp_eq_u32 s{sTOT}, 0")
    A("s_cbranch_scc1 K2_MAIN_DONE")
    A(f"s_add_u32 s{sNB}, s{sTOT}, 3"); A(f"s_lshr_b32 s{sNB}, s{sNB}, 2"); A(f"s_sub_u32 s{sN}, 0, s{sNB}")
    A(f"s_lshl_b32 s{sTMP}, s{sWB}, 2"); A(f"v_mov_b32 v{vIad}, s{sTMP}")
    A(f"v_mov_b32 v{vKad}, s{sWB}")
    A(f"s_lshl_b32 s{sTMP}, s{sWB}, 5"); A(f"s_add_u32 s{sTMP}, s{sTMP}, {LDS_A}")
    A(f"v_lshlrev_b32 v{vT0}, 3, v{vLANE}")
    A(f"v_add_u32 v{vAad}, s{sTMP}, v{vT0}")
    A(f"s_lshl_b32 s{sTMP}, s{sWB}, 3"); A(f"s_add_u32 s{sTMP}, s{sTMP}, {LDS_EF}")
    A(f"v_add_u32 v{vEad}, s{sTMP}, v{vT0}")
    if P.pf and P.nrounds:
        pf_row0(sW,sPFO)
        A(f"s_lshl_b32 s{sTMP}, s{sW}, 10"); A(f"s_add_u32 s{sTMP}, s{sTMP}, s{sTMP+3}"); A(f"s_sub_i32 s{sTMP}, s{sTMP}, {P.lead}")
        A(f"s_max_i32 s{sTMP}, s{sTMP}, 0"); A(f"s_mul_i32 s{sTMP}, s{sTMP}, s{sNB}"); A(f"s_mul_i32 s{sTMP}, s{sTMP}, 6711"); A(f"s_lshr_b32 s{sTMP}, s{sTMP}, 26")
        A(f"s_sub_u32 s{sPFT}, s{sTMP}, s{sNB}")
        A(f"s_min_i32 s{sPFT}, s{sPFT}, -2")
        A(f"s_cmp_lt_u32 s{sW}, {P.npro}"); A(f"s_cselect_b32 s{sPFT}, 1, s{sPFT}")
        A(f"s_cmp_ge_u32 s{sW}, {P.nrounds}"); A(f"s_cselect_b32 s{sPFT}, 1, s{sPFT}")
        A(f"v_lshlrev_b32 v0, 7, v{vLANE}")
    def mf(d,a,b,abid,c="0"): return f"v_mfma_f32_4x4x4_16b_bf16 v[{d}:{d+3}], v[{a}:{a+1}], v[{b}:{b+1}], {c} cbsz:4 abid:{abid}"
    def xload(slot,pair): return f"buffer_load_dwordx4 v[{X+4*(slot%U)}:{X+4*(slot%U)+3}], v[{PAIR+2*pair}:{PAIR+2*pair+1}], s[{sSRD}:{sSRD+3}], 0 idxen offen"
    if P.prio==4: A("s_setprio 3")
    for p in range(4): A(f"ds_read_b32 v{PAIR+2*p}, v{vIad} offset:{LDS_IDX+4*p}")
    A(f"ds_read_b64 v[{AOP}:{AOP+1}], v{vAad}")
    A(f"ds_read_b64 v[{EOP}:{EOP+1}], v{vEad}")
    A(f"ds_read_b32 v{vK}, v{vKad} offset:{LDS_K}")
    A("s_waitcnt lgkmcnt(3)")
    for p in range(4): A(xload(p,p))
    for p in range(4): A(f"ds_read_b32 v{PAIR+2*p}, v{vIad} offset:{LDS_IDX+4*(4+p)}")
    hi_e,hi_o,lo_e,lo_o=WF,WF+2,WF+4,WF+6
    A("s_waitcnt lgkmcnt(5)")
    for t in (0,1):
        u=UU[t]
        A(mf(u,EOP,hi_e,t)); A(mf(u+4,EOP,hi_o,t))
        A("s_nop 1")
        A(mf(u,EOP,lo_e,t,f"v[{u}:{u+3}]")); A(mf(u+4,EOP,lo_o,t,f"v[{u+4}:{u+7}]"))
    A("s_nop 2")
    u=UU[0]
    for q in range(8): A(f"v_exp_f32 v{EE+q}, v{u+q}")
    A("s_nop 0")
    for q in range(4): A(f"v_pk_add_f32 v[{EE+2*q}:{EE+2*q+1}], v[{EE+2*q}:{EE+2*q+1}], 1.0 op_sel_hi:[1,0]")
    for q in range(8): A(f"v_rcp_f32 v{EE+q}, v{EE+q}")
    A("s_nop 0")
    for q in range(2): A(f"v_pk_mul_f32 v[{RR+2*q}:{RR+2*q+1}], v[{u+2*q}:{u+2*q+1}], v[{EE+2*q}:{EE+2*q+1}]")
    body=[]
    for t in range(4):
        cur=t%2; nxt=(t+1)%2
        if P.prio==1: body.append(('s',f"s_setprio {3-t}"))
        body.append(('s',"s_waitcnt lgkmcnt(0)"))
        body.append(('s',f"v_readfirstlane_b32 s{sK[0]}, v{vK}"))
        if P.pf and P.nrounds:
            body.append(('s',f"s_cmp_eq_u32 s{sN}, s{sPFT}"))
            body.append(('s',f"s_cbranch_scc1 K2_PF{t}"))
            body.append(('l',f"K2_PFR{t}"))
        body.append(('s',f"ds_read_b32 v{vK}, v{vKad} offset:{LDS_K+4*(t+1)}"))
        if t==0:
            body.append(('s',f"ds_read_b64 v[{EOPN}:{EOPN+1}], v{vEad} offset:128"))
            body.append(('s',f"ds_read_b64 v[{AOPN}:{AOPN+1}], v{vAad} offset:512"))
        for i in range(4):
            j=4*t+i
            x=X+4*(j%U)
            if P.prio==2 and i%2==0: body.append(('s',f"s_setprio {3-(j//2)%4}"))
            if P.prio==3: body.append(('s',f"s_setprio {3-i}"))
            un=UU[nxt]; uw=UU[cur]
            if i==0: TR=[f"v_exp_f32 v{EE+q}, v{un+q}" for q in range(4)]
            if i==1: TR=[f"v_exp_f32 v{EE+4+q}, v{un+4+q}" for q in range(4)]
            if i==2: TR=[f"v_rcp_f32 v{EE+q}, v{EE+q}" for q in range(4)]
            if i==3: TR=[f"v_rcp_f32 v{EE+4+q}, v{EE+4+q}" for q in range(4)]
            PKpre=[];PKpost=[]
            if i==0: PKpre=[f"v_pk_mul_f32 v[{RR+4+2*q}:{RR+4+2*q+1}], v[{uw+4+2*q}:{uw+4+2*q+1}], v[{EE+4+2*q}:{EE+4+2*q+1}]" for q in range(2)]
            if i==1: PKpre=[f"v_pk_add_f32 v[{EE+2*q}:{EE+2*q+1}], v[{EE+2*q}:{EE+2*q+1}], 1.0 op_sel_hi:[1,0]" for q in range(2)]
            if i==2: PKpre=[f"v_pk_add_f32 v[{EE+4+2*q}:{EE+4+2*q+1}], v[{EE+4+2*q}:{EE+4+2*q+1}], 1.0 op_sel_hi:[1,0]" for q in range(2)]
            if i==3: PKpost=[f"v_pk_mul_f32 v[{RR+2*q}:{RR+2*q+1}], v[{un+2*q}:{un+2*q+1}], v[{EE+2*q}:{EE+2*q+1}]" for q in range(2)]
            eop,ab=(EOP,t+2) if t<2 else (EOPN,t-2)
            if i==0: UM=mf(uw,eop,hi_e,ab)
            if i==1: UM=mf(uw+4,eop,hi_o,ab)
            if i==2: UM=mf(uw,eop,lo_e,ab,f"v[{uw}:{uw+3}]")
            if i==3: UM=mf(uw+4,eop,lo_o,ab,f"v[{uw+4}:{uw+7}]")
            body.append(('s',f"s_waitcnt vmcnt({U-1})"))
            body.append(('s',mf(TP,AOP,x,j)))
            body.append(('s',TR[0]))
            body.append(('s',mf(TP+4,AOP,x+2,j)))
            body.append(('s',TR[1]))
            body.append(('s',xload(j,i)))
            body.append(('s',f"ds_read_b32 v{PAIR+2*i}, v{vIad} offset:{LDS_IDX+4*(j+2*U)}"))
            body.append(('s',UM))
            body.append(('s',TR[2])); body.append(('s',TR[3]))
            for q in PKpre: body.append(('s',q))
            body.append(('s',f"s_set_gpr_idx_on s{sK[0]}, gpr_idx(SRC2,DST)"))
            sel=i%2; pr=i//2
            for h in range(4):
                R=RR+(0 if h<2 else 4)+2*pr
                a=ACC+2*h; tp=TP+2*h
                mod = "op_sel_hi:[1,0,1]" if sel==0 else "op_sel:[0,1,0] op_sel_hi:[1,1,1]"
                body.append(('s',f"v_pk_fma_f32 v[{a}:{a+1}], v[{tp}:{tp+1}], v[{R}:{R+1}], v[{a}:{a+1}] {mod}"))
            body.append(('s',"s_set_gpr_idx_off"))
            for q in PKpost: body.append(('s',q))
            if i<3: body.append(('s',f"s_lshr_b32 s{sK[0]}, s{sK[0]}, 8"))
        body.append(('s',f"s_add_u32 s{sN}, s{sN}, 1"))
        body.append(('s',"s_cbranch_scc1 K2_MAIN_DONE"))
    if P.bar:
        body.append(('s',"s_barrier")); body.append(('s',f"s_add_u32 s{sGB}, s{sGB}, 1"))
    if P.prio==4:
        body.append(('s',f"s_sub_u32 s{sQ}, 0, s{sN}")); body.append(('s',f"s_lshl_b32 s{sQ}, s{sQ}, 2"))
        for lv in (3,2,1):
            pass
        body.append(('s',f"s_mul_i32 s{sQ+1}, s{sNB}, 3")); body.append(('s',f"s_cmp_ge_u32 s{sQ}, s{sQ+1}")); body.append(('s',"s_cbranch_scc1 K2_LOOPB"))
        body.append(('s',"s_setprio 2")); body.append(('s',f"s_lshl_b32 s{sQ+1}, s{sNB}, 1")); body.append(('s',f"s_cmp_ge_u32 s{sQ}, s{sQ+1}")); body.append(('s',"s_cbranch_scc1 K2_LOOPB"))
        body.append(('s',"s_setprio 1")); body.append(('s',f"s_cmp_ge_u32 s{sQ}, s{sNB}")); body.append(('s',"s_cbranch_scc1 K2_LOOPB"))
        body.append(('s',"s_setprio 0")); body.append(('l',"K2_LOOPB"))
    body.append(('s',f"v_mov_b32 v{AOP}, v{AOPN}")); body.append(('s',f"v_mov_b32 v{AOP+1}, v{AOPN+1}"))
    body.append(('s',f"v_mov_b32 v{EOP}, v{EOPN}")); body.append(('s',f"v_mov_b32 v{EOP+1}, v{EOPN+1}"))
    body.append(('s',f"v_add_u32 v{vAad}, 512, v{vAad}")); body.append(('s',f"v_add_u32 v{vEad}, 128, v{vEad}"))
    body.append(('s',f"v_add_u32 v{vIad}, 64, v{vIad}")); body.append(('s',f"v_add_u32 v{vKad}, 16, v{vKad}"))
    body.append(('s',"s_branch K2_LOOP"))
    if "noload" in P.dbg: body=[b for b in body if not (b[0]=='s' and (b[1].startswith("buffer_load") or b[1].startswith("s_waitcnt vmcnt")))]
    if "noidx" in P.dbg: body=[b for b in body if not (b[0]=='s' and b[1].startswith("s_set_gpr"))]
    if "notrans" in P.dbg: body=[b for b in body if not (b[0]=='s' and (b[1].startswith("v_exp") or b[1].startswith("v_rcp")))]
    if "nofma" in P.dbg: body=[b for b in body if not (b[0]=='s' and b[1].startswith("v_pk_fma"))]
    if "nolo" in P.dbg: body=[b for b in body if not (b[0]=='s' and b[1].startswith("v_mfma") and (f"v[{WF+4}:{WF+5}]" in b[1] or f"v[{WF+6}:{WF+7}]" in b[1]))]
    if "nomfma" in P.dbg: body=[b for b in body if not (b[0]=='s' and b[1].startswith("v_mfma"))]
    A.label("K2_LOOP")
    for i,b in enumerate(body):
        if b[0]=='s': A(b[1])
        elif b[0]=='l': A.label(b[1])
        elif b[0]=='lds': A(b[2])
        else:
            cnt=0; found=False
            for step in range(len(body)):
                kk=(i-1-step)%len(body)
                if body[kk][0]=='lds':
                    if body[kk][1]==b[1]: found=True; break
                    cnt+=1
            assert found,b
            A(f"s_waitcnt lgkmcnt({min(cnt,15)})")
    if P.pf and P.nrounds:
        for t in range(4):
            A.label(f"K2_PF{t}")
            burst(0)
            A(f"s_branch K2_PFR{t}")
    A.label("K2_MAIN_DONE")
    if P.prio: A("s_setprio 0")
    if P.bar:
        A.label("K2_BARL")
        A(f"s_cmp_ge_u32 s{sGB}, s{sGM}"); A("s_cbranch_scc1 K2_BARD")
        A("s_barrier"); A(f"s_add_u32 s{sGB}, s{sGB}, 1"); A("s_branch K2_BARL")
        A.label("K2_BARD")
    if P.pf and P.nrounds:
        A(f"s_lshl_b32 s{sTMP}, s{sW}, 6"); A(f"v_add_u32 v0, s{sTMP}, v{vLANE}")
    A(f"s_add_u32 s{sLO}, s{sLO}, s{sWIN}")
    A(f"s_cmp_lt_u32 s{sLO}, s{sT}")
    A("s_cbranch_scc0 K2_EPI")
    A("s_waitcnt vmcnt(0) lgkmcnt(0)")
    A("s_branch K2_ROUND")
    A.label("K2_EPI")
    A("s_waitcnt lgkmcnt(0)")
    ST.mark("main")
    tl(8)
    ST.markc("c1")
    A(f"s_and_b32 s{sCGP}, s{sW}, 3"); A(f"s_lshr_b32 s{sRG}, s{sW}, 2")
    A(f"s_lshl_b32 s{sTMP}, s{sCGP}, 13"); A(f"s_add_u32 s{sTMP}, s{sTMP}, {CONST_WM}")
    A(f"v_add_u32 v{2}, s{sTMP}, v{PAIR+1}")
    A(f"v_add_u32 v{3}, 4096, v{2}")
    for f in range(8):
        base=2 if f<4 else 3
        A(f"global_load_dwordx4 v[{WM+4*f}:{WM+4*f+3}], v{base}, s[{sCONST}:{sCONST+1}] offset:{(f%4)*1024}"+SC)
    RSZ=CAPW*32
    A(f"s_mul_i32 s{sTMP}, s{sW}, {RSZ}"); A(f"s_add_u32 s{sTMP}, s{sTMP}, {LDS_A}")
    A(f"s_xor_b32 s{sTMP+1}, s{sW}, 1"); A(f"s_mul_i32 s{sTMP+1}, s{sTMP+1}, {RSZ}"); A(f"s_add_u32 s{sTMP+1}, s{sTMP+1}, {LDS_A}")
    A(f"v_lshlrev_b32 v4, 3, v{vLANE}")
    A(f"v_add_u32 v5, s{sTMP}, v4"); A(f"v_add_u32 v6, 2048, v5"); A(f"v_add_u32 v7, 4096, v5")
    EX=64
    def xaddr(k,regs):
        r=regs[k//2]; o=(k%2)*128
        return r,o,o+64
    A(f"s_cmp_eq_u32 s{sH}, 0")
    A("s_cbranch_scc0 K2_EXW1")
    for k in range(5):
        r,o0,o1=xaddr(k,[5,6,7]); a=ACC+8*k
        A(f"ds_write2_b64 v{r}, v[{a+2}:{a+3}], v[{a+6}:{a+7}] offset0:{o0} offset1:{o1}")
    A("s_branch K2_EXW2")
    A.label("K2_EXW1")
    for k in range(5):
        r,o0,o1=xaddr(k,[5,6,7]); a=ACC+8*k
        A(f"ds_write2_b64 v{r}, v[{a}:{a+1}], v[{a+4}:{a+5}] offset0:{o0} offset1:{o1}")
    A.label("K2_EXW2")
    pr0,pr1,pr2,vRW=PAIR,PAIR+2,PAIR+4,PAIR+6
    A(f"v_add_u32 v{pr0}, s{sTMP+1}, v4"); A(f"v_add_u32 v{pr1}, 2048, v{pr0}"); A(f"v_add_u32 v{pr2}, 4096, v{pr0}")
    A(f"s_mul_i32 s{sTMP+2}, s{sG8}, 20"); A(f"s_lshl_b32 s{sTMP+3}, s{sH}, 1"); A(f"s_add_u32 s{sTMP+2}, s{sTMP+2}, s{sTMP+3}"); A(f"s_mul_i32 s{sTMP+2}, s{sTMP+2}, {AGG_STRIDE}")
    A(f"v_lshlrev_b32 v4, 2, v{vLANE}"); A(f"v_add_u32 v{vRW}, s{sTMP+2}, v4")
    A(f"s_mul_i32 s{sTMP}, s{sRG}, 3"); A(f"s_lshl_b32 s{sTMP+1}, s{sRG}, 1"); A(f"s_add_u32 s{sTMP+1}, s{sTMP+1}, 2")
    A(f"s_cmp_lt_u32 s{sRG}, 2"); A(f"s_cselect_b32 s{sTMP}, s{sTMP}, s{sTMP+1}")
    A(f"s_mul_i32 s{sTMP+1}, s{sTMP}, {16*AGG_STRIDE}")
    A(f"v_and_b32 v3, 15, v{vLANE}"); A(f"v_lshrrev_b32 v4, 4, v{vLANE}")
    A(f"v_mul_u32_u24 v7, {AGG_STRIDE}, v3"); A(f"v_lshl_add_u32 v7, v4, 4, v7"); A(f"v_add_u32 v{PAIR+1}, s{sTMP+1}, v7")
    vMR=PAIR+1; vOUT=PAIR+3
    A(f"v_lshlrev_b32 v3, 4, v3"); A(f"v_lshl_add_u32 v{vOUT}, v4, 10, v3")
    A(f"s_lshl_b32 s{sTMP}, s{sTMP}, 2")
    A(f"s_mul_i32 s{sTMP+1}, s{sB}, {NPB}"); A(f"s_add_u32 s{sTMP+1}, s{sTMP+1}, s{sTMP}")
    A(f"s_lshl_b32 s{sTMP+1}, s{sTMP+1}, 10"); A(f"s_lshl_b32 s{sTMP+2}, s{sCGP}, 8"); A(f"s_add_u32 s{sTMP+1}, s{sTMP+1}, s{sTMP+2}")
    A(f"s_add_u32 s{sOUT}, s{sOUT}, s{sTMP+1}"); A(f"s_addc_u32 s{sOUT+1}, s{sOUT+1}, 0")
    A("s_waitcnt vmcnt(8) lgkmcnt(0)")
    A("s_barrier")
    ST.mark("barY")
    for k in range(5):
        r,o0,o1=xaddr(k,[pr0,pr1,pr2])
        A(f"ds_read2_b64 v[{EX+4*k}:{EX+4*k+3}], v{r} offset0:{o0} offset1:{o1}")
    A(f"s_cmp_eq_u32 s{sH}, 0")
    A("s_cbranch_scc0 K2_CB1")
    for hh in range(2):
        if hh==1: A.label("K2_CB1")
        off=0 if hh==0 else 2
        for k in range(5):
            a=ACC+8*k+off; e=EX+4*k
            A(f"s_waitcnt lgkmcnt({min(4-k+2*k,15)})")
            A(f"v_pk_add_f32 v[{a}:{a+1}], v[{a}:{a+1}], v[{e}:{e+1}]")
            A(f"v_pk_add_f32 v[{a+4}:{a+5}], v[{a+4}:{a+5}], v[{e+2}:{e+3}]")
            A(f"v_pk_mul_f32 v[{a}:{a+1}], v[{a}:{a+1}], s[{sLN2}:{sLN2+1}]")
            A(f"v_pk_mul_f32 v[{a+4}:{a+5}], v[{a+4}:{a+5}], s[{sLN2}:{sLN2+1}]")
            A(f"v_cvt_pk_bf16_f32 v{2+2*(k%2)}, v{a}, v{a+4}")
            A(f"v_cvt_pk_bf16_f32 v{3+2*(k%2)}, v{a+1}, v{a+5}")
            A(f"ds_write_b32 v{vRW}, v{2+2*(k%2)} offset:{(4*k)*AGG_STRIDE}")
            A(f"ds_write_b32 v{vRW}, v{3+2*(k%2)} offset:{(4*k+1)*AGG_STRIDE}")
        if hh==0: A("s_branch K2_CB2")
    A.label("K2_CB2")
    A("s_waitcnt lgkmcnt(0)")
    A("s_barrier")
    ST.mark("barZ")
    D=ACC; FR=64
    fl={0:"",1:" sc1",2:" sc0 sc1",3:" nt"}[P.outwt]
    def rd(q):
        for ks in range(4): A(f"ds_read_b128 v[{FR+16*(q%2)+4*ks}:{FR+16*(q%2)+4*ks+3}], v{vMR} offset:{q*16*AGG_STRIDE+ks*64}")
    def mm(q):
        for ks in range(4):
            for p in range(2):
                d=D+8*q+4*p; f=FR+16*(q%2)+4*ks; w=WM+4*(4*p+ks)
                c="0" if ks==0 else f"v[{d}:{d+3}]"
                A(f"v_mfma_f32_16x16x32_bf16 v[{d}:{d+3}], v[{f}:{f+3}], v[{w}:{w+3}], {c}")
    def st(q):
        d=D+8*q; o=D+24+4*q
        A(f"v_cvt_pk_bf16_f32 v{o}, v{d}, v{d+1}"); A(f"v_cvt_pk_bf16_f32 v{o+1}, v{d+2}, v{d+3}")
        A(f"v_cvt_pk_bf16_f32 v{o+2}, v{d+4}, v{d+5}"); A(f"v_cvt_pk_bf16_f32 v{o+3}, v{d+6}, v{d+7}")
        if q: A(f"v_add_u32 v{vOUT}, 4096, v{vOUT}")
        A(f"global_store_dwordx4 v{vOUT}, v[{o}:{o+3}], s[{sOUT}:{sOUT+1}]"+fl)
    rd(0); rd(1)
    A("s_waitcnt vmcnt(0) lgkmcnt(4)")
    mm(0)
    A(f"s_cmp_lt_u32 s{sRG}, 2")
    A("s_cbranch_scc0 K2_MIX2")
    rd(2)
    A("s_waitcnt lgkmcnt(4)")
    mm(1)
    st(0)
    A("s_waitcnt lgkmcnt(0)")
    mm(2)
    st(1)
    A("s_nop 4")
    st(2)
    A("s_branch K2_MIXD")
    A.label("K2_MIX2")
    A("s_waitcnt lgkmcnt(0)")
    mm(1)
    st(0)
    A("s_nop 4")
    st(1)
    A.label("K2_MIXD")
    if P.tl:
        A("s_waitcnt vmcnt(0)"); tl(12)
        if not P.fused:
            A(f"s_lshl_b32 s74, s2, 3"); A("s_add_u32 s74, s74, 0x7F0000"); A("v_mov_b32 v4, s74")
            A("v_cmp_eq_u32 vcc, 0, v0"); A("s_and_saveexec_b64 s[76:77], vcc"); A("s_cbranch_execz K2_TLZ")
            A(f"global_load_dwordx2 v[6:7], v4, s[{sWS}:{sWS+1}]"); A("s_waitcnt vmcnt(0)")
            A("v_not_b32 v6, v6"); A("v_mov_b32 v3, 0")
            A("global_atomic_umax v3, v6, s[72:73] offset:16"); A("global_atomic_umax v3, v7, s[72:73] offset:20")
            A.label("K2_TLZ"); A("s_mov_b64 exec, s[76:77]")
    ST.mark("iss")
    if P.stamps:
        A("s_waitcnt vmcnt(0)")
        ST.mark("done")
        ST.dump(sWS,1,2,sW,2)
    A.label("K2_END")
    A("s_endpgm")
    A.label("K2_CODE_END")
    return NV

def kd(name,nv,ns):
    nv8=(nv+3)//4*4
    return f""".amdhsa_kernel {name}
  .amdhsa_next_free_vgpr {nv8}
  .amdhsa_next_free_sgpr {ns}
  .amdhsa_accum_offset {nv8}
  .amdhsa_group_segment_fixed_size 0
  .amdhsa_kernarg_size 88
  .amdhsa_user_sgpr_count 2
  .amdhsa_user_sgpr_kernarg_segment_ptr 1
  .amdhsa_system_sgpr_workgroup_id_x 1
  .amdhsa_float_denorm_mode_32 3
.end_amdhsa_kernel
"""

def main():
    ap=argparse.ArgumentParser()
    ap.add_argument("-o",default="standalone__tensor_product_equiv_tfn__graph.s")
    ap.add_argument("--U",type=int,default=8)
    ap.add_argument("--B",type=int,default=32)
    ap.add_argument("--rot",type=int,default=0)
    ap.add_argument("--stamps",type=int,default=0)
    ap.add_argument("--srcmask",type=lambda x:int(x,0),default=0x3fff)
    ap.add_argument("--dbg",default="")
    ap.add_argument("--xmap",type=int,default=1)
    ap.add_argument("--prio",type=int,default=4)
    ap.add_argument("--pf",type=int,default=3)
    ap.add_argument("--npro",type=int,default=2)
    ap.add_argument("--lead",type=int,default=1500)
    ap.add_argument("--nrounds",type=int,default=0)
    ap.add_argument("--bar",type=int,default=0)
    ap.add_argument("--k1stage",type=int,default=1)
    ap.add_argument("--k1wt",type=int,default=1)
    ap.add_argument("--k1pf",type=int,default=0)
    ap.add_argument("--pfat",default="recs")
    ap.add_argument("--k1l2",type=int,default=0)
    ap.add_argument("--outwt",type=int,default=1)
    ap.add_argument("--codepf",type=int,default=1)
    ap.add_argument("--k1rows",type=int,default=10000)
    ap.add_argument("--fused",type=int,default=1)
    ap.add_argument("--fpf",type=int,default=0)
    ap.add_argument("--sleep",type=int,default=0)
    ap.add_argument("--nfast",type=int,default=245)
    ap.add_argument("--pfsplit",type=int,default=0)
    ap.add_argument("--tl",type=int,default=0)
    ap.add_argument("--l2w",type=int,default=0)
    ap.add_argument("--flags",type=int,default=1)
    ap.add_argument("--pfat2",default="bar4")
    ap.add_argument("--sfast",type=int,default=8)
    P=ap.parse_args()
    hdr=open("standalone__tensor_product_equiv_tfn__graph.s.ref").read().split("; Override")[0]
    A=Asm()
    A.L.append(hdr.rstrip("\n"))
    if P.fused:
        A.L.append(f"; @launch grid=({NB},1,1) block=(1024,1,1) lds={K2_LDS}")
    else:
        A.L.append(f"; @launch kernel=tfn_bin_kernel grid=({NC+K1_CONST_WGS},1,1) block=({K1_THREADS},1,1) lds={2048+CH*20 if P.k1stage else 2048}")
        A.L.append(f"; @launch kernel=standalone__tensor_product_equiv_tfn__graph_kernel grid=({NB},1,1) block=(1024,1,1) lds={K2_LDS}")
    A('.amdgcn_target "amdgcn-amd-amdhsa--gfx950"')
    A(".text")
    if not P.fused: A(".globl tfn_bin_kernel")
    A(".globl standalone__tensor_product_equiv_tfn__graph_kernel")
    if not P.fused: gen_k1(A,P)
    nv=gen_k2(A,P)
    A('.section .rodata,"a"')
    A(".p2align 6")
    s=A.text()+("" if P.fused else kd("tfn_bin_kernel",72,102 if P.stamps else 40)+".p2align 6\n")+kd("standalone__tensor_product_equiv_tfn__graph_kernel",nv,102 if P.stamps else 80)
    open(P.o,"w").write(s)
    print("wrote",P.o,len(s),"bytes")
main()
```

```python
import sys, struct, argparse

N=10000; E=320000; C=128
NPB=40
NB=250
NC=250
CH=1280
K1_THREADS=320
K1_CONST_WGS=8
import os
WS_BASE=int(os.environ.get("WSBASE","0"),0)
WS_KEYS=WS_BASE; WS_PAY=WS_BASE+0x140000; WS_CELL=WS_BASE+0x630000; WS_CONST=WS_BASE+0x680000; WS_FLAG=WS_BASE+0x6A0000
CONST_WF=0; CONST_CG=2048; CONST_WM=4096
LOG2E=1.4426950408889634; LN2=0.6931471805599453
def f2u(f): return struct.unpack("<I",struct.pack("<f",f))[0]

class Asm:
    def __init__(s): s.L=[]
    def __call__(s,x=""):
        for l in x.split("\n"):
            s.L.append(l if (l.endswith(":") or l.startswith(".") or l=="" ) else "    "+l)
    def c(s,x): s.L.append("    ; "+x)
    def label(s,x): s.L.append(x+":")
    def text(s): return "\n".join(s.L)+"\n"

def vr(a,n=1): return f"v{a}" if n==1 else f"v[{a}:{a+n-1}]"
def sr(a,n=1): return f"s{a}" if n==1 else f"s[{a}:{a+n-1}]"

WS_STAMP=0x800000
class Stamps:
    def __init__(s,A,on,kn,base_sgpr=int(os.environ.get('STBASE','82')),tmp=int(os.environ.get('STTMP','80'))): s.A=A; s.on=on; s.n=0; s.base=base_sgpr; s.tmp=tmp; s.kn=kn
    def mark(s,name=""):
        if not s.on: return
        A=s.A
        A(f"s_memrealtime s[{s.tmp}:{s.tmp+1}]")
        A("s_waitcnt lgkmcnt(0)")
        A(f"s_mov_b32 s{s.base+s.n}, s{s.tmp}")
        s.n+=1
    def markc(s,name=""):
        if not s.on: return
        A=s.A
        A(f"s_memtime s[{s.tmp}:{s.tmp+1}]")
        A("s_waitcnt lgkmcnt(0)")
        A(f"s_mov_b32 s{s.base+s.n}, s{s.tmp}")
        s.n+=1
    def dump(s,wsreg,kernel,wgreg,wavereg,vtmp):
        if not s.on: return
        A=s.A
        A(f"s_lshl_b32 s{s.tmp}, s{wgreg}, 4"); A(f"s_add_u32 s{s.tmp}, s{s.tmp}, s{wavereg}"); A(f"s_lshl_b32 s{s.tmp}, s{s.tmp}, 7")
        A(f"s_add_u32 s{s.tmp}, s{s.tmp}, {WS_STAMP+kernel*0x100000}")
        A(f"s_add_u32 s{s.tmp}, s{wsreg}, s{s.tmp}"); A(f"s_addc_u32 s{s.tmp+1}, s{wsreg+1}, 0")
        A(f"v_mov_b32 v{vtmp}, 0")
        for i in range(s.n):
            A(f"v_mov_b32 v{vtmp+1}, s{s.base+i}")
            A(f"global_store_dword v{vtmp}, v{vtmp+1}, s[{s.tmp}:{s.tmp+1}] offset:{4*i}")
            A("s_nop 1")

def dpp_scan(A,v,nrows=4):
    for sh in (1,2,4,8):
        A("s_nop 1")
        A(f"v_add_u32_dpp v{v}, v{v}, v{v} row_shr:{sh} row_mask:0xf bank_mask:0xf bound_ctrl:1")
    if nrows>=2:
        A("s_nop 1")
        A(f"v_add_u32_dpp v{v}, v{v}, v{v} row_bcast:15 row_mask:0xa bank_mask:0xf")
    if nrows>=4:
        A("s_nop 1")
        A(f"v_add_u32_dpp v{v}, v{v}, v{v} row_bcast:31 row_mask:0xc bank_mask:0xf")

def gen_k1(A,P):
    B=P.B
    blkmul={32:209,16:104,64:419}[B]
    assert ((N-1)*blkmul)>>16 < B
    for d in range(N):
        b=(d*52429)>>21; assert b==d//40
    for dl in range(40): assert (dl*205)>>10==dl//5
    A(".p2align 8")
    A(".type tfn_bin_kernel,@function")
    A.label("tfn_bin_kernel")
    A(f"s_cmp_ge_u32 s2, {NC+K1_CONST_WGS}")
    A("s_cbranch_scc1 K1_END")
    A("s_load_dwordx4 s[4:7], s[0:1], 8")
    A("s_load_dwordx4 s[8:11], s[0:1], 24")
    A("s_load_dwordx2 s[12:13], s[0:1], 80")
    if P.k1pf: A("s_load_dwordx2 s[32:33], s[0:1], 0")
    A(f"s_cmp_ge_u32 s2, {NC}")
    A("s_cbranch_scc1 K1_CONST")
    ST=Stamps(A,P.stamps,"K1")
    ST.mark("start")
    if P.tl:
        A("s_memrealtime s[38:39]"); A("s_waitcnt lgkmcnt(0)")
    A(f"s_mul_i32 s14, s2, {CH*4}")
    A("v_lshlrev_b32 v1, 4, v0")
    A("v_add_u32 v1, s14, v1")
    A("v_lshlrev_b32 v2, 1, v1")
    A("v_lshlrev_b32 v3, 2, v0")
    A("v_mov_b32 v4, 0")
    A("v_mov_b32 v5, 1")
    A("v_cmp_gt_u32 vcc, 0x100, v0")
    A("s_and_saveexec_b64 s[16:17], vcc")
    A("s_cbranch_execz K1_NOZ")
    A("ds_write_b32 v3, v4")
    A.label("K1_NOZ")
    A("s_mov_b64 exec, s[16:17]")
    A("s_waitcnt lgkmcnt(0)")
    A("global_load_dwordx4 v[8:11], v1, s[6:7]")
    A("global_load_dwordx4 v[12:15], v1, s[4:5]")
    A("global_load_dwordx4 v[16:19], v2, s[8:9]")
    A("global_load_dwordx4 v[20:23], v2, s[8:9] offset:16")
    A("global_load_dwordx4 v[24:27], v2, s[10:11]")
    A("global_load_dwordx4 v[28:31], v2, s[10:11] offset:16")
    def k1pf():
        if P.k1l2==0:
            per=(P.k1rows*8+249)//250
            A(f"s_mul_i32 s34, s2, {per*128}")
            A("v_lshlrev_b32 v68, 7, v0"); A("v_add_u32 v68, s34, v68")
            if per<320:
                A(f"v_cmp_gt_u32 vcc, {per}, v0"); A("s_and_saveexec_b64 s[36:37], vcc"); A("s_cbranch_execz K1_NOPF")
            A("global_load_dword v69, v68, s[32:33]")
            if per<320:
                A.label("K1_NOPF"); A("s_mov_b64 exec, s[36:37]")
        else:
            A("s_lshr_b32 s34, s2, 3"); A(f"s_mul_i32 s34, s34, {320*128}")
            A("v_lshlrev_b32 v68, 7, v0"); A("v_add_u32 v68, s34, v68")
            for q in range(P.k1l2):
                A("global_load_dword v69, v68, s[32:33]")
                A(f"v_add_u32 v68, {10240*128}, v68")
            rem=80000-10240*P.k1l2; per=(rem+249)//250
            assert per<=320
            A(f"s_mul_i32 s34, s2, {per}"); A(f"s_add_u32 s34, s34, {10240*P.k1l2}")
            A("v_add_u32 v70, s34, v0")
            A(f"v_cmp_gt_u32 vcc, {per}, v0"); A(f"s_mov_b32 s35, 80000"); A("v_cmp_gt_u32 s[36:37], s35, v70"); A("s_and_b64 vcc, vcc, s[36:37]")
            A("v_lshlrev_b32 v70, 7, v70")
            A("s_and_saveexec_b64 s[36:37], vcc")
            A("s_cbranch_execz K1_NOPF")
            A("global_load_dword v71, v70, s[32:33]")
            A.label("K1_NOPF")
            A("s_mov_b64 exec, s[36:37]")
    if P.k1pf==1: k1pf()
    A(f"s_mul_i32 s15, s2, {CH*16}")
    A(f"s_add_u32 s18, s12, {WS_KEYS}"); A("s_addc_u32 s19, s13, 0")
    A("s_add_u32 s18, s18, s14"); A("s_addc_u32 s19, s19, 0")
    A(f"s_add_u32 s20, s12, {WS_PAY}"); A("s_addc_u32 s21, s13, 0")
    A("s_add_u32 s20, s20, s15"); A("s_addc_u32 s21, s21, 0")
    A("s_lshl_b32 s15, s2, 2")
    A(f"s_add_u32 s22, s12, {WS_CELL}"); A("s_addc_u32 s23, s13, 0")
    A("s_add_u32 s22, s22, s15"); A("s_addc_u32 s23, s23, 0")
    A("s_movk_i32 s24, -40")
    A("v_lshrrev_b32 v6, 6, v0")
    A("v_and_b32 v7, 63, v0")
    A("v_readfirstlane_b32 s25, v6")
    A("s_barrier")
    A(f"s_waitcnt vmcnt({5 if P.k1pf==1 else 4})")
    ST.mark("ld")
    for i in range(4):
        d=8+i; s=12+i
        A(f"v_mul_u32_u24 v44, 0xcccd, v{d}")
        A("v_lshrrev_b32 v44, 21, v44")
        A(f"v_mad_i32_i24 v45, v44, s24, v{d}")
        A(f"v_lshlrev_b32 v{36+i}, 2, v44")
        A(f"ds_add_rtn_u32 v{40+i}, v{36+i}, v5")
        A("v_mul_u32_u24 v46, 0xcd, v45")
        A("v_lshrrev_b32 v46, 10, v46")
        A("v_mad_i32_i24 v47, v46, -5, v45")
        A(f"v_mul_u32_u24 v48, {blkmul}, v{s}")
        A("v_lshrrev_b32 v48, 16, v48")
        if P.rot:
            A("v_mul_u32_u24 v49, 2098, v44"); A("v_lshrrev_b32 v49, 16, v49")
            A(f"v_mul_u32_u24 v49, {(B//8)*P.rot}, v49")
            A("v_add_u32 v48, v48, v49")
            A(f"v_and_b32 v48, {B-1}, v48")
        sh={16:4,32:5,64:6}[B]
        A(f"v_lshl_add_u32 v48, v46, {sh}, v48")
        A(f"v_lshl_or_b32 v{32+i}, v47, 14, v{s}")
        A(f"v_lshl_or_b32 v{32+i}, v48, 17, v{32+i}")
    A(f"s_waitcnt vmcnt({1 if P.k1pf==1 else 0})")
    A("v_swap_b32 v18, v24"); A("v_swap_b32 v19, v25"); A("v_swap_b32 v22, v28"); A("v_swap_b32 v23, v29")
    pay=[16,24,20,28]
    A("v_lshlrev_b32 v50, 4, v7")
    A("s_waitcnt lgkmcnt(0)")
    A("s_barrier")
    ST.mark("hist")
    if P.k1pf==2: k1pf()
    A("ds_read_b128 v[52:55], v50")
    A("s_waitcnt lgkmcnt(0)")
    A("v_add_u32 v56, v52, v53")
    A("v_add_u32 v57, v56, v54")
    A("v_add_u32 v58, v57, v55")
    A("v_mov_b32 v59, v58")
    dpp_scan(A,59)
    A("v_sub_u32 v60, v59, v58")
    A("v_add_u32 v61, v60, v52")
    A("v_add_u32 v62, v60, v56")
    A("v_add_u32 v63, v60, v57")
    A("ds_write_b128 v50, v[60:63] offset:1024")
    for i in range(4):
        A(f"s_cmp_lg_u32 s25, {i}")
        A(f"s_cbranch_scc1 K1_CS{i}")
        A(f"v_lshl_or_b32 v64, v{52+i}, 16, v{60+i}")
        A(f"v_lshlrev_b32 v65, 12, v7")
        if i: A(f"v_add_u32 v65, {i*1024}, v65")
        A(f"v_cmp_gt_u32 vcc, {(NB-i+3)//4}, v7")
        A("s_and_saveexec_b64 s[16:17], vcc")
        A("global_store_dword v65, v64, s[22:23]")
        A(f"s_cmp_ge_u32 s2, {256-NC}")
        A(f"s_cbranch_scc1 K1_CZ{i}")
        A(f"global_store_dword v65, v4, s[22:23] offset:{NC*4}")
        A.label(f"K1_CZ{i}")
        A("s_mov_b64 exec, s[16:17]")
        A.label(f"K1_CS{i}")
    A("s_waitcnt lgkmcnt(0)")
    for i in range(4): A(f"ds_read_b32 v{44+i}, v{36+i} offset:1024")
    if not P.k1stage:
        for i in range(4):
            A(f"s_waitcnt lgkmcnt({3-i})")
            A(f"v_add_u32 v{44+i}, v{44+i}, v{40+i}")
            A(f"v_lshlrev_b32 v48, 2, v{44+i}")
            A(f"v_lshlrev_b32 v49, 4, v{44+i}")
            A(f"global_store_dwordx4 v49, v[{pay[i]}:{pay[i]+3}], s[20:21]")
            A(f"global_store_dword v48, v{32+i}, s[18:19]")
            A("s_nop 1")
    else:
        KST=2048; PST=KST+CH*4
        fl={0:"",1:" sc1",2:" sc0 sc1",3:" nt"}[P.k1wt]
        for i in range(4):
            A(f"s_waitcnt lgkmcnt({3-i+2*i})")
            A(f"v_add_u32 v{44+i}, v{44+i}, v{40+i}")
            A(f"v_lshlrev_b32 v48, 2, v{44+i}")
            A(f"v_lshlrev_b32 v49, 4, v{44+i}")
            A(f"ds_write_b128 v49, v[{pay[i]}:{pay[i]+3}] offset:{PST}")
            A(f"ds_write_b32 v48, v{32+i} offset:{KST}")
        A("v_lshlrev_b32 v50, 4, v0")
        A("s_waitcnt lgkmcnt(0)")
        A("s_barrier")
        A(f"ds_read_b128 v[8:11], v50 offset:{KST}")
        for q in range(4): A(f"ds_read_b128 v[{12+4*q}:{15+4*q}], v50 offset:{PST+q*5120}")
        A("v_add_u32 v51, 5120, v50"); A("v_add_u32 v52, 10240, v50"); A("v_add_u32 v53, 15360, v50")
        A("s_waitcnt lgkmcnt(4)")
        A(f"global_store_dwordx4 v50, v[8:11], s[18:19]{fl}")
        for q in range(4):
            A(f"s_waitcnt lgkmcnt({3-q})")
            A(f"global_store_dwordx4 v{50+q}, v[{12+4*q}:{15+4*q}], s[20:21]{fl}")
    if P.k1pf==3: k1pf()
    if P.tl:
        A("s_waitcnt vmcnt(0)"); A("s_memrealtime s[34:35]"); A("s_waitcnt lgkmcnt(0)")
        A("s_cmp_lg_u32 s25, 0"); A("s_cbranch_scc1 K1_TLX")
        A("s_lshl_b32 s36, s2, 3"); A("s_add_u32 s36, s36, 0x7F0000")
        A("v_mov_b32 v68, s38"); A("v_mov_b32 v69, s34"); A("v_mov_b32 v70, s36")
        A("global_store_dwordx2 v70, v[68:69], s[12:13]")
        A.label("K1_TLX")
    ST.mark("iss")
    if P.stamps:
        A("s_waitcnt vmcnt(0)")
        ST.mark("done")
        ST.dump(12,0,2,25,66)
    A("s_endpgm")
    A.label("K1_CONST")
    A("s_load_dwordx2 s[26:27], s[0:1], 40")
    A("s_load_dwordx4 s[28:31], s[0:1], 48")
    A("v_lshrrev_b32 v6, 6, v0")
    A("s_nop 0")
    A("v_readfirstlane_b32 s25, v6")
    A(f"s_sub_u32 s14, s2, {NC}")
    A("v_and_b32 v7, 63, v0")
    A("s_waitcnt lgkmcnt(0)")
    A(f"s_add_u32 s18, s12, {WS_CONST}"); A("s_addc_u32 s19, s13, 0")
    A("s_cmp_eq_u32 s25, 4")
    A("s_cbranch_scc1 K1_CW4")
    A("s_and_b32 s15, s14, 1")
    A("s_lshr_b32 s16, s14, 1")
    A("s_lshl_b32 s16, s16, 5"); A("s_add_u32 s16, s16, s15")
    A("v_and_b32 v1, 15, v7"); A("v_lshlrev_b32 v1, 1, v1"); A("v_add_u32 v1, s16, v1")
    A("v_lshrrev_b32 v2, 4, v7"); A("v_lshlrev_b32 v2, 3, v2")
    A("s_lshl_b32 s17, s25, 5"); A("v_add_u32 v2, s17, v2")
    A("v_lshlrev_b32 v2, 7, v2"); A("v_add_u32 v2, v2, v1"); A("v_lshlrev_b32 v2, 1, v2")
    for r in range(8): A(f"global_load_ushort v{8+r}, v2, s[30:31] offset:{r*256}")
    A("s_lshl_b32 s17, s14, 12")
    A("v_lshlrev_b32 v3, 4, v0"); A("v_add_u32 v3, s17, v3"); A(f"v_add_u32 v3, {CONST_WM}, v3")
    A("s_waitcnt vmcnt(0)")
    for r in range(4): A(f"v_lshl_or_b32 v{16+r}, v{9+2*r}, 16, v{8+2*r}")
    A("global_store_dwordx4 v3, v[16:19], s[18:19]")
    A("s_endpgm")
    A.label("K1_CW4")
    A("s_cmp_eq_u32 s14, 0"); A("s_cbranch_scc1 K1_WF")
    A("s_cmp_eq_u32 s14, 1"); A("s_cbranch_scc1 K1_CG")
    if P.codepf&1:
        A("s_cmp_eq_u32 s14, 2"); A("s_cbranch_scc0 K1_CPX")
        A("s_getpc_b64 s[34:35]")
        A.label("K1_PC")
        A("s_add_u32 s34, s34, standalone__tensor_product_equiv_tfn__graph_kernel-K1_PC"); A("s_addc_u32 s35, s35, 0")
        A("v_lshlrev_b32 v1, 7, v7")
        for q in range(2):
            A(f"v_add_u32 v2, {q*8192}, v1")
            A(f"v_cmp_gt_u32 vcc, K2_CODE_END-standalone__tensor_product_equiv_tfn__graph_kernel, v2")
            A("s_and_saveexec_b64 s[36:37], vcc")
            A(f"s_cbranch_execz K1_CPS{q}")
            A(f"global_load_dword v{8+q}, v2, s[34:35]")
            A.label(f"K1_CPS{q}")
            A("s_mov_b64 exec, s[36:37]")
        A.label("K1_CPX")
    A("s_endpgm")
    A.label("K1_WF")
    A("v_lshlrev_b32 v1, 2, v7")
    for k in range(4): A(f"global_load_dword v{8+k}, v1, s[26:27] offset:{k*256}")
    A(f"s_mov_b32 s15, 0x{f2u(-LOG2E):08x}")
    A("s_mov_b32 s16, 0xffff0000")
    A("s_waitcnt vmcnt(0)")
    for k in range(4):
        A(f"v_lshlrev_b32 v{12+k}, 16, v{8+k}")
        A(f"v_and_b32 v{16+k}, s16, v{8+k}")
    for k in range(8): A(f"v_mul_f32 v{12+k}, s15, v{12+k}")
    A("v_cvt_pk_bf16_f32 v20, v12, v13"); A("v_cvt_pk_bf16_f32 v21, v14, v15")
    A("v_cvt_pk_bf16_f32 v22, v16, v17"); A("v_cvt_pk_bf16_f32 v23, v18, v19")
    for q in range(4):
        A(f"v_lshlrev_b32 v28, 16, v{20+q}")
        A(f"v_and_b32 v29, s16, v{20+q}")
        A(f"v_sub_f32 v28, v{12+2*q}, v28")
        A(f"v_sub_f32 v29, v{13+2*q}, v29")
        A(f"v_cvt_pk_bf16_f32 v{24+q}, v28, v29")
    A("v_lshlrev_b32 v3, 5, v7")
    A(f"global_store_dwordx4 v3, v[20:23], s[18:19] offset:{CONST_WF}")
    A(f"global_store_dwordx4 v3, v[24:27], s[18:19] offset:{CONST_WF+16}")
    A("s_endpgm")
    A.label("K1_CG")
    A("v_and_b32 v1, 3, v7"); A("v_lshlrev_b32 v1, 5, v1")
    for f in range(4): A(f"global_load_dwordx2 v[{8+2*f}:{9+2*f}], v1, s[28:29] offset:{f*8}")
    A("s_mov_b32 s15, 0x05040100"); A("s_mov_b32 s16, 0x07060302")
    A("s_waitcnt vmcnt(0)")
    for o in range(4):
        sel="s15" if o%2==0 else "s16"; h=o//2
        A(f"v_perm_b32 v{16+2*o}, v{10+h}, v{8+h}, {sel}")
        A(f"v_perm_b32 v{17+2*o}, v{14+h}, v{12+h}, {sel}")
    A("v_lshlrev_b32 v3, 5, v7"); A(f"v_add_u32 v3, {CONST_CG}, v3")
    A("global_store_dwordx4 v3, v[16:19], s[18:19]")
    A("global_store_dwordx4 v3, v[20:23], s[18:19] offset:16")
    A.label("K1_END")
    A("s_endpgm")


def gen_phase1(A,P,ST):
    B=P.B
    blkmul={32:209,16:104,64:419}[B]
    A("s_load_dwordx4 s[4:7], s[0:1], 8")
    A("s_load_dwordx4 s[8:11], s[0:1], 24")
    A("s_load_dwordx2 s[12:13], s[0:1], 80")
    A("s_load_dwordx2 s[26:27], s[0:1], 40")
    A("s_load_dwordx4 s[28:31], s[0:1], 48")
    A("s_load_dwordx2 s[32:33], s[0:1], 0")
    A("s_load_dwordx2 s[72:73], s[0:1], 72")
    A("v_lshrrev_b32 v6, 6, v0")
    A("v_and_b32 v7, 63, v0")
    A("v_readfirstlane_b32 s25, v6")
    A("s_nop 3")
    A("s_cmp_ge_u32 s25, 5")
    A("s_cbranch_scc1 F_OTHER")
    A(f"s_mul_i32 s14, s2, {CH*4}")
    A("v_lshlrev_b32 v1, 4, v0")
    A("v_add_u32 v1, s14, v1")
    A("v_lshlrev_b32 v2, 1, v1")
    A("v_lshlrev_b32 v3, 2, v0")
    A("v_mov_b32 v4, 0")
    A("v_mov_b32 v5, 1")
    A("v_cmp_gt_u32 vcc, 0x100, v0")
    A("s_and_saveexec_b64 s[16:17], vcc")
    A("s_cbranch_execz F_NOZ")
    A("ds_write_b32 v3, v4")
    A.label("F_NOZ")
    A("s_mov_b64 exec, s[16:17]")
    A("s_waitcnt lgkmcnt(0)")
    A("global_load_dwordx4 v[8:11], v1, s[6:7]")
    A("global_load_dwordx4 v[12:15], v1, s[4:5]")
    A("global_load_dwordx4 v[16:19], v2, s[8:9]")
    A("global_load_dwordx4 v[20:23], v2, s[8:9] offset:16")
    A("global_load_dwordx4 v[24:27], v2, s[10:11]")
    A("global_load_dwordx4 v[28:31], v2, s[10:11] offset:16")
    A(f"s_mul_i32 s15, s2, {CH*16}")
    A(f"s_add_u32 s18, s12, {WS_KEYS}"); A("s_addc_u32 s19, s13, 0")
    A("s_add_u32 s18, s18, s14"); A("s_addc_u32 s19, s19, 0")
    A(f"s_add_u32 s20, s12, {WS_PAY}"); A("s_addc_u32 s21, s13, 0")
    A("s_add_u32 s20, s20, s15"); A("s_addc_u32 s21, s21, 0")
    A("s_lshl_b32 s15, s2, 10")
    A(f"s_add_u32 s22, s12, {WS_CELL}"); A("s_addc_u32 s23, s13, 0")
    A("s_add_u32 s22, s22, s15"); A("s_addc_u32 s23, s23, 0")
    A("s_movk_i32 s24, -40")
    A("s_barrier")
    A("s_waitcnt vmcnt(4)")
    for i in range(4):
        d=8+i; s=12+i
        A(f"v_mul_u32_u24 v44, 0xcccd, v{d}")
        A("v_lshrrev_b32 v44, 21, v44")
        A(f"v_mad_i32_i24 v45, v44, s24, v{d}")
        A(f"v_lshlrev_b32 v{36+i}, 2, v44")
        A(f"ds_add_rtn_u32 v{40+i}, v{36+i}, v5")
        A("v_mul_u32_u24 v46, 0xcd, v45")
        A("v_lshrrev_b32 v46, 10, v46")
        A("v_mad_i32_i24 v47, v46, -5, v45")
        A(f"v_mul_u32_u24 v48, {blkmul}, v{s}")
        A("v_lshrrev_b32 v48, 16, v48")
        sh={16:4,32:5,64:6}[B]
        A(f"v_lshl_add_u32 v48, v46, {sh}, v48")
        A(f"v_lshl_or_b32 v{32+i}, v47, 14, v{s}")
        A(f"v_lshl_or_b32 v{32+i}, v48, 17, v{32+i}")
    A("s_waitcnt vmcnt(0)")
    A("v_swap_b32 v18, v24"); A("v_swap_b32 v19, v25"); A("v_swap_b32 v22, v28"); A("v_swap_b32 v23, v29")
    pay=[16,24,20,28]
    A("v_lshlrev_b32 v50, 4, v7")
    A("s_waitcnt lgkmcnt(0)")
    A("s_barrier")
    ST.mark("hist")
    A("ds_read_b128 v[52:55], v50")
    A("s_waitcnt lgkmcnt(0)")
    A("v_add_u32 v56, v52, v53"); A("v_add_u32 v57, v56, v54"); A("v_add_u32 v58, v57, v55"); A("v_mov_b32 v59, v58")
    dpp_scan(A,59)
    A("v_sub_u32 v60, v59, v58"); A("v_add_u32 v61, v60, v52"); A("v_add_u32 v62, v60, v56"); A("v_add_u32 v63, v60, v57")
    A("ds_write_b128 v50, v[60:63] offset:1024")
    A("s_cmp_lg_u32 s25, 0")
    A("s_cbranch_scc1 F_CS")
    for i in range(4): A(f"v_lshl_or_b32 v{64+i}, v{52+i}, 16, v{60+i}")
    A("global_store_dwordx4 v50, v[64:67], s[22:23] sc1")
    A.label("F_CS")
    A("s_waitcnt lgkmcnt(0)")
    for i in range(4): A(f"ds_read_b32 v{44+i}, v{36+i} offset:1024")
    KST=2048; PST=KST+CH*4
    for i in range(4):
        A(f"s_waitcnt lgkmcnt({3-i+2*i})")
        A(f"v_add_u32 v{44+i}, v{44+i}, v{40+i}")
        A(f"v_lshlrev_b32 v48, 2, v{44+i}")
        A(f"v_lshlrev_b32 v49, 4, v{44+i}")
        A(f"ds_write_b128 v49, v[{pay[i]}:{pay[i]+3}] offset:{PST}")
        A(f"ds_write_b32 v48, v{32+i} offset:{KST}")
    A("v_lshlrev_b32 v50, 4, v0")
    A("s_waitcnt lgkmcnt(0)")
    A("s_barrier")
    A(f"ds_read_b128 v[8:11], v50 offset:{KST}")
    for q in range(4): A(f"ds_read_b128 v[{12+4*q}:{15+4*q}], v50 offset:{PST+q*5120}")
    A("v_add_u32 v51, 5120, v50"); A("v_add_u32 v52, 10240, v50"); A("v_add_u32 v53, 15360, v50")
    A("s_waitcnt lgkmcnt(4)")
    A("global_store_dwordx4 v50, v[8:11], s[18:19] sc1")
    for q in range(4):
        A(f"s_waitcnt lgkmcnt({3-q})")
        A(f"global_store_dwordx4 v{50+q}, v[{12+4*q}:{15+4*q}], s[20:21] sc1")
    if P.flags:
        A("s_cmp_lg_u32 s25, 0"); A("s_cbranch_scc1 F_JOIN")
        A("v_mov_b32 v66, 0"); A("global_load_dword v67, v66, s[72:73] sc1")
    ST.mark("iss1")
    A("s_branch F_JOIN")
    A.label("F_OTHER")
    A("s_waitcnt lgkmcnt(0)")
    A(f"s_add_u32 s18, s12, {WS_CONST}"); A("s_addc_u32 s19, s13, 0")
    if P.flags:
        A("s_cmp_lg_u32 s2, 0"); A("s_cbranch_scc1 F_NN"); A("s_cmp_lg_u32 s25, 9"); A("s_cbranch_scc1 F_NN")
        A("s_memrealtime s[38:39]"); A("s_waitcnt lgkmcnt(0)"); A("s_or_b32 s38, s38, 1")
        A("v_mov_b32 v1, 0"); A("v_mov_b32 v2, s38")
        A("v_cmp_eq_u32 vcc, 0, v7"); A("s_and_saveexec_b64 s[16:17], vcc")
        A("global_store_dword v1, v2, s[72:73] sc1")
        A("s_mov_b64 exec, s[16:17]")
        A.label("F_NN")
    A("s_mov_b32 s36, 0")
    A("s_cmp_ge_u32 s25, 9"); A("s_cbranch_scc1 F_R0")
    A("s_cmp_lt_u32 s2, 8"); A("s_cbranch_scc1 F_RW")
    A("s_cmp_lg_u32 s25, 5"); A("s_cbranch_scc1 F_R0")
    A("s_cmp_eq_u32 s2, 8"); A("s_cbranch_scc1 F_RF")
    A("s_cmp_eq_u32 s2, 9"); A("s_cbranch_scc1 F_RC")
    A("s_branch F_R0")
    A.label("F_RW")
    A("s_mov_b32 s36, 1")
    A("s_sub_u32 s14, s25, 5")
    A("s_and_b32 s15, s2, 1"); A("s_lshr_b32 s16, s2, 1"); A("s_lshl_b32 s16, s16, 5"); A("s_add_u32 s16, s16, s15")
    A("v_and_b32 v1, 15, v7"); A("v_lshlrev_b32 v1, 1, v1"); A("v_add_u32 v1, s16, v1")
    A("v_lshrrev_b32 v2, 4, v7"); A("v_lshlrev_b32 v2, 3, v2")
    A("s_lshl_b32 s17, s14, 5"); A("v_add_u32 v2, s17, v2")
    A("v_lshlrev_b32 v2, 7, v2"); A("v_add_u32 v2, v2, v1"); A("v_lshlrev_b32 v2, 1, v2")
    for r in range(8): A(f"global_load_ushort v{8+r}, v2, s[30:31] offset:{r*256}")
    A("s_branch F_R0")
    A.label("F_RF")
    A("s_mov_b32 s36, 2")
    A("v_lshlrev_b32 v1, 2, v7")
    for k in range(4): A(f"global_load_dword v{8+k}, v1, s[26:27] offset:{k*256}")
    A("s_branch F_R0")
    A.label("F_RC")
    A("s_mov_b32 s36, 3")
    A("v_and_b32 v1, 3, v7"); A("v_lshlrev_b32 v1, 5, v1")
    for f in range(4): A(f"global_load_dwordx2 v[{8+2*f}:{9+2*f}], v1, s[28:29] offset:{f*8}")
    A.label("F_R0")
    def fpfcode(lab):
        A("s_cmp_lt_u32 s25, 9"); A(f"s_cbranch_scc1 {lab}")
        A("s_cmp_ge_u32 s25, 14"); A(f"s_cbranch_scc1 {lab}")
        A(f"s_mul_i32 s14, s2, {320*128}"); A("s_sub_u32 s15, s25, 9"); A("s_lshl_b32 s15, s15, 13"); A("s_add_u32 s14, s14, s15")
        A("v_lshlrev_b32 v126, 7, v7"); A("v_add_u32 v126, s14, v126")
        A("global_load_dword v127, v126, s[32:33]")
        A.label(lab)
    if P.fpf==3: fpfcode("F_NPF3")
    A("s_barrier")
    if P.fpf==4: fpfcode("F_NPF4")
    A("s_barrier")
    if P.fpf==5: fpfcode("F_NPF5")
    A("s_cmp_eq_u32 s36, 0"); A("s_cbranch_scc1 F_RD")
    A("s_waitcnt vmcnt(0)")
    A("s_cmp_eq_u32 s36, 2"); A("s_cbranch_scc1 F_RF2")
    A("s_cmp_eq_u32 s36, 3"); A("s_cbranch_scc1 F_RC2")
    A("s_lshl_b32 s17, s2, 12"); A("s_lshl_b32 s15, s14, 10"); A("s_add_u32 s17, s17, s15"); A(f"s_add_u32 s17, s17, {CONST_WM}")
    A("v_lshlrev_b32 v3, 4, v7"); A("v_add_u32 v3, s17, v3")
    for r in range(4): A(f"v_lshl_or_b32 v{16+r}, v{9+2*r}, 16, v{8+2*r}")
    A("global_store_dwordx4 v3, v[16:19], s[18:19] sc1")
    A("s_branch F_RD")
    A.label("F_RF2")
    A(f"s_mov_b32 s15, 0x{f2u(-LOG2E):08x}"); A("s_mov_b32 s16, 0xffff0000")
    for k in range(4):
        A(f"v_lshlrev_b32 v{12+k}, 16, v{8+k}"); A(f"v_and_b32 v{16+k}, s16, v{8+k}")
    for k in range(8): A(f"v_mul_f32 v{12+k}, s15, v{12+k}")
    A("v_cvt_pk_bf16_f32 v20, v12, v13"); A("v_cvt_pk_bf16_f32 v21, v14, v15")
    A("v_cvt_pk_bf16_f32 v22, v16, v17"); A("v_cvt_pk_bf16_f32 v23, v18, v19")
    for q in range(4):
        A(f"v_lshlrev_b32 v28, 16, v{20+q}"); A(f"v_and_b32 v29, s16, v{20+q}")
        A(f"v_sub_f32 v28, v{12+2*q}, v28"); A(f"v_sub_f32 v29, v{13+2*q}, v29")
        A(f"v_cvt_pk_bf16_f32 v{24+q}, v28, v29")
    A("v_lshlrev_b32 v3, 5, v7")
    A(f"global_store_dwordx4 v3, v[20:23], s[18:19] offset:{CONST_WF} sc1")
    A(f"global_store_dwordx4 v3, v[24:27], s[18:19] offset:{CONST_WF+16} sc1")
    A("s_branch F_RD")
    A.label("F_RC2")
    A("s_mov_b32 s15, 0x05040100"); A("s_mov_b32 s16, 0x07060302")
    for o in range(4):
        sel="s15" if o%2==0 else "s16"; h=o//2
        A(f"v_perm_b32 v{16+2*o}, v{10+h}, v{8+h}, {sel}")
        A(f"v_perm_b32 v{17+2*o}, v{14+h}, v{12+h}, {sel}")
    A("v_lshlrev_b32 v3, 5, v7"); A(f"v_add_u32 v3, {CONST_CG}, v3")
    A("global_store_dwordx4 v3, v[16:19], s[18:19] sc1")
    A("global_store_dwordx4 v3, v[20:23], s[18:19] offset:16 sc1")
    A.label("F_RD")
    A("s_barrier")
    if P.fpf==1:
        A("s_cmp_lt_u32 s25, 9"); A("s_cbranch_scc1 F_JOIN")
        A("s_cmp_ge_u32 s25, 14"); A("s_cbranch_scc1 F_JOIN")
        A(f"s_mul_i32 s14, s2, {320*128}"); A("s_sub_u32 s15, s25, 9"); A("s_lshl_b32 s15, s15, 13"); A("s_add_u32 s14, s14, s15")
        A("v_lshlrev_b32 v126, 7, v7"); A("v_add_u32 v126, s14, v126")
        A("global_load_dword v127, v126, s[32:33]")
        A("s_branch F_JOIN2")
    A.label("F_JOIN")
    A("s_waitcnt vmcnt(0)")
    A.label("F_JOIN2")
    A("s_barrier")
    ST.mark("barD")
    if P.fpf==2:
        A("s_cmp_lt_u32 s25, 9"); A("s_cbranch_scc1 F_NPF2")
        A("s_cmp_ge_u32 s25, 14"); A("s_cbranch_scc1 F_NPF2")
        A(f"s_mul_i32 s14, s2, {320*128}"); A("s_sub_u32 s15, s25, 9"); A("s_lshl_b32 s15, s15, 13"); A("s_add_u32 s14, s14, s15")
        A("v_lshlrev_b32 v126, 7, v7"); A("v_add_u32 v126, s14, v126")
        A("global_load_dword v127, v126, s[32:33]")
        A.label("F_NPF2")
    A("s_cmp_lg_u32 s25, 0"); A("s_cbranch_scc1 F_WAIT")
    if P.flags:
        A("s_mov_b32 s14, 0"); A("v_mov_b32 v1, 0")
        A("v_readfirstlane_b32 s74, v67"); A("s_nop 3"); A("s_cmp_lg_u32 s74, 0"); A("s_cbranch_scc1 F_GOTN")
        A.label("F_GETN")
        A("global_load_dword v2, v1, s[72:73] sc1"); A("s_waitcnt vmcnt(0)")
        A("v_readfirstlane_b32 s74, v2"); A("s_add_u32 s14, s14, 1")
        A("s_cmp_ge_u32 s14, 0x100000"); A("s_cbranch_scc1 F_GOTN")
        A("s_cmp_eq_u32 s74, 0"); A("s_cbranch_scc1 F_GETN")
        A.label("F_GOTN")
        A(f"s_add_u32 s76, s12, {WS_FLAG}"); A("s_addc_u32 s77, s13, 0")
        A("s_lshl_b32 s14, s2, 2"); A("v_lshlrev_b32 v1, 10, v7"); A("v_add_u32 v1, s14, v1"); A("v_mov_b32 v2, s74")
        A("v_cmp_gt_u32 vcc, 8, v7"); A("s_and_saveexec_b64 s[16:17], vcc")
        A("global_store_dword v1, v2, s[76:77] sc1")
        A("s_mov_b64 exec, s[16:17]")
    else:
        A("s_and_b32 s14, s2, 3"); A("s_lshl_b32 s14, s14, 6")
        A("v_mov_b32 v1, s14"); A("v_mov_b32 v2, 1")
        A("v_cmp_eq_u32 vcc, 0, v7"); A("s_and_saveexec_b64 s[16:17], vcc")
        A("global_atomic_add v1, v2, s[72:73]")
        A("s_mov_b64 exec, s[16:17]")
    A.label("F_WAIT")

NW=16; CAPW=160
LDS_IDX=0x0000
LDS_K=LDS_IDX+NW*CAPW*4
LDS_HIST=LDS_K+NW*CAPW
LDS_BASE=LDS_HIST+2048
LDS_FLAG=LDS_BASE+4096
LDS_MARK=LDS_FLAG+64
LDS_EF=LDS_MARK+8192+64
LDS_A=LDS_EF+NW*CAPW*8
LDS_CELL=LDS_A+NW*CAPW*32+1024
K2_LDS=LDS_CELL+1024
WINBIG=2048; WINSMALL=200; TOTMAX=CAPW-8
AGG_STRIDE=272
assert LDS_A%16==0 and LDS_EF%16==0 and LDS_MARK%4==0 and K2_LDS<=163840

def gen_k2(A,P):
    U=4; B=P.B
    SC=" sc1" if P.fused else ""
    nbins=8*B
    assert nbins*4<=2048 and nbins*8<=4096
    vTID=0; vLANE=1; vT0=2
    vAad=3; vEad=4; vIad=5; vKad=6; vK=7
    ACC=8
    WF=48
    PAIR=56
    X=64
    TP=80
    AOP=88; AOPN=90; EOP=92; EOPN=94
    UU=[96,104]; EE=112; RR=120
    NV=128
    REC0=64; CNT=68; BASEC=72; AT=64
    CG=80; KEY=88; RANK=90; PAY=92; AP=100; MK=116; BINA=118
    T=[2,3,4,5,6,7,120,121,122,123,124,125,126,127]
    WM=96
    sX=4; sOUT=6; sWS=8; sSRD=12; sW=16; sB=17; sT=18; sLO=19; sWIN=20; sNR=21; sKK=22; sH=23; sEX=24; sM=26; sG8=28; sWB=29
    sK=[32,33]; sN=34; sTOT=35; sTMP=36; sC=40; sLN2=44; sRG=46; sCGP=47; sKEY=48; sPAY=52; sCELL=56; sCONST=58; sRAW=60; sPFO=65; sPFT=66; sNB=67; sGB=68; sGM=69; sQ=70; sCHI=40
    name="standalone__tensor_product_equiv_tfn__graph_kernel"
    A(".p2align 8")
    A(f".type {name},@function")
    A.label(name)
    A(f"s_cmp_ge_u32 s2, {NB}")
    A("s_cbranch_scc1 K2_END")
    ST=Stamps(A,P.stamps,"K2")
    ST.mark("start")
    tlc=[0]
    def tl(off,inv=False):
        if not P.tl: return
        tlc[0]+=1
        A("s_memrealtime s[74:75]"); A("s_waitcnt lgkmcnt(0)")
        if inv: A("s_not_b32 s74, s74")
        A("v_mov_b32 v2, s74"); A("v_mov_b32 v3, 0")
        A("v_cmp_eq_u32 vcc, 0, v0"); A("s_and_saveexec_b64 s[76:77], vcc"); A(f"s_cbranch_execz K2_TL{tlc[0]}")
        A(f"global_atomic_umax v3, v2, s[72:73] offset:{off}")
        A.label(f"K2_TL{tlc[0]}"); A("s_mov_b64 exec, s[76:77]")
    if P.tl:
        A("s_load_dwordx2 s[72:73], s[0:1], 72"); A("s_waitcnt lgkmcnt(0)")
        tl(0,True)
    if P.fused: gen_phase1(A,P,ST)
    A(f"s_load_dwordx2 s[{sX}:{sX+1}], s[0:1], 0")
    A(f"s_load_dwordx2 s[{sOUT}:{sOUT+1}], s[0:1], 64")
    A(f"s_load_dwordx2 s[{sWS}:{sWS+1}], s[0:1], 80")
    A(f"v_and_b32 v{vLANE}, 63, v0")
    A(f"v_lshrrev_b32 v{T[0]}, 6, v0")
    A(f"v_lshlrev_b32 v{PAIR+1}, 4, v{vLANE}")
    A(f"v_readfirstlane_b32 s{sW}, v{T[0]}")
    for p in (3,5,7): A(f"v_mov_b32 v{PAIR+p}, v{PAIR+1}")
    if P.xmap:
        A(f"s_and_b32 s{sTMP}, s2, 7"); A(f"s_mul_i32 s{sB}, s{sTMP}, 31"); A(f"s_min_u32 s{sTMP}, s{sTMP}, 2")
        A(f"s_add_u32 s{sB}, s{sB}, s{sTMP}"); A(f"s_lshr_b32 s{sTMP}, s2, 3"); A(f"s_add_u32 s{sB}, s{sB}, s{sTMP}")
    else:
        A(f"s_mov_b32 s{sB}, s2")
    A(f"s_lshr_b32 s{sG8}, s{sW}, 1"); A(f"s_and_b32 s{sH}, s{sW}, 1"); A(f"s_mul_i32 s{sWB}, s{sW}, {CAPW}")
    for i in range(40): A(f"v_mov_b32 v{ACC+i}, 0")
    A("s_waitcnt lgkmcnt(0)")
    A(f"s_lshl_b32 s{sTMP}, s{sB}, {2 if P.fused else 10}")
    A(f"s_add_u32 s{sCELL}, s{sWS}, {WS_CELL}"); A(f"s_addc_u32 s{sCELL+1}, s{sWS+1}, 0")
    A(f"s_add_u32 s{sCELL}, s{sCELL}, s{sTMP}"); A(f"s_addc_u32 s{sCELL+1}, s{sCELL+1}, 0")
    A(f"s_add_u32 s{sCONST}, s{sWS}, {WS_CONST}"); A(f"s_addc_u32 s{sCONST+1}, s{sWS+1}, 0")
    A(f"s_mov_b32 s{sLO}, 0")
    A(f"s_mov_b32 s{sWIN}, {WINBIG}")
    for i in range(3): A(f"s_mov_b32 s{sCHI+i}, {(i+1)*CH}")
    if not P.fused:
        A(f"v_lshlrev_b32 v{T[1]}, 5, v{vLANE}")
        if P.fused:
            A(f"v_mov_b32 v{T[2]}, 0")
            A(f"s_cmp_ge_u32 s{sW}, 4"); A("s_cbranch_scc1 K2_NOCL")
            A(f"v_lshlrev_b32 v{T[3]}, 10, v0")
            A(f"v_cmp_gt_u32 vcc, {NC}, v0"); A(f"s_and_saveexec_b64 s[{sEX}:{sEX+1}], vcc")
            A(f"global_load_dword v{T[2]}, v{T[3]}, s[{sCELL}:{sCELL+1}] sc1")
            A("s_mov_b64 exec, -1")
            A.label("K2_NOCL")
        else:
            A(f"global_load_dwordx4 v[{CNT}:{CNT+3}], v{PAIR+1}, s[{sCELL}:{sCELL+1}]"+SC)
        A(f"global_load_dwordx4 v[{WF}:{WF+3}], v{T[1]}, s[{sCONST}:{sCONST+1}] offset:{CONST_WF}"+SC)
        A(f"global_load_dwordx4 v[{WF+4}:{WF+7}], v{T[1]}, s[{sCONST}:{sCONST+1}] offset:{CONST_WF+16}"+SC)
        A(f"global_load_dwordx4 v[{CG}:{CG+3}], v{T[1]}, s[{sCONST}:{sCONST+1}] offset:{CONST_CG}"+SC)
        A(f"global_load_dwordx4 v[{CG+4}:{CG+7}], v{T[1]}, s[{sCONST}:{sCONST+1}] offset:{CONST_CG+16}"+SC)
    if P.codepf&2:
        A(f"s_cmp_eq_u32 s{sW}, 15"); A("s_cbranch_scc0 K2_CPX")
        A(f"s_getpc_b64 s[{sTMP}:{sTMP+1}]")
        A.label("K2_PC")
        A(f"s_sub_u32 s{sTMP}, s{sTMP}, K2_PC-standalone__tensor_product_equiv_tfn__graph_kernel"); A(f"s_subb_u32 s{sTMP+1}, s{sTMP+1}, 0")
        A(f"v_lshlrev_b32 v{T[8]}, 7, v{vLANE}")
        for q in range(2):
            A(f"v_add_u32 v{T[9]}, {q*8192}, v{T[8]}")
            A(f"v_cmp_gt_u32 vcc, K2_CODE_END-standalone__tensor_product_equiv_tfn__graph_kernel, v{T[9]}")
            A(f"s_and_saveexec_b64 s[{sEX}:{sEX+1}], vcc")
            A(f"s_cbranch_execz K2_CPS{q}")
            A(f"global_load_dword v{127-q}, v{T[9]}, s[{sTMP}:{sTMP+1}]")
            A.label(f"K2_CPS{q}")
            A("s_mov_b64 exec, -1")
        A.label("K2_CPX")
    A(f"s_mov_b32 s{sSRD}, s{sX}")
    A(f"s_and_b32 s{sSRD+1}, s{sX+1}, 0xffff")
    A(f"s_or_b32 s{sSRD+1}, s{sSRD+1}, {1024<<16}")
    A(f"s_mov_b32 s{sSRD+2}, {N}")
    A(f"s_mov_b32 s{sSRD+3}, 0x00020000")
    A(f"s_add_u32 s{sKEY}, s{sWS}, {WS_KEYS}"); A(f"s_addc_u32 s{sKEY+1}, s{sWS+1}, 0")
    A(f"s_and_b32 s{sKEY+1}, s{sKEY+1}, 0xffff"); A(f"s_mov_b32 s{sKEY+2}, {E*4}"); A(f"s_mov_b32 s{sKEY+3}, 0x00020000")
    A(f"s_add_u32 s{sPAY}, s{sWS}, {WS_PAY}"); A(f"s_addc_u32 s{sPAY+1}, s{sWS+1}, 0")
    A(f"s_and_b32 s{sPAY+1}, s{sPAY+1}, 0xffff"); A(f"s_mov_b32 s{sPAY+2}, {E*16}"); A(f"s_mov_b32 s{sPAY+3}, 0x00020000")
    A(f"s_mov_b32 s{sLN2}, 0x{f2u(-LN2):08x}"); A(f"s_mov_b32 s{sLN2+1}, 0x{f2u(-LN2):08x}")
    def burst(vaddr,vdst=2):
        for q in range(4):
            A(f"buffer_load_dword v{vdst}, v{vaddr}, s[{sRAW}:{sRAW+3}], s{sPFO} offen")
            if q<3: A(f"s_add_u32 s{sPFO}, s{sPFO}, 8192")
    def pf_row0(rnd_sreg,dst):
        A(f"s_lshr_b32 s{sTMP+2}, s2, 3")
        A(f"s_and_b32 s{sTMP+3}, s{sTMP+2}, 1"); A(f"s_lshl_b32 s{sTMP+3}, s{sTMP+3}, 9")
        A(f"s_lshr_b32 s{sTMP+2}, s{sTMP+2}, 1"); A(f"s_lshl_b32 s{sTMP+2}, s{sTMP+2}, 5")
        A(f"s_add_u32 s{sTMP+2}, s{sTMP+2}, s{sTMP+3}")
        A(f"s_lshl_b32 s{dst}, s{rnd_sreg}, 10"); A(f"s_add_u32 s{dst}, s{dst}, s{sTMP+2}"); A(f"s_lshl_b32 s{dst}, s{dst}, 10")
    if P.pf:
        A(f"s_mov_b32 s{sRAW}, s{sX}"); A(f"s_and_b32 s{sRAW+1}, s{sX+1}, 0xffff"); A(f"s_mov_b32 s{sRAW+2}, {N*1024}"); A(f"s_mov_b32 s{sRAW+3}, 0x00020000")
    def propf(part=0):
        if P.pf==3:
            r0=(P.k1rows if P.k1pf else 0) if part==0 else P.pfsplit
            r1=P.pfsplit if (part==0 and P.pfsplit) else N
            per=((r1-r0)*8+249)//250; nw=(per+63)//64
            lab=f"K2_NOPF{part}"
            A(f"s_cmp_ge_u32 s{sW}, {nw}")
            A(f"s_cbranch_scc1 {lab}")
            A(f"s_mul_i32 s{sPFO}, s2, {per*128}"); A(f"s_lshl_b32 s{sTMP+2}, s{sW}, 13"); A(f"s_add_u32 s{sPFO}, s{sPFO}, s{sTMP+2}")
            if r0: A(f"s_add_u32 s{sPFO}, s{sPFO}, {r0*1024}")
            A(f"v_lshlrev_b32 v126, 7, v{vLANE}")
            A(f"buffer_load_dword v127, v126, s[{sRAW}:{sRAW+3}], s{sPFO} offen")
            A.label(lab)
            return
        A(f"s_cmp_ge_u32 s{sW}, {P.npro}")
        A("s_cbranch_scc1 K2_NOPF0")
        pf_row0(sW,sPFO)
        A(f"v_lshlrev_b32 v126, 7, v{vLANE}")
        burst(126,127)
        A.label("K2_NOPF0")
    if P.fused:
        if P.flags:
            A(f"s_add_u32 s76, s{sWS}, {WS_FLAG}"); A(f"s_addc_u32 s77, s{sWS+1}, 0")
        A(f"s_cmp_lg_u32 s{sW}, 0"); A("s_cbranch_scc1 F_REL")
        A(f"s_mov_b32 s{sTMP}, 0")
        if P.flags:
            A(f"s_and_b32 s{sTMP+1}, s2, 7"); A(f"s_lshl_b32 s{sTMP+1}, s{sTMP+1}, 10"); A(f"v_add_u32 v{T[1]}, s{sTMP+1}, v{PAIR+1}")
            A(f"v_cmp_gt_u32 s[64:65], 63, v{vLANE}"); A(f"v_cmp_gt_u32 s[66:67], 62, v{vLANE}")
            A.label("F_POLL")
            A(f"global_load_dwordx4 v[{X}:{X+3}], v{T[1]}, s[76:77] sc1")
            A("s_waitcnt vmcnt(0)")
            for q in range(4):
                A(f"v_cmp_eq_u32 vcc, s74, v{X+q}")
                m="s[64:65]" if q<2 else "s[66:67]"
                d=["s[68:69]","s[70:71]","s[32:33]","s[34:35]"][q]
                A(f"s_andn2_b64 {d}, {m}, vcc")
            A("s_or_b64 s[68:69], s[68:69], s[70:71]"); A("s_or_b64 s[32:33], s[32:33], s[34:35]"); A("s_or_b64 s[68:69], s[68:69], s[32:33]")
            A(f"s_add_u32 s{sTMP}, s{sTMP}, 1")
            A(f"s_cmp_ge_u32 s{sTMP}, 0x100000"); A("s_cbranch_scc1 F_REL")
            A("s_cmp_eq_u64 s[68:69], 0"); A("s_cbranch_scc1 F_REL")
            if P.sleep>0: A(f"s_sleep {P.sleep}")
            A("s_branch F_POLL")
        else:
            A(f"v_lshlrev_b32 v{T[1]}, 6, v{vLANE}")
            A.label("F_POLL")
            A(f"v_mov_b32 v{T[2]}, 0")
            A(f"v_cmp_gt_u32 vcc, 4, v{vLANE}"); A(f"s_and_saveexec_b64 s[{sEX}:{sEX+1}], vcc")
            A(f"global_load_dword v{T[2]}, v{T[1]}, s[72:73] sc1")
            A("s_mov_b64 exec, -1")
            A("s_waitcnt vmcnt(0)")
            A("s_nop 1"); A(f"v_add_u32_dpp v{T[2]}, v{T[2]}, v{T[2]} row_shr:1 row_mask:0xf bank_mask:0xf bound_ctrl:1")
            A("s_nop 1"); A(f"v_add_u32_dpp v{T[2]}, v{T[2]}, v{T[2]} row_shr:2 row_mask:0xf bank_mask:0xf bound_ctrl:1")
            A("s_nop 1"); A(f"v_readlane_b32 s{sTMP+1}, v{T[2]}, 3")
            A(f"s_add_u32 s{sTMP}, s{sTMP}, 1")
            A(f"s_cmp_ge_u32 s{sTMP}, 0x100000"); A("s_cbranch_scc1 F_REL")
        if P.flags:
            pass
        elif P.sleep<0:
            A(f"s_cmp_ge_u32 s{sTMP+1}, {NB}"); A("s_cbranch_scc1 F_REL")
            A(f"s_cmp_ge_u32 s{sTMP+1}, {P.nfast}"); A("s_cbranch_scc1 F_FAST")
            A(f"s_sleep {-P.sleep}")
            A("s_branch F_POLL")
            A.label("F_FAST")
            A(f"s_sleep {P.sfast}")
            A("s_branch F_POLL")
        elif P.sleep:
            A(f"s_cmp_ge_u32 s{sTMP+1}, {NB}"); A("s_cbranch_scc1 F_REL")
            A(f"s_sleep {P.sleep}")
            A("s_branch F_POLL")
        else:
            A(f"s_cmp_lt_u32 s{sTMP+1}, {NB}"); A("s_cbranch_scc1 F_POLL")
        A.label("F_REL")
        A("s_barrier")
        ST.mark("rel")
    A(f"v_lshlrev_b32 v{T[1]}, 5, v{vLANE}")
    if P.fused:
        A(f"v_mov_b32 v{T[2]}, 0")
        A(f"s_cmp_ge_u32 s{sW}, 4"); A("s_cbranch_scc1 K2_NOCL")
        A(f"v_lshlrev_b32 v{T[3]}, 10, v0")
        A(f"v_cmp_gt_u32 vcc, {NC}, v0"); A(f"s_and_saveexec_b64 s[{sEX}:{sEX+1}], vcc")
        A(f"global_load_dword v{T[2]}, v{T[3]}, s[{sCELL}:{sCELL+1}] sc1")
        A("s_mov_b64 exec, -1")
        A.label("K2_NOCL")
    else:
        A(f"global_load_dwordx4 v[{CNT}:{CNT+3}], v{PAIR+1}, s[{sCELL}:{sCELL+1}]"+SC)
    A(f"global_load_dwordx4 v[{WF}:{WF+3}], v{T[1]}, s[{sCONST}:{sCONST+1}] offset:{CONST_WF}"+SC)
    A(f"global_load_dwordx4 v[{WF+4}:{WF+7}], v{T[1]}, s[{sCONST}:{sCONST+1}] offset:{CONST_WF+16}"+SC)
    A(f"global_load_dwordx4 v[{CG}:{CG+3}], v{T[1]}, s[{sCONST}:{sCONST+1}] offset:{CONST_CG}"+SC)
    A(f"global_load_dwordx4 v[{CG+4}:{CG+7}], v{T[1]}, s[{sCONST}:{sCONST+1}] offset:{CONST_CG+16}"+SC)
    if P.fused:
        A(f"s_cmp_ge_u32 s{sW}, 4"); A("s_cbranch_scc1 K2_NOCW")
        A("s_waitcnt vmcnt(4)")
        A(f"v_lshlrev_b32 v{T[3]}, 2, v0"); A(f"v_add_u32 v{T[3]}, {LDS_CELL}, v{T[3]}")
        A(f"ds_write_b32 v{T[3]}, v{T[2]}")
        A("s_waitcnt lgkmcnt(0)")
        A.label("K2_NOCW")
        A("s_barrier")
        A(f"v_add_u32 v{T[3]}, {LDS_CELL}, v{PAIR+1}")
        A(f"ds_read_b128 v[{CNT}:{CNT+3}], v{T[3]}")
    A("s_branch K2_ROUND1")
    A.label("K2_ROUND")
    A(f"v_lshlrev_b32 v{T[1]}, 5, v{vLANE}")
    if P.fused:
        A(f"v_add_u32 v{T[3]}, {LDS_CELL}, v{PAIR+1}")
        A(f"ds_read_b128 v[{CNT}:{CNT+3}], v{T[3]}")
    else:
        A(f"global_load_dwordx4 v[{CNT}:{CNT+3}], v{PAIR+1}, s[{sCELL}:{sCELL+1}]"+SC)
    A(f"global_load_dwordx4 v[{CG}:{CG+3}], v{T[1]}, s[{sCONST}:{sCONST+1}] offset:{CONST_CG}"+SC)
    A(f"global_load_dwordx4 v[{CG+4}:{CG+7}], v{T[1]}, s[{sCONST}:{sCONST+1}] offset:{CONST_CG+16}"+SC)
    A("s_waitcnt vmcnt(0)")
    A.label("K2_ROUND1")
    A(f"v_lshlrev_b32 v{T[0]}, 2, v0")
    A(f"v_mov_b32 v{T[1]}, 0")
    A(f"v_cmp_gt_u32 vcc, {nbins}, v0")
    A(f"s_and_saveexec_b64 s[{sEX}:{sEX+1}], vcc")
    A("s_cbranch_execz K2_NOZ")
    A(f"ds_write_b32 v{T[0]}, v{T[1]} offset:{LDS_HIST}")
    A.label("K2_NOZ")
    A(f"s_mov_b64 exec, -1")
    A("s_waitcnt lgkmcnt(0)" if P.fused else "s_waitcnt vmcnt(4)")
    ST.mark("cell")
    if P.pf and P.pfat=="cell": propf()
    A(f"v_mul_u32_u24 v{T[0]}, {4*CH}, v{vLANE}")
    for i in range(4):
        A(f"v_and_b32 v{REC0+i}, 0xffff, v{CNT+i}")
        A(f"v_lshrrev_b32 v{CNT+i}, 16, v{CNT+i}")
        if i: A(f"v_add3_u32 v{REC0+i}, v{REC0+i}, v{T[0]}, s{sCHI+i-1}")
        else: A(f"v_add_u32 v{REC0+i}, v{REC0+i}, v{T[0]}")
    A(f"v_add_u32 v{T[1]}, v{CNT}, v{CNT+1}")
    A(f"v_add_u32 v{T[2]}, v{T[1]}, v{CNT+2}")
    A(f"v_add_u32 v{T[3]}, v{T[2]}, v{CNT+3}")
    A(f"v_max3_u32 v{T[5]}, v{CNT}, v{CNT+1}, v{CNT+2}")
    A(f"v_mov_b32 v{T[4]}, v{T[3]}")
    A(f"v_max_u32 v{T[5]}, v{T[5]}, v{CNT+3}")
    dpp_scan(A,T[4])
    A(f"v_sub_u32 v{BASEC}, v{T[4]}, v{T[3]}")
    A(f"v_add_u32 v{BASEC+1}, v{BASEC}, v{CNT}")
    A(f"v_add_u32 v{BASEC+2}, v{BASEC}, v{T[1]}")
    A(f"v_add_u32 v{BASEC+3}, v{BASEC}, v{T[2]}")
    A(f"v_readlane_b32 s{sT}, v{T[4]}, 63")
    A(f"v_mov_b32 v{T[6]}, 8192")
    A(f"s_mov_b32 s{sKK}, s{sW}")
    A(f"s_cmp_eq_u32 s{sT}, 0")
    A("s_cbranch_scc1 K2_EPI")
    A.label("K2_EX")
    A(f"v_cmp_lt_u32 vcc, s{sKK}, v{T[5]}")
    A(f"s_cbranch_vccz K2_EXD")
    A(f"s_sub_u32 s{sTMP}, s{sKK}, s{sLO}")
    for i in range(4):
        A(f"v_add_u32 v{T[0]}, s{sTMP}, v{BASEC+i}")
        A(f"v_cmp_lt_u32 vcc, s{sKK}, v{CNT+i}")
        A(f"v_cmp_gt_u32 s[{sM}:{sM+1}], s{sWIN}, v{T[0]}")
        A(f"v_lshlrev_b32 v{T[0]}, 2, v{T[0]}")
        A(f"v_add_u32 v{T[1]}, s{sKK}, v{REC0+i}")
        A(f"s_and_b64 vcc, vcc, s[{sM}:{sM+1}]")
        A(f"v_cndmask_b32 v{T[0]}, v{T[6]}, v{T[0]}, vcc")
        A(f"ds_write_b32 v{T[0]}, v{T[1]} offset:{LDS_MARK}")
    A(f"s_add_u32 s{sKK}, s{sKK}, {NW}")
    A("s_branch K2_EX")
    A.label("K2_EXD")
    A("s_waitcnt lgkmcnt(0)")
    A("s_barrier")
    ST.mark("bar1")
    A(f"v_lshlrev_b32 v{T[0]}, 2, v0")
    for s in range(2): A(f"ds_read_b32 v{MK+s}, v{T[0]} offset:{LDS_MARK+s*4096}")
    A(f"v_mov_b32 v{T[2]}, 0"); A(f"v_mov_b32 v{T[3]}, 0"); A(f"v_mov_b32 v{T[1]}, {LDS_FLAG}")
    A(f"ds_write_b64 v{T[1]}, v[{T[2]}:{T[3]}]")
    A(f"s_sub_u32 s{sNR}, s{sT}, s{sLO}")
    A(f"s_min_u32 s{sNR}, s{sNR}, s{sWIN}")
    A(f"s_lshl_b32 s{sTMP}, s{sW}, 6")
    A("s_waitcnt lgkmcnt(1)")
    for s in range(2):
        A(f"s_add_u32 s{sTMP+1}, s{sTMP}, {s*1024}")
        A(f"s_cmp_ge_u32 s{sTMP+1}, s{sNR}")
        A(f"s_cbranch_scc1 K2_LD_DONE")
        A(f"v_add_u32 v{T[1]}, {s*1024}, v0")
        A(f"v_cmp_gt_u32 vcc, s{sNR}, v{T[1]}")
        A(f"v_lshlrev_b32 v{T[2]}, 2, v{MK+s}")
        A(f"v_lshlrev_b32 v{T[3]}, 4, v{MK+s}")
        A(f"s_and_saveexec_b64 s[{sEX}:{sEX+1}], vcc")
        A(f"buffer_load_dword v{KEY+s}, v{T[2]}, s[{sKEY}:{sKEY+3}], 0 offen"+SC)
        A(f"buffer_load_dwordx4 v[{PAY+4*s}:{PAY+4*s+3}], v{T[3]}, s[{sPAY}:{sPAY+3}], 0 offen"+SC)
        A(f"s_mov_b64 exec, -1")
    A.label("K2_LD_DONE")
    A(f"v_mov_b32 v{T[4]}, 1")
    A("s_waitcnt vmcnt(0)")
    ST.mark("recs")
    if P.pf and P.pfat=="recs": propf()
    for s in range(2):
        A(f"s_add_u32 s{sTMP+1}, s{sTMP}, {s*1024}")
        A(f"s_cmp_ge_u32 s{sTMP+1}, s{sNR}")
        A(f"s_cbranch_scc1 K2_H_DONE")
        A(f"v_add_u32 v{T[1]}, {s*1024}, v0")
        A(f"v_lshrrev_b32 v{BINA+s}, 17, v{KEY+s}")
        A(f"v_cmp_gt_u32 vcc, s{sNR}, v{T[1]}")
        A(f"v_lshlrev_b32 v{T[2]}, 2, v{BINA+s}")
        A(f"s_and_saveexec_b64 s[{sEX}:{sEX+1}], vcc")
        A(f"ds_add_rtn_u32 v{RANK+s}, v{T[2]}, v{T[4]} offset:{LDS_HIST}")
        A(f"s_mov_b64 exec, -1")
        for o in range(4):
            A(f"v_mfma_f32_4x4x4_16b_bf16 v[{AT+4*o}:{AT+4*o+3}], v[{CG+2*o}:{CG+2*o+1}], v[{PAY+4*s}:{PAY+4*s+1}], 0")
        A("s_nop 4")
        for o in range(4):
            A(f"v_cvt_pk_bf16_f32 v{AP+8*s+2*o}, v{AT+4*o}, v{AT+4*o+1}")
            A(f"v_cvt_pk_bf16_f32 v{AP+8*s+2*o+1}, v{AT+4*o+2}, v{AT+4*o+3}")
    A.label("K2_H_DONE")
    A("s_waitcnt lgkmcnt(0)")
    A("s_barrier")
    ST.mark("bar2")
    if P.pf and P.pfat=="bar2": propf()
    A(f"s_lshl_b32 s{sTMP+1}, s{sG8}, {(B*4).bit_length()-1}")
    A(f"v_lshlrev_b32 v{T[0]}, 2, v{vLANE}")
    A(f"v_add_u32 v{T[0]}, s{sTMP+1}, v{T[0]}")
    if B<64:
        A(f"v_mov_b32 v{T[1]}, 0")
        A(f"v_cmp_gt_u32 vcc, {B}, v{vLANE}")
        A(f"s_and_saveexec_b64 s[{sEX}:{sEX+1}], vcc")
    A(f"ds_read_b32 v{T[1]}, v{T[0]} offset:{LDS_HIST}")
    A(f"s_mov_b64 exec, -1")
    A(f"v_add_u32 v{T[2]}, s{sH}, v{vLANE}"); A(f"v_and_b32 v{T[2]}, 1, v{T[2]}")
    A(f"v_lshlrev_b32 v{T[0]}, 1, v{T[0]}"); A(f"s_lshl_b32 s{sTMP+2}, s{sH}, 2"); A(f"v_add_u32 v{T[0]}, s{sTMP+2}, v{T[0]}")
    A("s_waitcnt lgkmcnt(0)")
    A(f"v_sub_u32 v{T[1]}, v{T[1]}, v{T[2]}"); A(f"v_add_u32 v{T[1]}, 1, v{T[1]}"); A(f"v_lshrrev_b32 v{T[1]}, 1, v{T[1]}")
    A(f"v_mov_b32 v{T[2]}, v{T[1]}")
    dpp_scan(A,T[2],nrows={16:1,32:2,64:4}[B])
    A(f"s_nop 0")
    A(f"v_readlane_b32 s{sTOT}, v{T[2]}, {B-1}")
    A(f"v_sub_u32 v{T[2]}, v{T[2]}, v{T[1]}")
    A(f"v_add_u32 v{T[2]}, s{sWB}, v{T[2]}")
    if B<64:
        A(f"v_cmp_gt_u32 vcc, {B}, v{vLANE}")
        A(f"s_and_saveexec_b64 s[{sEX}:{sEX+1}], vcc")
    A(f"ds_write_b32 v{T[0]}, v{T[2]} offset:{LDS_BASE}")
    A(f"s_mov_b64 exec, -1")
    if P.bar:
        A(f"v_mov_b32 v{T[0]}, s{sTOT}"); A(f"v_mov_b32 v{T[1]}, {LDS_FLAG}")
        A(f"ds_max_u32 v{T[1]}, v{T[0]} offset:4")
    A(f"s_cmp_gt_u32 s{sTOT}, {TOTMAX}")
    A("s_cbranch_scc0 K2_NOOVF")
    A(f"v_mov_b32 v{T[0]}, 1"); A(f"v_mov_b32 v{T[1]}, {LDS_FLAG}")
    A(f"ds_write_b32 v{T[1]}, v{T[0]}")
    A("s_branch K2_PADDONE")
    A.label("K2_NOOVF")
    A.label("K2_PADDONE")
    A("s_waitcnt lgkmcnt(0)")
    A("s_barrier")
    ST.mark("bar3")
    if P.l2w:
        A(f"s_cmp_lt_u32 s{sW}, 8"); A("s_cbranch_scc1 K2_NOL2W"); A(f"s_cmp_ge_u32 s{sW}, {8+P.l2w}"); A("s_cbranch_scc1 K2_NOL2W")
        A(f"s_sub_u32 s{sQ}, s{sW}, 8")
        pf_row0(sQ,sPFO)
        A(f"v_lshlrev_b32 v125, 7, v{vLANE}")
        burst(125,124)
        A.label("K2_NOL2W")
    if P.pf and P.pfat=="bar3": propf()
    if P.pf==3 and P.pfsplit and P.pfat2=="bar3": propf(1)
    A(f"v_mov_b32 v{T[1]}, {LDS_FLAG}")
    A(f"ds_read_b32 v{T[0]}, v{T[1]}")
    if P.bar: A(f"ds_read_b32 v{T[5]}, v{T[1]} offset:4")
    for s in range(2):
        A(f"v_add_u32 v{T[2]}, v{RANK+s}, v{BINA+s}"); A(f"v_and_b32 v{T[2]}, 1, v{T[2]}")
        A(f"v_lshl_add_u32 v{T[2]}, v{BINA+s}, 1, v{T[2]}"); A(f"v_lshlrev_b32 v{T[2]}, 2, v{T[2]}")
        A(f"ds_read_b32 v{MK+s}, v{T[2]} offset:{LDS_BASE}")
    A("s_waitcnt lgkmcnt(0)")
    A(f"v_readfirstlane_b32 s{sTMP+1}, v{T[0]}")
    if P.bar:
        A(f"v_readfirstlane_b32 s{sGM}, v{T[5]}")
        A(f"s_add_u32 s{sGM}, s{sGM}, 15"); A(f"s_lshr_b32 s{sGM}, s{sGM}, 4"); A(f"s_mov_b32 s{sGB}, 0")
    A("s_nop 3")
    A(f"s_cmp_eq_u32 s{sTMP+1}, 0")
    A("s_cbranch_scc1 K2_PLACE")
    A(f"s_mov_b32 s{sWIN}, {WINSMALL}")
    A("s_branch K2_ROUND")
    A.label("K2_PLACE")
    A(f"s_add_u32 s{sTMP+2}, s{sWB}, s{sTOT}")
    A(f"v_add_u32 v{T[0]}, s{sTMP+2}, v{vLANE}")
    A(f"v_lshlrev_b32 v{T[1]}, 2, v{T[0]}")
    A(f"v_lshlrev_b32 v{T[2]}, 3, v{T[0]}")
    A(f"v_lshlrev_b32 v{T[3]}, 5, v{T[0]}"); A(f"v_add_u32 v{T[3]}, {LDS_A}, v{T[3]}")
    for q in range(4): A(f"v_mov_b32 v{T[6+q]}, 0")
    assert T[6]%2==0 and T[9]==T[6]+3
    A(f"v_cmp_gt_u32 vcc, 8, v{vLANE}")
    A(f"s_and_saveexec_b64 s[{sEX}:{sEX+1}], vcc")
    A(f"ds_write_b32 v{T[1]}, v{T[6]} offset:{LDS_IDX}")
    A(f"ds_write_b8 v{T[0]}, v{T[6]} offset:{LDS_K}")
    A(f"v_cmp_gt_u32 vcc, 4, v{vLANE}")
    A(f"s_and_b64 exec, exec, vcc")
    A(f"ds_write_b64 v{T[2]}, v[{T[6]}:{T[6]+1}] offset:{LDS_EF}")
    A(f"ds_write_b128 v{T[3]}, v[{T[6]}:{T[6]+3}]")
    A(f"ds_write_b128 v{T[3]}, v[{T[6]}:{T[6]+3}] offset:16")
    A(f"s_mov_b64 exec, -1")
    for s in range(2):
        A(f"s_add_u32 s{sTMP+1}, s{sTMP}, {s*1024}")
        A(f"s_cmp_ge_u32 s{sTMP+1}, s{sNR}")
        A(f"s_cbranch_scc1 K2_P_DONE")
        A(f"v_add_u32 v{T[1]}, {s*1024}, v0")
        A(f"v_cmp_gt_u32 vcc, s{sNR}, v{T[1]}")
        A(f"v_lshrrev_b32 v{T[0]}, 1, v{RANK+s}")
        A(f"v_add_u32 v{MK+s}, v{MK+s}, v{T[0]}")
        A(f"v_lshlrev_b32 v{T[0]}, 2, v{MK+s}")
        A(f"v_lshlrev_b32 v{T[1]}, 3, v{MK+s}")
        A(f"v_lshlrev_b32 v{T[2]}, 5, v{MK+s}")
        A(f"v_add_u32 v{T[2]}, {LDS_A}, v{T[2]}")
        A(f"v_and_b32 v{T[3]}, {hex(P.srcmask)}, v{KEY+s}")
        A(f"v_lshrrev_b32 v{T[4]}, 11, v{KEY+s}")
        A(f"v_and_b32 v{T[4]}, 0x38, v{T[4]}")
        A(f"s_and_saveexec_b64 s[{sEX}:{sEX+1}], vcc")
        A(f"ds_write_b128 v{T[2]}, v[{AP+8*s}:{AP+8*s+3}]")
        A(f"ds_write_b128 v{T[2]}, v[{AP+8*s+4}:{AP+8*s+7}] offset:16")
        A(f"ds_write_b64 v{T[1]}, v[{PAY+4*s+2}:{PAY+4*s+3}] offset:{LDS_EF}")
        A(f"ds_write_b32 v{T[0]}, v{T[3]} offset:{LDS_IDX}")
        A(f"ds_write_b8 v{MK+s}, v{T[4]} offset:{LDS_K}")
        A(f"s_mov_b64 exec, -1")
    A.label("K2_P_DONE")
    A("s_waitcnt lgkmcnt(0)")
    A("s_barrier")
    ST.mark("bar4")
    tl(4)
    if P.pf==3 and P.pfsplit and P.pfat2=="bar4": propf(1)
    ST.markc("c0")
    A(f"s_cmp_eq_u32 s{sTOT}, 0")
    A("s_cbranch_scc1 K2_MAIN_DONE")
    A(f"s_add_u32 s{sNB}, s{sTOT}, 3"); A(f"s_lshr_b32 s{sNB}, s{sNB}, 2"); A(f"s_sub_u32 s{sN}, 0, s{sNB}")
    A(f"s_lshl_b32 s{sTMP}, s{sWB}, 2"); A(f"v_mov_b32 v{vIad}, s{sTMP}")
    A(f"v_mov_b32 v{vKad}, s{sWB}")
    A(f"s_lshl_b32 s{sTMP}, s{sWB}, 5"); A(f"s_add_u32 s{sTMP}, s{sTMP}, {LDS_A}")
    A(f"v_lshlrev_b32 v{vT0}, 3, v{vLANE}")
    A(f"v_add_u32 v{vAad}, s{sTMP}, v{vT0}")
    A(f"s_lshl_b32 s{sTMP}, s{sWB}, 3"); A(f"s_add_u32 s{sTMP}, s{sTMP}, {LDS_EF}")
    A(f"v_add_u32 v{vEad}, s{sTMP}, v{vT0}")
    if P.pf and P.nrounds:
        pf_row0(sW,sPFO)
        A(f"s_lshl_b32 s{sTMP}, s{sW}, 10"); A(f"s_add_u32 s{sTMP}, s{sTMP}, s{sTMP+3}"); A(f"s_sub_i32 s{sTMP}, s{sTMP}, {P.lead}")
        A(f"s_max_i32 s{sTMP}, s{sTMP}, 0"); A(f"s_mul_i32 s{sTMP}, s{sTMP}, s{sNB}"); A(f"s_mul_i32 s{sTMP}, s{sTMP}, 6711"); A(f"s_lshr_b32 s{sTMP}, s{sTMP}, 26")
        A(f"s_sub_u32 s{sPFT}, s{sTMP}, s{sNB}")
        A(f"s_min_i32 s{sPFT}, s{sPFT}, -2")
        A(f"s_cmp_lt_u32 s{sW}, {P.npro}"); A(f"s_cselect_b32 s{sPFT}, 1, s{sPFT}")
        A(f"s_cmp_ge_u32 s{sW}, {P.nrounds}"); A(f"s_cselect_b32 s{sPFT}, 1, s{sPFT}")
        A(f"v_lshlrev_b32 v0, 7, v{vLANE}")
    def mf(d,a,b,abid,c="0"): return f"v_mfma_f32_4x4x4_16b_bf16 v[{d}:{d+3}], v[{a}:{a+1}], v[{b}:{b+1}], {c} cbsz:4 abid:{abid}"
    def xload(slot,pair): return f"buffer_load_dwordx4 v[{X+4*(slot%U)}:{X+4*(slot%U)+3}], v[{PAIR+2*pair}:{PAIR+2*pair+1}], s[{sSRD}:{sSRD+3}], 0 idxen offen"
    if P.prio==4: A("s_setprio 3")
    for p in range(4): A(f"ds_read_b32 v{PAIR+2*p}, v{vIad} offset:{LDS_IDX+4*p}")
    A(f"ds_read_b64 v[{AOP}:{AOP+1}], v{vAad}")
    A(f"ds_read_b64 v[{EOP}:{EOP+1}], v{vEad}")
    A(f"ds_read_b32 v{vK}, v{vKad} offset:{LDS_K}")
    A("s_waitcnt lgkmcnt(3)")
    for p in range(4): A(xload(p,p))
    for p in range(4): A(f"ds_read_b32 v{PAIR+2*p}, v{vIad} offset:{LDS_IDX+4*(4+p)}")
    hi_e,hi_o,lo_e,lo_o=WF,WF+2,WF+4,WF+6
    A("s_waitcnt lgkmcnt(5)")
    for t in (0,1):
        u=UU[t]
        A(mf(u,EOP,hi_e,t)); A(mf(u+4,EOP,hi_o,t))
        A("s_nop 1")
        A(mf(u,EOP,lo_e,t,f"v[{u}:{u+3}]")); A(mf(u+4,EOP,lo_o,t,f"v[{u+4}:{u+7}]"))
    A("s_nop 2")
    u=UU[0]
    for q in range(8): A(f"v_exp_f32 v{EE+q}, v{u+q}")
    A("s_nop 0")
    for q in range(4): A(f"v_pk_add_f32 v[{EE+2*q}:{EE+2*q+1}], v[{EE+2*q}:{EE+2*q+1}], 1.0 op_sel_hi:[1,0]")
    for q in range(8): A(f"v_rcp_f32 v{EE+q}, v{EE+q}")
    A("s_nop 0")
    for q in range(2): A(f"v_pk_mul_f32 v[{RR+2*q}:{RR+2*q+1}], v[{u+2*q}:{u+2*q+1}], v[{EE+2*q}:{EE+2*q+1}]")
    body=[]
    for t in range(4):
        cur=t%2; nxt=(t+1)%2
        if P.prio==1: body.append(('s',f"s_setprio {3-t}"))
        body.append(('s',"s_waitcnt lgkmcnt(0)"))
        body.append(('s',f"v_readfirstlane_b32 s{sK[0]}, v{vK}"))
        if P.pf and P.nrounds:
            body.append(('s',f"s_cmp_eq_u32 s{sN}, s{sPFT}"))
            body.append(('s',f"s_cbranch_scc1 K2_PF{t}"))
            body.append(('l',f"K2_PFR{t}"))
        body.append(('s',f"ds_read_b32 v{vK}, v{vKad} offset:{LDS_K+4*(t+1)}"))
        if t==0:
            body.append(('s',f"ds_read_b64 v[{EOPN}:{EOPN+1}], v{vEad} offset:128"))
            body.append(('s',f"ds_read_b64 v[{AOPN}:{AOPN+1}], v{vAad} offset:512"))
        for i in range(4):
            j=4*t+i
            x=X+4*(j%U)
            if P.prio==2 and i%2==0: body.append(('s',f"s_setprio {3-(j//2)%4}"))
            if P.prio==3: body.append(('s',f"s_setprio {3-i}"))
            un=UU[nxt]; uw=UU[cur]
            if i==0: TR=[f"v_exp_f32 v{EE+q}, v{un+q}" for q in range(4)]
            if i==1: TR=[f"v_exp_f32 v{EE+4+q}, v{un+4+q}" for q in range(4)]
            if i==2: TR=[f"v_rcp_f32 v{EE+q}, v{EE+q}" for q in range(4)]
            if i==3: TR=[f"v_rcp_f32 v{EE+4+q}, v{EE+4+q}" for q in range(4)]
            PKpre=[];PKpost=[]
            if i==0: PKpre=[f"v_pk_mul_f32 v[{RR+4+2*q}:{RR+4+2*q+1}], v[{uw+4+2*q}:{uw+4+2*q+1}], v[{EE+4+2*q}:{EE+4+2*q+1}]" for q in range(2)]
            if i==1: PKpre=[f"v_pk_add_f32 v[{EE+2*q}:{EE+2*q+1}], v[{EE+2*q}:{EE+2*q+1}], 1.0 op_sel_hi:[1,0]" for q in range(2)]
            if i==2: PKpre=[f"v_pk_add_f32 v[{EE+4+2*q}:{EE+4+2*q+1}], v[{EE+4+2*q}:{EE+4+2*q+1}], 1.0 op_sel_hi:[1,0]" for q in range(2)]
            if i==3: PKpost=[f"v_pk_mul_f32 v[{RR+2*q}:{RR+2*q+1}], v[{un+2*q}:{un+2*q+1}], v[{EE+2*q}:{EE+2*q+1}]" for q in range(2)]
            eop,ab=(EOP,t+2) if t<2 else (EOPN,t-2)
            if i==0: UM=mf(uw,eop,hi_e,ab)
            if i==1: UM=mf(uw+4,eop,hi_o,ab)
            if i==2: UM=mf(uw,eop,lo_e,ab,f"v[{uw}:{uw+3}]")
            if i==3: UM=mf(uw+4,eop,lo_o,ab,f"v[{uw+4}:{uw+7}]")
            body.append(('s',f"s_waitcnt vmcnt({U-1})"))
            body.append(('s',mf(TP,AOP,x,j)))
            body.append(('s',TR[0]))
            body.append(('s',mf(TP+4,AOP,x+2,j)))
            body.append(('s',TR[1]))
            body.append(('s',xload(j,i)))
            body.append(('s',f"ds_read_b32 v{PAIR+2*i}, v{vIad} offset:{LDS_IDX+4*(j+2*U)}"))
            body.append(('s',UM))
            body.append(('s',TR[2])); body.append(('s',TR[3]))
            for q in PKpre: body.append(('s',q))
            body.append(('s',f"s_set_gpr_idx_on s{sK[0]}, gpr_idx(SRC2,DST)"))
            sel=i%2; pr=i//2
            for h in range(4):
                R=RR+(0 if h<2 else 4)+2*pr
                a=ACC+2*h; tp=TP+2*h
                mod = "op_sel_hi:[1,0,1]" if sel==0 else "op_sel:[0,1,0] op_sel_hi:[1,1,1]"
                body.append(('s',f"v_pk_fma_f32 v[{a}:{a+1}], v[{tp}:{tp+1}], v[{R}:{R+1}], v[{a}:{a+1}] {mod}"))
            body.append(('s',"s_set_gpr_idx_off"))
            for q in PKpost: body.append(('s',q))
            if i<3: body.append(('s',f"s_lshr_b32 s{sK[0]}, s{sK[0]}, 8"))
        body.append(('s',f"s_add_u32 s{sN}, s{sN}, 1"))
        body.append(('s',"s_cbranch_scc1 K2_MAIN_DONE"))
    if P.bar:
        body.append(('s',"s_barrier")); body.append(('s',f"s_add_u32 s{sGB}, s{sGB}, 1"))
    if P.prio==4:
        body.append(('s',f"s_sub_u32 s{sQ}, 0, s{sN}")); body.append(('s',f"s_lshl_b32 s{sQ}, s{sQ}, 2"))
        for lv in (3,2,1):
            pass
        body.append(('s',f"s_mul_i32 s{sQ+1}, s{sNB}, 3")); body.append(('s',f"s_cmp_ge_u32 s{sQ}, s{sQ+1}")); body.append(('s',"s_cbranch_scc1 K2_LOOPB"))
        body.append(('s',"s_setprio 2")); body.append(('s',f"s_lshl_b32 s{sQ+1}, s{sNB}, 1")); body.append(('s',f"s_cmp_ge_u32 s{sQ}, s{sQ+1}")); body.append(('s',"s_cbranch_scc1 K2_LOOPB"))
        body.append(('s',"s_setprio 1")); body.append(('s',f"s_cmp_ge_u32 s{sQ}, s{sNB}")); body.append(('s',"s_cbranch_scc1 K2_LOOPB"))
        body.append(('s',"s_setprio 0")); body.append(('l',"K2_LOOPB"))
    body.append(('s',f"v_mov_b32 v{AOP}, v{AOPN}")); body.append(('s',f"v_mov_b32 v{AOP+1}, v{AOPN+1}"))
    body.append(('s',f"v_mov_b32 v{EOP}, v{EOPN}")); body.append(('s',f"v_mov_b32 v{EOP+1}, v{EOPN+1}"))
    body.append(('s',f"v_add_u32 v{vAad}, 512, v{vAad}")); body.append(('s',f"v_add_u32 v{vEad}, 128, v{vEad}"))
    body.append(('s',f"v_add_u32 v{vIad}, 64, v{vIad}")); body.append(('s',f"v_add_u32 v{vKad}, 16, v{vKad}"))
    body.append(('s',"s_branch K2_LOOP"))
    if "noload" in P.dbg: body=[b for b in body if not (b[0]=='s' and (b[1].startswith("buffer_load") or b[1].startswith("s_waitcnt vmcnt")))]
    if "noidx" in P.dbg: body=[b for b in body if not (b[0]=='s' and b[1].startswith("s_set_gpr"))]
    if "notrans" in P.dbg: body=[b for b in body if not (b[0]=='s' and (b[1].startswith("v_exp") or b[1].startswith("v_rcp")))]
    if "nofma" in P.dbg: body=[b for b in body if not (b[0]=='s' and b[1].startswith("v_pk_fma"))]
    if "nolo" in P.dbg: body=[b for b in body if not (b[0]=='s' and b[1].startswith("v_mfma") and (f"v[{WF+4}:{WF+5}]" in b[1] or f"v[{WF+6}:{WF+7}]" in b[1]))]
    if "nomfma" in P.dbg: body=[b for b in body if not (b[0]=='s' and b[1].startswith("v_mfma"))]
    A.label("K2_LOOP")
    for i,b in enumerate(body):
        if b[0]=='s': A(b[1])
        elif b[0]=='l': A.label(b[1])
        elif b[0]=='lds': A(b[2])
        else:
            cnt=0; found=False
            for step in range(len(body)):
                kk=(i-1-step)%len(body)
                if body[kk][0]=='lds':
                    if body[kk][1]==b[1]: found=True; break
                    cnt+=1
            assert found,b
            A(f"s_waitcnt lgkmcnt({min(cnt,15)})")
    if P.pf and P.nrounds:
        for t in range(4):
            A.label(f"K2_PF{t}")
            burst(0)
            A(f"s_branch K2_PFR{t}")
    A.label("K2_MAIN_DONE")
    if P.prio: A("s_setprio 0")
    if P.bar:
        A.label("K2_BARL")
        A(f"s_cmp_ge_u32 s{sGB}, s{sGM}"); A("s_cbranch_scc1 K2_BARD")
        A("s_barrier"); A(f"s_add_u32 s{sGB}, s{sGB}, 1"); A("s_branch K2_BARL")
        A.label("K2_BARD")
    if P.pf and P.nrounds:
        A(f"s_lshl_b32 s{sTMP}, s{sW}, 6"); A(f"v_add_u32 v0, s{sTMP}, v{vLANE}")
    A(f"s_add_u32 s{sLO}, s{sLO}, s{sWIN}")
    A(f"s_cmp_lt_u32 s{sLO}, s{sT}")
    A("s_cbranch_scc0 K2_EPI")
    A("s_waitcnt vmcnt(0) lgkmcnt(0)")
    A("s_branch K2_ROUND")
    A.label("K2_EPI")
    A("s_waitcnt lgkmcnt(0)")
    ST.mark("main")
    tl(8)
    ST.markc("c1")
    A(f"s_and_b32 s{sCGP}, s{sW}, 3"); A(f"s_lshr_b32 s{sRG}, s{sW}, 2")
    A(f"s_lshl_b32 s{sTMP}, s{sCGP}, 13"); A(f"s_add_u32 s{sTMP}, s{sTMP}, {CONST_WM}")
    A(f"v_add_u32 v{2}, s{sTMP}, v{PAIR+1}")
    A(f"v_add_u32 v{3}, 4096, v{2}")
    for f in range(8):
        base=2 if f<4 else 3
        A(f"global_load_dwordx4 v[{WM+4*f}:{WM+4*f+3}], v{base}, s[{sCONST}:{sCONST+1}] offset:{(f%4)*1024}"+SC)
    RSZ=CAPW*32
    A(f"s_mul_i32 s{sTMP}, s{sW}, {RSZ}"); A(f"s_add_u32 s{sTMP}, s{sTMP}, {LDS_A}")
    A(f"s_xor_b32 s{sTMP+1}, s{sW}, 1"); A(f"s_mul_i32 s{sTMP+1}, s{sTMP+1}, {RSZ}"); A(f"s_add_u32 s{sTMP+1}, s{sTMP+1}, {LDS_A}")
    A(f"v_lshlrev_b32 v4, 3, v{vLANE}")
    A(f"v_add_u32 v5, s{sTMP}, v4"); A(f"v_add_u32 v6, 2048, v5"); A(f"v_add_u32 v7, 4096, v5")
    EX=64
    def xaddr(k,regs):
        r=regs[k//2]; o=(k%2)*128
        return r,o,o+64
    A(f"s_cmp_eq_u32 s{sH}, 0")
    A("s_cbranch_scc0 K2_EXW1")
    for k in range(5):
        r,o0,o1=xaddr(k,[5,6,7]); a=ACC+8*k
        A(f"ds_write2_b64 v{r}, v[{a+2}:{a+3}], v[{a+6}:{a+7}] offset0:{o0} offset1:{o1}")
    A("s_branch K2_EXW2")
    A.label("K2_EXW1")
    for k in range(5):
        r,o0,o1=xaddr(k,[5,6,7]); a=ACC+8*k
        A(f"ds_write2_b64 v{r}, v[{a}:{a+1}], v[{a+4}:{a+5}] offset0:{o0} offset1:{o1}")
    A.label("K2_EXW2")
    pr0,pr1,pr2,vRW=PAIR,PAIR+2,PAIR+4,PAIR+6
    A(f"v_add_u32 v{pr0}, s{sTMP+1}, v4"); A(f"v_add_u32 v{pr1}, 2048, v{pr0}"); A(f"v_add_u32 v{pr2}, 4096, v{pr0}")
    A(f"s_mul_i32 s{sTMP+2}, s{sG8}, 20"); A(f"s_lshl_b32 s{sTMP+3}, s{sH}, 1"); A(f"s_add_u32 s{sTMP+2}, s{sTMP+2}, s{sTMP+3}"); A(f"s_mul_i32 s{sTMP+2}, s{sTMP+2}, {AGG_STRIDE}")
    A(f"v_lshlrev_b32 v4, 2, v{vLANE}"); A(f"v_add_u32 v{vRW}, s{sTMP+2}, v4")
    A(f"s_mul_i32 s{sTMP}, s{sRG}, 3"); A(f"s_lshl_b32 s{sTMP+1}, s{sRG}, 1"); A(f"s_add_u32 s{sTMP+1}, s{sTMP+1}, 2")
    A(f"s_cmp_lt_u32 s{sRG}, 2"); A(f"s_cselect_b32 s{sTMP}, s{sTMP}, s{sTMP+1}")
    A(f"s_mul_i32 s{sTMP+1}, s{sTMP}, {16*AGG_STRIDE}")
    A(f"v_and_b32 v3, 15, v{vLANE}"); A(f"v_lshrrev_b32 v4, 4, v{vLANE}")
    A(f"v_mul_u32_u24 v7, {AGG_STRIDE}, v3"); A(f"v_lshl_add_u32 v7, v4, 4, v7"); A(f"v_add_u32 v{PAIR+1}, s{sTMP+1}, v7")
    vMR=PAIR+1; vOUT=PAIR+3
    A(f"v_lshlrev_b32 v3, 4, v3"); A(f"v_lshl_add_u32 v{vOUT}, v4, 10, v3")
    A(f"s_lshl_b32 s{sTMP}, s{sTMP}, 2")
    A(f"s_mul_i32 s{sTMP+1}, s{sB}, {NPB}"); A(f"s_add_u32 s{sTMP+1}, s{sTMP+1}, s{sTMP}")
    A(f"s_lshl_b32 s{sTMP+1}, s{sTMP+1}, 10"); A(f"s_lshl_b32 s{sTMP+2}, s{sCGP}, 8"); A(f"s_add_u32 s{sTMP+1}, s{sTMP+1}, s{sTMP+2}")
    A(f"s_add_u32 s{sOUT}, s{sOUT}, s{sTMP+1}"); A(f"s_addc_u32 s{sOUT+1}, s{sOUT+1}, 0")
    A("s_waitcnt vmcnt(8) lgkmcnt(0)")
    A("s_barrier")
    ST.mark("barY")
    for k in range(5):
        r,o0,o1=xaddr(k,[pr0,pr1,pr2])
        A(f"ds_read2_b64 v[{EX+4*k}:{EX+4*k+3}], v{r} offset0:{o0} offset1:{o1}")
    A(f"s_cmp_eq_u32 s{sH}, 0")
    A("s_cbranch_scc0 K2_CB1")
    for hh in range(2):
        if hh==1: A.label("K2_CB1")
        off=0 if hh==0 else 2
        for k in range(5):
            a=ACC+8*k+off; e=EX+4*k
            A(f"s_waitcnt lgkmcnt({min(4-k+2*k,15)})")
            A(f"v_pk_add_f32 v[{a}:{a+1}], v[{a}:{a+1}], v[{e}:{e+1}]")
            A(f"v_pk_add_f32 v[{a+4}:{a+5}], v[{a+4}:{a+5}], v[{e+2}:{e+3}]")
            A(f"v_pk_mul_f32 v[{a}:{a+1}], v[{a}:{a+1}], s[{sLN2}:{sLN2+1}]")
            A(f"v_pk_mul_f32 v[{a+4}:{a+5}], v[{a+4}:{a+5}], s[{sLN2}:{sLN2+1}]")
            A(f"v_cvt_pk_bf16_f32 v{2+2*(k%2)}, v{a}, v{a+4}")
            A(f"v_cvt_pk_bf16_f32 v{3+2*(k%2)}, v{a+1}, v{a+5}")
            A(f"ds_write_b32 v{vRW}, v{2+2*(k%2)} offset:{(4*k)*AGG_STRIDE}")
            A(f"ds_write_b32 v{vRW}, v{3+2*(k%2)} offset:{(4*k+1)*AGG_STRIDE}")
        if hh==0: A("s_branch K2_CB2")
    A.label("K2_CB2")
    A("s_waitcnt lgkmcnt(0)")
    A("s_barrier")
    ST.mark("barZ")
    D=ACC; FR=64
    fl={0:"",1:" sc1",2:" sc0 sc1",3:" nt"}[P.outwt]
    def rd(q):
        for ks in range(4): A(f"ds_read_b128 v[{FR+16*(q%2)+4*ks}:{FR+16*(q%2)+4*ks+3}], v{vMR} offset:{q*16*AGG_STRIDE+ks*64}")
    def mm(q):
        for ks in range(4):
            for p in range(2):
                d=D+8*q+4*p; f=FR+16*(q%2)+4*ks; w=WM+4*(4*p+ks)
                c="0" if ks==0 else f"v[{d}:{d+3}]"
                A(f"v_mfma_f32_16x16x32_bf16 v[{d}:{d+3}], v[{f}:{f+3}], v[{w}:{w+3}], {c}")
    def st(q):
        d=D+8*q; o=D+24+4*q
        A(f"v_cvt_pk_bf16_f32 v{o}, v{d}, v{d+1}"); A(f"v_cvt_pk_bf16_f32 v{o+1}, v{d+2}, v{d+3}")
        A(f"v_cvt_pk_bf16_f32 v{o+2}, v{d+4}, v{d+5}"); A(f"v_cvt_pk_bf16_f32 v{o+3}, v{d+6}, v{d+7}")
        if q: A(f"v_add_u32 v{vOUT}, 4096, v{vOUT}")
        A(f"global_store_dwordx4 v{vOUT}, v[{o}:{o+3}], s[{sOUT}:{sOUT+1}]"+fl)
    rd(0); rd(1)
    A("s_waitcnt vmcnt(0) lgkmcnt(4)")
    mm(0)
    A(f"s_cmp_lt_u32 s{sRG}, 2")
    A("s_cbranch_scc0 K2_MIX2")
    rd(2)
    A("s_waitcnt lgkmcnt(4)")
    mm(1)
    st(0)
    A("s_waitcnt lgkmcnt(0)")
    mm(2)
    st(1)
    A("s_nop 4")
    st(2)
    A("s_branch K2_MIXD")
    A.label("K2_MIX2")
    A("s_waitcnt lgkmcnt(0)")
    mm(1)
    st(0)
    A("s_nop 4")
    st(1)
    A.label("K2_MIXD")
    if P.tl:
        A("s_waitcnt vmcnt(0)"); tl(12)
        if not P.fused:
            A(f"s_lshl_b32 s74, s2, 3"); A("s_add_u32 s74, s74, 0x7F0000"); A("v_mov_b32 v4, s74")
            A("v_cmp_eq_u32 vcc, 0, v0"); A("s_and_saveexec_b64 s[76:77], vcc"); A("s_cbranch_execz K2_TLZ")
            A(f"global_load_dwordx2 v[6:7], v4, s[{sWS}:{sWS+1}]"); A("s_waitcnt vmcnt(0)")
            A("v_not_b32 v6, v6"); A("v_mov_b32 v3, 0")
            A("global_atomic_umax v3, v6, s[72:73] offset:16"); A("global_atomic_umax v3, v7, s[72:73] offset:20")
            A.label("K2_TLZ"); A("s_mov_b64 exec, s[76:77]")
    ST.mark("iss")
    if P.stamps:
        A("s_waitcnt vmcnt(0)")
        ST.mark("done")
        ST.dump(sWS,1,2,sW,2)
    A.label("K2_END")
    A("s_endpgm")
    A.label("K2_CODE_END")
    return NV

def kd(name,nv,ns):
    nv8=(nv+3)//4*4
    return f""".amdhsa_kernel {name}
  .amdhsa_next_free_vgpr {nv8}
  .amdhsa_next_free_sgpr {ns}
  .amdhsa_accum_offset {nv8}
  .amdhsa_group_segment_fixed_size 0
  .amdhsa_kernarg_size 88
  .amdhsa_user_sgpr_count 2
  .amdhsa_user_sgpr_kernarg_segment_ptr 1
  .amdhsa_system_sgpr_workgroup_id_x 1
  .amdhsa_float_denorm_mode_32 3
.end_amdhsa_kernel
"""

def main():
    ap=argparse.ArgumentParser()
    ap.add_argument("-o",default="standalone__tensor_product_equiv_tfn__graph.s")
    ap.add_argument("--U",type=int,default=8)
    ap.add_argument("--B",type=int,default=32)
    ap.add_argument("--rot",type=int,default=0)
    ap.add_argument("--stamps",type=int,default=0)
    ap.add_argument("--srcmask",type=lambda x:int(x,0),default=0x3fff)
    ap.add_argument("--dbg",default="")
    ap.add_argument("--xmap",type=int,default=1)
    ap.add_argument("--prio",type=int,default=4)
    ap.add_argument("--pf",type=int,default=3)
    ap.add_argument("--npro",type=int,default=2)
    ap.add_argument("--lead",type=int,default=1500)
    ap.add_argument("--nrounds",type=int,default=0)
    ap.add_argument("--bar",type=int,default=0)
    ap.add_argument("--k1stage",type=int,default=1)
    ap.add_argument("--k1wt",type=int,default=1)
    ap.add_argument("--k1pf",type=int,default=0)
    ap.add_argument("--pfat",default="recs")
    ap.add_argument("--k1l2",type=int,default=0)
    ap.add_argument("--outwt",type=int,default=1)
    ap.add_argument("--codepf",type=int,default=1)
    ap.add_argument("--k1rows",type=int,default=10000)
    ap.add_argument("--fused",type=int,default=1)
    ap.add_argument("--fpf",type=int,default=0)
    ap.add_argument("--sleep",type=int,default=0)
    ap.add_argument("--nfast",type=int,default=245)
    ap.add_argument("--pfsplit",type=int,default=0)
    ap.add_argument("--tl",type=int,default=0)
    ap.add_argument("--l2w",type=int,default=0)
    ap.add_argument("--flags",type=int,default=1)
    ap.add_argument("--pfat2",default="bar4")
    ap.add_argument("--sfast",type=int,default=8)
    P=ap.parse_args()
    hdr=open("standalone__tensor_product_equiv_tfn__graph.s.ref").read().split("; Override")[0]
    A=Asm()
    A.L.append(hdr.rstrip("\n"))
    if P.fused:
        A.L.append(f"; @launch grid=({NB},1,1) block=(1024,1,1) lds={K2_LDS}")
    else:
        A.L.append(f"; @launch kernel=tfn_bin_kernel grid=({NC+K1_CONST_WGS},1,1) block=({K1_THREADS},1,1) lds={2048+CH*20 if P.k1stage else 2048}")
        A.L.append(f"; @launch kernel=standalone__tensor_product_equiv_tfn__graph_kernel grid=({NB},1,1) block=(1024,1,1) lds={K2_LDS}")
    A('.amdgcn_target "amdgcn-amd-amdhsa--gfx950"')
    A(".text")
    if not P.fused: A(".globl tfn_bin_kernel")
    A(".globl standalone__tensor_product_equiv_tfn__graph_kernel")
    if not P.fused: gen_k1(A,P)
    nv=gen_k2(A,P)
    A('.section .rodata,"a"')
    A(".p2align 6")
    s=A.text()+("" if P.fused else kd("tfn_bin_kernel",72,102 if P.stamps else 40)+".p2align 6\n")+kd("standalone__tensor_product_equiv_tfn__graph_kernel",nv,102 if P.stamps else 80)
    open(P.o,"w").write(s)
    print("wrote",P.o,len(s),"bytes")
main()
```

```python
import sys, struct, argparse

N=10000; E=320000; C=128
NPB=40
NB=250
NC=250
CH=1280
K1_THREADS=320
K1_CONST_WGS=8
import os
WS_BASE=int(os.environ.get("WSBASE","0"),0)
WS_KEYS=WS_BASE; WS_PAY=WS_BASE+0x140000; WS_CELL=WS_BASE+0x630000; WS_CONST=WS_BASE+0x680000; WS_FLAG=WS_BASE+0x6A0000
CONST_WF=0; CONST_CG=2048; CONST_WM=4096
LOG2E=1.4426950408889634; LN2=0.6931471805599453
def f2u(f): return struct.unpack("<I",struct.pack("<f",f))[0]

class Asm:
    def __init__(s): s.L=[]
    def __call__(s,x=""):
        for l in x.split("\n"):
            s.L.append(l if (l.endswith(":") or l.startswith(".") or l=="" ) else "    "+l)
    def c(s,x): s.L.append("    ; "+x)
    def label(s,x): s.L.append(x+":")
    def text(s): return "\n".join(s.L)+"\n"

def vr(a,n=1): return f"v{a}" if n==1 else f"v[{a}:{a+n-1}]"
def sr(a,n=1): return f"s{a}" if n==1 else f"s[{a}:{a+n-1}]"

WS_STAMP=0x800000
class Stamps:
    def __init__(s,A,on,kn,base_sgpr=int(os.environ.get('STBASE','82')),tmp=int(os.environ.get('STTMP','80'))): s.A=A; s.on=on; s.n=0; s.base=base_sgpr; s.tmp=tmp; s.kn=kn
    def mark(s,name=""):
        if not s.on: return
        A=s.A
        A(f"s_memrealtime s[{s.tmp}:{s.tmp+1}]")
        A("s_waitcnt lgkmcnt(0)")
        A(f"s_mov_b32 s{s.base+s.n}, s{s.tmp}")
        s.n+=1
    def markc(s,name=""):
        if not s.on: return
        A=s.A
        A(f"s_memtime s[{s.tmp}:{s.tmp+1}]")
        A("s_waitcnt lgkmcnt(0)")
        A(f"s_mov_b32 s{s.base+s.n}, s{s.tmp}")
        s.n+=1
    def dump(s,wsreg,kernel,wgreg,wavereg,vtmp):
        if not s.on: return
        A=s.A
        A(f"s_lshl_b32 s{s.tmp}, s{wgreg}, 4"); A(f"s_add_u32 s{s.tmp}, s{s.tmp}, s{wavereg}"); A(f"s_lshl_b32 s{s.tmp}, s{s.tmp}, 7")
        A(f"s_add_u32 s{s.tmp}, s{s.tmp}, {WS_STAMP+kernel*0x100000}")
        A(f"s_add_u32 s{s.tmp}, s{wsreg}, s{s.tmp}"); A(f"s_addc_u32 s{s.tmp+1}, s{wsreg+1}, 0")
        A(f"v_mov_b32 v{vtmp}, 0")
        for i in range(s.n):
            A(f"v_mov_b32 v{vtmp+1}, s{s.base+i}")
            A(f"global_store_dword v{vtmp}, v{vtmp+1}, s[{s.tmp}:{s.tmp+1}] offset:{4*i}")
            A("s_nop 1")

def dpp_scan(A,v,nrows=4):
    for sh in (1,2,4,8):
        A("s_nop 1")
        A(f"v_add_u32_dpp v{v}, v{v}, v{v} row_shr:{sh} row_mask:0xf bank_mask:0xf bound_ctrl:1")
    if nrows>=2:
        A("s_nop 1")
        A(f"v_add_u32_dpp v{v}, v{v}, v{v} row_bcast:15 row_mask:0xa bank_mask:0xf")
    if nrows>=4:
        A("s_nop 1")
        A(f"v_add_u32_dpp v{v}, v{v}, v{v} row_bcast:31 row_mask:0xc bank_mask:0xf")

def gen_k1(A,P):
    B=P.B
    blkmul={32:209,16:104,64:419}[B]
    assert ((N-1)*blkmul)>>16 < B
    for d in range(N):
        b=(d*52429)>>21; assert b==d//40
    for dl in range(40): assert (dl*205)>>10==dl//5
    A(".p2align 8")
    A(".type tfn_bin_kernel,@function")
    A.label("tfn_bin_kernel")
    A(f"s_cmp_ge_u32 s2, {NC+K1_CONST_WGS}")
    A("s_cbranch_scc1 K1_END")
    A("s_load_dwordx4 s[4:7], s[0:1], 8")
    A("s_load_dwordx4 s[8:11], s[0:1], 24")
    A("s_load_dwordx2 s[12:13], s[0:1], 80")
    if P.k1pf: A("s_load_dwordx2 s[32:33], s[0:1], 0")
    A(f"s_cmp_ge_u32 s2, {NC}")
    A("s_cbranch_scc1 K1_CONST")
    ST=Stamps(A,P.stamps,"K1")
    ST.mark("start")
    if P.tl:
        A("s_memrealtime s[38:39]"); A("s_waitcnt lgkmcnt(0)")
    A(f"s_mul_i32 s14, s2, {CH*4}")
    A("v_lshlrev_b32 v1, 4, v0")
    A("v_add_u32 v1, s14, v1")
    A("v_lshlrev_b32 v2, 1, v1")
    A("v_lshlrev_b32 v3, 2, v0")
    A("v_mov_b32 v4, 0")
    A("v_mov_b32 v5, 1")
    A("v_cmp_gt_u32 vcc, 0x100, v0")
    A("s_and_saveexec_b64 s[16:17], vcc")
    A("s_cbranch_execz K1_NOZ")
    A("ds_write_b32 v3, v4")
    A.label("K1_NOZ")
    A("s_mov_b64 exec, s[16:17]")
    A("s_waitcnt lgkmcnt(0)")
    A("global_load_dwordx4 v[8:11], v1, s[6:7]")
    A("global_load_dwordx4 v[12:15], v1, s[4:5]")
    A("global_load_dwordx4 v[16:19], v2, s[8:9]")
    A("global_load_dwordx4 v[20:23], v2, s[8:9] offset:16")
    A("global_load_dwordx4 v[24:27], v2, s[10:11]")
    A("global_load_dwordx4 v[28:31], v2, s[10:11] offset:16")
    def k1pf():
        if P.k1l2==0:
            per=(P.k1rows*8+249)//250
            A(f"s_mul_i32 s34, s2, {per*128}")
            A("v_lshlrev_b32 v68, 7, v0"); A("v_add_u32 v68, s34, v68")
            if per<320:
                A(f"v_cmp_gt_u32 vcc, {per}, v0"); A("s_and_saveexec_b64 s[36:37], vcc"); A("s_cbranch_execz K1_NOPF")
            A("global_load_dword v69, v68, s[32:33]")
            if per<320:
                A.label("K1_NOPF"); A("s_mov_b64 exec, s[36:37]")
        else:
            A("s_lshr_b32 s34, s2, 3"); A(f"s_mul_i32 s34, s34, {320*128}")
            A("v_lshlrev_b32 v68, 7, v0"); A("v_add_u32 v68, s34, v68")
            for q in range(P.k1l2):
                A("global_load_dword v69, v68, s[32:33]")
                A(f"v_add_u32 v68, {10240*128}, v68")
            rem=80000-10240*P.k1l2; per=(rem+249)//250
            assert per<=320
            A(f"s_mul_i32 s34, s2, {per}"); A(f"s_add_u32 s34, s34, {10240*P.k1l2}")
            A("v_add_u32 v70, s34, v0")
            A(f"v_cmp_gt_u32 vcc, {per}, v0"); A(f"s_mov_b32 s35, 80000"); A("v_cmp_gt_u32 s[36:37], s35, v70"); A("s_and_b64 vcc, vcc, s[36:37]")
            A("v_lshlrev_b32 v70, 7, v70")
            A("s_and_saveexec_b64 s[36:37], vcc")
            A("s_cbranch_execz K1_NOPF")
            A("global_load_dword v71, v70, s[32:33]")
            A.label("K1_NOPF")
            A("s_mov_b64 exec, s[36:37]")
    if P.k1pf==1: k1pf()
    A(f"s_mul_i32 s15, s2, {CH*16}")
    A(f"s_add_u32 s18, s12, {WS_KEYS}"); A("s_addc_u32 s19, s13, 0")
    A("s_add_u32 s18, s18, s14"); A("s_addc_u32 s19, s19, 0")
    A(f"s_add_u32 s20, s12, {WS_PAY}"); A("s_addc_u32 s21, s13, 0")
    A("s_add_u32 s20, s20, s15"); A("s_addc_u32 s21, s21, 0")
    A("s_lshl_b32 s15, s2, 2")
    A(f"s_add_u32 s22, s12, {WS_CELL}"); A("s_addc_u32 s23, s13, 0")
    A("s_add_u32 s22, s22, s15"); A("s_addc_u32 s23, s23, 0")
    A("s_movk_i32 s24, -40")
    A("v_lshrrev_b32 v6, 6, v0")
    A("v_and_b32 v7, 63, v0")
    A("v_readfirstlane_b32 s25, v6")
    A("s_barrier")
    A(f"s_waitcnt vmcnt({5 if P.k1pf==1 else 4})")
    ST.mark("ld")
    for i in range(4):
        d=8+i; s=12+i
        A(f"v_mul_u32_u24 v44, 0xcccd, v{d}")
        A("v_lshrrev_b32 v44, 21, v44")
        A(f"v_mad_i32_i24 v45, v44, s24, v{d}")
        A(f"v_lshlrev_b32 v{36+i}, 2, v44")
        A(f"ds_add_rtn_u32 v{40+i}, v{36+i}, v5")
        A("v_mul_u32_u24 v46, 0xcd, v45")
        A("v_lshrrev_b32 v46, 10, v46")
        A("v_mad_i32_i24 v47, v46, -5, v45")
        A(f"v_mul_u32_u24 v48, {blkmul}, v{s}")
        A("v_lshrrev_b32 v48, 16, v48")
        if P.rot:
            A("v_mul_u32_u24 v49, 2098, v44"); A("v_lshrrev_b32 v49, 16, v49")
            A(f"v_mul_u32_u24 v49, {(B//8)*P.rot}, v49")
            A("v_add_u32 v48, v48, v49")
            A(f"v_and_b32 v48, {B-1}, v48")
        sh={16:4,32:5,64:6}[B]
        A(f"v_lshl_add_u32 v48, v46, {sh}, v48")
        A(f"v_lshl_or_b32 v{32+i}, v47, 14, v{s}")
        A(f"v_lshl_or_b32 v{32+i}, v48, 17, v{32+i}")
    A(f"s_waitcnt vmcnt({1 if P.k1pf==1 else 0})")
    A("v_swap_b32 v18, v24"); A("v_swap_b32 v19, v25"); A("v_swap_b32 v22, v28"); A("v_swap_b32 v23, v29")
    pay=[16,24,20,28]
    A("v_lshlrev_b32 v50, 4, v7")
    A("s_waitcnt lgkmcnt(0)")
    A("s_barrier")
    ST.mark("hist")
    if P.k1pf==2: k1pf()
    A("ds_read_b128 v[52:55], v50")
    A("s_waitcnt lgkmcnt(0)")
    A("v_add_u32 v56, v52, v53")
    A("v_add_u32 v57, v56, v54")
    A("v_add_u32 v58, v57, v55")
    A("v_mov_b32 v59, v58")
    dpp_scan(A,59)
    A("v_sub_u32 v60, v59, v58")
    A("v_add_u32 v61, v60, v52")
    A("v_add_u32 v62, v60, v56")
    A("v_add_u32 v63, v60, v57")
    A("ds_write_b128 v50, v[60:63] offset:1024")
    for i in range(4):
        A(f"s_cmp_lg_u32 s25, {i}")
        A(f"s_cbranch_scc1 K1_CS{i}")
        A(f"v_lshl_or_b32 v64, v{52+i}, 16, v{60+i}")
        A(f"v_lshlrev_b32 v65, 12, v7")
        if i: A(f"v_add_u32 v65, {i*1024}, v65")
        A(f"v_cmp_gt_u32 vcc, {(NB-i+3)//4}, v7")
        A("s_and_saveexec_b64 s[16:17], vcc")
        A("global_store_dword v65, v64, s[22:23]")
        A(f"s_cmp_ge_u32 s2, {256-NC}")
        A(f"s_cbranch_scc1 K1_CZ{i}")
        A(f"global_store_dword v65, v4, s[22:23] offset:{NC*4}")
        A.label(f"K1_CZ{i}")
        A("s_mov_b64 exec, s[16:17]")
        A.label(f"K1_CS{i}")
    A("s_waitcnt lgkmcnt(0)")
    for i in range(4): A(f"ds_read_b32 v{44+i}, v{36+i} offset:1024")
    if not P.k1stage:
        for i in range(4):
            A(f"s_waitcnt lgkmcnt({3-i})")
            A(f"v_add_u32 v{44+i}, v{44+i}, v{40+i}")
            A(f"v_lshlrev_b32 v48, 2, v{44+i}")
            A(f"v_lshlrev_b32 v49, 4, v{44+i}")
            A(f"global_store_dwordx4 v49, v[{pay[i]}:{pay[i]+3}], s[20:21]")
            A(f"global_store_dword v48, v{32+i}, s[18:19]")
            A("s_nop 1")
    else:
        KST=2048; PST=KST+CH*4
        fl={0:"",1:" sc1",2:" sc0 sc1",3:" nt"}[P.k1wt]
        for i in range(4):
            A(f"s_waitcnt lgkmcnt({3-i+2*i})")
            A(f"v_add_u32 v{44+i}, v{44+i}, v{40+i}")
            A(f"v_lshlrev_b32 v48, 2, v{44+i}")
            A(f"v_lshlrev_b32 v49, 4, v{44+i}")
            A(f"ds_write_b128 v49, v[{pay[i]}:{pay[i]+3}] offset:{PST}")
            A(f"ds_write_b32 v48, v{32+i} offset:{KST}")
        A("v_lshlrev_b32 v50, 4, v0")
        A("s_waitcnt lgkmcnt(0)")
        A("s_barrier")
        A(f"ds_read_b128 v[8:11], v50 offset:{KST}")
        for q in range(4): A(f"ds_read_b128 v[{12+4*q}:{15+4*q}], v50 offset:{PST+q*5120}")
        A("v_add_u32 v51, 5120, v50"); A("v_add_u32 v52, 10240, v50"); A("v_add_u32 v53, 15360, v50")
        A("s_waitcnt lgkmcnt(4)")
        A(f"global_store_dwordx4 v50, v[8:11], s[18:19]{fl}")
        for q in range(4):
            A(f"s_waitcnt lgkmcnt({3-q})")
            A(f"global_store_dwordx4 v{50+q}, v[{12+4*q}:{15+4*q}], s[20:21]{fl}")
    if P.k1pf==3: k1pf()
    if P.tl:
        A("s_waitcnt vmcnt(0)"); A("s_memrealtime s[34:35]"); A("s_waitcnt lgkmcnt(0)")
        A("s_cmp_lg_u32 s25, 0"); A("s_cbranch_scc1 K1_TLX")
        A("s_lshl_b32 s36, s2, 3"); A("s_add_u32 s36, s36, 0x7F0000")
        A("v_mov_b32 v68, s38"); A("v_mov_b32 v69, s34"); A("v_mov_b32 v70, s36")
        A("global_store_dwordx2 v70, v[68:69], s[12:13]")
        A.label("K1_TLX")
    ST.mark("iss")
    if P.stamps:
        A("s_waitcnt vmcnt(0)")
        ST.mark("done")
        ST.dump(12,0,2,25,66)
    A("s_endpgm")
    A.label("K1_CONST")
    A("s_load_dwordx2 s[26:27], s[0:1], 40")
    A("s_load_dwordx4 s[28:31], s[0:1], 48")
    A("v_lshrrev_b32 v6, 6, v0")
    A("s_nop 0")
    A("v_readfirstlane_b32 s25, v6")
    A(f"s_sub_u32 s14, s2, {NC}")
    A("v_and_b32 v7, 63, v0")
    A("s_waitcnt lgkmcnt(0)")
    A(f"s_add_u32 s18, s12, {WS_CONST}"); A("s_addc_u32 s19, s13, 0")
    A("s_cmp_eq_u32 s25, 4")
    A("s_cbranch_scc1 K1_CW4")
    A("s_and_b32 s15, s14, 1")
    A("s_lshr_b32 s16, s14, 1")
    A("s_lshl_b32 s16, s16, 5"); A("s_add_u32 s16, s16, s15")
    A("v_and_b32 v1, 15, v7"); A("v_lshlrev_b32 v1, 1, v1"); A("v_add_u32 v1, s16, v1")
    A("v_lshrrev_b32 v2, 4, v7"); A("v_lshlrev_b32 v2, 3, v2")
    A("s_lshl_b32 s17, s25, 5"); A("v_add_u32 v2, s17, v2")
    A("v_lshlrev_b32 v2, 7, v2"); A("v_add_u32 v2, v2, v1"); A("v_lshlrev_b32 v2, 1, v2")
    for r in range(8): A(f"global_load_ushort v{8+r}, v2, s[30:31] offset:{r*256}")
    A("s_lshl_b32 s17, s14, 12")
    A("v_lshlrev_b32 v3, 4, v0"); A("v_add_u32 v3, s17, v3"); A(f"v_add_u32 v3, {CONST_WM}, v3")
    A("s_waitcnt vmcnt(0)")
    for r in range(4): A(f"v_lshl_or_b32 v{16+r}, v{9+2*r}, 16, v{8+2*r}")
    A("global_store_dwordx4 v3, v[16:19], s[18:19]")
    A("s_endpgm")
    A.label("K1_CW4")
    A("s_cmp_eq_u32 s14, 0"); A("s_cbranch_scc1 K1_WF")
    A("s_cmp_eq_u32 s14, 1"); A("s_cbranch_scc1 K1_CG")
    if P.codepf&1:
        A("s_cmp_eq_u32 s14, 2"); A("s_cbranch_scc0 K1_CPX")
        A("s_getpc_b64 s[34:35]")
        A.label("K1_PC")
        A("s_add_u32 s34, s34, standalone__tensor_product_equiv_tfn__graph_kernel-K1_PC"); A("s_addc_u32 s35, s35, 0")
        A("v_lshlrev_b32 v1, 7, v7")
        for q in range(2):
            A(f"v_add_u32 v2, {q*8192}, v1")
            A(f"v_cmp_gt_u32 vcc, K2_CODE_END-standalone__tensor_product_equiv_tfn__graph_kernel, v2")
            A("s_and_saveexec_b64 s[36:37], vcc")
            A(f"s_cbranch_execz K1_CPS{q}")
            A(f"global_load_dword v{8+q}, v2, s[34:35]")
            A.label(f"K1_CPS{q}")
            A("s_mov_b64 exec, s[36:37]")
        A.label("K1_CPX")
    A("s_endpgm")
    A.label("K1_WF")
    A("v_lshlrev_b32 v1, 2, v7")
    for k in range(4): A(f"global_load_dword v{8+k}, v1, s[26:27] offset:{k*256}")
    A(f"s_mov_b32 s15, 0x{f2u(-LOG2E):08x}")
    A("s_mov_b32 s16, 0xffff0000")
    A("s_waitcnt vmcnt(0)")
    for k in range(4):
        A(f"v_lshlrev_b32 v{12+k}, 16, v{8+k}")
        A(f"v_and_b32 v{16+k}, s16, v{8+k}")
    for k in range(8): A(f"v_mul_f32 v{12+k}, s15, v{12+k}")
    A("v_cvt_pk_bf16_f32 v20, v12, v13"); A("v_cvt_pk_bf16_f32 v21, v14, v15")
    A("v_cvt_pk_bf16_f32 v22, v16, v17"); A("v_cvt_pk_bf16_f32 v23, v18, v19")
    for q in range(4):
        A(f"v_lshlrev_b32 v28, 16, v{20+q}")
        A(f"v_and_b32 v29, s16, v{20+q}")
        A(f"v_sub_f32 v28, v{12+2*q}, v28")
        A(f"v_sub_f32 v29, v{13+2*q}, v29")
        A(f"v_cvt_pk_bf16_f32 v{24+q}, v28, v29")
    A("v_lshlrev_b32 v3, 5, v7")
    A(f"global_store_dwordx4 v3, v[20:23], s[18:19] offset:{CONST_WF}")
    A(f"global_store_dwordx4 v3, v[24:27], s[18:19] offset:{CONST_WF+16}")
    A("s_endpgm")
    A.label("K1_CG")
    A("v_and_b32 v1, 3, v7"); A("v_lshlrev_b32 v1, 5, v1")
    for f in range(4): A(f"global_load_dwordx2 v[{8+2*f}:{9+2*f}], v1, s[28:29] offset:{f*8}")
    A("s_mov_b32 s15, 0x05040100"); A("s_mov_b32 s16, 0x07060302")
    A("s_waitcnt vmcnt(0)")
    for o in range(4):
        sel="s15" if o%2==0 else "s16"; h=o//2
        A(f"v_perm_b32 v{16+2*o}, v{10+h}, v{8+h}, {sel}")
        A(f"v_perm_b32 v{17+2*o}, v{14+h}, v{12+h}, {sel}")
    A("v_lshlrev_b32 v3, 5, v7"); A(f"v_add_u32 v3, {CONST_CG}, v3")
    A("global_store_dwordx4 v3, v[16:19], s[18:19]")
    A("global_store_dwordx4 v3, v[20:23], s[18:19] offset:16")
    A.label("K1_END")
    A("s_endpgm")


def gen_phase1(A,P,ST):
    B=P.B
    blkmul={32:209,16:104,64:419}[B]
    A("s_load_dwordx4 s[4:7], s[0:1], 8")
    A("s_load_dwordx4 s[8:11], s[0:1], 24")
    A("s_load_dwordx2 s[12:13], s[0:1], 80")
    A("s_load_dwordx2 s[26:27], s[0:1], 40")
    A("s_load_dwordx4 s[28:31], s[0:1], 48")
    A("s_load_dwordx2 s[32:33], s[0:1], 0")
    A("s_load_dwordx2 s[72:73], s[0:1], 72")
    A("v_lshrrev_b32 v6, 6, v0")
    A("v_and_b32 v7, 63, v0")
    A("v_readfirstlane_b32 s25, v6")
    A("s_nop 3")
    A("s_cmp_ge_u32 s25, 5")
    A("s_cbranch_scc1 F_OTHER")
    A(f"s_mul_i32 s14, s2, {CH*4}")
    A("v_lshlrev_b32 v1, 4, v0")
    A("v_add_u32 v1, s14, v1")
    A("v_lshlrev_b32 v2, 1, v1")
    A("v_lshlrev_b32 v3, 2, v0")
    A("v_mov_b32 v4, 0")
    A("v_mov_b32 v5, 1")
    A("v_cmp_gt_u32 vcc, 0x100, v0")
    A("s_and_saveexec_b64 s[16:17], vcc")
    A("s_cbranch_execz F_NOZ")
    A("ds_write_b32 v3, v4")
    A.label("F_NOZ")
    A("s_mov_b64 exec, s[16:17]")
    A("s_waitcnt lgkmcnt(0)")
    A("global_load_dwordx4 v[8:11], v1, s[6:7]")
    A("global_load_dwordx4 v[12:15], v1, s[4:5]")
    A("global_load_dwordx4 v[16:19], v2, s[8:9]")
    A("global_load_dwordx4 v[20:23], v2, s[8:9] offset:16")
    A("global_load_dwordx4 v[24:27], v2, s[10:11]")
    A("global_load_dwordx4 v[28:31], v2, s[10:11] offset:16")
    A(f"s_mul_i32 s15, s2, {CH*16}")
    A(f"s_add_u32 s18, s12, {WS_KEYS}"); A("s_addc_u32 s19, s13, 0")
    A("s_add_u32 s18, s18, s14"); A("s_addc_u32 s19, s19, 0")
    A(f"s_add_u32 s20, s12, {WS_PAY}"); A("s_addc_u32 s21, s13, 0")
    A("s_add_u32 s20, s20, s15"); A("s_addc_u32 s21, s21, 0")
    A("s_lshl_b32 s15, s2, 10")
    A(f"s_add_u32 s22, s12, {WS_CELL}"); A("s_addc_u32 s23, s13, 0")
    A("s_add_u32 s22, s22, s15"); A("s_addc_u32 s23, s23, 0")
    A("s_movk_i32 s24, -40")
    A("s_barrier")
    A("s_waitcnt vmcnt(4)")
    for i in range(4):
        d=8+i; s=12+i
        A(f"v_mul_u32_u24 v44, 0xcccd, v{d}")
        A("v_lshrrev_b32 v44, 21, v44")
        A(f"v_mad_i32_i24 v45, v44, s24, v{d}")
        A(f"v_lshlrev_b32 v{36+i}, 2, v44")
        A(f"ds_add_rtn_u32 v{40+i}, v{36+i}, v5")
        A("v_mul_u32_u24 v46, 0xcd, v45")
        A("v_lshrrev_b32 v46, 10, v46")
        A("v_mad_i32_i24 v47, v46, -5, v45")
        A(f"v_mul_u32_u24 v48, {blkmul}, v{s}")
        A("v_lshrrev_b32 v48, 16, v48")
        sh={16:4,32:5,64:6}[B]
        A(f"v_lshl_add_u32 v48, v46, {sh}, v48")
        A(f"v_lshl_or_b32 v{32+i}, v47, 14, v{s}")
        A(f"v_lshl_or_b32 v{32+i}, v48, 17, v{32+i}")
    A("s_waitcnt vmcnt(0)")
    A("v_swap_b32 v18, v24"); A("v_swap_b32 v19, v25"); A("v_swap_b32 v22, v28"); A("v_swap_b32 v23, v29")
    pay=[16,24,20,28]
    A("v_lshlrev_b32 v50, 4, v7")
    A("s_waitcnt lgkmcnt(0)")
    A("s_barrier")
    ST.mark("hist")
    A("ds_read_b128 v[52:55], v50")
    A("s_waitcnt lgkmcnt(0)")
    A("v_add_u32 v56, v52, v53"); A("v_add_u32 v57, v56, v54"); A("v_add_u32 v58, v57, v55"); A("v_mov_b32 v59, v58")
    dpp_scan(A,59)
    A("v_sub_u32 v60, v59, v58"); A("v_add_u32 v61, v60, v52"); A("v_add_u32 v62, v60, v56"); A("v_add_u32 v63, v60, v57")
    A("ds_write_b128 v50, v[60:63] offset:1024")
    A("s_cmp_lg_u32 s25, 0")
    A("s_cbranch_scc1 F_CS")
    for i in range(4): A(f"v_lshl_or_b32 v{64+i}, v{52+i}, 16, v{60+i}")
    A("global_store_dwordx4 v50, v[64:67], s[22:23] sc1")
    A.label("F_CS")
    A("s_waitcnt lgkmcnt(0)")
    for i in range(4): A(f"ds_read_b32 v{44+i}, v{36+i} offset:1024")
    KST=2048; PST=KST+CH*4
    for i in range(4):
        A(f"s_waitcnt lgkmcnt({3-i+2*i})")
        A(f"v_add_u32 v{44+i}, v{44+i}, v{40+i}")
        A(f"v_lshlrev_b32 v48, 2, v{44+i}")
        A(f"v_lshlrev_b32 v49, 4, v{44+i}")
        A(f"ds_write_b128 v49, v[{pay[i]}:{pay[i]+3}] offset:{PST}")
        A(f"ds_write_b32 v48, v{32+i} offset:{KST}")
    A("v_lshlrev_b32 v50, 4, v0")
    A("s_waitcnt lgkmcnt(0)")
    A("s_barrier")
    A(f"ds_read_b128 v[8:11], v50 offset:{KST}")
    for q in range(4): A(f"ds_read_b128 v[{12+4*q}:{15+4*q}], v50 offset:{PST+q*5120}")
    A("v_add_u32 v51, 5120, v50"); A("v_add_u32 v52, 10240, v50"); A("v_add_u32 v53, 15360, v50")
    A("s_waitcnt lgkmcnt(4)")
    A("global_store_dwordx4 v50, v[8:11], s[18:19] sc1")
    for q in range(4):
        A(f"s_waitcnt lgkmcnt({3-q})")
        A(f"global_store_dwordx4 v{50+q}, v[{12+4*q}:{15+4*q}], s[20:21] sc1")
    if P.flags:
        A("s_cmp_lg_u32 s25, 0"); A("s_cbranch_scc1 F_JOIN")
        A("v_mov_b32 v66, 0"); A("global_load_dword v67, v66, s[72:73] sc1")
    ST.mark("iss1")
    A("s_branch F_JOIN")
    A.label("F_OTHER")
    A("s_waitcnt lgkmcnt(0)")
    A(f"s_add_u32 s18, s12, {WS_CONST}"); A("s_addc_u32 s19, s13, 0")
    if P.flags:
        A("s_cmp_lg_u32 s2, 0"); A("s_cbranch_scc1 F_NN"); A("s_cmp_lg_u32 s25, 9"); A("s_cbranch_scc1 F_NN")
        A("s_memrealtime s[38:39]"); A("s_waitcnt lgkmcnt(0)"); A("s_or_b32 s38, s38, 1")
        A("v_mov_b32 v1, 0"); A("v_mov_b32 v2, s38")
        A("v_cmp_eq_u32 vcc, 0, v7"); A("s_and_saveexec_b64 s[16:17], vcc")
        A("global_store_dword v1, v2, s[72:73] sc1")
        A("s_mov_b64 exec, s[16:17]")
        A.label("F_NN")
    A("s_mov_b32 s36, 0")
    A("s_cmp_ge_u32 s25, 9"); A("s_cbranch_scc1 F_R0")
    A("s_cmp_lt_u32 s2, 8"); A("s_cbranch_scc1 F_RW")
    A("s_cmp_lg_u32 s25, 5"); A("s_cbranch_scc1 F_R0")
    A("s_cmp_eq_u32 s2, 8"); A("s_cbranch_scc1 F_RF")
    A("s_cmp_eq_u32 s2, 9"); A("s_cbranch_scc1 F_RC")
    A("s_branch F_R0")
    A.label("F_RW")
    A("s_mov_b32 s36, 1")
    A("s_sub_u32 s14, s25, 5")
    A("s_and_b32 s15, s2, 1"); A("s_lshr_b32 s16, s2, 1"); A("s_lshl_b32 s16, s16, 5"); A("s_add_u32 s16, s16, s15")
    A("v_and_b32 v1, 15, v7"); A("v_lshlrev_b32 v1, 1, v1"); A("v_add_u32 v1, s16, v1")
    A("v_lshrrev_b32 v2, 4, v7"); A("v_lshlrev_b32 v2, 3, v2")
    A("s_lshl_b32 s17, s14, 5"); A("v_add_u32 v2, s17, v2")
    A("v_lshlrev_b32 v2, 7, v2"); A("v_add_u32 v2, v2, v1"); A("v_lshlrev_b32 v2, 1, v2")
    for r in range(8): A(f"global_load_ushort v{8+r}, v2, s[30:31] offset:{r*256}")
    A("s_branch F_R0")
    A.label("F_RF")
    A("s_mov_b32 s36, 2")
    A("v_lshlrev_b32 v1, 2, v7")
    for k in range(4): A(f"global_load_dword v{8+k}, v1, s[26:27] offset:{k*256}")
    A("s_branch F_R0")
    A.label("F_RC")
    A("s_mov_b32 s36, 3")
    A("v_and_b32 v1, 3, v7"); A("v_lshlrev_b32 v1, 5, v1")
    for f in range(4): A(f"global_load_dwordx2 v[{8+2*f}:{9+2*f}], v1, s[28:29] offset:{f*8}")
    A.label("F_R0")
    def fpfcode(lab):
        A("s_cmp_lt_u32 s25, 9"); A(f"s_cbranch_scc1 {lab}")
        A("s_cmp_ge_u32 s25, 14"); A(f"s_cbranch_scc1 {lab}")
        A(f"s_mul_i32 s14, s2, {320*128}"); A("s_sub_u32 s15, s25, 9"); A("s_lshl_b32 s15, s15, 13"); A("s_add_u32 s14, s14, s15")
        A("v_lshlrev_b32 v126, 7, v7"); A("v_add_u32 v126, s14, v126")
        A("global_load_dword v127, v126, s[32:33]")
        A.label(lab)
    if P.fpf==3: fpfcode("F_NPF3")
    A("s_barrier")
    if P.fpf==4: fpfcode("F_NPF4")
    A("s_barrier")
    if P.fpf==5: fpfcode("F_NPF5")
    A("s_cmp_eq_u32 s36, 0"); A("s_cbranch_scc1 F_RD")
    A("s_waitcnt vmcnt(0)")
    A("s_cmp_eq_u32 s36, 2"); A("s_cbranch_scc1 F_RF2")
    A("s_cmp_eq_u32 s36, 3"); A("s_cbranch_scc1 F_RC2")
    A("s_lshl_b32 s17, s2, 12"); A("s_lshl_b32 s15, s14, 10"); A("s_add_u32 s17, s17, s15"); A(f"s_add_u32 s17, s17, {CONST_WM}")
    A("v_lshlrev_b32 v3, 4, v7"); A("v_add_u32 v3, s17, v3")
    for r in range(4): A(f"v_lshl_or_b32 v{16+r}, v{9+2*r}, 16, v{8+2*r}")
    A("global_store_dwordx4 v3, v[16:19], s[18:19] sc1")
    A("s_branch F_RD")
    A.label("F_RF2")
    A(f"s_mov_b32 s15, 0x{f2u(-LOG2E):08x}"); A("s_mov_b32 s16, 0xffff0000")
    for k in range(4):
        A(f"v_lshlrev_b32 v{12+k}, 16, v{8+k}"); A(f"v_and_b32 v{16+k}, s16, v{8+k}")
    for k in range(8): A(f"v_mul_f32 v{12+k}, s15, v{12+k}")
    A("v_cvt_pk_bf16_f32 v20, v12, v13"); A("v_cvt_pk_bf16_f32 v21, v14, v15")
    A("v_cvt_pk_bf16_f32 v22, v16, v17"); A("v_cvt_pk_bf16_f32 v23, v18, v19")
    for q in range(4):
        A(f"v_lshlrev_b32 v28, 16, v{20+q}"); A(f"v_and_b32 v29, s16, v{20+q}")
        A(f"v_sub_f32 v28, v{12+2*q}, v28"); A(f"v_sub_f32 v29, v{13+2*q}, v29")
        A(f"v_cvt_pk_bf16_f32 v{24+q}, v28, v29")
    A("v_lshlrev_b32 v3, 5, v7")
    A(f"global_store_dwordx4 v3, v[20:23], s[18:19] offset:{CONST_WF} sc1")
    A(f"global_store_dwordx4 v3, v[24:27], s[18:19] offset:{CONST_WF+16} sc1")
    A("s_branch F_RD")
    A.label("F_RC2")
    A("s_mov_b32 s15, 0x05040100"); A("s_mov_b32 s16, 0x07060302")
    for o in range(4):
        sel="s15" if o%2==0 else "s16"; h=o//2
        A(f"v_perm_b32 v{16+2*o}, v{10+h}, v{8+h}, {sel}")
        A(f"v_perm_b32 v{17+2*o}, v{14+h}, v{12+h}, {sel}")
    A("v_lshlrev_b32 v3, 5, v7"); A(f"v_add_u32 v3, {CONST_CG}, v3")
    A("global_store_dwordx4 v3, v[16:19], s[18:19] sc1")
    A("global_store_dwordx4 v3, v[20:23], s[18:19] offset:16 sc1")
    A.label("F_RD")
    A("s_barrier")
    if P.fpf==1:
        A("s_cmp_lt_u32 s25, 9"); A("s_cbranch_scc1 F_JOIN")
        A("s_cmp_ge_u32 s25, 14"); A("s_cbranch_scc1 F_JOIN")
        A(f"s_mul_i32 s14, s2, {320*128}"); A("s_sub_u32 s15, s25, 9"); A("s_lshl_b32 s15, s15, 13"); A("s_add_u32 s14, s14, s15")
        A("v_lshlrev_b32 v126, 7, v7"); A("v_add_u32 v126, s14, v126")
        A("global_load_dword v127, v126, s[32:33]")
        A("s_branch F_JOIN2")
    A.label("F_JOIN")
    A("s_waitcnt vmcnt(0)")
    A.label("F_JOIN2")
    A("s_barrier")
    ST.mark("barD")
    if P.fpf==2:
        A("s_cmp_lt_u32 s25, 9"); A("s_cbranch_scc1 F_NPF2")
        A("s_cmp_ge_u32 s25, 14"); A("s_cbranch_scc1 F_NPF2")
        A(f"s_mul_i32 s14, s2, {320*128}"); A("s_sub_u32 s15, s25, 9"); A("s_lshl_b32 s15, s15, 13"); A("s_add_u32 s14, s14, s15")
        A("v_lshlrev_b32 v126, 7, v7"); A("v_add_u32 v126, s14, v126")
        A("global_load_dword v127, v126, s[32:33]")
        A.label("F_NPF2")
    A("s_cmp_lg_u32 s25, 0"); A("s_cbranch_scc1 F_WAIT")
    if P.flags:
        A("s_mov_b32 s14, 0"); A("v_mov_b32 v1, 0")
        A("v_readfirstlane_b32 s74, v67"); A("s_nop 3"); A("s_cmp_lg_u32 s74, 0"); A("s_cbranch_scc1 F_GOTN")
        A.label("F_GETN")
        A("global_load_dword v2, v1, s[72:73] sc1"); A("s_waitcnt vmcnt(0)")
        A("v_readfirstlane_b32 s74, v2"); A("s_add_u32 s14, s14, 1")
        A("s_cmp_ge_u32 s14, 0x100000"); A("s_cbranch_scc1 F_GOTN")
        A("s_cmp_eq_u32 s74, 0"); A("s_cbranch_scc1 F_GETN")
        A.label("F_GOTN")
        A(f"s_add_u32 s76, s12, {WS_FLAG}"); A("s_addc_u32 s77, s13, 0")
        A("s_lshl_b32 s14, s2, 2"); A("v_lshlrev_b32 v1, 10, v7"); A("v_add_u32 v1, s14, v1"); A("v_mov_b32 v2, s74")
        A("v_cmp_gt_u32 vcc, 8, v7"); A("s_and_saveexec_b64 s[16:17], vcc")
        A("global_store_dword v1, v2, s[76:77] sc1")
        A("s_mov_b64 exec, s[16:17]")
    else:
        A("s_and_b32 s14, s2, 3"); A("s_lshl_b32 s14, s14, 6")
        A("v_mov_b32 v1, s14"); A("v_mov_b32 v2, 1")
        A("v_cmp_eq_u32 vcc, 0, v7"); A("s_and_saveexec_b64 s[16:17], vcc")
        A("global_atomic_add v1, v2, s[72:73]")
        A("s_mov_b64 exec, s[16:17]")
    A.label("F_WAIT")

NW=16; CAPW=160
LDS_IDX=0x0000
LDS_K=LDS_IDX+NW*CAPW*4
LDS_HIST=LDS_K+NW*CAPW
LDS_BASE=LDS_HIST+2048
LDS_FLAG=LDS_BASE+4096
LDS_MARK=LDS_FLAG+64
LDS_EF=LDS_MARK+8192+64
LDS_A=LDS_EF+NW*CAPW*8
LDS_CELL=LDS_A+NW*CAPW*32+1024
K2_LDS=LDS_CELL+1024
WINBIG=2048; WINSMALL=200; TOTMAX=CAPW-8
AGG_STRIDE=272
assert LDS_A%16==0 and LDS_EF%16==0 and LDS_MARK%4==0 and K2_LDS<=163840

def gen_k2(A,P):
    U=4; B=P.B
    SC=" sc1" if P.fused else ""
    nbins=8*B
    assert nbins*4<=2048 and nbins*8<=4096
    vTID=0; vLANE=1; vT0=2
    vAad=3; vEad=4; vIad=5; vKad=6; vK=7
    ACC=8
    WF=48
    PAIR=56
    X=64
    TP=80
    AOP=88; AOPN=90; EOP=92; EOPN=94
    UU=[96,104]; EE=112; RR=120
    NV=128
    REC0=64; CNT=68; BASEC=72; AT=64
    CG=80; KEY=88; RANK=90; PAY=92; AP=100; MK=116; BINA=118
    T=[2,3,4,5,6,7,120,121,122,123,124,125,126,127]
    WM=96
    sX=4; sOUT=6; sWS=8; sSRD=12; sW=16; sB=17; sT=18; sLO=19; sWIN=20; sNR=21; sKK=22; sH=23; sEX=24; sM=26; sG8=28; sWB=29
    sP3=68; sLV=43; sTH=46; sK=[32,33]; sN=34; sTOT=35; sTMP=36; sC=40; sLN2=44; sRG=46; sCGP=47; sKEY=48; sPAY=52; sCELL=56; sCONST=58; sRAW=60; sPFO=65; sPFT=66; sNB=67; sGB=68; sGM=69; sQ=70; sCHI=40
    name="standalone__tensor_product_equiv_tfn__graph_kernel"
    A(".p2align 8")
    A(f".type {name},@function")
    A.label(name)
    A(f"s_cmp_ge_u32 s2, {NB}")
    A("s_cbranch_scc1 K2_END")
    ST=Stamps(A,P.stamps,"K2")
    ST.mark("start")
    tlc=[0]
    def tl(off,inv=False):
        if not P.tl: return
        tlc[0]+=1
        A("s_memrealtime s[74:75]"); A("s_waitcnt lgkmcnt(0)")
        if inv: A("s_not_b32 s74, s74")
        A("v_mov_b32 v2, s74"); A("v_mov_b32 v3, 0")
        A("v_cmp_eq_u32 vcc, 0, v0"); A("s_and_saveexec_b64 s[76:77], vcc"); A(f"s_cbranch_execz K2_TL{tlc[0]}")
        A(f"global_atomic_umax v3, v2, s[72:73] offset:{off}")
        A.label(f"K2_TL{tlc[0]}"); A("s_mov_b64 exec, s[76:77]")
    if P.tl:
        A("s_load_dwordx2 s[72:73], s[0:1], 72"); A("s_waitcnt lgkmcnt(0)")
        tl(0,True)
    if P.fused: gen_phase1(A,P,ST)
    A(f"s_load_dwordx2 s[{sX}:{sX+1}], s[0:1], 0")
    A(f"s_load_dwordx2 s[{sOUT}:{sOUT+1}], s[0:1], 64")
    A(f"s_load_dwordx2 s[{sWS}:{sWS+1}], s[0:1], 80")
    A(f"v_and_b32 v{vLANE}, 63, v0")
    A(f"v_lshrrev_b32 v{T[0]}, 6, v0")
    A(f"v_lshlrev_b32 v{PAIR+1}, 4, v{vLANE}")
    A(f"v_readfirstlane_b32 s{sW}, v{T[0]}")
    for p in (3,5,7): A(f"v_mov_b32 v{PAIR+p}, v{PAIR+1}")
    if P.xmap:
        A(f"s_and_b32 s{sTMP}, s2, 7"); A(f"s_mul_i32 s{sB}, s{sTMP}, 31"); A(f"s_min_u32 s{sTMP}, s{sTMP}, 2")
        A(f"s_add_u32 s{sB}, s{sB}, s{sTMP}"); A(f"s_lshr_b32 s{sTMP}, s2, 3"); A(f"s_add_u32 s{sB}, s{sB}, s{sTMP}")
    else:
        A(f"s_mov_b32 s{sB}, s2")
    A(f"s_lshr_b32 s{sG8}, s{sW}, 1"); A(f"s_and_b32 s{sH}, s{sW}, 1"); A(f"s_mul_i32 s{sWB}, s{sW}, {CAPW}")
    for i in range(40): A(f"v_mov_b32 v{ACC+i}, 0")
    A("s_waitcnt lgkmcnt(0)")
    A(f"s_lshl_b32 s{sTMP}, s{sB}, {2 if P.fused else 10}")
    A(f"s_add_u32 s{sCELL}, s{sWS}, {WS_CELL}"); A(f"s_addc_u32 s{sCELL+1}, s{sWS+1}, 0")
    A(f"s_add_u32 s{sCELL}, s{sCELL}, s{sTMP}"); A(f"s_addc_u32 s{sCELL+1}, s{sCELL+1}, 0")
    A(f"s_add_u32 s{sCONST}, s{sWS}, {WS_CONST}"); A(f"s_addc_u32 s{sCONST+1}, s{sWS+1}, 0")
    A(f"s_mov_b32 s{sLO}, 0")
    A(f"s_mov_b32 s{sWIN}, {WINBIG}")
    for i in range(3): A(f"s_mov_b32 s{sCHI+i}, {(i+1)*CH}")
    if not P.fused:
        A(f"v_lshlrev_b32 v{T[1]}, 5, v{vLANE}")
        if P.fused:
            A(f"v_mov_b32 v{T[2]}, 0")
            A(f"s_cmp_ge_u32 s{sW}, 4"); A("s_cbranch_scc1 K2_NOCL")
            A(f"v_lshlrev_b32 v{T[3]}, 10, v0")
            A(f"v_cmp_gt_u32 vcc, {NC}, v0"); A(f"s_and_saveexec_b64 s[{sEX}:{sEX+1}], vcc")
            A(f"global_load_dword v{T[2]}, v{T[3]}, s[{sCELL}:{sCELL+1}] sc1")
            A("s_mov_b64 exec, -1")
            A.label("K2_NOCL")
        else:
            A(f"global_load_dwordx4 v[{CNT}:{CNT+3}], v{PAIR+1}, s[{sCELL}:{sCELL+1}]"+SC)
        A(f"global_load_dwordx4 v[{WF}:{WF+3}], v{T[1]}, s[{sCONST}:{sCONST+1}] offset:{CONST_WF}"+SC)
        A(f"global_load_dwordx4 v[{WF+4}:{WF+7}], v{T[1]}, s[{sCONST}:{sCONST+1}] offset:{CONST_WF+16}"+SC)
        A(f"global_load_dwordx4 v[{CG}:{CG+3}], v{T[1]}, s[{sCONST}:{sCONST+1}] offset:{CONST_CG}"+SC)
        A(f"global_load_dwordx4 v[{CG+4}:{CG+7}], v{T[1]}, s[{sCONST}:{sCONST+1}] offset:{CONST_CG+16}"+SC)
    if P.codepf&2:
        A(f"s_cmp_eq_u32 s{sW}, 15"); A("s_cbranch_scc0 K2_CPX")
        A(f"s_getpc_b64 s[{sTMP}:{sTMP+1}]")
        A.label("K2_PC")
        A(f"s_sub_u32 s{sTMP}, s{sTMP}, K2_PC-standalone__tensor_product_equiv_tfn__graph_kernel"); A(f"s_subb_u32 s{sTMP+1}, s{sTMP+1}, 0")
        A(f"v_lshlrev_b32 v{T[8]}, 7, v{vLANE}")
        for q in range(2):
            A(f"v_add_u32 v{T[9]}, {q*8192}, v{T[8]}")
            A(f"v_cmp_gt_u32 vcc, K2_CODE_END-standalone__tensor_product_equiv_tfn__graph_kernel, v{T[9]}")
            A(f"s_and_saveexec_b64 s[{sEX}:{sEX+1}], vcc")
            A(f"s_cbranch_execz K2_CPS{q}")
            A(f"global_load_dword v{127-q}, v{T[9]}, s[{sTMP}:{sTMP+1}]")
            A.label(f"K2_CPS{q}")
            A("s_mov_b64 exec, -1")
        A.label("K2_CPX")
    A(f"s_mov_b32 s{sSRD}, s{sX}")
    A(f"s_and_b32 s{sSRD+1}, s{sX+1}, 0xffff")
    A(f"s_or_b32 s{sSRD+1}, s{sSRD+1}, {1024<<16}")
    A(f"s_mov_b32 s{sSRD+2}, {N}")
    A(f"s_mov_b32 s{sSRD+3}, 0x00020000")
    A(f"s_add_u32 s{sKEY}, s{sWS}, {WS_KEYS}"); A(f"s_addc_u32 s{sKEY+1}, s{sWS+1}, 0")
    A(f"s_and_b32 s{sKEY+1}, s{sKEY+1}, 0xffff"); A(f"s_mov_b32 s{sKEY+2}, {E*4}"); A(f"s_mov_b32 s{sKEY+3}, 0x00020000")
    A(f"s_add_u32 s{sPAY}, s{sWS}, {WS_PAY}"); A(f"s_addc_u32 s{sPAY+1}, s{sWS+1}, 0")
    A(f"s_and_b32 s{sPAY+1}, s{sPAY+1}, 0xffff"); A(f"s_mov_b32 s{sPAY+2}, {E*16}"); A(f"s_mov_b32 s{sPAY+3}, 0x00020000")
    A(f"s_mov_b32 s{sLN2}, 0x{f2u(-LN2):08x}"); A(f"s_mov_b32 s{sLN2+1}, 0x{f2u(-LN2):08x}")
    def burst(vaddr,vdst=2):
        for q in range(4):
            A(f"buffer_load_dword v{vdst}, v{vaddr}, s[{sRAW}:{sRAW+3}], s{sPFO} offen")
            if q<3: A(f"s_add_u32 s{sPFO}, s{sPFO}, 8192")
    def pf_row0(rnd_sreg,dst):
        A(f"s_lshr_b32 s{sTMP+2}, s2, 3")
        A(f"s_and_b32 s{sTMP+3}, s{sTMP+2}, 1"); A(f"s_lshl_b32 s{sTMP+3}, s{sTMP+3}, 9")
        A(f"s_lshr_b32 s{sTMP+2}, s{sTMP+2}, 1"); A(f"s_lshl_b32 s{sTMP+2}, s{sTMP+2}, 5")
        A(f"s_add_u32 s{sTMP+2}, s{sTMP+2}, s{sTMP+3}")
        A(f"s_lshl_b32 s{dst}, s{rnd_sreg}, 10"); A(f"s_add_u32 s{dst}, s{dst}, s{sTMP+2}"); A(f"s_lshl_b32 s{dst}, s{dst}, 10")
    if P.pf:
        A(f"s_mov_b32 s{sRAW}, s{sX}"); A(f"s_and_b32 s{sRAW+1}, s{sX+1}, 0xffff"); A(f"s_mov_b32 s{sRAW+2}, {N*1024}"); A(f"s_mov_b32 s{sRAW+3}, 0x00020000")
    def propf(part=0):
        if P.pf==3:
            r0=(P.k1rows if P.k1pf else 0) if part==0 else P.pfsplit
            r1=P.pfsplit if (part==0 and P.pfsplit) else N
            per=((r1-r0)*8+249)//250; nw=(per+63)//64
            lab=f"K2_NOPF{part}"
            A(f"s_cmp_ge_u32 s{sW}, {nw}")
            A(f"s_cbranch_scc1 {lab}")
            A(f"s_mul_i32 s{sPFO}, s2, {per*128}"); A(f"s_lshl_b32 s{sTMP+2}, s{sW}, 13"); A(f"s_add_u32 s{sPFO}, s{sPFO}, s{sTMP+2}")
            if r0: A(f"s_add_u32 s{sPFO}, s{sPFO}, {r0*1024}")
            A(f"v_lshlrev_b32 v126, 7, v{vLANE}")
            A(f"buffer_load_dword v127, v126, s[{sRAW}:{sRAW+3}], s{sPFO} offen")
            A.label(lab)
            return
        A(f"s_cmp_ge_u32 s{sW}, {P.npro}")
        A("s_cbranch_scc1 K2_NOPF0")
        pf_row0(sW,sPFO)
        A(f"v_lshlrev_b32 v126, 7, v{vLANE}")
        burst(126,127)
        A.label("K2_NOPF0")
    if P.fused:
        if P.flags:
            A(f"s_add_u32 s76, s{sWS}, {WS_FLAG}"); A(f"s_addc_u32 s77, s{sWS+1}, 0")
        A(f"s_cmp_lg_u32 s{sW}, 0"); A("s_cbranch_scc1 F_REL")
        A(f"s_mov_b32 s{sTMP}, 0")
        if P.flags:
            A(f"s_and_b32 s{sTMP+1}, s2, 7"); A(f"s_lshl_b32 s{sTMP+1}, s{sTMP+1}, 10"); A(f"v_add_u32 v{T[1]}, s{sTMP+1}, v{PAIR+1}")
            A(f"v_cmp_gt_u32 s[64:65], 63, v{vLANE}"); A(f"v_cmp_gt_u32 s[66:67], 62, v{vLANE}")
            A.label("F_POLL")
            A(f"global_load_dwordx4 v[{X}:{X+3}], v{T[1]}, s[76:77] sc1")
            A("s_waitcnt vmcnt(0)")
            for q in range(4):
                A(f"v_cmp_eq_u32 vcc, s74, v{X+q}")
                m="s[64:65]" if q<2 else "s[66:67]"
                d=["s[68:69]","s[70:71]","s[32:33]","s[34:35]"][q]
                A(f"s_andn2_b64 {d}, {m}, vcc")
            A("s_or_b64 s[68:69], s[68:69], s[70:71]"); A("s_or_b64 s[32:33], s[32:33], s[34:35]"); A("s_or_b64 s[68:69], s[68:69], s[32:33]")
            A(f"s_add_u32 s{sTMP}, s{sTMP}, 1")
            A(f"s_cmp_ge_u32 s{sTMP}, 0x100000"); A("s_cbranch_scc1 F_REL")
            A("s_cmp_eq_u64 s[68:69], 0"); A("s_cbranch_scc1 F_REL")
            if P.sleep>0: A(f"s_sleep {P.sleep}")
            A("s_branch F_POLL")
        else:
            A(f"v_lshlrev_b32 v{T[1]}, 6, v{vLANE}")
            A.label("F_POLL")
            A(f"v_mov_b32 v{T[2]}, 0")
            A(f"v_cmp_gt_u32 vcc, 4, v{vLANE}"); A(f"s_and_saveexec_b64 s[{sEX}:{sEX+1}], vcc")
            A(f"global_load_dword v{T[2]}, v{T[1]}, s[72:73] sc1")
            A("s_mov_b64 exec, -1")
            A("s_waitcnt vmcnt(0)")
            A("s_nop 1"); A(f"v_add_u32_dpp v{T[2]}, v{T[2]}, v{T[2]} row_shr:1 row_mask:0xf bank_mask:0xf bound_ctrl:1")
            A("s_nop 1"); A(f"v_add_u32_dpp v{T[2]}, v{T[2]}, v{T[2]} row_shr:2 row_mask:0xf bank_mask:0xf bound_ctrl:1")
            A("s_nop 1"); A(f"v_readlane_b32 s{sTMP+1}, v{T[2]}, 3")
            A(f"s_add_u32 s{sTMP}, s{sTMP}, 1")
            A(f"s_cmp_ge_u32 s{sTMP}, 0x100000"); A("s_cbranch_scc1 F_REL")
        if P.flags:
            pass
        elif P.sleep<0:
            A(f"s_cmp_ge_u32 s{sTMP+1}, {NB}"); A("s_cbranch_scc1 F_REL")
            A(f"s_cmp_ge_u32 s{sTMP+1}, {P.nfast}"); A("s_cbranch_scc1 F_FAST")
            A(f"s_sleep {-P.sleep}")
            A("s_branch F_POLL")
            A.label("F_FAST")
            A(f"s_sleep {P.sfast}")
            A("s_branch F_POLL")
        elif P.sleep:
            A(f"s_cmp_ge_u32 s{sTMP+1}, {NB}"); A("s_cbranch_scc1 F_REL")
            A(f"s_sleep {P.sleep}")
            A("s_branch F_POLL")
        else:
            A(f"s_cmp_lt_u32 s{sTMP+1}, {NB}"); A("s_cbranch_scc1 F_POLL")
        A.label("F_REL")
        A("s_barrier")
        ST.mark("rel")
    A(f"v_lshlrev_b32 v{T[1]}, 5, v{vLANE}")
    if P.fused:
        A(f"v_mov_b32 v{T[2]}, 0")
        A(f"s_cmp_ge_u32 s{sW}, 4"); A("s_cbranch_scc1 K2_NOCL")
        A(f"v_lshlrev_b32 v{T[3]}, 10, v0")
        A(f"v_cmp_gt_u32 vcc, {NC}, v0"); A(f"s_and_saveexec_b64 s[{sEX}:{sEX+1}], vcc")
        A(f"global_load_dword v{T[2]}, v{T[3]}, s[{sCELL}:{sCELL+1}] sc1")
        A("s_mov_b64 exec, -1")
        A.label("K2_NOCL")
    else:
        A(f"global_load_dwordx4 v[{CNT}:{CNT+3}], v{PAIR+1}, s[{sCELL}:{sCELL+1}]"+SC)
    A(f"global_load_dwordx4 v[{WF}:{WF+3}], v{T[1]}, s[{sCONST}:{sCONST+1}] offset:{CONST_WF}"+SC)
    A(f"global_load_dwordx4 v[{WF+4}:{WF+7}], v{T[1]}, s[{sCONST}:{sCONST+1}] offset:{CONST_WF+16}"+SC)
    A(f"global_load_dwordx4 v[{CG}:{CG+3}], v{T[1]}, s[{sCONST}:{sCONST+1}] offset:{CONST_CG}"+SC)
    A(f"global_load_dwordx4 v[{CG+4}:{CG+7}], v{T[1]}, s[{sCONST}:{sCONST+1}] offset:{CONST_CG+16}"+SC)
    if P.fused:
        A(f"s_cmp_ge_u32 s{sW}, 4"); A("s_cbranch_scc1 K2_NOCW")
        A("s_waitcnt vmcnt(4)")
        A(f"v_lshlrev_b32 v{T[3]}, 2, v0"); A(f"v_add_u32 v{T[3]}, {LDS_CELL}, v{T[3]}")
        A(f"ds_write_b32 v{T[3]}, v{T[2]}")
        A("s_waitcnt lgkmcnt(0)")
        A.label("K2_NOCW")
        A("s_barrier")
        A(f"v_add_u32 v{T[3]}, {LDS_CELL}, v{PAIR+1}")
        A(f"ds_read_b128 v[{CNT}:{CNT+3}], v{T[3]}")
    A("s_branch K2_ROUND1")
    A.label("K2_ROUND")
    A(f"v_lshlrev_b32 v{T[1]}, 5, v{vLANE}")
    if P.fused:
        A(f"v_add_u32 v{T[3]}, {LDS_CELL}, v{PAIR+1}")
        A(f"ds_read_b128 v[{CNT}:{CNT+3}], v{T[3]}")
    else:
        A(f"global_load_dwordx4 v[{CNT}:{CNT+3}], v{PAIR+1}, s[{sCELL}:{sCELL+1}]"+SC)
    A(f"global_load_dwordx4 v[{CG}:{CG+3}], v{T[1]}, s[{sCONST}:{sCONST+1}] offset:{CONST_CG}"+SC)
    A(f"global_load_dwordx4 v[{CG+4}:{CG+7}], v{T[1]}, s[{sCONST}:{sCONST+1}] offset:{CONST_CG+16}"+SC)
    A("s_waitcnt vmcnt(0)")
    A.label("K2_ROUND1")
    A(f"v_lshlrev_b32 v{T[0]}, 2, v0")
    A(f"v_mov_b32 v{T[1]}, 0")
    A(f"v_cmp_gt_u32 vcc, {nbins}, v0")
    A(f"s_and_saveexec_b64 s[{sEX}:{sEX+1}], vcc")
    A("s_cbranch_execz K2_NOZ")
    A(f"ds_write_b32 v{T[0]}, v{T[1]} offset:{LDS_HIST}")
    A.label("K2_NOZ")
    A(f"s_mov_b64 exec, -1")
    A("s_waitcnt lgkmcnt(0)" if P.fused else "s_waitcnt vmcnt(4)")
    ST.mark("cell")
    if P.pf and P.pfat=="cell": propf()
    A(f"v_mul_u32_u24 v{T[0]}, {4*CH}, v{vLANE}")
    for i in range(4):
        A(f"v_and_b32 v{REC0+i}, 0xffff, v{CNT+i}")
        A(f"v_lshrrev_b32 v{CNT+i}, 16, v{CNT+i}")
        if i: A(f"v_add3_u32 v{REC0+i}, v{REC0+i}, v{T[0]}, s{sCHI+i-1}")
        else: A(f"v_add_u32 v{REC0+i}, v{REC0+i}, v{T[0]}")
    A(f"v_add_u32 v{T[1]}, v{CNT}, v{CNT+1}")
    A(f"v_add_u32 v{T[2]}, v{T[1]}, v{CNT+2}")
    A(f"v_add_u32 v{T[3]}, v{T[2]}, v{CNT+3}")
    A(f"v_max3_u32 v{T[5]}, v{CNT}, v{CNT+1}, v{CNT+2}")
    A(f"v_mov_b32 v{T[4]}, v{T[3]}")
    A(f"v_max_u32 v{T[5]}, v{T[5]}, v{CNT+3}")
    dpp_scan(A,T[4])
    A(f"v_sub_u32 v{BASEC}, v{T[4]}, v{T[3]}")
    A(f"v_add_u32 v{BASEC+1}, v{BASEC}, v{CNT}")
    A(f"v_add_u32 v{BASEC+2}, v{BASEC}, v{T[1]}")
    A(f"v_add_u32 v{BASEC+3}, v{BASEC}, v{T[2]}")
    A(f"v_readlane_b32 s{sT}, v{T[4]}, 63")
    A(f"v_mov_b32 v{T[6]}, 8192")
    A(f"s_mov_b32 s{sKK}, s{sW}")
    A(f"s_cmp_eq_u32 s{sT}, 0")
    A("s_cbranch_scc1 K2_EPI")
    A.label("K2_EX")
    A(f"v_cmp_lt_u32 vcc, s{sKK}, v{T[5]}")
    A(f"s_cbranch_vccz K2_EXD")
    A(f"s_sub_u32 s{sTMP}, s{sKK}, s{sLO}")
    for i in range(4):
        A(f"v_add_u32 v{T[0]}, s{sTMP}, v{BASEC+i}")
        A(f"v_cmp_lt_u32 vcc, s{sKK}, v{CNT+i}")
        A(f"v_cmp_gt_u32 s[{sM}:{sM+1}], s{sWIN}, v{T[0]}")
        A(f"v_lshlrev_b32 v{T[0]}, 2, v{T[0]}")
        A(f"v_add_u32 v{T[1]}, s{sKK}, v{REC0+i}")
        A(f"s_and_b64 vcc, vcc, s[{sM}:{sM+1}]")
        A(f"v_cndmask_b32 v{T[0]}, v{T[6]}, v{T[0]}, vcc")
        A(f"ds_write_b32 v{T[0]}, v{T[1]} offset:{LDS_MARK}")
    A(f"s_add_u32 s{sKK}, s{sKK}, {NW}")
    A("s_branch K2_EX")
    A.label("K2_EXD")
    A("s_waitcnt lgkmcnt(0)")
    A("s_barrier")
    ST.mark("bar1")
    A(f"v_lshlrev_b32 v{T[0]}, 2, v0")
    for s in range(2): A(f"ds_read_b32 v{MK+s}, v{T[0]} offset:{LDS_MARK+s*4096}")
    A(f"v_mov_b32 v{T[2]}, 0"); A(f"v_mov_b32 v{T[3]}, 0"); A(f"v_mov_b32 v{T[1]}, {LDS_FLAG}")
    A(f"ds_write_b64 v{T[1]}, v[{T[2]}:{T[3]}]")
    A(f"s_sub_u32 s{sNR}, s{sT}, s{sLO}")
    A(f"s_min_u32 s{sNR}, s{sNR}, s{sWIN}")
    A(f"s_lshl_b32 s{sTMP}, s{sW}, 6")
    A("s_waitcnt lgkmcnt(1)")
    for s in range(2):
        A(f"s_add_u32 s{sTMP+1}, s{sTMP}, {s*1024}")
        A(f"s_cmp_ge_u32 s{sTMP+1}, s{sNR}")
        A(f"s_cbranch_scc1 K2_LD_DONE")
        A(f"v_add_u32 v{T[1]}, {s*1024}, v0")
        A(f"v_cmp_gt_u32 vcc, s{sNR}, v{T[1]}")
        A(f"v_lshlrev_b32 v{T[2]}, 2, v{MK+s}")
        A(f"v_lshlrev_b32 v{T[3]}, 4, v{MK+s}")
        A(f"s_and_saveexec_b64 s[{sEX}:{sEX+1}], vcc")
        A(f"buffer_load_dword v{KEY+s}, v{T[2]}, s[{sKEY}:{sKEY+3}], 0 offen"+SC)
        A(f"buffer_load_dwordx4 v[{PAY+4*s}:{PAY+4*s+3}], v{T[3]}, s[{sPAY}:{sPAY+3}], 0 offen"+SC)
        A(f"s_mov_b64 exec, -1")
    A.label("K2_LD_DONE")
    A(f"v_mov_b32 v{T[4]}, 1")
    A("s_waitcnt vmcnt(0)")
    ST.mark("recs")
    if P.pf and P.pfat=="recs": propf()
    for s in range(2):
        A(f"s_add_u32 s{sTMP+1}, s{sTMP}, {s*1024}")
        A(f"s_cmp_ge_u32 s{sTMP+1}, s{sNR}")
        A(f"s_cbranch_scc1 K2_H_DONE")
        A(f"v_add_u32 v{T[1]}, {s*1024}, v0")
        A(f"v_lshrrev_b32 v{BINA+s}, 17, v{KEY+s}")
        A(f"v_cmp_gt_u32 vcc, s{sNR}, v{T[1]}")
        A(f"v_lshlrev_b32 v{T[2]}, 2, v{BINA+s}")
        A(f"s_and_saveexec_b64 s[{sEX}:{sEX+1}], vcc")
        A(f"ds_add_rtn_u32 v{RANK+s}, v{T[2]}, v{T[4]} offset:{LDS_HIST}")
        A(f"s_mov_b64 exec, -1")
        for o in range(4):
            A(f"v_mfma_f32_4x4x4_16b_bf16 v[{AT+4*o}:{AT+4*o+3}], v[{CG+2*o}:{CG+2*o+1}], v[{PAY+4*s}:{PAY+4*s+1}], 0")
        A("s_nop 4")
        for o in range(4):
            A(f"v_cvt_pk_bf16_f32 v{AP+8*s+2*o}, v{AT+4*o}, v{AT+4*o+1}")
            A(f"v_cvt_pk_bf16_f32 v{AP+8*s+2*o+1}, v{AT+4*o+2}, v{AT+4*o+3}")
    A.label("K2_H_DONE")
    A("s_waitcnt lgkmcnt(0)")
    A("s_barrier")
    ST.mark("bar2")
    if P.pf and P.pfat=="bar2": propf()
    A(f"s_lshl_b32 s{sTMP+1}, s{sG8}, {(B*4).bit_length()-1}")
    A(f"v_lshlrev_b32 v{T[0]}, 2, v{vLANE}")
    A(f"v_add_u32 v{T[0]}, s{sTMP+1}, v{T[0]}")
    if B<64:
        A(f"v_mov_b32 v{T[1]}, 0")
        A(f"v_cmp_gt_u32 vcc, {B}, v{vLANE}")
        A(f"s_and_saveexec_b64 s[{sEX}:{sEX+1}], vcc")
    A(f"ds_read_b32 v{T[1]}, v{T[0]} offset:{LDS_HIST}")
    A(f"s_mov_b64 exec, -1")
    A(f"v_add_u32 v{T[2]}, s{sH}, v{vLANE}"); A(f"v_and_b32 v{T[2]}, 1, v{T[2]}")
    A(f"v_lshlrev_b32 v{T[0]}, 1, v{T[0]}"); A(f"s_lshl_b32 s{sTMP+2}, s{sH}, 2"); A(f"v_add_u32 v{T[0]}, s{sTMP+2}, v{T[0]}")
    A("s_waitcnt lgkmcnt(0)")
    A(f"v_sub_u32 v{T[1]}, v{T[1]}, v{T[2]}"); A(f"v_add_u32 v{T[1]}, 1, v{T[1]}"); A(f"v_lshrrev_b32 v{T[1]}, 1, v{T[1]}")
    A(f"v_mov_b32 v{T[2]}, v{T[1]}")
    dpp_scan(A,T[2],nrows={16:1,32:2,64:4}[B])
    A(f"s_nop 0")
    A(f"v_readlane_b32 s{sTOT}, v{T[2]}, {B-1}")
    A(f"v_sub_u32 v{T[2]}, v{T[2]}, v{T[1]}")
    A(f"v_add_u32 v{T[2]}, s{sWB}, v{T[2]}")
    if B<64:
        A(f"v_cmp_gt_u32 vcc, {B}, v{vLANE}")
        A(f"s_and_saveexec_b64 s[{sEX}:{sEX+1}], vcc")
    A(f"ds_write_b32 v{T[0]}, v{T[2]} offset:{LDS_BASE}")
    A(f"s_mov_b64 exec, -1")
    if P.bar:
        A(f"v_mov_b32 v{T[0]}, s{sTOT}"); A(f"v_mov_b32 v{T[1]}, {LDS_FLAG}")
        A(f"ds_max_u32 v{T[1]}, v{T[0]} offset:4")
    A(f"s_cmp_gt_u32 s{sTOT}, {TOTMAX}")
    A("s_cbranch_scc0 K2_NOOVF")
    A(f"v_mov_b32 v{T[0]}, 1"); A(f"v_mov_b32 v{T[1]}, {LDS_FLAG}")
    A(f"ds_write_b32 v{T[1]}, v{T[0]}")
    A("s_branch K2_PADDONE")
    A.label("K2_NOOVF")
    A.label("K2_PADDONE")
    A("s_waitcnt lgkmcnt(0)")
    A("s_barrier")
    ST.mark("bar3")
    if P.l2w:
        A(f"s_cmp_lt_u32 s{sW}, 8"); A("s_cbranch_scc1 K2_NOL2W"); A(f"s_cmp_ge_u32 s{sW}, {8+P.l2w}"); A("s_cbranch_scc1 K2_NOL2W")
        A(f"s_sub_u32 s{sQ}, s{sW}, 8")
        pf_row0(sQ,sPFO)
        A(f"v_lshlrev_b32 v125, 7, v{vLANE}")
        burst(125,124)
        A.label("K2_NOL2W")
    if P.pf and P.pfat=="bar3": propf()
    if P.pf==3 and P.pfsplit and P.pfat2=="bar3": propf(1)
    A(f"v_mov_b32 v{T[1]}, {LDS_FLAG}")
    A(f"ds_read_b32 v{T[0]}, v{T[1]}")
    if P.bar: A(f"ds_read_b32 v{T[5]}, v{T[1]} offset:4")
    for s in range(2):
        A(f"v_add_u32 v{T[2]}, v{RANK+s}, v{BINA+s}"); A(f"v_and_b32 v{T[2]}, 1, v{T[2]}")
        A(f"v_lshl_add_u32 v{T[2]}, v{BINA+s}, 1, v{T[2]}"); A(f"v_lshlrev_b32 v{T[2]}, 2, v{T[2]}")
        A(f"ds_read_b32 v{MK+s}, v{T[2]} offset:{LDS_BASE}")
    A("s_waitcnt lgkmcnt(0)")
    A(f"v_readfirstlane_b32 s{sTMP+1}, v{T[0]}")
    if P.bar:
        A(f"v_readfirstlane_b32 s{sGM}, v{T[5]}")
        A(f"s_add_u32 s{sGM}, s{sGM}, 15"); A(f"s_lshr_b32 s{sGM}, s{sGM}, 4"); A(f"s_mov_b32 s{sGB}, 0")
    A("s_nop 3")
    A(f"s_cmp_eq_u32 s{sTMP+1}, 0")
    A("s_cbranch_scc1 K2_PLACE")
    A(f"s_mov_b32 s{sWIN}, {WINSMALL}")
    A("s_branch K2_ROUND")
    A.label("K2_PLACE")
    A(f"s_add_u32 s{sTMP+2}, s{sWB}, s{sTOT}")
    A(f"v_add_u32 v{T[0]}, s{sTMP+2}, v{vLANE}")
    A(f"v_lshlrev_b32 v{T[1]}, 2, v{T[0]}")
    A(f"v_lshlrev_b32 v{T[2]}, 3, v{T[0]}")
    A(f"v_lshlrev_b32 v{T[3]}, 5, v{T[0]}"); A(f"v_add_u32 v{T[3]}, {LDS_A}, v{T[3]}")
    for q in range(4): A(f"v_mov_b32 v{T[6+q]}, 0")
    assert T[6]%2==0 and T[9]==T[6]+3
    A(f"v_cmp_gt_u32 vcc, 8, v{vLANE}")
    A(f"s_and_saveexec_b64 s[{sEX}:{sEX+1}], vcc")
    A(f"ds_write_b32 v{T[1]}, v{T[6]} offset:{LDS_IDX}")
    A(f"ds_write_b8 v{T[0]}, v{T[6]} offset:{LDS_K}")
    A(f"v_cmp_gt_u32 vcc, 4, v{vLANE}")
    A(f"s_and_b64 exec, exec, vcc")
    A(f"ds_write_b64 v{T[2]}, v[{T[6]}:{T[6]+1}] offset:{LDS_EF}")
    A(f"ds_write_b128 v{T[3]}, v[{T[6]}:{T[6]+3}]")
    A(f"ds_write_b128 v{T[3]}, v[{T[6]}:{T[6]+3}] offset:16")
    A(f"s_mov_b64 exec, -1")
    for s in range(2):
        A(f"s_add_u32 s{sTMP+1}, s{sTMP}, {s*1024}")
        A(f"s_cmp_ge_u32 s{sTMP+1}, s{sNR}")
        A(f"s_cbranch_scc1 K2_P_DONE")
        A(f"v_add_u32 v{T[1]}, {s*1024}, v0")
        A(f"v_cmp_gt_u32 vcc, s{sNR}, v{T[1]}")
        A(f"v_lshrrev_b32 v{T[0]}, 1, v{RANK+s}")
        A(f"v_add_u32 v{MK+s}, v{MK+s}, v{T[0]}")
        A(f"v_lshlrev_b32 v{T[0]}, 2, v{MK+s}")
        A(f"v_lshlrev_b32 v{T[1]}, 3, v{MK+s}")
        A(f"v_lshlrev_b32 v{T[2]}, 5, v{MK+s}")
        A(f"v_add_u32 v{T[2]}, {LDS_A}, v{T[2]}")
        A(f"v_and_b32 v{T[3]}, {hex(P.srcmask)}, v{KEY+s}")
        A(f"v_lshrrev_b32 v{T[4]}, 11, v{KEY+s}")
        A(f"v_and_b32 v{T[4]}, 0x38, v{T[4]}")
        A(f"s_and_saveexec_b64 s[{sEX}:{sEX+1}], vcc")
        A(f"ds_write_b128 v{T[2]}, v[{AP+8*s}:{AP+8*s+3}]")
        A(f"ds_write_b128 v{T[2]}, v[{AP+8*s+4}:{AP+8*s+7}] offset:16")
        A(f"ds_write_b64 v{T[1]}, v[{PAY+4*s+2}:{PAY+4*s+3}] offset:{LDS_EF}")
        A(f"ds_write_b32 v{T[0]}, v{T[3]} offset:{LDS_IDX}")
        A(f"ds_write_b8 v{MK+s}, v{T[4]} offset:{LDS_K}")
        A(f"s_mov_b64 exec, -1")
    A.label("K2_P_DONE")
    A("s_waitcnt lgkmcnt(0)")
    A("s_barrier")
    ST.mark("bar4")
    tl(4)
    if P.pf==3 and P.pfsplit and P.pfat2=="bar4": propf(1)
    ST.markc("c0")
    A(f"s_cmp_eq_u32 s{sTOT}, 0")
    A("s_cbranch_scc1 K2_MAIN_DONE")
    A(f"s_add_u32 s{sNB}, s{sTOT}, 3"); A(f"s_lshr_b32 s{sNB}, s{sNB}, 2"); A(f"s_sub_u32 s{sN}, 0, s{sNB}")
    A(f"s_lshl_b32 s{sTMP}, s{sWB}, 2"); A(f"v_mov_b32 v{vIad}, s{sTMP}")
    A(f"v_mov_b32 v{vKad}, s{sWB}")
    A(f"s_lshl_b32 s{sTMP}, s{sWB}, 5"); A(f"s_add_u32 s{sTMP}, s{sTMP}, {LDS_A}")
    A(f"v_lshlrev_b32 v{vT0}, 3, v{vLANE}")
    A(f"v_add_u32 v{vAad}, s{sTMP}, v{vT0}")
    A(f"s_lshl_b32 s{sTMP}, s{sWB}, 3"); A(f"s_add_u32 s{sTMP}, s{sTMP}, {LDS_EF}")
    A(f"v_add_u32 v{vEad}, s{sTMP}, v{vT0}")
    if P.pf and P.nrounds:
        pf_row0(sW,sPFO)
        A(f"s_lshl_b32 s{sTMP}, s{sW}, 10"); A(f"s_add_u32 s{sTMP}, s{sTMP}, s{sTMP+3}"); A(f"s_sub_i32 s{sTMP}, s{sTMP}, {P.lead}")
        A(f"s_max_i32 s{sTMP}, s{sTMP}, 0"); A(f"s_mul_i32 s{sTMP}, s{sTMP}, s{sNB}"); A(f"s_mul_i32 s{sTMP}, s{sTMP}, 6711"); A(f"s_lshr_b32 s{sTMP}, s{sTMP}, 26")
        A(f"s_sub_u32 s{sPFT}, s{sTMP}, s{sNB}")
        A(f"s_min_i32 s{sPFT}, s{sPFT}, -2")
        A(f"s_cmp_lt_u32 s{sW}, {P.npro}"); A(f"s_cselect_b32 s{sPFT}, 1, s{sPFT}")
        A(f"s_cmp_ge_u32 s{sW}, {P.nrounds}"); A(f"s_cselect_b32 s{sPFT}, 1, s{sPFT}")
        A(f"v_lshlrev_b32 v0, 7, v{vLANE}")
    def mf(d,a,b,abid,c="0"): return f"v_mfma_f32_4x4x4_16b_bf16 v[{d}:{d+3}], v[{a}:{a+1}], v[{b}:{b+1}], {c} cbsz:4 abid:{abid}"
    def xload(slot,pair): return f"buffer_load_dwordx4 v[{X+4*(slot%U)}:{X+4*(slot%U)+3}], v[{PAIR+2*pair}:{PAIR+2*pair+1}], s[{sSRD}:{sSRD+3}], 0 idxen offen"
    if P.prio in (4,5): A("s_setprio 3")
    if P.prio==5:
        A(f"s_lshr_b32 s{sQ}, s{sW}, 2"); A(f"s_lshl_b32 s{sQ}, s{sQ}, 1"); A(f"s_sub_i32 s{sQ}, s{sQ}, 3"); A(f"s_mul_i32 s{sQ}, s{sQ}, {P.pdelta}")
        for L,reg in ((2,sP3),(1,sP3+1),(0,sP3+2)):
            A(f"s_sub_i32 s{sQ+1}, {P.pth[L]}, s{sQ}"); A(f"s_mul_i32 s{sQ+1}, s{sQ+1}, s{sNB}"); A(f"s_ashr_i32 s{sQ+1}, s{sQ+1}, 6")
            A(f"s_max_i32 s{sQ+1}, s{sQ+1}, 1"); A(f"s_sub_i32 s{reg}, 0, s{sQ+1}")
        A(f"s_mov_b32 s{sLV}, 2"); A(f"s_mov_b32 s{sTH}, s{sP3}")
    for p in range(4): A(f"ds_read_b32 v{PAIR+2*p}, v{vIad} offset:{LDS_IDX+4*p}")
    A(f"ds_read_b64 v[{AOP}:{AOP+1}], v{vAad}")
    A(f"ds_read_b64 v[{EOP}:{EOP+1}], v{vEad}")
    A(f"ds_read_b32 v{vK}, v{vKad} offset:{LDS_K}")
    A("s_waitcnt lgkmcnt(3)")
    for p in range(4): A(xload(p,p))
    for p in range(4): A(f"ds_read_b32 v{PAIR+2*p}, v{vIad} offset:{LDS_IDX+4*(4+p)}")
    hi_e,hi_o,lo_e,lo_o=WF,WF+2,WF+4,WF+6
    A("s_waitcnt lgkmcnt(5)")
    for t in (0,1):
        u=UU[t]
        A(mf(u,EOP,hi_e,t)); A(mf(u+4,EOP,hi_o,t))
        A("s_nop 1")
        A(mf(u,EOP,lo_e,t,f"v[{u}:{u+3}]")); A(mf(u+4,EOP,lo_o,t,f"v[{u+4}:{u+7}]"))
    A("s_nop 2")
    u=UU[0]
    for q in range(8): A(f"v_exp_f32 v{EE+q}, v{u+q}")
    A("s_nop 0")
    for q in range(4): A(f"v_pk_add_f32 v[{EE+2*q}:{EE+2*q+1}], v[{EE+2*q}:{EE+2*q+1}], 1.0 op_sel_hi:[1,0]")
    for q in range(8): A(f"v_rcp_f32 v{EE+q}, v{EE+q}")
    A("s_nop 0")
    for q in range(2): A(f"v_pk_mul_f32 v[{RR+2*q}:{RR+2*q+1}], v[{u+2*q}:{u+2*q+1}], v[{EE+2*q}:{EE+2*q+1}]")
    body=[]
    for t in range(4):
        cur=t%2; nxt=(t+1)%2
        if P.prio==1: body.append(('s',f"s_setprio {3-t}"))
        body.append(('s',"s_waitcnt lgkmcnt(0)"))
        body.append(('s',f"v_readfirstlane_b32 s{sK[0]}, v{vK}"))
        if P.prio==5:
            body.append(('s',f"s_cmp_ge_i32 s{sN}, s{sTH}"))
            body.append(('s',f"s_cbranch_scc1 K2_PR{t}"))
            body.append(('l',f"K2_PRR{t}"))
        if P.pf and P.nrounds:
            body.append(('s',f"s_cmp_eq_u32 s{sN}, s{sPFT}"))
            body.append(('s',f"s_cbranch_scc1 K2_PF{t}"))
            body.append(('l',f"K2_PFR{t}"))
        body.append(('s',f"ds_read_b32 v{vK}, v{vKad} offset:{LDS_K+4*(t+1)}"))
        if t==0:
            body.append(('s',f"ds_read_b64 v[{EOPN}:{EOPN+1}], v{vEad} offset:128"))
            body.append(('s',f"ds_read_b64 v[{AOPN}:{AOPN+1}], v{vAad} offset:512"))
        for i in range(4):
            j=4*t+i
            x=X+4*(j%U)
            if P.prio==2 and i%2==0: body.append(('s',f"s_setprio {3-(j//2)%4}"))
            if P.prio==3: body.append(('s',f"s_setprio {3-i}"))
            un=UU[nxt]; uw=UU[cur]
            if i==0: TR=[f"v_exp_f32 v{EE+q}, v{un+q}" for q in range(4)]
            if i==1: TR=[f"v_exp_f32 v{EE+4+q}, v{un+4+q}" for q in range(4)]
            if i==2: TR=[f"v_rcp_f32 v{EE+q}, v{EE+q}" for q in range(4)]
            if i==3: TR=[f"v_rcp_f32 v{EE+4+q}, v{EE+4+q}" for q in range(4)]
            PKpre=[];PKpost=[]
            if i==0: PKpre=[f"v_pk_mul_f32 v[{RR+4+2*q}:{RR+4+2*q+1}], v[{uw+4+2*q}:{uw+4+2*q+1}], v[{EE+4+2*q}:{EE+4+2*q+1}]" for q in range(2)]
            if i==1: PKpre=[f"v_pk_add_f32 v[{EE+2*q}:{EE+2*q+1}], v[{EE+2*q}:{EE+2*q+1}], 1.0 op_sel_hi:[1,0]" for q in range(2)]
            if i==2: PKpre=[f"v_pk_add_f32 v[{EE+4+2*q}:{EE+4+2*q+1}], v[{EE+4+2*q}:{EE+4+2*q+1}], 1.0 op_sel_hi:[1,0]" for q in range(2)]
            if i==3: PKpost=[f"v_pk_mul_f32 v[{RR+2*q}:{RR+2*q+1}], v[{un+2*q}:{un+2*q+1}], v[{EE+2*q}:{EE+2*q+1}]" for q in range(2)]
            eop,ab=(EOP,t+2) if t<2 else (EOPN,t-2)
            if i==0: UM=mf(uw,eop,hi_e,ab)
            if i==1: UM=mf(uw+4,eop,hi_o,ab)
            if i==2: UM=mf(uw,eop,lo_e,ab,f"v[{uw}:{uw+3}]")
            if i==3: UM=mf(uw+4,eop,lo_o,ab,f"v[{uw+4}:{uw+7}]")
            body.append(('s',f"s_waitcnt vmcnt({U-1})"))
            body.append(('s',mf(TP,AOP,x,j)))
            body.append(('s',TR[0]))
            body.append(('s',mf(TP+4,AOP,x+2,j)))
            body.append(('s',TR[1]))
            body.append(('s',xload(j,i)))
            body.append(('s',f"ds_read_b32 v{PAIR+2*i}, v{vIad} offset:{LDS_IDX+4*(j+2*U)}"))
            body.append(('s',UM))
            body.append(('s',TR[2])); body.append(('s',TR[3]))
            for q in PKpre: body.append(('s',q))
            body.append(('s',f"s_set_gpr_idx_on s{sK[0]}, gpr_idx(SRC2,DST)"))
            sel=i%2; pr=i//2
            for h in range(4):
                R=RR+(0 if h<2 else 4)+2*pr
                a=ACC+2*h; tp=TP+2*h
                mod = "op_sel_hi:[1,0,1]" if sel==0 else "op_sel:[0,1,0] op_sel_hi:[1,1,1]"
                body.append(('s',f"v_pk_fma_f32 v[{a}:{a+1}], v[{tp}:{tp+1}], v[{R}:{R+1}], v[{a}:{a+1}] {mod}"))
            body.append(('s',"s_set_gpr_idx_off"))
            for q in PKpost: body.append(('s',q))
            if i<3: body.append(('s',f"s_lshr_b32 s{sK[0]}, s{sK[0]}, 8"))
        body.append(('s',f"s_add_u32 s{sN}, s{sN}, 1"))
        body.append(('s',"s_cbranch_scc1 K2_MAIN_DONE"))
    if P.bar:
        body.append(('s',"s_barrier")); body.append(('s',f"s_add_u32 s{sGB}, s{sGB}, 1"))
    if P.prio==4:
        body.append(('s',f"s_sub_u32 s{sQ}, 0, s{sN}")); body.append(('s',f"s_lshl_b32 s{sQ}, s{sQ}, 2"))
        for lv in (3,2,1):
            pass
        body.append(('s',f"s_mul_i32 s{sQ+1}, s{sNB}, 3")); body.append(('s',f"s_cmp_ge_u32 s{sQ}, s{sQ+1}")); body.append(('s',"s_cbranch_scc1 K2_LOOPB"))
        body.append(('s',"s_setprio 2")); body.append(('s',f"s_lshl_b32 s{sQ+1}, s{sNB}, 1")); body.append(('s',f"s_cmp_ge_u32 s{sQ}, s{sQ+1}")); body.append(('s',"s_cbranch_scc1 K2_LOOPB"))
        body.append(('s',"s_setprio 1")); body.append(('s',f"s_cmp_ge_u32 s{sQ}, s{sNB}")); body.append(('s',"s_cbranch_scc1 K2_LOOPB"))
        body.append(('s',"s_setprio 0")); body.append(('l',"K2_LOOPB"))
    body.append(('s',f"v_mov_b32 v{AOP}, v{AOPN}")); body.append(('s',f"v_mov_b32 v{AOP+1}, v{AOPN+1}"))
    body.append(('s',f"v_mov_b32 v{EOP}, v{EOPN}")); body.append(('s',f"v_mov_b32 v{EOP+1}, v{EOPN+1}"))
    body.append(('s',f"v_add_u32 v{vAad}, 512, v{vAad}")); body.append(('s',f"v_add_u32 v{vEad}, 128, v{vEad}"))
    body.append(('s',f"v_add_u32 v{vIad}, 64, v{vIad}")); body.append(('s',f"v_add_u32 v{vKad}, 16, v{vKad}"))
    body.append(('s',"s_branch K2_LOOP"))
    if "noload" in P.dbg: body=[b for b in body if not (b[0]=='s' and (b[1].startswith("buffer_load") or b[1].startswith("s_waitcnt vmcnt")))]
    if "noidx" in P.dbg: body=[b for b in body if not (b[0]=='s' and b[1].startswith("s_set_gpr"))]
    if "notrans" in P.dbg: body=[b for b in body if not (b[0]=='s' and (b[1].startswith("v_exp") or b[1].startswith("v_rcp")))]
    if "nofma" in P.dbg: body=[b for b in body if not (b[0]=='s' and b[1].startswith("v_pk_fma"))]
    if "nolo" in P.dbg: body=[b for b in body if not (b[0]=='s' and b[1].startswith("v_mfma") and (f"v[{WF+4}:{WF+5}]" in b[1] or f"v[{WF+6}:{WF+7}]" in b[1]))]
    if "nomfma" in P.dbg: body=[b for b in body if not (b[0]=='s' and b[1].startswith("v_mfma"))]
    A.label("K2_LOOP")
    for i,b in enumerate(body):
        if b[0]=='s': A(b[1])
        elif b[0]=='l': A.label(b[1])
        elif b[0]=='lds': A(b[2])
        else:
            cnt=0; found=False
            for step in range(len(body)):
                kk=(i-1-step)%len(body)
                if body[kk][0]=='lds':
                    if body[kk][1]==b[1]: found=True; break
                    cnt+=1
            assert found,b
            A(f"s_waitcnt lgkmcnt({min(cnt,15)})")
    if P.pf and P.nrounds:
        for t in range(4):
            A.label(f"K2_PF{t}")
            burst(0)
            A(f"s_branch K2_PFR{t}")
    if P.prio==5:
        for t in range(4):
            A.label(f"K2_PR{t}")
            A(f"s_cmp_eq_u32 s{sLV}, 2"); A(f"s_cbranch_scc0 K2_PRA{t}")
            A("s_setprio 2"); A(f"s_mov_b32 s{sLV}, 1"); A(f"s_mov_b32 s{sTH}, s{sP3+1}"); A(f"s_branch K2_PRR{t}")
            A.label(f"K2_PRA{t}")
            A(f"s_cmp_eq_u32 s{sLV}, 1"); A(f"s_cbranch_scc0 K2_PRB{t}")
            A("s_setprio 1"); A(f"s_mov_b32 s{sLV}, 0"); A(f"s_mov_b32 s{sTH}, s{sP3+2}"); A(f"s_branch K2_PRR{t}")
            A.label(f"K2_PRB{t}")
            A("s_setprio 0"); A(f"s_mov_b32 s{sTH}, 0x7fffffff"); A(f"s_branch K2_PRR{t}")
    A.label("K2_MAIN_DONE")
    if P.prio: A("s_setprio 0")
    if P.bar:
        A.label("K2_BARL")
        A(f"s_cmp_ge_u32 s{sGB}, s{sGM}"); A("s_cbranch_scc1 K2_BARD")
        A("s_barrier"); A(f"s_add_u32 s{sGB}, s{sGB}, 1"); A("s_branch K2_BARL")
        A.label("K2_BARD")
    if P.pf and P.nrounds:
        A(f"s_lshl_b32 s{sTMP}, s{sW}, 6"); A(f"v_add_u32 v0, s{sTMP}, v{vLANE}")
    A(f"s_add_u32 s{sLO}, s{sLO}, s{sWIN}")
    A(f"s_cmp_lt_u32 s{sLO}, s{sT}")
    A("s_cbranch_scc0 K2_EPI")
    A("s_waitcnt vmcnt(0) lgkmcnt(0)")
    A("s_branch K2_ROUND")
    A.label("K2_EPI")
    A("s_waitcnt lgkmcnt(0)")
    ST.mark("main")
    tl(8)
    ST.markc("c1")
    A(f"s_and_b32 s{sCGP}, s{sW}, 3"); A(f"s_lshr_b32 s{sRG}, s{sW}, 2")
    A(f"s_lshl_b32 s{sTMP}, s{sCGP}, 13"); A(f"s_add_u32 s{sTMP}, s{sTMP}, {CONST_WM}")
    A(f"v_add_u32 v{2}, s{sTMP}, v{PAIR+1}")
    A(f"v_add_u32 v{3}, 4096, v{2}")
    for f in range(8):
        base=2 if f<4 else 3
        A(f"global_load_dwordx4 v[{WM+4*f}:{WM+4*f+3}], v{base}, s[{sCONST}:{sCONST+1}] offset:{(f%4)*1024}"+SC)
    RSZ=CAPW*32
    A(f"s_mul_i32 s{sTMP}, s{sW}, {RSZ}"); A(f"s_add_u32 s{sTMP}, s{sTMP}, {LDS_A}")
    A(f"s_xor_b32 s{sTMP+1}, s{sW}, 1"); A(f"s_mul_i32 s{sTMP+1}, s{sTMP+1}, {RSZ}"); A(f"s_add_u32 s{sTMP+1}, s{sTMP+1}, {LDS_A}")
    A(f"v_lshlrev_b32 v4, 3, v{vLANE}")
    A(f"v_add_u32 v5, s{sTMP}, v4"); A(f"v_add_u32 v6, 2048, v5"); A(f"v_add_u32 v7, 4096, v5")
    EX=64
    def xaddr(k,regs):
        r=regs[k//2]; o=(k%2)*128
        return r,o,o+64
    A(f"s_cmp_eq_u32 s{sH}, 0")
    A("s_cbranch_scc0 K2_EXW1")
    for k in range(5):
        r,o0,o1=xaddr(k,[5,6,7]); a=ACC+8*k
        A(f"ds_write2_b64 v{r}, v[{a+2}:{a+3}], v[{a+6}:{a+7}] offset0:{o0} offset1:{o1}")
    A("s_branch K2_EXW2")
    A.label("K2_EXW1")
    for k in range(5):
        r,o0,o1=xaddr(k,[5,6,7]); a=ACC+8*k
        A(f"ds_write2_b64 v{r}, v[{a}:{a+1}], v[{a+4}:{a+5}] offset0:{o0} offset1:{o1}")
    A.label("K2_EXW2")
    pr0,pr1,pr2,vRW=PAIR,PAIR+2,PAIR+4,PAIR+6
    A(f"v_add_u32 v{pr0}, s{sTMP+1}, v4"); A(f"v_add_u32 v{pr1}, 2048, v{pr0}"); A(f"v_add_u32 v{pr2}, 4096, v{pr0}")
    A(f"s_mul_i32 s{sTMP+2}, s{sG8}, 20"); A(f"s_lshl_b32 s{sTMP+3}, s{sH}, 1"); A(f"s_add_u32 s{sTMP+2}, s{sTMP+2}, s{sTMP+3}"); A(f"s_mul_i32 s{sTMP+2}, s{sTMP+2}, {AGG_STRIDE}")
    A(f"v_lshlrev_b32 v4, 2, v{vLANE}"); A(f"v_add_u32 v{vRW}, s{sTMP+2}, v4")
    A(f"s_mul_i32 s{sTMP}, s{sRG}, 3"); A(f"s_lshl_b32 s{sTMP+1}, s{sRG}, 1"); A(f"s_add_u32 s{sTMP+1}, s{sTMP+1}, 2")
    A(f"s_cmp_lt_u32 s{sRG}, 2"); A(f"s_cselect_b32 s{sTMP}, s{sTMP}, s{sTMP+1}")
    A(f"s_mul_i32 s{sTMP+1}, s{sTMP}, {16*AGG_STRIDE}")
    A(f"v_and_b32 v3, 15, v{vLANE}"); A(f"v_lshrrev_b32 v4, 4, v{vLANE}")
    A(f"v_mul_u32_u24 v7, {AGG_STRIDE}, v3"); A(f"v_lshl_add_u32 v7, v4, 4, v7"); A(f"v_add_u32 v{PAIR+1}, s{sTMP+1}, v7")
    vMR=PAIR+1; vOUT=PAIR+3
    A(f"v_lshlrev_b32 v3, 4, v3"); A(f"v_lshl_add_u32 v{vOUT}, v4, 10, v3")
    A(f"s_lshl_b32 s{sTMP}, s{sTMP}, 2")
    A(f"s_mul_i32 s{sTMP+1}, s{sB}, {NPB}"); A(f"s_add_u32 s{sTMP+1}, s{sTMP+1}, s{sTMP}")
    A(f"s_lshl_b32 s{sTMP+1}, s{sTMP+1}, 10"); A(f"s_lshl_b32 s{sTMP+2}, s{sCGP}, 8"); A(f"s_add_u32 s{sTMP+1}, s{sTMP+1}, s{sTMP+2}")
    A(f"s_add_u32 s{sOUT}, s{sOUT}, s{sTMP+1}"); A(f"s_addc_u32 s{sOUT+1}, s{sOUT+1}, 0")
    A("s_waitcnt vmcnt(8) lgkmcnt(0)")
    A("s_barrier")
    ST.mark("barY")
    for k in range(5):
        r,o0,o1=xaddr(k,[pr0,pr1,pr2])
        A(f"ds_read2_b64 v[{EX+4*k}:{EX+4*k+3}], v{r} offset0:{o0} offset1:{o1}")
    A(f"s_cmp_eq_u32 s{sH}, 0")
    A("s_cbranch_scc0 K2_CB1")
    for hh in range(2):
        if hh==1: A.label("K2_CB1")
        off=0 if hh==0 else 2
        for k in range(5):
            a=ACC+8*k+off; e=EX+4*k
            A(f"s_waitcnt lgkmcnt({min(4-k+2*k,15)})")
            A(f"v_pk_add_f32 v[{a}:{a+1}], v[{a}:{a+1}], v[{e}:{e+1}]")
            A(f"v_pk_add_f32 v[{a+4}:{a+5}], v[{a+4}:{a+5}], v[{e+2}:{e+3}]")
            A(f"v_pk_mul_f32 v[{a}:{a+1}], v[{a}:{a+1}], s[{sLN2}:{sLN2+1}]")
            A(f"v_pk_mul_f32 v[{a+4}:{a+5}], v[{a+4}:{a+5}], s[{sLN2}:{sLN2+1}]")
            A(f"v_cvt_pk_bf16_f32 v{2+2*(k%2)}, v{a}, v{a+4}")
            A(f"v_cvt_pk_bf16_f32 v{3+2*(k%2)}, v{a+1}, v{a+5}")
            A(f"ds_write_b32 v{vRW}, v{2+2*(k%2)} offset:{(4*k)*AGG_STRIDE}")
            A(f"ds_write_b32 v{vRW}, v{3+2*(k%2)} offset:{(4*k+1)*AGG_STRIDE}")
        if hh==0: A("s_branch K2_CB2")
    A.label("K2_CB2")
    A("s_waitcnt lgkmcnt(0)")
    A("s_barrier")
    ST.mark("barZ")
    D=ACC; FR=64
    fl={0:"",1:" sc1",2:" sc0 sc1",3:" nt"}[P.outwt]
    def rd(q):
        for ks in range(4): A(f"ds_read_b128 v[{FR+16*(q%2)+4*ks}:{FR+16*(q%2)+4*ks+3}], v{vMR} offset:{q*16*AGG_STRIDE+ks*64}")
    def mm(q):
        for ks in range(4):
            for p in range(2):
                d=D+8*q+4*p; f=FR+16*(q%2)+4*ks; w=WM+4*(4*p+ks)
                c="0" if ks==0 else f"v[{d}:{d+3}]"
                A(f"v_mfma_f32_16x16x32_bf16 v[{d}:{d+3}], v[{f}:{f+3}], v[{w}:{w+3}], {c}")
    def st(q):
        d=D+8*q; o=D+24+4*q
        A(f"v_cvt_pk_bf16_f32 v{o}, v{d}, v{d+1}"); A(f"v_cvt_pk_bf16_f32 v{o+1}, v{d+2}, v{d+3}")
        A(f"v_cvt_pk_bf16_f32 v{o+2}, v{d+4}, v{d+5}"); A(f"v_cvt_pk_bf16_f32 v{o+3}, v{d+6}, v{d+7}")
        if q: A(f"v_add_u32 v{vOUT}, 4096, v{vOUT}")
        A(f"global_store_dwordx4 v{vOUT}, v[{o}:{o+3}], s[{sOUT}:{sOUT+1}]"+fl)
    rd(0); rd(1)
    A("s_waitcnt vmcnt(0) lgkmcnt(4)")
    mm(0)
    A(f"s_cmp_lt_u32 s{sRG}, 2")
    A("s_cbranch_scc0 K2_MIX2")
    rd(2)
    A("s_waitcnt lgkmcnt(4)")
    mm(1)
    st(0)
    A("s_waitcnt lgkmcnt(0)")
    mm(2)
    st(1)
    A("s_nop 4")
    st(2)
    A("s_branch K2_MIXD")
    A.label("K2_MIX2")
    A("s_waitcnt lgkmcnt(0)")
    mm(1)
    st(0)
    A("s_nop 4")
    st(1)
    A.label("K2_MIXD")
    if P.tl:
        A("s_waitcnt vmcnt(0)"); tl(12)
        if not P.fused:
            A(f"s_lshl_b32 s74, s2, 3"); A("s_add_u32 s74, s74, 0x7F0000"); A("v_mov_b32 v4, s74")
            A("v_cmp_eq_u32 vcc, 0, v0"); A("s_and_saveexec_b64 s[76:77], vcc"); A("s_cbranch_execz K2_TLZ")
            A(f"global_load_dwordx2 v[6:7], v4, s[{sWS}:{sWS+1}]"); A("s_waitcnt vmcnt(0)")
            A("v_not_b32 v6, v6"); A("v_mov_b32 v3, 0")
            A("global_atomic_umax v3, v6, s[72:73] offset:16"); A("global_atomic_umax v3, v7, s[72:73] offset:20")
            A.label("K2_TLZ"); A("s_mov_b64 exec, s[76:77]")
    ST.mark("iss")
    if P.stamps:
        A("s_waitcnt vmcnt(0)")
        ST.mark("done")
        ST.dump(sWS,1,2,sW,2)
    A.label("K2_END")
    A("s_endpgm")
    A.label("K2_CODE_END")
    return NV

def kd(name,nv,ns):
    nv8=(nv+3)//4*4
    return f""".amdhsa_kernel {name}
  .amdhsa_next_free_vgpr {nv8}
  .amdhsa_next_free_sgpr {ns}
  .amdhsa_accum_offset {nv8}
  .amdhsa_group_segment_fixed_size 0
  .amdhsa_kernarg_size 88
  .amdhsa_user_sgpr_count 2
  .amdhsa_user_sgpr_kernarg_segment_ptr 1
  .amdhsa_system_sgpr_workgroup_id_x 1
  .amdhsa_float_denorm_mode_32 3
.end_amdhsa_kernel
"""

def main():
    ap=argparse.ArgumentParser()
    ap.add_argument("-o",default="standalone__tensor_product_equiv_tfn__graph.s")
    ap.add_argument("--U",type=int,default=8)
    ap.add_argument("--B",type=int,default=32)
    ap.add_argument("--rot",type=int,default=0)
    ap.add_argument("--stamps",type=int,default=0)
    ap.add_argument("--srcmask",type=lambda x:int(x,0),default=0x3fff)
    ap.add_argument("--dbg",default="")
    ap.add_argument("--xmap",type=int,default=1)
    ap.add_argument("--prio",type=int,default=5)
    ap.add_argument("--pf",type=int,default=3)
    ap.add_argument("--npro",type=int,default=2)
    ap.add_argument("--lead",type=int,default=1500)
    ap.add_argument("--nrounds",type=int,default=0)
    ap.add_argument("--bar",type=int,default=0)
    ap.add_argument("--k1stage",type=int,default=1)
    ap.add_argument("--k1wt",type=int,default=1)
    ap.add_argument("--k1pf",type=int,default=0)
    ap.add_argument("--pfat",default="recs")
    ap.add_argument("--k1l2",type=int,default=0)
    ap.add_argument("--outwt",type=int,default=1)
    ap.add_argument("--codepf",type=int,default=1)
    ap.add_argument("--k1rows",type=int,default=10000)
    ap.add_argument("--fused",type=int,default=1)
    ap.add_argument("--fpf",type=int,default=0)
    ap.add_argument("--sleep",type=int,default=0)
    ap.add_argument("--nfast",type=int,default=245)
    ap.add_argument("--pfsplit",type=int,default=0)
    ap.add_argument("--tl",type=int,default=0)
    ap.add_argument("--pdelta",type=int,default=3)
    ap.add_argument("--pth",type=lambda x:[int(v) for v in x.split(",")],default=[16,32,48])
    ap.add_argument("--l2w",type=int,default=0)
    ap.add_argument("--flags",type=int,default=1)
    ap.add_argument("--pfat2",default="bar4")
    ap.add_argument("--sfast",type=int,default=8)
    P=ap.parse_args()
    hdr=open("standalone__tensor_product_equiv_tfn__graph.s.ref").read().split("; Override")[0]
    A=Asm()
    A.L.append(hdr.rstrip("\n"))
    if P.fused:
        A.L.append(f"; @launch grid=({NB},1,1) block=(1024,1,1) lds={K2_LDS}")
    else:
        A.L.append(f"; @launch kernel=tfn_bin_kernel grid=({NC+K1_CONST_WGS},1,1) block=({K1_THREADS},1,1) lds={2048+CH*20 if P.k1stage else 2048}")
        A.L.append(f"; @launch kernel=standalone__tensor_product_equiv_tfn__graph_kernel grid=({NB},1,1) block=(1024,1,1) lds={K2_LDS}")
    A('.amdgcn_target "amdgcn-amd-amdhsa--gfx950"')
    A(".text")
    if not P.fused: A(".globl tfn_bin_kernel")
    A(".globl standalone__tensor_product_equiv_tfn__graph_kernel")
    if not P.fused: gen_k1(A,P)
    nv=gen_k2(A,P)
    A('.section .rodata,"a"')
    A(".p2align 6")
    s=A.text()+("" if P.fused else kd("tfn_bin_kernel",72,102 if P.stamps else 40)+".p2align 6\n")+kd("standalone__tensor_product_equiv_tfn__graph_kernel",nv,102 if P.stamps else 80)
    open(P.o,"w").write(s)
    print("wrote",P.o,len(s),"bytes")
main()
```

```python
import sys, struct, argparse

N=10000; E=320000; C=128
NPB=40
NB=250
NC=250
CH=1280
K1_THREADS=320
K1_CONST_WGS=8
import os
WS_BASE=int(os.environ.get("WSBASE","0"),0)
WS_KEYS=WS_BASE; WS_PAY=WS_BASE+0x140000; WS_CELL=WS_BASE+0x630000; WS_CONST=WS_BASE+0x680000; WS_FLAG=WS_BASE+0x6A0000; WS_GRAN=WS_BASE+0x700000
CONST_WF=0; CONST_CG=2048; CONST_WM=4096
LOG2E=1.4426950408889634; LN2=0.6931471805599453
def f2u(f): return struct.unpack("<I",struct.pack("<f",f))[0]

class Asm:
    def __init__(s): s.L=[]
    def __call__(s,x=""):
        for l in x.split("\n"):
            s.L.append(l if (l.endswith(":") or l.startswith(".") or l=="" ) else "    "+l)
    def c(s,x): s.L.append("    ; "+x)
    def label(s,x): s.L.append(x+":")
    def text(s): return "\n".join(s.L)+"\n"

def vr(a,n=1): return f"v{a}" if n==1 else f"v[{a}:{a+n-1}]"
def sr(a,n=1): return f"s{a}" if n==1 else f"s[{a}:{a+n-1}]"

WS_STAMP=0x800000
class Stamps:
    def __init__(s,A,on,kn,base_sgpr=int(os.environ.get('STBASE','82')),tmp=int(os.environ.get('STTMP','80'))): s.A=A; s.on=on; s.n=0; s.base=base_sgpr; s.tmp=tmp; s.kn=kn
    def mark(s,name=""):
        if not s.on: return
        A=s.A
        A(f"s_memrealtime s[{s.tmp}:{s.tmp+1}]")
        A("s_waitcnt lgkmcnt(0)")
        A(f"s_mov_b32 s{s.base+s.n}, s{s.tmp}")
        s.n+=1
    def markc(s,name=""):
        if not s.on: return
        A=s.A
        A(f"s_memtime s[{s.tmp}:{s.tmp+1}]")
        A("s_waitcnt lgkmcnt(0)")
        A(f"s_mov_b32 s{s.base+s.n}, s{s.tmp}")
        s.n+=1
    def dump(s,wsreg,kernel,wgreg,wavereg,vtmp):
        if not s.on: return
        A=s.A
        A(f"s_lshl_b32 s{s.tmp}, s{wgreg}, 4"); A(f"s_add_u32 s{s.tmp}, s{s.tmp}, s{wavereg}"); A(f"s_lshl_b32 s{s.tmp}, s{s.tmp}, 7")
        A(f"s_add_u32 s{s.tmp}, s{s.tmp}, {WS_STAMP+kernel*0x100000}")
        A(f"s_add_u32 s{s.tmp}, s{wsreg}, s{s.tmp}"); A(f"s_addc_u32 s{s.tmp+1}, s{wsreg+1}, 0")
        A(f"v_mov_b32 v{vtmp}, 0")
        for i in range(s.n):
            A(f"v_mov_b32 v{vtmp+1}, s{s.base+i}")
            A(f"global_store_dword v{vtmp}, v{vtmp+1}, s[{s.tmp}:{s.tmp+1}] offset:{4*i}")
            A("s_nop 1")

def dpp_scan(A,v,nrows=4):
    for sh in (1,2,4,8):
        A("s_nop 1")
        A(f"v_add_u32_dpp v{v}, v{v}, v{v} row_shr:{sh} row_mask:0xf bank_mask:0xf bound_ctrl:1")
    if nrows>=2:
        A("s_nop 1")
        A(f"v_add_u32_dpp v{v}, v{v}, v{v} row_bcast:15 row_mask:0xa bank_mask:0xf")
    if nrows>=4:
        A("s_nop 1")
        A(f"v_add_u32_dpp v{v}, v{v}, v{v} row_bcast:31 row_mask:0xc bank_mask:0xf")

def gen_k1(A,P):
    B=P.B
    blkmul={32:209,16:104,64:419}[B]
    assert ((N-1)*blkmul)>>16 < B
    for d in range(N):
        b=(d*52429)>>21; assert b==d//40
    for dl in range(40): assert (dl*205)>>10==dl//5
    A(".p2align 8")
    A(".type tfn_bin_kernel,@function")
    A.label("tfn_bin_kernel")
    A(f"s_cmp_ge_u32 s2, {NC+K1_CONST_WGS}")
    A("s_cbranch_scc1 K1_END")
    A("s_load_dwordx4 s[4:7], s[0:1], 8")
    A("s_load_dwordx4 s[8:11], s[0:1], 24")
    A("s_load_dwordx2 s[12:13], s[0:1], 80")
    if P.k1pf: A("s_load_dwordx2 s[32:33], s[0:1], 0")
    A(f"s_cmp_ge_u32 s2, {NC}")
    A("s_cbranch_scc1 K1_CONST")
    ST=Stamps(A,P.stamps,"K1")
    ST.mark("start")
    if P.tl:
        A("s_memrealtime s[38:39]"); A("s_waitcnt lgkmcnt(0)")
    A(f"s_mul_i32 s14, s2, {CH*4}")
    A("v_lshlrev_b32 v1, 4, v0")
    A("v_add_u32 v1, s14, v1")
    A("v_lshlrev_b32 v2, 1, v1")
    A("v_lshlrev_b32 v3, 2, v0")
    A("v_mov_b32 v4, 0")
    A("v_mov_b32 v5, 1")
    A("v_cmp_gt_u32 vcc, 0x100, v0")
    A("s_and_saveexec_b64 s[16:17], vcc")
    A("s_cbranch_execz K1_NOZ")
    A("ds_write_b32 v3, v4")
    A.label("K1_NOZ")
    A("s_mov_b64 exec, s[16:17]")
    A("s_waitcnt lgkmcnt(0)")
    A("global_load_dwordx4 v[8:11], v1, s[6:7]")
    A("global_load_dwordx4 v[12:15], v1, s[4:5]")
    A("global_load_dwordx4 v[16:19], v2, s[8:9]")
    A("global_load_dwordx4 v[20:23], v2, s[8:9] offset:16")
    A("global_load_dwordx4 v[24:27], v2, s[10:11]")
    A("global_load_dwordx4 v[28:31], v2, s[10:11] offset:16")
    def k1pf():
        if P.k1l2==0:
            per=(P.k1rows*8+249)//250
            A(f"s_mul_i32 s34, s2, {per*128}")
            A("v_lshlrev_b32 v68, 7, v0"); A("v_add_u32 v68, s34, v68")
            if per<320:
                A(f"v_cmp_gt_u32 vcc, {per}, v0"); A("s_and_saveexec_b64 s[36:37], vcc"); A("s_cbranch_execz K1_NOPF")
            A("global_load_dword v69, v68, s[32:33]")
            if per<320:
                A.label("K1_NOPF"); A("s_mov_b64 exec, s[36:37]")
        else:
            A("s_lshr_b32 s34, s2, 3"); A(f"s_mul_i32 s34, s34, {320*128}")
            A("v_lshlrev_b32 v68, 7, v0"); A("v_add_u32 v68, s34, v68")
            for q in range(P.k1l2):
                A("global_load_dword v69, v68, s[32:33]")
                A(f"v_add_u32 v68, {10240*128}, v68")
            rem=80000-10240*P.k1l2; per=(rem+249)//250
            assert per<=320
            A(f"s_mul_i32 s34, s2, {per}"); A(f"s_add_u32 s34, s34, {10240*P.k1l2}")
            A("v_add_u32 v70, s34, v0")
            A(f"v_cmp_gt_u32 vcc, {per}, v0"); A(f"s_mov_b32 s35, 80000"); A("v_cmp_gt_u32 s[36:37], s35, v70"); A("s_and_b64 vcc, vcc, s[36:37]")
            A("v_lshlrev_b32 v70, 7, v70")
            A("s_and_saveexec_b64 s[36:37], vcc")
            A("s_cbranch_execz K1_NOPF")
            A("global_load_dword v71, v70, s[32:33]")
            A.label("K1_NOPF")
            A("s_mov_b64 exec, s[36:37]")
    if P.k1pf==1: k1pf()
    A(f"s_mul_i32 s15, s2, {CH*16}")
    A(f"s_add_u32 s18, s12, {WS_KEYS}"); A("s_addc_u32 s19, s13, 0")
    A("s_add_u32 s18, s18, s14"); A("s_addc_u32 s19, s19, 0")
    A(f"s_add_u32 s20, s12, {WS_PAY}"); A("s_addc_u32 s21, s13, 0")
    A("s_add_u32 s20, s20, s15"); A("s_addc_u32 s21, s21, 0")
    A("s_lshl_b32 s15, s2, 2")
    A(f"s_add_u32 s22, s12, {WS_CELL}"); A("s_addc_u32 s23, s13, 0")
    A("s_add_u32 s22, s22, s15"); A("s_addc_u32 s23, s23, 0")
    A("s_movk_i32 s24, -40")
    A("v_lshrrev_b32 v6, 6, v0")
    A("v_and_b32 v7, 63, v0")
    A("v_readfirstlane_b32 s25, v6")
    A("s_barrier")
    A(f"s_waitcnt vmcnt({5 if P.k1pf==1 else 4})")
    ST.mark("ld")
    for i in range(4):
        d=8+i; s=12+i
        A(f"v_mul_u32_u24 v44, 0xcccd, v{d}")
        A("v_lshrrev_b32 v44, 21, v44")
        A(f"v_mad_i32_i24 v45, v44, s24, v{d}")
        A(f"v_lshlrev_b32 v{36+i}, 2, v44")
        A(f"ds_add_rtn_u32 v{40+i}, v{36+i}, v5")
        A("v_mul_u32_u24 v46, 0xcd, v45")
        A("v_lshrrev_b32 v46, 10, v46")
        A("v_mad_i32_i24 v47, v46, -5, v45")
        A(f"v_mul_u32_u24 v48, {blkmul}, v{s}")
        A("v_lshrrev_b32 v48, 16, v48")
        if P.rot:
            A("v_mul_u32_u24 v49, 2098, v44"); A("v_lshrrev_b32 v49, 16, v49")
            A(f"v_mul_u32_u24 v49, {(B//8)*P.rot}, v49")
            A("v_add_u32 v48, v48, v49")
            A(f"v_and_b32 v48, {B-1}, v48")
        sh={16:4,32:5,64:6}[B]
        A(f"v_lshl_add_u32 v48, v46, {sh}, v48")
        A(f"v_lshl_or_b32 v{32+i}, v47, 14, v{s}")
        A(f"v_lshl_or_b32 v{32+i}, v48, 17, v{32+i}")
    A(f"s_waitcnt vmcnt({1 if P.k1pf==1 else 0})")
    A("v_swap_b32 v18, v24"); A("v_swap_b32 v19, v25"); A("v_swap_b32 v22, v28"); A("v_swap_b32 v23, v29")
    pay=[16,24,20,28]
    A("v_lshlrev_b32 v50, 4, v7")
    A("s_waitcnt lgkmcnt(0)")
    A("s_barrier")
    ST.mark("hist")
    if P.k1pf==2: k1pf()
    A("ds_read_b128 v[52:55], v50")
    A("s_waitcnt lgkmcnt(0)")
    A("v_add_u32 v56, v52, v53")
    A("v_add_u32 v57, v56, v54")
    A("v_add_u32 v58, v57, v55")
    A("v_mov_b32 v59, v58")
    dpp_scan(A,59)
    A("v_sub_u32 v60, v59, v58")
    A("v_add_u32 v61, v60, v52")
    A("v_add_u32 v62, v60, v56")
    A("v_add_u32 v63, v60, v57")
    A("ds_write_b128 v50, v[60:63] offset:1024")
    for i in range(4):
        A(f"s_cmp_lg_u32 s25, {i}")
        A(f"s_cbranch_scc1 K1_CS{i}")
        A(f"v_lshl_or_b32 v64, v{52+i}, 16, v{60+i}")
        A(f"v_lshlrev_b32 v65, 12, v7")
        if i: A(f"v_add_u32 v65, {i*1024}, v65")
        A(f"v_cmp_gt_u32 vcc, {(NB-i+3)//4}, v7")
        A("s_and_saveexec_b64 s[16:17], vcc")
        A("global_store_dword v65, v64, s[22:23]")
        A(f"s_cmp_ge_u32 s2, {256-NC}")
        A(f"s_cbranch_scc1 K1_CZ{i}")
        A(f"global_store_dword v65, v4, s[22:23] offset:{NC*4}")
        A.label(f"K1_CZ{i}")
        A("s_mov_b64 exec, s[16:17]")
        A.label(f"K1_CS{i}")
    A("s_waitcnt lgkmcnt(0)")
    for i in range(4): A(f"ds_read_b32 v{44+i}, v{36+i} offset:1024")
    if not P.k1stage:
        for i in range(4):
            A(f"s_waitcnt lgkmcnt({3-i})")
            A(f"v_add_u32 v{44+i}, v{44+i}, v{40+i}")
            A(f"v_lshlrev_b32 v48, 2, v{44+i}")
            A(f"v_lshlrev_b32 v49, 4, v{44+i}")
            A(f"global_store_dwordx4 v49, v[{pay[i]}:{pay[i]+3}], s[20:21]")
            A(f"global_store_dword v48, v{32+i}, s[18:19]")
            A("s_nop 1")
    else:
        KST=2048; PST=KST+CH*4
        fl={0:"",1:" sc1",2:" sc0 sc1",3:" nt"}[P.k1wt]
        for i in range(4):
            A(f"s_waitcnt lgkmcnt({3-i+2*i})")
            A(f"v_add_u32 v{44+i}, v{44+i}, v{40+i}")
            A(f"v_lshlrev_b32 v48, 2, v{44+i}")
            A(f"v_lshlrev_b32 v49, 4, v{44+i}")
            A(f"ds_write_b128 v49, v[{pay[i]}:{pay[i]+3}] offset:{PST}")
            A(f"ds_write_b32 v48, v{32+i} offset:{KST}")
        A("v_lshlrev_b32 v50, 4, v0")
        A("s_waitcnt lgkmcnt(0)")
        A("s_barrier")
        A(f"ds_read_b128 v[8:11], v50 offset:{KST}")
        for q in range(4): A(f"ds_read_b128 v[{12+4*q}:{15+4*q}], v50 offset:{PST+q*5120}")
        A("v_add_u32 v51, 5120, v50"); A("v_add_u32 v52, 10240, v50"); A("v_add_u32 v53, 15360, v50")
        A("s_waitcnt lgkmcnt(4)")
        A(f"global_store_dwordx4 v50, v[8:11], s[18:19]{fl}")
        for q in range(4):
            A(f"s_waitcnt lgkmcnt({3-q})")
            A(f"global_store_dwordx4 v{50+q}, v[{12+4*q}:{15+4*q}], s[20:21]{fl}")
    if P.k1pf==3: k1pf()
    if P.tl:
        A("s_waitcnt vmcnt(0)"); A("s_memrealtime s[34:35]"); A("s_waitcnt lgkmcnt(0)")
        A("s_cmp_lg_u32 s25, 0"); A("s_cbranch_scc1 K1_TLX")
        A("s_lshl_b32 s36, s2, 3"); A("s_add_u32 s36, s36, 0x7F0000")
        A("v_mov_b32 v68, s38"); A("v_mov_b32 v69, s34"); A("v_mov_b32 v70, s36")
        A("global_store_dwordx2 v70, v[68:69], s[12:13]")
        A.label("K1_TLX")
    ST.mark("iss")
    if P.stamps:
        A("s_waitcnt vmcnt(0)")
        ST.mark("done")
        ST.dump(12,0,2,25,66)
    A("s_endpgm")
    A.label("K1_CONST")
    A("s_load_dwordx2 s[26:27], s[0:1], 40")
    A("s_load_dwordx4 s[28:31], s[0:1], 48")
    A("v_lshrrev_b32 v6, 6, v0")
    A("s_nop 0")
    A("v_readfirstlane_b32 s25, v6")
    A(f"s_sub_u32 s14, s2, {NC}")
    A("v_and_b32 v7, 63, v0")
    A("s_waitcnt lgkmcnt(0)")
    A(f"s_add_u32 s18, s12, {WS_CONST}"); A("s_addc_u32 s19, s13, 0")
    A("s_cmp_eq_u32 s25, 4")
    A("s_cbranch_scc1 K1_CW4")
    A("s_and_b32 s15, s14, 1")
    A("s_lshr_b32 s16, s14, 1")
    A("s_lshl_b32 s16, s16, 5"); A("s_add_u32 s16, s16, s15")
    A("v_and_b32 v1, 15, v7"); A("v_lshlrev_b32 v1, 1, v1"); A("v_add_u32 v1, s16, v1")
    A("v_lshrrev_b32 v2, 4, v7"); A("v_lshlrev_b32 v2, 3, v2")
    A("s_lshl_b32 s17, s25, 5"); A("v_add_u32 v2, s17, v2")
    A("v_lshlrev_b32 v2, 7, v2"); A("v_add_u32 v2, v2, v1"); A("v_lshlrev_b32 v2, 1, v2")
    for r in range(8): A(f"global_load_ushort v{8+r}, v2, s[30:31] offset:{r*256}")
    A("s_lshl_b32 s17, s14, 12")
    A("v_lshlrev_b32 v3, 4, v0"); A("v_add_u32 v3, s17, v3"); A(f"v_add_u32 v3, {CONST_WM}, v3")
    A("s_waitcnt vmcnt(0)")
    for r in range(4): A(f"v_lshl_or_b32 v{16+r}, v{9+2*r}, 16, v{8+2*r}")
    A("global_store_dwordx4 v3, v[16:19], s[18:19]")
    A("s_endpgm")
    A.label("K1_CW4")
    A("s_cmp_eq_u32 s14, 0"); A("s_cbranch_scc1 K1_WF")
    A("s_cmp_eq_u32 s14, 1"); A("s_cbranch_scc1 K1_CG")
    if P.codepf&1:
        A("s_cmp_eq_u32 s14, 2"); A("s_cbranch_scc0 K1_CPX")
        A("s_getpc_b64 s[34:35]")
        A.label("K1_PC")
        A("s_add_u32 s34, s34, standalone__tensor_product_equiv_tfn__graph_kernel-K1_PC"); A("s_addc_u32 s35, s35, 0")
        A("v_lshlrev_b32 v1, 7, v7")
        for q in range(2):
            A(f"v_add_u32 v2, {q*8192}, v1")
            A(f"v_cmp_gt_u32 vcc, K2_CODE_END-standalone__tensor_product_equiv_tfn__graph_kernel, v2")
            A("s_and_saveexec_b64 s[36:37], vcc")
            A(f"s_cbranch_execz K1_CPS{q}")
            A(f"global_load_dword v{8+q}, v2, s[34:35]")
            A.label(f"K1_CPS{q}")
            A("s_mov_b64 exec, s[36:37]")
        A.label("K1_CPX")
    A("s_endpgm")
    A.label("K1_WF")
    A("v_lshlrev_b32 v1, 2, v7")
    for k in range(4): A(f"global_load_dword v{8+k}, v1, s[26:27] offset:{k*256}")
    A(f"s_mov_b32 s15, 0x{f2u(-LOG2E):08x}")
    A("s_mov_b32 s16, 0xffff0000")
    A("s_waitcnt vmcnt(0)")
    for k in range(4):
        A(f"v_lshlrev_b32 v{12+k}, 16, v{8+k}")
        A(f"v_and_b32 v{16+k}, s16, v{8+k}")
    for k in range(8): A(f"v_mul_f32 v{12+k}, s15, v{12+k}")
    A("v_cvt_pk_bf16_f32 v20, v12, v13"); A("v_cvt_pk_bf16_f32 v21, v14, v15")
    A("v_cvt_pk_bf16_f32 v22, v16, v17"); A("v_cvt_pk_bf16_f32 v23, v18, v19")
    for q in range(4):
        A(f"v_lshlrev_b32 v28, 16, v{20+q}")
        A(f"v_and_b32 v29, s16, v{20+q}")
        A(f"v_sub_f32 v28, v{12+2*q}, v28")
        A(f"v_sub_f32 v29, v{13+2*q}, v29")
        A(f"v_cvt_pk_bf16_f32 v{24+q}, v28, v29")
    A("v_lshlrev_b32 v3, 5, v7")
    A(f"global_store_dwordx4 v3, v[20:23], s[18:19] offset:{CONST_WF}")
    A(f"global_store_dwordx4 v3, v[24:27], s[18:19] offset:{CONST_WF+16}")
    A("s_endpgm")
    A.label("K1_CG")
    A("v_and_b32 v1, 3, v7"); A("v_lshlrev_b32 v1, 5, v1")
    for f in range(4): A(f"global_load_dwordx2 v[{8+2*f}:{9+2*f}], v1, s[28:29] offset:{f*8}")
    A("s_mov_b32 s15, 0x05040100"); A("s_mov_b32 s16, 0x07060302")
    A("s_waitcnt vmcnt(0)")
    for o in range(4):
        sel="s15" if o%2==0 else "s16"; h=o//2
        A(f"v_perm_b32 v{16+2*o}, v{10+h}, v{8+h}, {sel}")
        A(f"v_perm_b32 v{17+2*o}, v{14+h}, v{12+h}, {sel}")
    A("v_lshlrev_b32 v3, 5, v7"); A(f"v_add_u32 v3, {CONST_CG}, v3")
    A("global_store_dwordx4 v3, v[16:19], s[18:19]")
    A("global_store_dwordx4 v3, v[20:23], s[18:19] offset:16")
    A.label("K1_END")
    A("s_endpgm")


def gen_phase1(A,P,ST):
    B=P.B
    blkmul={32:209,16:104,64:419}[B]
    A("s_load_dwordx4 s[4:7], s[0:1], 8")
    A("s_load_dwordx4 s[8:11], s[0:1], 24")
    A("s_load_dwordx2 s[12:13], s[0:1], 80")
    A("s_load_dwordx2 s[26:27], s[0:1], 40")
    A("s_load_dwordx4 s[28:31], s[0:1], 48")
    A("s_load_dwordx2 s[32:33], s[0:1], 0")
    A("s_load_dwordx2 s[72:73], s[0:1], 72")
    A("v_lshrrev_b32 v6, 6, v0")
    A("v_and_b32 v7, 63, v0")
    A("v_readfirstlane_b32 s25, v6")
    A("s_nop 3")
    A("s_cmp_ge_u32 s25, 5")
    A("s_cbranch_scc1 F_OTHER")
    A(f"s_mul_i32 s14, s2, {CH*4}")
    A("v_lshlrev_b32 v1, 4, v0")
    A("v_add_u32 v1, s14, v1")
    A("v_lshlrev_b32 v2, 1, v1")
    A("v_lshlrev_b32 v3, 2, v0")
    A("v_mov_b32 v4, 0")
    A("v_mov_b32 v5, 1")
    A("v_cmp_gt_u32 vcc, 0x100, v0")
    A("s_and_saveexec_b64 s[16:17], vcc")
    A("s_cbranch_execz F_NOZ")
    A("ds_write_b32 v3, v4")
    A.label("F_NOZ")
    A("s_mov_b64 exec, s[16:17]")
    A("s_waitcnt lgkmcnt(0)")
    A("global_load_dwordx4 v[8:11], v1, s[6:7]")
    A("global_load_dwordx4 v[12:15], v1, s[4:5]")
    A("global_load_dwordx4 v[16:19], v2, s[8:9]")
    A("global_load_dwordx4 v[20:23], v2, s[8:9] offset:16")
    A("global_load_dwordx4 v[24:27], v2, s[10:11]")
    A("global_load_dwordx4 v[28:31], v2, s[10:11] offset:16")
    A(f"s_mul_i32 s15, s2, {CH*16}")
    A(f"s_add_u32 s18, s12, {WS_KEYS}"); A("s_addc_u32 s19, s13, 0")
    A("s_add_u32 s18, s18, s14"); A("s_addc_u32 s19, s19, 0")
    A(f"s_add_u32 s20, s12, {WS_PAY}"); A("s_addc_u32 s21, s13, 0")
    A("s_add_u32 s20, s20, s15"); A("s_addc_u32 s21, s21, 0")
    A(f"s_lshl_b32 s15, s2, {3 if P.gran else 10}")
    A(f"s_add_u32 s22, s12, {WS_GRAN if P.gran else WS_CELL}"); A("s_addc_u32 s23, s13, 0")
    A("s_add_u32 s22, s22, s15"); A("s_addc_u32 s23, s23, 0")
    A("s_movk_i32 s24, -40")
    A("s_barrier")
    A("s_waitcnt vmcnt(4)")
    for i in range(4):
        d=8+i; s=12+i
        A(f"v_mul_u32_u24 v44, 0xcccd, v{d}")
        A("v_lshrrev_b32 v44, 21, v44")
        A(f"v_mad_i32_i24 v45, v44, s24, v{d}")
        A(f"v_lshlrev_b32 v{36+i}, 2, v44")
        A(f"ds_add_rtn_u32 v{40+i}, v{36+i}, v5")
        A("v_mul_u32_u24 v46, 0xcd, v45")
        A("v_lshrrev_b32 v46, 10, v46")
        A("v_mad_i32_i24 v47, v46, -5, v45")
        A(f"v_mul_u32_u24 v48, {blkmul}, v{s}")
        A("v_lshrrev_b32 v48, 16, v48")
        sh={16:4,32:5,64:6}[B]
        A(f"v_lshl_add_u32 v48, v46, {sh}, v48")
        A(f"v_lshl_or_b32 v{32+i}, v47, 14, v{s}")
        A(f"v_lshl_or_b32 v{32+i}, v48, 17, v{32+i}")
    A("s_waitcnt vmcnt(0)")
    A("v_swap_b32 v18, v24"); A("v_swap_b32 v19, v25"); A("v_swap_b32 v22, v28"); A("v_swap_b32 v23, v29")
    pay=[16,24,20,28]
    A("v_lshlrev_b32 v50, 4, v7")
    A("s_waitcnt lgkmcnt(0)")
    A("s_barrier")
    ST.mark("hist")
    A("ds_read_b128 v[52:55], v50")
    A("s_waitcnt lgkmcnt(0)")
    A("v_add_u32 v56, v52, v53"); A("v_add_u32 v57, v56, v54"); A("v_add_u32 v58, v57, v55"); A("v_mov_b32 v59, v58")
    dpp_scan(A,59)
    A("v_sub_u32 v60, v59, v58"); A("v_add_u32 v61, v60, v52"); A("v_add_u32 v62, v60, v56"); A("v_add_u32 v63, v60, v57")
    A("ds_write_b128 v50, v[60:63] offset:1024")
    if P.gran:
        for i in range(4):
            A(f"s_cmp_lg_u32 s25, {i}"); A(f"s_cbranch_scc1 F_CG{i}")
            A(f"v_lshl_or_b32 v70, v{52+i}, 16, v{60+i}")
            A.label(f"F_CG{i}")
    else:
        A("s_cmp_lg_u32 s25, 0")
        A("s_cbranch_scc1 F_CS")
        for i in range(4): A(f"v_lshl_or_b32 v{64+i}, v{52+i}, 16, v{60+i}")
        A("global_store_dwordx4 v50, v[64:67], s[22:23] sc1")
        A.label("F_CS")
    A("s_waitcnt lgkmcnt(0)")
    for i in range(4): A(f"ds_read_b32 v{44+i}, v{36+i} offset:1024")
    KST=2048; PST=KST+CH*4
    for i in range(4):
        A(f"s_waitcnt lgkmcnt({3-i+2*i})")
        A(f"v_add_u32 v{44+i}, v{44+i}, v{40+i}")
        A(f"v_lshlrev_b32 v48, 2, v{44+i}")
        A(f"v_lshlrev_b32 v49, 4, v{44+i}")
        A(f"ds_write_b128 v49, v[{pay[i]}:{pay[i]+3}] offset:{PST}")
        A(f"ds_write_b32 v48, v{32+i} offset:{KST}")
    A("v_lshlrev_b32 v50, 4, v0")
    A("s_waitcnt lgkmcnt(0)")
    A("s_barrier")
    A(f"ds_read_b128 v[8:11], v50 offset:{KST}")
    for q in range(4): A(f"ds_read_b128 v[{12+4*q}:{15+4*q}], v50 offset:{PST+q*5120}")
    A("v_add_u32 v51, 5120, v50"); A("v_add_u32 v52, 10240, v50"); A("v_add_u32 v53, 15360, v50")
    A("s_waitcnt lgkmcnt(4)")
    A("global_store_dwordx4 v50, v[8:11], s[18:19] sc1")
    for q in range(4):
        A(f"s_waitcnt lgkmcnt({3-q})")
        A(f"global_store_dwordx4 v{50+q}, v[{12+4*q}:{15+4*q}], s[20:21] sc1")
    if P.flags:
        if P.gran: A("s_cmp_ge_u32 s25, 4"); A("s_cbranch_scc1 F_JOIN")
        else: A("s_cmp_lg_u32 s25, 0"); A("s_cbranch_scc1 F_JOIN")
        A("v_mov_b32 v66, 0"); A("global_load_dword v67, v66, s[72:73] sc1")
    ST.mark("iss1")
    A("s_branch F_JOIN")
    A.label("F_OTHER")
    A("s_waitcnt lgkmcnt(0)")
    A(f"s_add_u32 s18, s12, {WS_CONST}"); A("s_addc_u32 s19, s13, 0")
    if P.flags:
        A("s_cmp_lg_u32 s2, 0"); A("s_cbranch_scc1 F_NN"); A("s_cmp_lg_u32 s25, 9"); A("s_cbranch_scc1 F_NN")
        A("s_memrealtime s[38:39]"); A("s_waitcnt lgkmcnt(0)"); A("s_or_b32 s38, s38, 1")
        A("v_mov_b32 v1, 0"); A("v_mov_b32 v2, s38")
        A("v_cmp_eq_u32 vcc, 0, v7"); A("s_and_saveexec_b64 s[16:17], vcc")
        A("global_store_dword v1, v2, s[72:73] sc1")
        A("s_mov_b64 exec, s[16:17]")
        A.label("F_NN")
    A("s_mov_b32 s36, 0")
    A("s_cmp_ge_u32 s25, 9"); A("s_cbranch_scc1 F_R0")
    A("s_cmp_lt_u32 s2, 8"); A("s_cbranch_scc1 F_RW")
    A("s_cmp_lg_u32 s25, 5"); A("s_cbranch_scc1 F_R0")
    A("s_cmp_eq_u32 s2, 8"); A("s_cbranch_scc1 F_RF")
    A("s_cmp_eq_u32 s2, 9"); A("s_cbranch_scc1 F_RC")
    A("s_branch F_R0")
    A.label("F_RW")
    A("s_mov_b32 s36, 1")
    A("s_sub_u32 s14, s25, 5")
    A("s_and_b32 s15, s2, 1"); A("s_lshr_b32 s16, s2, 1"); A("s_lshl_b32 s16, s16, 5"); A("s_add_u32 s16, s16, s15")
    A("v_and_b32 v1, 15, v7"); A("v_lshlrev_b32 v1, 1, v1"); A("v_add_u32 v1, s16, v1")
    A("v_lshrrev_b32 v2, 4, v7"); A("v_lshlrev_b32 v2, 3, v2")
    A("s_lshl_b32 s17, s14, 5"); A("v_add_u32 v2, s17, v2")
    A("v_lshlrev_b32 v2, 7, v2"); A("v_add_u32 v2, v2, v1"); A("v_lshlrev_b32 v2, 1, v2")
    for r in range(8): A(f"global_load_ushort v{8+r}, v2, s[30:31] offset:{r*256}")
    A("s_branch F_R0")
    A.label("F_RF")
    A("s_mov_b32 s36, 2")
    A("v_lshlrev_b32 v1, 2, v7")
    for k in range(4): A(f"global_load_dword v{8+k}, v1, s[26:27] offset:{k*256}")
    A("s_branch F_R0")
    A.label("F_RC")
    A("s_mov_b32 s36, 3")
    A("v_and_b32 v1, 3, v7"); A("v_lshlrev_b32 v1, 5, v1")
    for f in range(4): A(f"global_load_dwordx2 v[{8+2*f}:{9+2*f}], v1, s[28:29] offset:{f*8}")
    A.label("F_R0")
    def fpfcode(lab):
        A("s_cmp_lt_u32 s25, 9"); A(f"s_cbranch_scc1 {lab}")
        A("s_cmp_ge_u32 s25, 14"); A(f"s_cbranch_scc1 {lab}")
        A(f"s_mul_i32 s14, s2, {320*128}"); A("s_sub_u32 s15, s25, 9"); A("s_lshl_b32 s15, s15, 13"); A("s_add_u32 s14, s14, s15")
        A("v_lshlrev_b32 v126, 7, v7"); A("v_add_u32 v126, s14, v126")
        A("global_load_dword v127, v126, s[32:33]")
        A.label(lab)
    if P.fpf==3: fpfcode("F_NPF3")
    A("s_barrier")
    if P.fpf==4: fpfcode("F_NPF4")
    A("s_barrier")
    if P.fpf==5: fpfcode("F_NPF5")
    A("s_cmp_eq_u32 s36, 0"); A("s_cbranch_scc1 F_RD")
    A("s_waitcnt vmcnt(0)")
    A("s_cmp_eq_u32 s36, 2"); A("s_cbranch_scc1 F_RF2")
    A("s_cmp_eq_u32 s36, 3"); A("s_cbranch_scc1 F_RC2")
    A("s_lshl_b32 s17, s2, 12"); A("s_lshl_b32 s15, s14, 10"); A("s_add_u32 s17, s17, s15"); A(f"s_add_u32 s17, s17, {CONST_WM}")
    A("v_lshlrev_b32 v3, 4, v7"); A("v_add_u32 v3, s17, v3")
    for r in range(4): A(f"v_lshl_or_b32 v{16+r}, v{9+2*r}, 16, v{8+2*r}")
    A("global_store_dwordx4 v3, v[16:19], s[18:19] sc1")
    A("s_branch F_RD")
    A.label("F_RF2")
    A(f"s_mov_b32 s15, 0x{f2u(-LOG2E):08x}"); A("s_mov_b32 s16, 0xffff0000")
    for k in range(4):
        A(f"v_lshlrev_b32 v{12+k}, 16, v{8+k}"); A(f"v_and_b32 v{16+k}, s16, v{8+k}")
    for k in range(8): A(f"v_mul_f32 v{12+k}, s15, v{12+k}")
    A("v_cvt_pk_bf16_f32 v20, v12, v13"); A("v_cvt_pk_bf16_f32 v21, v14, v15")
    A("v_cvt_pk_bf16_f32 v22, v16, v17"); A("v_cvt_pk_bf16_f32 v23, v18, v19")
    for q in range(4):
        A(f"v_lshlrev_b32 v28, 16, v{20+q}"); A(f"v_and_b32 v29, s16, v{20+q}")
        A(f"v_sub_f32 v28, v{12+2*q}, v28"); A(f"v_sub_f32 v29, v{13+2*q}, v29")
        A(f"v_cvt_pk_bf16_f32 v{24+q}, v28, v29")
    A("v_lshlrev_b32 v3, 5, v7")
    A(f"global_store_dwordx4 v3, v[20:23], s[18:19] offset:{CONST_WF} sc1")
    A(f"global_store_dwordx4 v3, v[24:27], s[18:19] offset:{CONST_WF+16} sc1")
    A("s_branch F_RD")
    A.label("F_RC2")
    A("s_mov_b32 s15, 0x05040100"); A("s_mov_b32 s16, 0x07060302")
    for o in range(4):
        sel="s15" if o%2==0 else "s16"; h=o//2
        A(f"v_perm_b32 v{16+2*o}, v{10+h}, v{8+h}, {sel}")
        A(f"v_perm_b32 v{17+2*o}, v{14+h}, v{12+h}, {sel}")
    A("v_lshlrev_b32 v3, 5, v7"); A(f"v_add_u32 v3, {CONST_CG}, v3")
    A("global_store_dwordx4 v3, v[16:19], s[18:19] sc1")
    A("global_store_dwordx4 v3, v[20:23], s[18:19] offset:16 sc1")
    A.label("F_RD")
    A("s_barrier")
    if P.fpf==1:
        A("s_cmp_lt_u32 s25, 9"); A("s_cbranch_scc1 F_JOIN")
        A("s_cmp_ge_u32 s25, 14"); A("s_cbranch_scc1 F_JOIN")
        A(f"s_mul_i32 s14, s2, {320*128}"); A("s_sub_u32 s15, s25, 9"); A("s_lshl_b32 s15, s15, 13"); A("s_add_u32 s14, s14, s15")
        A("v_lshlrev_b32 v126, 7, v7"); A("v_add_u32 v126, s14, v126")
        A("global_load_dword v127, v126, s[32:33]")
        A("s_branch F_JOIN2")
    A.label("F_JOIN")
    A("s_waitcnt vmcnt(0)")
    A.label("F_JOIN2")
    A("s_barrier")
    ST.mark("barD")
    if P.fpf==2:
        A("s_cmp_lt_u32 s25, 9"); A("s_cbranch_scc1 F_NPF2")
        A("s_cmp_ge_u32 s25, 14"); A("s_cbranch_scc1 F_NPF2")
        A(f"s_mul_i32 s14, s2, {320*128}"); A("s_sub_u32 s15, s25, 9"); A("s_lshl_b32 s15, s15, 13"); A("s_add_u32 s14, s14, s15")
        A("v_lshlrev_b32 v126, 7, v7"); A("v_add_u32 v126, s14, v126")
        A("global_load_dword v127, v126, s[32:33]")
        A.label("F_NPF2")
    if P.gran: A("s_cmp_ge_u32 s25, 4"); A("s_cbranch_scc1 F_WAIT")
    else: A("s_cmp_lg_u32 s25, 0"); A("s_cbranch_scc1 F_WAIT")
    if P.flags:
        A("s_mov_b32 s14, 0"); A("v_mov_b32 v1, 0")
        A("v_readfirstlane_b32 s74, v67"); A("s_nop 3"); A("s_cmp_lg_u32 s74, 0"); A("s_cbranch_scc1 F_GOTN")
        A.label("F_GETN")
        A("global_load_dword v2, v1, s[72:73] sc1"); A("s_waitcnt vmcnt(0)")
        A("v_readfirstlane_b32 s74, v2"); A("s_add_u32 s14, s14, 1")
        A("s_cmp_ge_u32 s14, 0x100000"); A("s_cbranch_scc1 F_GOTN")
        A("s_cmp_eq_u32 s74, 0"); A("s_cbranch_scc1 F_GETN")
        A.label("F_GOTN")
        if P.gran:
            A("v_mov_b32 v71, s74")
            A("v_lshlrev_b32 v72, 2, v7"); A("v_add_u32 v72, s25, v72")
            A(f"v_cmp_gt_u32 vcc, {NB}, v72"); A("v_lshlrev_b32 v72, 11, v72")
            A("s_and_saveexec_b64 s[16:17], vcc")
            A("global_store_dwordx2 v72, v[70:71], s[22:23] sc1")
            A("s_mov_b64 exec, s[16:17]")
        else:
            A(f"s_add_u32 s76, s12, {WS_FLAG}"); A("s_addc_u32 s77, s13, 0")
            A("s_lshl_b32 s14, s2, 2"); A("v_lshlrev_b32 v1, 10, v7"); A("v_add_u32 v1, s14, v1"); A("v_mov_b32 v2, s74")
            A("v_cmp_gt_u32 vcc, 8, v7"); A("s_and_saveexec_b64 s[16:17], vcc")
            A("global_store_dword v1, v2, s[76:77] sc1")
            A("s_mov_b64 exec, s[16:17]")
    else:
        A("s_and_b32 s14, s2, 3"); A("s_lshl_b32 s14, s14, 6")
        A("v_mov_b32 v1, s14"); A("v_mov_b32 v2, 1")
        A("v_cmp_eq_u32 vcc, 0, v7"); A("s_and_saveexec_b64 s[16:17], vcc")
        A("global_atomic_add v1, v2, s[72:73]")
        A("s_mov_b64 exec, s[16:17]")
    A.label("F_WAIT")

NW=16; CAPW=160
LDS_IDX=0x0000
LDS_K=LDS_IDX+NW*CAPW*4
LDS_HIST=LDS_K+NW*CAPW
LDS_BASE=LDS_HIST+2048
LDS_FLAG=LDS_BASE+4096
LDS_MARK=LDS_FLAG+64
LDS_EF=LDS_MARK+8192+64
LDS_A=LDS_EF+NW*CAPW*8
LDS_CELL=LDS_A+NW*CAPW*32+1024
K2_LDS=LDS_CELL+1024
WINBIG=2048; WINSMALL=200; TOTMAX=CAPW-8
AGG_STRIDE=272
assert LDS_A%16==0 and LDS_EF%16==0 and LDS_MARK%4==0 and K2_LDS<=163840

def gen_k2(A,P):
    U=4; B=P.B
    SC=" sc1" if P.fused else ""
    nbins=8*B
    assert nbins*4<=2048 and nbins*8<=4096
    vTID=0; vLANE=1; vT0=2
    vAad=3; vEad=4; vIad=5; vKad=6; vK=7
    ACC=8
    WF=48
    PAIR=56
    X=64
    TP=80
    AOP=88; AOPN=90; EOP=92; EOPN=94
    UU=[96,104]; EE=112; RR=120
    NV=128
    REC0=64; CNT=68; BASEC=72; AT=64
    CG=80; KEY=88; RANK=90; PAY=92; AP=100; MK=116; BINA=118
    T=[2,3,4,5,6,7,120,121,122,123,124,125,126,127]
    WM=96
    sX=4; sOUT=6; sWS=8; sSRD=12; sW=16; sB=17; sT=18; sLO=19; sWIN=20; sNR=21; sKK=22; sH=23; sEX=24; sM=26; sG8=28; sWB=29
    sP3=68; sLV=43; sTH=46; sK=[32,33]; sN=34; sTOT=35; sTMP=36; sC=40; sLN2=44; sRG=46; sCGP=47; sKEY=48; sPAY=52; sCELL=56; sCONST=58; sRAW=60; sPFO=65; sPFT=66; sNB=67; sGB=68; sGM=69; sQ=70; sCHI=40
    name="standalone__tensor_product_equiv_tfn__graph_kernel"
    A(".p2align 8")
    A(f".type {name},@function")
    A.label(name)
    A(f"s_cmp_ge_u32 s2, {NB}")
    A("s_cbranch_scc1 K2_END")
    ST=Stamps(A,P.stamps,"K2")
    ST.mark("start")
    tlc=[0]
    def tl(off,inv=False):
        if not P.tl: return
        tlc[0]+=1
        A("s_memrealtime s[74:75]"); A("s_waitcnt lgkmcnt(0)")
        if inv: A("s_not_b32 s74, s74")
        A("v_mov_b32 v2, s74"); A("v_mov_b32 v3, 0")
        A("v_cmp_eq_u32 vcc, 0, v0"); A("s_and_saveexec_b64 s[76:77], vcc"); A(f"s_cbranch_execz K2_TL{tlc[0]}")
        A(f"global_atomic_umax v3, v2, s[72:73] offset:{off+(16 if P.fused else 0)}")
        A.label(f"K2_TL{tlc[0]}"); A("s_mov_b64 exec, s[76:77]")
    if P.tl:
        A("s_load_dwordx2 s[72:73], s[0:1], 72"); A("s_waitcnt lgkmcnt(0)")
        tl(0,True)
    if P.fused: gen_phase1(A,P,ST)
    A(f"s_load_dwordx2 s[{sX}:{sX+1}], s[0:1], 0")
    A(f"s_load_dwordx2 s[{sOUT}:{sOUT+1}], s[0:1], 64")
    A(f"s_load_dwordx2 s[{sWS}:{sWS+1}], s[0:1], 80")
    A(f"v_and_b32 v{vLANE}, 63, v0")
    A(f"v_lshrrev_b32 v{T[0]}, 6, v0")
    A(f"v_lshlrev_b32 v{PAIR+1}, 4, v{vLANE}")
    A(f"v_readfirstlane_b32 s{sW}, v{T[0]}")
    for p in (3,5,7): A(f"v_mov_b32 v{PAIR+p}, v{PAIR+1}")
    if P.xmap:
        A(f"s_and_b32 s{sTMP}, s2, 7"); A(f"s_mul_i32 s{sB}, s{sTMP}, 31"); A(f"s_min_u32 s{sTMP}, s{sTMP}, 2")
        A(f"s_add_u32 s{sB}, s{sB}, s{sTMP}"); A(f"s_lshr_b32 s{sTMP}, s2, 3"); A(f"s_add_u32 s{sB}, s{sB}, s{sTMP}")
    else:
        A(f"s_mov_b32 s{sB}, s2")
    A(f"s_lshr_b32 s{sG8}, s{sW}, 1"); A(f"s_and_b32 s{sH}, s{sW}, 1"); A(f"s_mul_i32 s{sWB}, s{sW}, {CAPW}")
    for i in range(40): A(f"v_mov_b32 v{ACC+i}, 0")
    A("s_waitcnt lgkmcnt(0)")
    A(f"s_lshl_b32 s{sTMP}, s{sB}, {2 if P.fused else 10}")
    A(f"s_add_u32 s{sCELL}, s{sWS}, {WS_CELL}"); A(f"s_addc_u32 s{sCELL+1}, s{sWS+1}, 0")
    A(f"s_add_u32 s{sCELL}, s{sCELL}, s{sTMP}"); A(f"s_addc_u32 s{sCELL+1}, s{sCELL+1}, 0")
    A(f"s_add_u32 s{sCONST}, s{sWS}, {WS_CONST}"); A(f"s_addc_u32 s{sCONST+1}, s{sWS+1}, 0")
    A(f"s_mov_b32 s{sLO}, 0")
    A(f"s_mov_b32 s{sWIN}, {WINBIG}")
    for i in range(3): A(f"s_mov_b32 s{sCHI+i}, {(i+1)*CH}")
    if not P.fused:
        A(f"v_lshlrev_b32 v{T[1]}, 5, v{vLANE}")
        if P.fused:
            A(f"v_mov_b32 v{T[2]}, 0")
            A(f"s_cmp_ge_u32 s{sW}, 4"); A("s_cbranch_scc1 K2_NOCL")
            A(f"v_lshlrev_b32 v{T[3]}, 10, v0")
            A(f"v_cmp_gt_u32 vcc, {NC}, v0"); A(f"s_and_saveexec_b64 s[{sEX}:{sEX+1}], vcc")
            A(f"global_load_dword v{T[2]}, v{T[3]}, s[{sCELL}:{sCELL+1}] sc1")
            A("s_mov_b64 exec, -1")
            A.label("K2_NOCL")
        else:
            A(f"global_load_dwordx4 v[{CNT}:{CNT+3}], v{PAIR+1}, s[{sCELL}:{sCELL+1}]"+SC)
        A(f"global_load_dwordx4 v[{WF}:{WF+3}], v{T[1]}, s[{sCONST}:{sCONST+1}] offset:{CONST_WF}"+SC)
        A(f"global_load_dwordx4 v[{WF+4}:{WF+7}], v{T[1]}, s[{sCONST}:{sCONST+1}] offset:{CONST_WF+16}"+SC)
        A(f"global_load_dwordx4 v[{CG}:{CG+3}], v{T[1]}, s[{sCONST}:{sCONST+1}] offset:{CONST_CG}"+SC)
        A(f"global_load_dwordx4 v[{CG+4}:{CG+7}], v{T[1]}, s[{sCONST}:{sCONST+1}] offset:{CONST_CG+16}"+SC)
    if P.codepf&2:
        A(f"s_cmp_eq_u32 s{sW}, 15"); A("s_cbranch_scc0 K2_CPX")
        A(f"s_getpc_b64 s[{sTMP}:{sTMP+1}]")
        A.label("K2_PC")
        A(f"s_sub_u32 s{sTMP}, s{sTMP}, K2_PC-standalone__tensor_product_equiv_tfn__graph_kernel"); A(f"s_subb_u32 s{sTMP+1}, s{sTMP+1}, 0")
        A(f"v_lshlrev_b32 v{T[8]}, 7, v{vLANE}")
        for q in range(2):
            A(f"v_add_u32 v{T[9]}, {q*8192}, v{T[8]}")
            A(f"v_cmp_gt_u32 vcc, K2_CODE_END-standalone__tensor_product_equiv_tfn__graph_kernel, v{T[9]}")
            A(f"s_and_saveexec_b64 s[{sEX}:{sEX+1}], vcc")
            A(f"s_cbranch_execz K2_CPS{q}")
            A(f"global_load_dword v{127-q}, v{T[9]}, s[{sTMP}:{sTMP+1}]")
            A.label(f"K2_CPS{q}")
            A("s_mov_b64 exec, -1")
        A.label("K2_CPX")
    A(f"s_mov_b32 s{sSRD}, s{sX}")
    A(f"s_and_b32 s{sSRD+1}, s{sX+1}, 0xffff")
    A(f"s_or_b32 s{sSRD+1}, s{sSRD+1}, {1024<<16}")
    A(f"s_mov_b32 s{sSRD+2}, {N}")
    A(f"s_mov_b32 s{sSRD+3}, 0x00020000")
    A(f"s_add_u32 s{sKEY}, s{sWS}, {WS_KEYS}"); A(f"s_addc_u32 s{sKEY+1}, s{sWS+1}, 0")
    A(f"s_and_b32 s{sKEY+1}, s{sKEY+1}, 0xffff"); A(f"s_mov_b32 s{sKEY+2}, {E*4}"); A(f"s_mov_b32 s{sKEY+3}, 0x00020000")
    A(f"s_add_u32 s{sPAY}, s{sWS}, {WS_PAY}"); A(f"s_addc_u32 s{sPAY+1}, s{sWS+1}, 0")
    A(f"s_and_b32 s{sPAY+1}, s{sPAY+1}, 0xffff"); A(f"s_mov_b32 s{sPAY+2}, {E*16}"); A(f"s_mov_b32 s{sPAY+3}, 0x00020000")
    A(f"s_mov_b32 s{sLN2}, 0x{f2u(-LN2):08x}"); A(f"s_mov_b32 s{sLN2+1}, 0x{f2u(-LN2):08x}")
    def burst(vaddr,vdst=2):
        for q in range(4):
            A(f"buffer_load_dword v{vdst}, v{vaddr}, s[{sRAW}:{sRAW+3}], s{sPFO} offen")
            if q<3: A(f"s_add_u32 s{sPFO}, s{sPFO}, 8192")
    def pf_row0(rnd_sreg,dst):
        A(f"s_lshr_b32 s{sTMP+2}, s2, 3")
        A(f"s_and_b32 s{sTMP+3}, s{sTMP+2}, 1"); A(f"s_lshl_b32 s{sTMP+3}, s{sTMP+3}, 9")
        A(f"s_lshr_b32 s{sTMP+2}, s{sTMP+2}, 1"); A(f"s_lshl_b32 s{sTMP+2}, s{sTMP+2}, 5")
        A(f"s_add_u32 s{sTMP+2}, s{sTMP+2}, s{sTMP+3}")
        A(f"s_lshl_b32 s{dst}, s{rnd_sreg}, 10"); A(f"s_add_u32 s{dst}, s{dst}, s{sTMP+2}"); A(f"s_lshl_b32 s{dst}, s{dst}, 10")
    if P.pf:
        A(f"s_mov_b32 s{sRAW}, s{sX}"); A(f"s_and_b32 s{sRAW+1}, s{sX+1}, 0xffff"); A(f"s_mov_b32 s{sRAW+2}, {N*1024}"); A(f"s_mov_b32 s{sRAW+3}, 0x00020000")
    def propf(part=0):
        if P.pf==3:
            r0=(P.k1rows if P.k1pf else 0) if part==0 else P.pfsplit
            r1=P.pfsplit if (part==0 and P.pfsplit) else N
            per=((r1-r0)*8+249)//250; nw=(per+63)//64
            lab=f"K2_NOPF{part}"
            A(f"s_cmp_ge_u32 s{sW}, {nw}")
            A(f"s_cbranch_scc1 {lab}")
            A(f"s_mul_i32 s{sPFO}, s2, {per*128}"); A(f"s_lshl_b32 s{sTMP+2}, s{sW}, 13"); A(f"s_add_u32 s{sPFO}, s{sPFO}, s{sTMP+2}")
            if r0: A(f"s_add_u32 s{sPFO}, s{sPFO}, {r0*1024}")
            A(f"v_lshlrev_b32 v126, 7, v{vLANE}")
            A(f"buffer_load_dword v127, v126, s[{sRAW}:{sRAW+3}], s{sPFO} offen")
            A.label(lab)
            return
        A(f"s_cmp_ge_u32 s{sW}, {P.npro}")
        A("s_cbranch_scc1 K2_NOPF0")
        pf_row0(sW,sPFO)
        A(f"v_lshlrev_b32 v126, 7, v{vLANE}")
        burst(126,127)
        A.label("K2_NOPF0")
    if P.fused:
        if P.gran:
            A(f"s_lshl_b32 s{sTMP}, s{sB}, 11"); A(f"s_add_u32 s76, s{sWS}, {WS_GRAN}"); A(f"s_addc_u32 s77, s{sWS+1}, 0")
            A(f"s_add_u32 s76, s76, s{sTMP}"); A("s_addc_u32 s77, s77, 0")
        elif P.flags:
            A(f"s_add_u32 s76, s{sWS}, {WS_FLAG}"); A(f"s_addc_u32 s77, s{sWS+1}, 0")
        A(f"s_cmp_lg_u32 s{sW}, 0"); A("s_cbranch_scc1 F_REL")
        A(f"s_mov_b32 s{sTMP}, 0")
        if P.gran:
            A(f"v_lshlrev_b32 v{T[1]}, 5, v{vLANE}")
            A(f"v_cmp_gt_u32 s[64:65], 63, v{vLANE}"); A(f"v_cmp_gt_u32 s[66:67], 62, v{vLANE}")
            A.label("F_POLL")
            A(f"global_load_dwordx4 v[{X}:{X+3}], v{T[1]}, s[76:77] sc1")
            A(f"global_load_dwordx4 v[{X+4}:{X+7}], v{T[1]}, s[76:77] offset:16 sc1")
            A("s_waitcnt vmcnt(0)")
            for q in range(4):
                A(f"v_cmp_eq_u32 vcc, s74, v{X+2*q+1}")
                m="s[64:65]" if q<2 else "s[66:67]"
                d=["s[68:69]","s[70:71]","s[32:33]","s[34:35]"][q]
                A(f"s_andn2_b64 {d}, {m}, vcc")
            A("s_or_b64 s[68:69], s[68:69], s[70:71]"); A("s_or_b64 s[32:33], s[32:33], s[34:35]"); A("s_or_b64 s[68:69], s[68:69], s[32:33]")
            A(f"s_add_u32 s{sTMP}, s{sTMP}, 1")
            A(f"s_cmp_ge_u32 s{sTMP}, 0x100000"); A("s_cbranch_scc1 F_GOT")
            A("s_cmp_eq_u64 s[68:69], 0"); A("s_cbranch_scc0 F_POLL")
            A.label("F_GOT")
            for q in range(4):
                m="s[64:65]" if q<2 else "s[66:67]"
                A(f"v_cndmask_b32 v{X+8+q}, 0, v{X+2*q}, {m}")
            A(f"v_add_u32 v{T[3]}, {LDS_CELL}, v{PAIR+1}")
            A(f"ds_write_b128 v{T[3]}, v[{X+8}:{X+11}]")
            A("s_waitcnt lgkmcnt(0)")
        elif P.flags:
            A(f"s_and_b32 s{sTMP+1}, s2, 7"); A(f"s_lshl_b32 s{sTMP+1}, s{sTMP+1}, 10"); A(f"v_add_u32 v{T[1]}, s{sTMP+1}, v{PAIR+1}")
            A(f"v_cmp_gt_u32 s[64:65], 63, v{vLANE}"); A(f"v_cmp_gt_u32 s[66:67], 62, v{vLANE}")
            A.label("F_POLL")
            A(f"global_load_dwordx4 v[{X}:{X+3}], v{T[1]}, s[76:77] sc1")
            A("s_waitcnt vmcnt(0)")
            for q in range(4):
                A(f"v_cmp_eq_u32 vcc, s74, v{X+q}")
                m="s[64:65]" if q<2 else "s[66:67]"
                d=["s[68:69]","s[70:71]","s[32:33]","s[34:35]"][q]
                A(f"s_andn2_b64 {d}, {m}, vcc")
            A("s_or_b64 s[68:69], s[68:69], s[70:71]"); A("s_or_b64 s[32:33], s[32:33], s[34:35]"); A("s_or_b64 s[68:69], s[68:69], s[32:33]")
            A(f"s_add_u32 s{sTMP}, s{sTMP}, 1")
            A(f"s_cmp_ge_u32 s{sTMP}, 0x100000"); A("s_cbranch_scc1 F_REL")
            A("s_cmp_eq_u64 s[68:69], 0"); A("s_cbranch_scc1 F_REL")
            if P.sleep>0: A(f"s_sleep {P.sleep}")
            A("s_branch F_POLL")
        else:
            A(f"v_lshlrev_b32 v{T[1]}, 6, v{vLANE}")
            A.label("F_POLL")
            A(f"v_mov_b32 v{T[2]}, 0")
            A(f"v_cmp_gt_u32 vcc, 4, v{vLANE}"); A(f"s_and_saveexec_b64 s[{sEX}:{sEX+1}], vcc")
            A(f"global_load_dword v{T[2]}, v{T[1]}, s[72:73] sc1")
            A("s_mov_b64 exec, -1")
            A("s_waitcnt vmcnt(0)")
            A("s_nop 1"); A(f"v_add_u32_dpp v{T[2]}, v{T[2]}, v{T[2]} row_shr:1 row_mask:0xf bank_mask:0xf bound_ctrl:1")
            A("s_nop 1"); A(f"v_add_u32_dpp v{T[2]}, v{T[2]}, v{T[2]} row_shr:2 row_mask:0xf bank_mask:0xf bound_ctrl:1")
            A("s_nop 1"); A(f"v_readlane_b32 s{sTMP+1}, v{T[2]}, 3")
            A(f"s_add_u32 s{sTMP}, s{sTMP}, 1")
            A(f"s_cmp_ge_u32 s{sTMP}, 0x100000"); A("s_cbranch_scc1 F_REL")
        if P.flags:
            pass
        elif P.sleep<0:
            A(f"s_cmp_ge_u32 s{sTMP+1}, {NB}"); A("s_cbranch_scc1 F_REL")
            A(f"s_cmp_ge_u32 s{sTMP+1}, {P.nfast}"); A("s_cbranch_scc1 F_FAST")
            A(f"s_sleep {-P.sleep}")
            A("s_branch F_POLL")
            A.label("F_FAST")
            A(f"s_sleep {P.sfast}")
            A("s_branch F_POLL")
        elif P.sleep:
            A(f"s_cmp_ge_u32 s{sTMP+1}, {NB}"); A("s_cbranch_scc1 F_REL")
            A(f"s_sleep {P.sleep}")
            A("s_branch F_POLL")
        else:
            A(f"s_cmp_lt_u32 s{sTMP+1}, {NB}"); A("s_cbranch_scc1 F_POLL")
        A.label("F_REL")
        A("s_barrier")
        ST.mark("rel")
        tl(16)
    A(f"v_lshlrev_b32 v{T[1]}, 5, v{vLANE}")
    if P.gran:
        pass
    elif P.fused:
        A(f"v_mov_b32 v{T[2]}, 0")
        A(f"s_cmp_ge_u32 s{sW}, 4"); A("s_cbranch_scc1 K2_NOCL")
        A(f"v_lshlrev_b32 v{T[3]}, 10, v0")
        A(f"v_cmp_gt_u32 vcc, {NC}, v0"); A(f"s_and_saveexec_b64 s[{sEX}:{sEX+1}], vcc")
        A(f"global_load_dword v{T[2]}, v{T[3]}, s[{sCELL}:{sCELL+1}] sc1")
        A("s_mov_b64 exec, -1")
        A.label("K2_NOCL")
    else:
        A(f"global_load_dwordx4 v[{CNT}:{CNT+3}], v{PAIR+1}, s[{sCELL}:{sCELL+1}]"+SC)
    A(f"global_load_dwordx4 v[{WF}:{WF+3}], v{T[1]}, s[{sCONST}:{sCONST+1}] offset:{CONST_WF}"+SC)
    A(f"global_load_dwordx4 v[{WF+4}:{WF+7}], v{T[1]}, s[{sCONST}:{sCONST+1}] offset:{CONST_WF+16}"+SC)
    A(f"global_load_dwordx4 v[{CG}:{CG+3}], v{T[1]}, s[{sCONST}:{sCONST+1}] offset:{CONST_CG}"+SC)
    A(f"global_load_dwordx4 v[{CG+4}:{CG+7}], v{T[1]}, s[{sCONST}:{sCONST+1}] offset:{CONST_CG+16}"+SC)
    if P.gran:
        A(f"v_add_u32 v{T[3]}, {LDS_CELL}, v{PAIR+1}")
        A(f"ds_read_b128 v[{CNT}:{CNT+3}], v{T[3]}")
    elif P.fused:
        A(f"s_cmp_ge_u32 s{sW}, 4"); A("s_cbranch_scc1 K2_NOCW")
        A("s_waitcnt vmcnt(4)")
        A(f"v_lshlrev_b32 v{T[3]}, 2, v0"); A(f"v_add_u32 v{T[3]}, {LDS_CELL}, v{T[3]}")
        A(f"ds_write_b32 v{T[3]}, v{T[2]}")
        A("s_waitcnt lgkmcnt(0)")
        A.label("K2_NOCW")
        A("s_barrier")
        A(f"v_add_u32 v{T[3]}, {LDS_CELL}, v{PAIR+1}")
        A(f"ds_read_b128 v[{CNT}:{CNT+3}], v{T[3]}")
    A("s_branch K2_ROUND1")
    A.label("K2_ROUND")
    A(f"v_lshlrev_b32 v{T[1]}, 5, v{vLANE}")
    if P.fused:
        A(f"v_add_u32 v{T[3]}, {LDS_CELL}, v{PAIR+1}")
        A(f"ds_read_b128 v[{CNT}:{CNT+3}], v{T[3]}")
    else:
        A(f"global_load_dwordx4 v[{CNT}:{CNT+3}], v{PAIR+1}, s[{sCELL}:{sCELL+1}]"+SC)
    A(f"global_load_dwordx4 v[{CG}:{CG+3}], v{T[1]}, s[{sCONST}:{sCONST+1}] offset:{CONST_CG}"+SC)
    A(f"global_load_dwordx4 v[{CG+4}:{CG+7}], v{T[1]}, s[{sCONST}:{sCONST+1}] offset:{CONST_CG+16}"+SC)
    A("s_waitcnt vmcnt(0)")
    A.label("K2_ROUND1")
    A(f"v_lshlrev_b32 v{T[0]}, 2, v0")
    A(f"v_mov_b32 v{T[1]}, 0")
    A(f"v_cmp_gt_u32 vcc, {nbins}, v0")
    A(f"s_and_saveexec_b64 s[{sEX}:{sEX+1}], vcc")
    A("s_cbranch_execz K2_NOZ")
    A(f"ds_write_b32 v{T[0]}, v{T[1]} offset:{LDS_HIST}")
    A.label("K2_NOZ")
    A(f"s_mov_b64 exec, -1")
    A("s_waitcnt lgkmcnt(0)" if P.fused else "s_waitcnt vmcnt(4)")
    ST.mark("cell")
    if P.pf and P.pfat=="cell": propf()
    A(f"v_mul_u32_u24 v{T[0]}, {4*CH}, v{vLANE}")
    for i in range(4):
        A(f"v_and_b32 v{REC0+i}, 0xffff, v{CNT+i}")
        A(f"v_lshrrev_b32 v{CNT+i}, 16, v{CNT+i}")
        if i: A(f"v_add3_u32 v{REC0+i}, v{REC0+i}, v{T[0]}, s{sCHI+i-1}")
        else: A(f"v_add_u32 v{REC0+i}, v{REC0+i}, v{T[0]}")
    A(f"v_add_u32 v{T[1]}, v{CNT}, v{CNT+1}")
    A(f"v_add_u32 v{T[2]}, v{T[1]}, v{CNT+2}")
    A(f"v_add_u32 v{T[3]}, v{T[2]}, v{CNT+3}")
    A(f"v_max3_u32 v{T[5]}, v{CNT}, v{CNT+1}, v{CNT+2}")
    A(f"v_mov_b32 v{T[4]}, v{T[3]}")
    A(f"v_max_u32 v{T[5]}, v{T[5]}, v{CNT+3}")
    dpp_scan(A,T[4])
    A(f"v_sub_u32 v{BASEC}, v{T[4]}, v{T[3]}")
    A(f"v_add_u32 v{BASEC+1}, v{BASEC}, v{CNT}")
    A(f"v_add_u32 v{BASEC+2}, v{BASEC}, v{T[1]}")
    A(f"v_add_u32 v{BASEC+3}, v{BASEC}, v{T[2]}")
    A(f"v_readlane_b32 s{sT}, v{T[4]}, 63")
    A(f"v_mov_b32 v{T[6]}, 8192")
    A(f"s_mov_b32 s{sKK}, s{sW}")
    A(f"s_cmp_eq_u32 s{sT}, 0")
    A("s_cbranch_scc1 K2_EPI")
    A.label("K2_EX")
    A(f"v_cmp_lt_u32 vcc, s{sKK}, v{T[5]}")
    A(f"s_cbranch_vccz K2_EXD")
    A(f"s_sub_u32 s{sTMP}, s{sKK}, s{sLO}")
    for i in range(4):
        A(f"v_add_u32 v{T[0]}, s{sTMP}, v{BASEC+i}")
        A(f"v_cmp_lt_u32 vcc, s{sKK}, v{CNT+i}")
        A(f"v_cmp_gt_u32 s[{sM}:{sM+1}], s{sWIN}, v{T[0]}")
        A(f"v_lshlrev_b32 v{T[0]}, 2, v{T[0]}")
        A(f"v_add_u32 v{T[1]}, s{sKK}, v{REC0+i}")
        A(f"s_and_b64 vcc, vcc, s[{sM}:{sM+1}]")
        A(f"v_cndmask_b32 v{T[0]}, v{T[6]}, v{T[0]}, vcc")
        A(f"ds_write_b32 v{T[0]}, v{T[1]} offset:{LDS_MARK}")
    A(f"s_add_u32 s{sKK}, s{sKK}, {NW}")
    A("s_branch K2_EX")
    A.label("K2_EXD")
    A("s_waitcnt lgkmcnt(0)")
    A("s_barrier")
    ST.mark("bar1")
    A(f"v_lshlrev_b32 v{T[0]}, 2, v0")
    for s in range(2): A(f"ds_read_b32 v{MK+s}, v{T[0]} offset:{LDS_MARK+s*4096}")
    A(f"v_mov_b32 v{T[2]}, 0"); A(f"v_mov_b32 v{T[3]}, 0"); A(f"v_mov_b32 v{T[1]}, {LDS_FLAG}")
    A(f"ds_write_b64 v{T[1]}, v[{T[2]}:{T[3]}]")
    A(f"s_sub_u32 s{sNR}, s{sT}, s{sLO}")
    A(f"s_min_u32 s{sNR}, s{sNR}, s{sWIN}")
    A(f"s_lshl_b32 s{sTMP}, s{sW}, 6")
    A("s_waitcnt lgkmcnt(1)")
    for s in range(2):
        A(f"s_add_u32 s{sTMP+1}, s{sTMP}, {s*1024}")
        A(f"s_cmp_ge_u32 s{sTMP+1}, s{sNR}")
        A(f"s_cbranch_scc1 K2_LD_DONE")
        A(f"v_add_u32 v{T[1]}, {s*1024}, v0")
        A(f"v_cmp_gt_u32 vcc, s{sNR}, v{T[1]}")
        A(f"v_lshlrev_b32 v{T[2]}, 2, v{MK+s}")
        A(f"v_lshlrev_b32 v{T[3]}, 4, v{MK+s}")
        A(f"s_and_saveexec_b64 s[{sEX}:{sEX+1}], vcc")
        A(f"buffer_load_dword v{KEY+s}, v{T[2]}, s[{sKEY}:{sKEY+3}], 0 offen"+SC)
        A(f"buffer_load_dwordx4 v[{PAY+4*s}:{PAY+4*s+3}], v{T[3]}, s[{sPAY}:{sPAY+3}], 0 offen"+SC)
        A(f"s_mov_b64 exec, -1")
    A.label("K2_LD_DONE")
    A(f"v_mov_b32 v{T[4]}, 1")
    A("s_waitcnt vmcnt(0)")
    ST.mark("recs")
    if P.pf and P.pfat=="recs": propf()
    for s in range(2):
        A(f"s_add_u32 s{sTMP+1}, s{sTMP}, {s*1024}")
        A(f"s_cmp_ge_u32 s{sTMP+1}, s{sNR}")
        A(f"s_cbranch_scc1 K2_H_DONE")
        A(f"v_add_u32 v{T[1]}, {s*1024}, v0")
        A(f"v_lshrrev_b32 v{BINA+s}, 17, v{KEY+s}")
        A(f"v_cmp_gt_u32 vcc, s{sNR}, v{T[1]}")
        A(f"v_lshlrev_b32 v{T[2]}, 2, v{BINA+s}")
        A(f"s_and_saveexec_b64 s[{sEX}:{sEX+1}], vcc")
        A(f"ds_add_rtn_u32 v{RANK+s}, v{T[2]}, v{T[4]} offset:{LDS_HIST}")
        A(f"s_mov_b64 exec, -1")
        for o in range(4):
            A(f"v_mfma_f32_4x4x4_16b_bf16 v[{AT+4*o}:{AT+4*o+3}], v[{CG+2*o}:{CG+2*o+1}], v[{PAY+4*s}:{PAY+4*s+1}], 0")
        A("s_nop 4")
        for o in range(4):
            A(f"v_cvt_pk_bf16_f32 v{AP+8*s+2*o}, v{AT+4*o}, v{AT+4*o+1}")
            A(f"v_cvt_pk_bf16_f32 v{AP+8*s+2*o+1}, v{AT+4*o+2}, v{AT+4*o+3}")
    A.label("K2_H_DONE")
    A("s_waitcnt lgkmcnt(0)")
    A("s_barrier")
    ST.mark("bar2")
    if P.pf and P.pfat=="bar2": propf()
    A(f"s_lshl_b32 s{sTMP+1}, s{sG8}, {(B*4).bit_length()-1}")
    A(f"v_lshlrev_b32 v{T[0]}, 2, v{vLANE}")
    A(f"v_add_u32 v{T[0]}, s{sTMP+1}, v{T[0]}")
    if B<64:
        A(f"v_mov_b32 v{T[1]}, 0")
        A(f"v_cmp_gt_u32 vcc, {B}, v{vLANE}")
        A(f"s_and_saveexec_b64 s[{sEX}:{sEX+1}], vcc")
    A(f"ds_read_b32 v{T[1]}, v{T[0]} offset:{LDS_HIST}")
    A(f"s_mov_b64 exec, -1")
    A(f"v_add_u32 v{T[2]}, s{sH}, v{vLANE}"); A(f"v_and_b32 v{T[2]}, 1, v{T[2]}")
    A(f"v_lshlrev_b32 v{T[0]}, 1, v{T[0]}"); A(f"s_lshl_b32 s{sTMP+2}, s{sH}, 2"); A(f"v_add_u32 v{T[0]}, s{sTMP+2}, v{T[0]}")
    A("s_waitcnt lgkmcnt(0)")
    A(f"v_sub_u32 v{T[1]}, v{T[1]}, v{T[2]}"); A(f"v_add_u32 v{T[1]}, 1, v{T[1]}"); A(f"v_lshrrev_b32 v{T[1]}, 1, v{T[1]}")
    A(f"v_mov_b32 v{T[2]}, v{T[1]}")
    dpp_scan(A,T[2],nrows={16:1,32:2,64:4}[B])
    A(f"s_nop 0")
    A(f"v_readlane_b32 s{sTOT}, v{T[2]}, {B-1}")
    A(f"v_sub_u32 v{T[2]}, v{T[2]}, v{T[1]}")
    A(f"v_add_u32 v{T[2]}, s{sWB}, v{T[2]}")
    if B<64:
        A(f"v_cmp_gt_u32 vcc, {B}, v{vLANE}")
        A(f"s_and_saveexec_b64 s[{sEX}:{sEX+1}], vcc")
    A(f"ds_write_b32 v{T[0]}, v{T[2]} offset:{LDS_BASE}")
    A(f"s_mov_b64 exec, -1")
    if P.bar:
        A(f"v_mov_b32 v{T[0]}, s{sTOT}"); A(f"v_mov_b32 v{T[1]}, {LDS_FLAG}")
        A(f"ds_max_u32 v{T[1]}, v{T[0]} offset:4")
    A(f"s_cmp_gt_u32 s{sTOT}, {TOTMAX}")
    A("s_cbranch_scc0 K2_NOOVF")
    A(f"v_mov_b32 v{T[0]}, 1"); A(f"v_mov_b32 v{T[1]}, {LDS_FLAG}")
    A(f"ds_write_b32 v{T[1]}, v{T[0]}")
    A("s_branch K2_PADDONE")
    A.label("K2_NOOVF")
    A.label("K2_PADDONE")
    A("s_waitcnt lgkmcnt(0)")
    A("s_barrier")
    ST.mark("bar3")
    if P.l2w:
        A(f"s_cmp_lt_u32 s{sW}, 8"); A("s_cbranch_scc1 K2_NOL2W"); A(f"s_cmp_ge_u32 s{sW}, {8+P.l2w}"); A("s_cbranch_scc1 K2_NOL2W")
        A(f"s_sub_u32 s{sQ}, s{sW}, 8")
        pf_row0(sQ,sPFO)
        A(f"v_lshlrev_b32 v125, 7, v{vLANE}")
        burst(125,124)
        A.label("K2_NOL2W")
    if P.pf and P.pfat=="bar3": propf()
    if P.pf==3 and P.pfsplit and P.pfat2=="bar3": propf(1)
    A(f"v_mov_b32 v{T[1]}, {LDS_FLAG}")
    A(f"ds_read_b32 v{T[0]}, v{T[1]}")
    if P.bar: A(f"ds_read_b32 v{T[5]}, v{T[1]} offset:4")
    for s in range(2):
        A(f"v_add_u32 v{T[2]}, v{RANK+s}, v{BINA+s}"); A(f"v_and_b32 v{T[2]}, 1, v{T[2]}")
        A(f"v_lshl_add_u32 v{T[2]}, v{BINA+s}, 1, v{T[2]}"); A(f"v_lshlrev_b32 v{T[2]}, 2, v{T[2]}")
        A(f"ds_read_b32 v{MK+s}, v{T[2]} offset:{LDS_BASE}")
    A("s_waitcnt lgkmcnt(0)")
    A(f"v_readfirstlane_b32 s{sTMP+1}, v{T[0]}")
    if P.bar:
        A(f"v_readfirstlane_b32 s{sGM}, v{T[5]}")
        A(f"s_add_u32 s{sGM}, s{sGM}, 15"); A(f"s_lshr_b32 s{sGM}, s{sGM}, 4"); A(f"s_mov_b32 s{sGB}, 0")
    A("s_nop 3")
    A(f"s_cmp_eq_u32 s{sTMP+1}, 0")
    A("s_cbranch_scc1 K2_PLACE")
    A(f"s_mov_b32 s{sWIN}, {WINSMALL}")
    A("s_branch K2_ROUND")
    A.label("K2_PLACE")
    A(f"s_add_u32 s{sTMP+2}, s{sWB}, s{sTOT}")
    A(f"v_add_u32 v{T[0]}, s{sTMP+2}, v{vLANE}")
    A(f"v_lshlrev_b32 v{T[1]}, 2, v{T[0]}")
    A(f"v_lshlrev_b32 v{T[2]}, 3, v{T[0]}")
    A(f"v_lshlrev_b32 v{T[3]}, 5, v{T[0]}"); A(f"v_add_u32 v{T[3]}, {LDS_A}, v{T[3]}")
    for q in range(4): A(f"v_mov_b32 v{T[6+q]}, 0")
    assert T[6]%2==0 and T[9]==T[6]+3
    A(f"v_cmp_gt_u32 vcc, 8, v{vLANE}")
    A(f"s_and_saveexec_b64 s[{sEX}:{sEX+1}], vcc")
    A(f"ds_write_b32 v{T[1]}, v{T[6]} offset:{LDS_IDX}")
    A(f"ds_write_b8 v{T[0]}, v{T[6]} offset:{LDS_K}")
    A(f"v_cmp_gt_u32 vcc, 4, v{vLANE}")
    A(f"s_and_b64 exec, exec, vcc")
    A(f"ds_write_b64 v{T[2]}, v[{T[6]}:{T[6]+1}] offset:{LDS_EF}")
    A(f"ds_write_b128 v{T[3]}, v[{T[6]}:{T[6]+3}]")
    A(f"ds_write_b128 v{T[3]}, v[{T[6]}:{T[6]+3}] offset:16")
    A(f"s_mov_b64 exec, -1")
    for s in range(2):
        A(f"s_add_u32 s{sTMP+1}, s{sTMP}, {s*1024}")
        A(f"s_cmp_ge_u32 s{sTMP+1}, s{sNR}")
        A(f"s_cbranch_scc1 K2_P_DONE")
        A(f"v_add_u32 v{T[1]}, {s*1024}, v0")
        A(f"v_cmp_gt_u32 vcc, s{sNR}, v{T[1]}")
        A(f"v_lshrrev_b32 v{T[0]}, 1, v{RANK+s}")
        A(f"v_add_u32 v{MK+s}, v{MK+s}, v{T[0]}")
        A(f"v_lshlrev_b32 v{T[0]}, 2, v{MK+s}")
        A(f"v_lshlrev_b32 v{T[1]}, 3, v{MK+s}")
        A(f"v_lshlrev_b32 v{T[2]}, 5, v{MK+s}")
        A(f"v_add_u32 v{T[2]}, {LDS_A}, v{T[2]}")
        A(f"v_and_b32 v{T[3]}, {hex(P.srcmask)}, v{KEY+s}")
        A(f"v_lshrrev_b32 v{T[4]}, 11, v{KEY+s}")
        A(f"v_and_b32 v{T[4]}, 0x38, v{T[4]}")
        A(f"s_and_saveexec_b64 s[{sEX}:{sEX+1}], vcc")
        A(f"ds_write_b128 v{T[2]}, v[{AP+8*s}:{AP+8*s+3}]")
        A(f"ds_write_b128 v{T[2]}, v[{AP+8*s+4}:{AP+8*s+7}] offset:16")
        A(f"ds_write_b64 v{T[1]}, v[{PAY+4*s+2}:{PAY+4*s+3}] offset:{LDS_EF}")
        A(f"ds_write_b32 v{T[0]}, v{T[3]} offset:{LDS_IDX}")
        A(f"ds_write_b8 v{MK+s}, v{T[4]} offset:{LDS_K}")
        A(f"s_mov_b64 exec, -1")
    A.label("K2_P_DONE")
    A("s_waitcnt lgkmcnt(0)")
    A("s_barrier")
    ST.mark("bar4")
    tl(4)
    if P.pf==3 and P.pfsplit and P.pfat2=="bar4": propf(1)
    ST.markc("c0")
    A(f"s_cmp_eq_u32 s{sTOT}, 0")
    A("s_cbranch_scc1 K2_MAIN_DONE")
    A(f"s_add_u32 s{sNB}, s{sTOT}, 3"); A(f"s_lshr_b32 s{sNB}, s{sNB}, 2"); A(f"s_sub_u32 s{sN}, 0, s{sNB}")
    A(f"s_lshl_b32 s{sTMP}, s{sWB}, 2"); A(f"v_mov_b32 v{vIad}, s{sTMP}")
    A(f"v_mov_b32 v{vKad}, s{sWB}")
    A(f"s_lshl_b32 s{sTMP}, s{sWB}, 5"); A(f"s_add_u32 s{sTMP}, s{sTMP}, {LDS_A}")
    A(f"v_lshlrev_b32 v{vT0}, 3, v{vLANE}")
    A(f"v_add_u32 v{vAad}, s{sTMP}, v{vT0}")
    A(f"s_lshl_b32 s{sTMP}, s{sWB}, 3"); A(f"s_add_u32 s{sTMP}, s{sTMP}, {LDS_EF}")
    A(f"v_add_u32 v{vEad}, s{sTMP}, v{vT0}")
    if P.pf and P.nrounds:
        pf_row0(sW,sPFO)
        A(f"s_lshl_b32 s{sTMP}, s{sW}, 10"); A(f"s_add_u32 s{sTMP}, s{sTMP}, s{sTMP+3}"); A(f"s_sub_i32 s{sTMP}, s{sTMP}, {P.lead}")
        A(f"s_max_i32 s{sTMP}, s{sTMP}, 0"); A(f"s_mul_i32 s{sTMP}, s{sTMP}, s{sNB}"); A(f"s_mul_i32 s{sTMP}, s{sTMP}, 6711"); A(f"s_lshr_b32 s{sTMP}, s{sTMP}, 26")
        A(f"s_sub_u32 s{sPFT}, s{sTMP}, s{sNB}")
        A(f"s_min_i32 s{sPFT}, s{sPFT}, -2")
        A(f"s_cmp_lt_u32 s{sW}, {P.npro}"); A(f"s_cselect_b32 s{sPFT}, 1, s{sPFT}")
        A(f"s_cmp_ge_u32 s{sW}, {P.nrounds}"); A(f"s_cselect_b32 s{sPFT}, 1, s{sPFT}")
        A(f"v_lshlrev_b32 v0, 7, v{vLANE}")
    def mf(d,a,b,abid,c="0"): return f"v_mfma_f32_4x4x4_16b_bf16 v[{d}:{d+3}], v[{a}:{a+1}], v[{b}:{b+1}], {c} cbsz:4 abid:{abid}"
    def xload(slot,pair): return f"buffer_load_dwordx4 v[{X+4*(slot%U)}:{X+4*(slot%U)+3}], v[{PAIR+2*pair}:{PAIR+2*pair+1}], s[{sSRD}:{sSRD+3}], 0 idxen offen"
    if P.prio in (4,5): A("s_setprio 3")
    if P.prio==5:
        A(f"s_lshr_b32 s{sQ}, s{sW}, 2"); A(f"s_lshl_b32 s{sQ}, s{sQ}, 1"); A(f"s_sub_i32 s{sQ}, s{sQ}, 3"); A(f"s_mul_i32 s{sQ}, s{sQ}, {P.pdelta}")
        for L,reg in ((2,sP3),(1,sP3+1),(0,sP3+2)):
            A(f"s_sub_i32 s{sQ+1}, {P.pth[L]}, s{sQ}"); A(f"s_mul_i32 s{sQ+1}, s{sQ+1}, s{sNB}"); A(f"s_ashr_i32 s{sQ+1}, s{sQ+1}, 6")
            A(f"s_max_i32 s{sQ+1}, s{sQ+1}, 1"); A(f"s_sub_i32 s{reg}, 0, s{sQ+1}")
        A(f"s_mov_b32 s{sLV}, 2"); A(f"s_mov_b32 s{sTH}, s{sP3}")
    for p in range(4): A(f"ds_read_b32 v{PAIR+2*p}, v{vIad} offset:{LDS_IDX+4*p}")
    A(f"ds_read_b64 v[{AOP}:{AOP+1}], v{vAad}")
    A(f"ds_read_b64 v[{EOP}:{EOP+1}], v{vEad}")
    A(f"ds_read_b32 v{vK}, v{vKad} offset:{LDS_K}")
    A("s_waitcnt lgkmcnt(3)")
    for p in range(4): A(xload(p,p))
    for p in range(4): A(f"ds_read_b32 v{PAIR+2*p}, v{vIad} offset:{LDS_IDX+4*(4+p)}")
    hi_e,hi_o,lo_e,lo_o=WF,WF+2,WF+4,WF+6
    A("s_waitcnt lgkmcnt(5)")
    for t in (0,1):
        u=UU[t]
        A(mf(u,EOP,hi_e,t)); A(mf(u+4,EOP,hi_o,t))
        A("s_nop 1")
        A(mf(u,EOP,lo_e,t,f"v[{u}:{u+3}]")); A(mf(u+4,EOP,lo_o,t,f"v[{u+4}:{u+7}]"))
    A("s_nop 2")
    u=UU[0]
    for q in range(8): A(f"v_exp_f32 v{EE+q}, v{u+q}")
    A("s_nop 0")
    for q in range(4): A(f"v_pk_add_f32 v[{EE+2*q}:{EE+2*q+1}], v[{EE+2*q}:{EE+2*q+1}], 1.0 op_sel_hi:[1,0]")
    for q in range(8): A(f"v_rcp_f32 v{EE+q}, v{EE+q}")
    A("s_nop 0")
    for q in range(2): A(f"v_pk_mul_f32 v[{RR+2*q}:{RR+2*q+1}], v[{u+2*q}:{u+2*q+1}], v[{EE+2*q}:{EE+2*q+1}]")
    body=[]
    for t in range(4):
        cur=t%2; nxt=(t+1)%2
        if P.prio==1: body.append(('s',f"s_setprio {3-t}"))
        body.append(('s',"s_waitcnt lgkmcnt(0)"))
        body.append(('s',f"v_readfirstlane_b32 s{sK[0]}, v{vK}"))
        if P.prio==5:
            body.append(('s',f"s_cmp_ge_i32 s{sN}, s{sTH}"))
            body.append(('s',f"s_cbranch_scc1 K2_PR{t}"))
            body.append(('l',f"K2_PRR{t}"))
        if P.pf and P.nrounds:
            body.append(('s',f"s_cmp_eq_u32 s{sN}, s{sPFT}"))
            body.append(('s',f"s_cbranch_scc1 K2_PF{t}"))
            body.append(('l',f"K2_PFR{t}"))
        body.append(('s',f"ds_read_b32 v{vK}, v{vKad} offset:{LDS_K+4*(t+1)}"))
        if t==0:
            body.append(('s',f"ds_read_b64 v[{EOPN}:{EOPN+1}], v{vEad} offset:128"))
            body.append(('s',f"ds_read_b64 v[{AOPN}:{AOPN+1}], v{vAad} offset:512"))
        for i in range(4):
            j=4*t+i
            x=X+4*(j%U)
            if P.prio==2 and i%2==0: body.append(('s',f"s_setprio {3-(j//2)%4}"))
            if P.prio==3: body.append(('s',f"s_setprio {3-i}"))
            un=UU[nxt]; uw=UU[cur]
            if i==0: TR=[f"v_exp_f32 v{EE+q}, v{un+q}" for q in range(4)]
            if i==1: TR=[f"v_exp_f32 v{EE+4+q}, v{un+4+q}" for q in range(4)]
            if i==2: TR=[f"v_rcp_f32 v{EE+q}, v{EE+q}" for q in range(4)]
            if i==3: TR=[f"v_rcp_f32 v{EE+4+q}, v{EE+4+q}" for q in range(4)]
            PKpre=[];PKpost=[]
            if i==0: PKpre=[f"v_pk_mul_f32 v[{RR+4+2*q}:{RR+4+2*q+1}], v[{uw+4+2*q}:{uw+4+2*q+1}], v[{EE+4+2*q}:{EE+4+2*q+1}]" for q in range(2)]
            if i==1: PKpre=[f"v_pk_add_f32 v[{EE+2*q}:{EE+2*q+1}], v[{EE+2*q}:{EE+2*q+1}], 1.0 op_sel_hi:[1,0]" for q in range(2)]
            if i==2: PKpre=[f"v_pk_add_f32 v[{EE+4+2*q}:{EE+4+2*q+1}], v[{EE+4+2*q}:{EE+4+2*q+1}], 1.0 op_sel_hi:[1,0]" for q in range(2)]
            if i==3: PKpost=[f"v_pk_mul_f32 v[{RR+2*q}:{RR+2*q+1}], v[{un+2*q}:{un+2*q+1}], v[{EE+2*q}:{EE+2*q+1}]" for q in range(2)]
            eop,ab=(EOP,t+2) if t<2 else (EOPN,t-2)
            if i==0: UM=mf(uw,eop,hi_e,ab)
            if i==1: UM=mf(uw+4,eop,hi_o,ab)
            if i==2: UM=mf(uw,eop,lo_e,ab,f"v[{uw}:{uw+3}]")
            if i==3: UM=mf(uw+4,eop,lo_o,ab,f"v[{uw+4}:{uw+7}]")
            body.append(('s',f"s_waitcnt vmcnt({U-1})"))
            body.append(('s',mf(TP,AOP,x,j)))
            body.append(('s',TR[0]))
            body.append(('s',mf(TP+4,AOP,x+2,j)))
            body.append(('s',TR[1]))
            body.append(('s',xload(j,i)))
            body.append(('s',f"ds_read_b32 v{PAIR+2*i}, v{vIad} offset:{LDS_IDX+4*(j+2*U)}"))
            body.append(('s',UM))
            body.append(('s',TR[2])); body.append(('s',TR[3]))
            for q in PKpre: body.append(('s',q))
            body.append(('s',f"s_set_gpr_idx_on s{sK[0]}, gpr_idx(SRC2,DST)"))
            sel=i%2; pr=i//2
            for h in range(4):
                R=RR+(0 if h<2 else 4)+2*pr
                a=ACC+2*h; tp=TP+2*h
                mod = "op_sel_hi:[1,0,1]" if sel==0 else "op_sel:[0,1,0] op_sel_hi:[1,1,1]"
                body.append(('s',f"v_pk_fma_f32 v[{a}:{a+1}], v[{tp}:{tp+1}], v[{R}:{R+1}], v[{a}:{a+1}] {mod}"))
            body.append(('s',"s_set_gpr_idx_off"))
            for q in PKpost: body.append(('s',q))
            if i<3: body.append(('s',f"s_lshr_b32 s{sK[0]}, s{sK[0]}, 8"))
        body.append(('s',f"s_add_u32 s{sN}, s{sN}, 1"))
        body.append(('s',"s_cbranch_scc1 K2_MAIN_DONE"))
    if P.bar:
        body.append(('s',"s_barrier")); body.append(('s',f"s_add_u32 s{sGB}, s{sGB}, 1"))
    if P.prio==4:
        body.append(('s',f"s_sub_u32 s{sQ}, 0, s{sN}")); body.append(('s',f"s_lshl_b32 s{sQ}, s{sQ}, 2"))
        for lv in (3,2,1):
            pass
        body.append(('s',f"s_mul_i32 s{sQ+1}, s{sNB}, 3")); body.append(('s',f"s_cmp_ge_u32 s{sQ}, s{sQ+1}")); body.append(('s',"s_cbranch_scc1 K2_LOOPB"))
        body.append(('s',"s_setprio 2")); body.append(('s',f"s_lshl_b32 s{sQ+1}, s{sNB}, 1")); body.append(('s',f"s_cmp_ge_u32 s{sQ}, s{sQ+1}")); body.append(('s',"s_cbranch_scc1 K2_LOOPB"))
        body.append(('s',"s_setprio 1")); body.append(('s',f"s_cmp_ge_u32 s{sQ}, s{sNB}")); body.append(('s',"s_cbranch_scc1 K2_LOOPB"))
        body.append(('s',"s_setprio 0")); body.append(('l',"K2_LOOPB"))
    body.append(('s',f"v_mov_b32 v{AOP}, v{AOPN}")); body.append(('s',f"v_mov_b32 v{AOP+1}, v{AOPN+1}"))
    body.append(('s',f"v_mov_b32 v{EOP}, v{EOPN}")); body.append(('s',f"v_mov_b32 v{EOP+1}, v{EOPN+1}"))
    body.append(('s',f"v_add_u32 v{vAad}, 512, v{vAad}")); body.append(('s',f"v_add_u32 v{vEad}, 128, v{vEad}"))
    body.append(('s',f"v_add_u32 v{vIad}, 64, v{vIad}")); body.append(('s',f"v_add_u32 v{vKad}, 16, v{vKad}"))
    body.append(('s',"s_branch K2_LOOP"))
    if "noload" in P.dbg: body=[b for b in body if not (b[0]=='s' and (b[1].startswith("buffer_load") or b[1].startswith("s_waitcnt vmcnt")))]
    if "noidx" in P.dbg: body=[b for b in body if not (b[0]=='s' and b[1].startswith("s_set_gpr"))]
    if "notrans" in P.dbg: body=[b for b in body if not (b[0]=='s' and (b[1].startswith("v_exp") or b[1].startswith("v_rcp")))]
    if "nofma" in P.dbg: body=[b for b in body if not (b[0]=='s' and b[1].startswith("v_pk_fma"))]
    if "nolo" in P.dbg: body=[b for b in body if not (b[0]=='s' and b[1].startswith("v_mfma") and (f"v[{WF+4}:{WF+5}]" in b[1] or f"v[{WF+6}:{WF+7}]" in b[1]))]
    if "nomfma" in P.dbg: body=[b for b in body if not (b[0]=='s' and b[1].startswith("v_mfma"))]
    A.label("K2_LOOP")
    for i,b in enumerate(body):
        if b[0]=='s': A(b[1])
        elif b[0]=='l': A.label(b[1])
        elif b[0]=='lds': A(b[2])
        else:
            cnt=0; found=False
            for step in range(len(body)):
                kk=(i-1-step)%len(body)
                if body[kk][0]=='lds':
                    if body[kk][1]==b[1]: found=True; break
                    cnt+=1
            assert found,b
            A(f"s_waitcnt lgkmcnt({min(cnt,15)})")
    if P.pf and P.nrounds:
        for t in range(4):
            A.label(f"K2_PF{t}")
            burst(0)
            A(f"s_branch K2_PFR{t}")
    if P.prio==5:
        for t in range(4):
            A.label(f"K2_PR{t}")
            A(f"s_cmp_eq_u32 s{sLV}, 2"); A(f"s_cbranch_scc0 K2_PRA{t}")
            A("s_setprio 2"); A(f"s_mov_b32 s{sLV}, 1"); A(f"s_mov_b32 s{sTH}, s{sP3+1}"); A(f"s_branch K2_PRR{t}")
            A.label(f"K2_PRA{t}")
            A(f"s_cmp_eq_u32 s{sLV}, 1"); A(f"s_cbranch_scc0 K2_PRB{t}")
            A("s_setprio 1"); A(f"s_mov_b32 s{sLV}, 0"); A(f"s_mov_b32 s{sTH}, s{sP3+2}"); A(f"s_branch K2_PRR{t}")
            A.label(f"K2_PRB{t}")
            A("s_setprio 0"); A(f"s_mov_b32 s{sTH}, 0x7fffffff"); A(f"s_branch K2_PRR{t}")
    A.label("K2_MAIN_DONE")
    if P.prio: A("s_setprio 0")
    if P.bar:
        A.label("K2_BARL")
        A(f"s_cmp_ge_u32 s{sGB}, s{sGM}"); A("s_cbranch_scc1 K2_BARD")
        A("s_barrier"); A(f"s_add_u32 s{sGB}, s{sGB}, 1"); A("s_branch K2_BARL")
        A.label("K2_BARD")
    if P.pf and P.nrounds:
        A(f"s_lshl_b32 s{sTMP}, s{sW}, 6"); A(f"v_add_u32 v0, s{sTMP}, v{vLANE}")
    A(f"s_add_u32 s{sLO}, s{sLO}, s{sWIN}")
    A(f"s_cmp_lt_u32 s{sLO}, s{sT}")
    A("s_cbranch_scc0 K2_EPI")
    A("s_waitcnt vmcnt(0) lgkmcnt(0)")
    A("s_branch K2_ROUND")
    A.label("K2_EPI")
    A("s_waitcnt lgkmcnt(0)")
    ST.mark("main")
    tl(8)
    ST.markc("c1")
    A(f"s_and_b32 s{sCGP}, s{sW}, 3"); A(f"s_lshr_b32 s{sRG}, s{sW}, 2")
    A(f"s_lshl_b32 s{sTMP}, s{sCGP}, 13"); A(f"s_add_u32 s{sTMP}, s{sTMP}, {CONST_WM}")
    A(f"v_add_u32 v{2}, s{sTMP}, v{PAIR+1}")
    A(f"v_add_u32 v{3}, 4096, v{2}")
    for f in range(8):
        base=2 if f<4 else 3
        A(f"global_load_dwordx4 v[{WM+4*f}:{WM+4*f+3}], v{base}, s[{sCONST}:{sCONST+1}] offset:{(f%4)*1024}"+SC)
    RSZ=CAPW*32
    A(f"s_mul_i32 s{sTMP}, s{sW}, {RSZ}"); A(f"s_add_u32 s{sTMP}, s{sTMP}, {LDS_A}")
    A(f"s_xor_b32 s{sTMP+1}, s{sW}, 1"); A(f"s_mul_i32 s{sTMP+1}, s{sTMP+1}, {RSZ}"); A(f"s_add_u32 s{sTMP+1}, s{sTMP+1}, {LDS_A}")
    A(f"v_lshlrev_b32 v4, 3, v{vLANE}")
    A(f"v_add_u32 v5, s{sTMP}, v4"); A(f"v_add_u32 v6, 2048, v5"); A(f"v_add_u32 v7, 4096, v5")
    EX=64
    def xaddr(k,regs):
        r=regs[k//2]; o=(k%2)*128
        return r,o,o+64
    A(f"s_cmp_eq_u32 s{sH}, 0")
    A("s_cbranch_scc0 K2_EXW1")
    for k in range(5):
        r,o0,o1=xaddr(k,[5,6,7]); a=ACC+8*k
        A(f"ds_write2_b64 v{r}, v[{a+2}:{a+3}], v[{a+6}:{a+7}] offset0:{o0} offset1:{o1}")
    A("s_branch K2_EXW2")
    A.label("K2_EXW1")
    for k in range(5):
        r,o0,o1=xaddr(k,[5,6,7]); a=ACC+8*k
        A(f"ds_write2_b64 v{r}, v[{a}:{a+1}], v[{a+4}:{a+5}] offset0:{o0} offset1:{o1}")
    A.label("K2_EXW2")
    pr0,pr1,pr2,vRW=PAIR,PAIR+2,PAIR+4,PAIR+6
    A(f"v_add_u32 v{pr0}, s{sTMP+1}, v4"); A(f"v_add_u32 v{pr1}, 2048, v{pr0}"); A(f"v_add_u32 v{pr2}, 4096, v{pr0}")
    A(f"s_mul_i32 s{sTMP+2}, s{sG8}, 20"); A(f"s_lshl_b32 s{sTMP+3}, s{sH}, 1"); A(f"s_add_u32 s{sTMP+2}, s{sTMP+2}, s{sTMP+3}"); A(f"s_mul_i32 s{sTMP+2}, s{sTMP+2}, {AGG_STRIDE}")
    A(f"v_lshlrev_b32 v4, 2, v{vLANE}"); A(f"v_add_u32 v{vRW}, s{sTMP+2}, v4")
    A(f"s_mul_i32 s{sTMP}, s{sRG}, 3"); A(f"s_lshl_b32 s{sTMP+1}, s{sRG}, 1"); A(f"s_add_u32 s{sTMP+1}, s{sTMP+1}, 2")
    A(f"s_cmp_lt_u32 s{sRG}, 2"); A(f"s_cselect_b32 s{sTMP}, s{sTMP}, s{sTMP+1}")
    A(f"s_mul_i32 s{sTMP+1}, s{sTMP}, {16*AGG_STRIDE}")
    A(f"v_and_b32 v3, 15, v{vLANE}"); A(f"v_lshrrev_b32 v4, 4, v{vLANE}")
    A(f"v_mul_u32_u24 v7, {AGG_STRIDE}, v3"); A(f"v_lshl_add_u32 v7, v4, 4, v7"); A(f"v_add_u32 v{PAIR+1}, s{sTMP+1}, v7")
    vMR=PAIR+1; vOUT=PAIR+3
    A(f"v_lshlrev_b32 v3, 4, v3"); A(f"v_lshl_add_u32 v{vOUT}, v4, 10, v3")
    A(f"s_lshl_b32 s{sTMP}, s{sTMP}, 2")
    A(f"s_mul_i32 s{sTMP+1}, s{sB}, {NPB}"); A(f"s_add_u32 s{sTMP+1}, s{sTMP+1}, s{sTMP}")
    A(f"s_lshl_b32 s{sTMP+1}, s{sTMP+1}, 10"); A(f"s_lshl_b32 s{sTMP+2}, s{sCGP}, 8"); A(f"s_add_u32 s{sTMP+1}, s{sTMP+1}, s{sTMP+2}")
    A(f"s_add_u32 s{sOUT}, s{sOUT}, s{sTMP+1}"); A(f"s_addc_u32 s{sOUT+1}, s{sOUT+1}, 0")
    A("s_waitcnt vmcnt(8) lgkmcnt(0)")
    A("s_barrier")
    ST.mark("barY")
    for k in range(5):
        r,o0,o1=xaddr(k,[pr0,pr1,pr2])
        A(f"ds_read2_b64 v[{EX+4*k}:{EX+4*k+3}], v{r} offset0:{o0} offset1:{o1}")
    A(f"s_cmp_eq_u32 s{sH}, 0")
    A("s_cbranch_scc0 K2_CB1")
    for hh in range(2):
        if hh==1: A.label("K2_CB1")
        off=0 if hh==0 else 2
        for k in range(5):
            a=ACC+8*k+off; e=EX+4*k
            A(f"s_waitcnt lgkmcnt({min(4-k+2*k,15)})")
            A(f"v_pk_add_f32 v[{a}:{a+1}], v[{a}:{a+1}], v[{e}:{e+1}]")
            A(f"v_pk_add_f32 v[{a+4}:{a+5}], v[{a+4}:{a+5}], v[{e+2}:{e+3}]")
            A(f"v_pk_mul_f32 v[{a}:{a+1}], v[{a}:{a+1}], s[{sLN2}:{sLN2+1}]")
            A(f"v_pk_mul_f32 v[{a+4}:{a+5}], v[{a+4}:{a+5}], s[{sLN2}:{sLN2+1}]")
            A(f"v_cvt_pk_bf16_f32 v{2+2*(k%2)}, v{a}, v{a+4}")
            A(f"v_cvt_pk_bf16_f32 v{3+2*(k%2)}, v{a+1}, v{a+5}")
            A(f"ds_write_b32 v{vRW}, v{2+2*(k%2)} offset:{(4*k)*AGG_STRIDE}")
            A(f"ds_write_b32 v{vRW}, v{3+2*(k%2)} offset:{(4*k+1)*AGG_STRIDE}")
        if hh==0: A("s_branch K2_CB2")
    A.label("K2_CB2")
    A("s_waitcnt lgkmcnt(0)")
    A("s_barrier")
    ST.mark("barZ")
    D=ACC; FR=64
    fl={0:"",1:" sc1",2:" sc0 sc1",3:" nt"}[P.outwt]
    def rd(q):
        for ks in range(4): A(f"ds_read_b128 v[{FR+16*(q%2)+4*ks}:{FR+16*(q%2)+4*ks+3}], v{vMR} offset:{q*16*AGG_STRIDE+ks*64}")
    def mm(q):
        for ks in range(4):
            for p in range(2):
                d=D+8*q+4*p; f=FR+16*(q%2)+4*ks; w=WM+4*(4*p+ks)
                c="0" if ks==0 else f"v[{d}:{d+3}]"
                A(f"v_mfma_f32_16x16x32_bf16 v[{d}:{d+3}], v[{f}:{f+3}], v[{w}:{w+3}], {c}")
    def st(q):
        d=D+8*q; o=D+24+4*q
        A(f"v_cvt_pk_bf16_f32 v{o}, v{d}, v{d+1}"); A(f"v_cvt_pk_bf16_f32 v{o+1}, v{d+2}, v{d+3}")
        A(f"v_cvt_pk_bf16_f32 v{o+2}, v{d+4}, v{d+5}"); A(f"v_cvt_pk_bf16_f32 v{o+3}, v{d+6}, v{d+7}")
        if q: A(f"v_add_u32 v{vOUT}, 4096, v{vOUT}")
        A(f"global_store_dwordx4 v{vOUT}, v[{o}:{o+3}], s[{sOUT}:{sOUT+1}]"+fl)
    rd(0); rd(1)
    A("s_waitcnt vmcnt(0) lgkmcnt(4)")
    mm(0)
    A(f"s_cmp_lt_u32 s{sRG}, 2")
    A("s_cbranch_scc0 K2_MIX2")
    rd(2)
    A("s_waitcnt lgkmcnt(4)")
    mm(1)
    st(0)
    A("s_waitcnt lgkmcnt(0)")
    mm(2)
    st(1)
    A("s_nop 4")
    st(2)
    A("s_branch K2_MIXD")
    A.label("K2_MIX2")
    A("s_waitcnt lgkmcnt(0)")
    mm(1)
    st(0)
    A("s_nop 4")
    st(1)
    A.label("K2_MIXD")
    if P.tl:
        A("s_waitcnt vmcnt(0)"); tl(12)
        if not P.fused:
            A(f"s_lshl_b32 s74, s2, 3"); A("s_add_u32 s74, s74, 0x7F0000"); A("v_mov_b32 v4, s74")
            A("v_cmp_eq_u32 vcc, 0, v0"); A("s_and_saveexec_b64 s[76:77], vcc"); A("s_cbranch_execz K2_TLZ")
            A(f"global_load_dwordx2 v[6:7], v4, s[{sWS}:{sWS+1}]"); A("s_waitcnt vmcnt(0)")
            A("v_not_b32 v6, v6"); A("v_mov_b32 v3, 0")
            A("global_atomic_umax v3, v6, s[72:73] offset:16"); A("global_atomic_umax v3, v7, s[72:73] offset:20")
            A.label("K2_TLZ"); A("s_mov_b64 exec, s[76:77]")
    ST.mark("iss")
    if P.stamps:
        A("s_waitcnt vmcnt(0)")
        ST.mark("done")
        ST.dump(sWS,1,2,sW,2)
    A.label("K2_END")
    A("s_endpgm")
    A.label("K2_CODE_END")
    return NV

def kd(name,nv,ns):
    nv8=(nv+3)//4*4
    return f""".amdhsa_kernel {name}
  .amdhsa_next_free_vgpr {nv8}
  .amdhsa_next_free_sgpr {ns}
  .amdhsa_accum_offset {nv8}
  .amdhsa_group_segment_fixed_size 0
  .amdhsa_kernarg_size 88
  .amdhsa_user_sgpr_count 2
  .amdhsa_user_sgpr_kernarg_segment_ptr 1
  .amdhsa_system_sgpr_workgroup_id_x 1
  .amdhsa_float_denorm_mode_32 3
.end_amdhsa_kernel
"""

def main():
    ap=argparse.ArgumentParser()
    ap.add_argument("-o",default="standalone__tensor_product_equiv_tfn__graph.s")
    ap.add_argument("--U",type=int,default=8)
    ap.add_argument("--B",type=int,default=32)
    ap.add_argument("--rot",type=int,default=0)
    ap.add_argument("--stamps",type=int,default=0)
    ap.add_argument("--srcmask",type=lambda x:int(x,0),default=0x3fff)
    ap.add_argument("--dbg",default="")
    ap.add_argument("--xmap",type=int,default=1)
    ap.add_argument("--prio",type=int,default=5)
    ap.add_argument("--pf",type=int,default=3)
    ap.add_argument("--npro",type=int,default=2)
    ap.add_argument("--lead",type=int,default=1500)
    ap.add_argument("--nrounds",type=int,default=0)
    ap.add_argument("--bar",type=int,default=0)
    ap.add_argument("--k1stage",type=int,default=1)
    ap.add_argument("--k1wt",type=int,default=1)
    ap.add_argument("--k1pf",type=int,default=0)
    ap.add_argument("--pfat",default="recs")
    ap.add_argument("--k1l2",type=int,default=0)
    ap.add_argument("--outwt",type=int,default=1)
    ap.add_argument("--codepf",type=int,default=1)
    ap.add_argument("--k1rows",type=int,default=10000)
    ap.add_argument("--fused",type=int,default=1)
    ap.add_argument("--fpf",type=int,default=0)
    ap.add_argument("--sleep",type=int,default=0)
    ap.add_argument("--nfast",type=int,default=245)
    ap.add_argument("--pfsplit",type=int,default=0)
    ap.add_argument("--tl",type=int,default=0)
    ap.add_argument("--gran",type=int,default=0)
    ap.add_argument("--pdelta",type=int,default=3)
    ap.add_argument("--pth",type=lambda x:[int(v) for v in x.split(",")],default=[16,32,48])
    ap.add_argument("--l2w",type=int,default=0)
    ap.add_argument("--flags",type=int,default=1)
    ap.add_argument("--pfat2",default="bar4")
    ap.add_argument("--sfast",type=int,default=8)
    P=ap.parse_args()
    hdr=open("standalone__tensor_product_equiv_tfn__graph.s.ref").read().split("; Override")[0]
    A=Asm()
    A.L.append(hdr.rstrip("\n"))
    if P.fused:
        A.L.append(f"; @launch grid=({NB},1,1) block=(1024,1,1) lds={K2_LDS}")
    else:
        A.L.append(f"; @launch kernel=tfn_bin_kernel grid=({NC+K1_CONST_WGS},1,1) block=({K1_THREADS},1,1) lds={2048+CH*20 if P.k1stage else 2048}")
        A.L.append(f"; @launch kernel=standalone__tensor_product_equiv_tfn__graph_kernel grid=({NB},1,1) block=(1024,1,1) lds={K2_LDS}")
    A('.amdgcn_target "amdgcn-amd-amdhsa--gfx950"')
    A(".text")
    if not P.fused: A(".globl tfn_bin_kernel")
    A(".globl standalone__tensor_product_equiv_tfn__graph_kernel")
    if not P.fused: gen_k1(A,P)
    nv=gen_k2(A,P)
    A('.section .rodata,"a"')
    A(".p2align 6")
    s=A.text()+("" if P.fused else kd("tfn_bin_kernel",72,102 if P.stamps else 40)+".p2align 6\n")+kd("standalone__tensor_product_equiv_tfn__graph_kernel",nv,102 if P.stamps else 80)
    open(P.o,"w").write(s)
    print("wrote",P.o,len(s),"bytes")
main()
```

```python
import sys, struct, argparse

N=10000; E=320000; C=128
NPB=40
NB=250
NC=250
CH=1280
K1_THREADS=320
K1_CONST_WGS=8
import os
WS_BASE=int(os.environ.get("WSBASE","0"),0)
WS_KEYS=WS_BASE; WS_PAY=WS_BASE+0x140000; WS_CELL=WS_BASE+0x630000; WS_CONST=WS_BASE+0x680000; WS_FLAG=WS_BASE+0x6A0000; WS_GRAN=WS_BASE+0x700000
CONST_WF=0; CONST_CG=2048; CONST_WM=4096
LOG2E=1.4426950408889634; LN2=0.6931471805599453
def f2u(f): return struct.unpack("<I",struct.pack("<f",f))[0]

class Asm:
    def __init__(s): s.L=[]
    def __call__(s,x=""):
        for l in x.split("\n"):
            s.L.append(l if (l.endswith(":") or l.startswith(".") or l=="" ) else "    "+l)
    def c(s,x): s.L.append("    ; "+x)
    def label(s,x): s.L.append(x+":")
    def text(s): return "\n".join(s.L)+"\n"

def vr(a,n=1): return f"v{a}" if n==1 else f"v[{a}:{a+n-1}]"
def sr(a,n=1): return f"s{a}" if n==1 else f"s[{a}:{a+n-1}]"

WS_STAMP=0x800000
class Stamps:
    def __init__(s,A,on,kn,base_sgpr=int(os.environ.get('STBASE','82')),tmp=int(os.environ.get('STTMP','80'))): s.A=A; s.on=on; s.n=0; s.base=base_sgpr; s.tmp=tmp; s.kn=kn
    def mark(s,name=""):
        if not s.on: return
        A=s.A
        A(f"s_memrealtime s[{s.tmp}:{s.tmp+1}]")
        A("s_waitcnt lgkmcnt(0)")
        A(f"s_mov_b32 s{s.base+s.n}, s{s.tmp}")
        s.n+=1
    def markc(s,name=""):
        if not s.on: return
        A=s.A
        A(f"s_memtime s[{s.tmp}:{s.tmp+1}]")
        A("s_waitcnt lgkmcnt(0)")
        A(f"s_mov_b32 s{s.base+s.n}, s{s.tmp}")
        s.n+=1
    def dump(s,wsreg,kernel,wgreg,wavereg,vtmp):
        if not s.on: return
        A=s.A
        A(f"s_lshl_b32 s{s.tmp}, s{wgreg}, 4"); A(f"s_add_u32 s{s.tmp}, s{s.tmp}, s{wavereg}"); A(f"s_lshl_b32 s{s.tmp}, s{s.tmp}, 7")
        A(f"s_add_u32 s{s.tmp}, s{s.tmp}, {WS_STAMP+kernel*0x100000}")
        A(f"s_add_u32 s{s.tmp}, s{wsreg}, s{s.tmp}"); A(f"s_addc_u32 s{s.tmp+1}, s{wsreg+1}, 0")
        A(f"v_mov_b32 v{vtmp}, 0")
        for i in range(s.n):
            A(f"v_mov_b32 v{vtmp+1}, s{s.base+i}")
            A(f"global_store_dword v{vtmp}, v{vtmp+1}, s[{s.tmp}:{s.tmp+1}] offset:{4*i}")
            A("s_nop 1")

def dpp_scan(A,v,nrows=4):
    for sh in (1,2,4,8):
        A("s_nop 1")
        A(f"v_add_u32_dpp v{v}, v{v}, v{v} row_shr:{sh} row_mask:0xf bank_mask:0xf bound_ctrl:1")
    if nrows>=2:
        A("s_nop 1")
        A(f"v_add_u32_dpp v{v}, v{v}, v{v} row_bcast:15 row_mask:0xa bank_mask:0xf")
    if nrows>=4:
        A("s_nop 1")
        A(f"v_add_u32_dpp v{v}, v{v}, v{v} row_bcast:31 row_mask:0xc bank_mask:0xf")

def gen_k1(A,P):
    B=P.B
    blkmul={32:209,16:104,64:419}[B]
    assert ((N-1)*blkmul)>>16 < B
    for d in range(N):
        b=(d*52429)>>21; assert b==d//40
    for dl in range(40): assert (dl*205)>>10==dl//5
    A(".p2align 8")
    A(".type tfn_bin_kernel,@function")
    A.label("tfn_bin_kernel")
    A(f"s_cmp_ge_u32 s2, {NC+K1_CONST_WGS}")
    A("s_cbranch_scc1 K1_END")
    A("s_load_dwordx4 s[4:7], s[0:1], 8")
    A("s_load_dwordx4 s[8:11], s[0:1], 24")
    A("s_load_dwordx2 s[12:13], s[0:1], 80")
    if P.k1pf: A("s_load_dwordx2 s[32:33], s[0:1], 0")
    A(f"s_cmp_ge_u32 s2, {NC}")
    A("s_cbranch_scc1 K1_CONST")
    ST=Stamps(A,P.stamps,"K1")
    ST.mark("start")
    if P.tl:
        A("s_memrealtime s[38:39]"); A("s_waitcnt lgkmcnt(0)")
    A(f"s_mul_i32 s14, s2, {CH*4}")
    A("v_lshlrev_b32 v1, 4, v0")
    A("v_add_u32 v1, s14, v1")
    A("v_lshlrev_b32 v2, 1, v1")
    A("v_lshlrev_b32 v3, 2, v0")
    A("v_mov_b32 v4, 0")
    A("v_mov_b32 v5, 1")
    A("v_cmp_gt_u32 vcc, 0x100, v0")
    A("s_and_saveexec_b64 s[16:17], vcc")
    A("s_cbranch_execz K1_NOZ")
    A("ds_write_b32 v3, v4")
    A.label("K1_NOZ")
    A("s_mov_b64 exec, s[16:17]")
    A("s_waitcnt lgkmcnt(0)")
    A("global_load_dwordx4 v[8:11], v1, s[6:7]")
    A("global_load_dwordx4 v[12:15], v1, s[4:5]")
    A("global_load_dwordx4 v[16:19], v2, s[8:9]")
    A("global_load_dwordx4 v[20:23], v2, s[8:9] offset:16")
    A("global_load_dwordx4 v[24:27], v2, s[10:11]")
    A("global_load_dwordx4 v[28:31], v2, s[10:11] offset:16")
    def k1pf():
        if P.k1l2==0:
            per=(P.k1rows*8+249)//250
            A(f"s_mul_i32 s34, s2, {per*128}")
            A("v_lshlrev_b32 v68, 7, v0"); A("v_add_u32 v68, s34, v68")
            if per<320:
                A(f"v_cmp_gt_u32 vcc, {per}, v0"); A("s_and_saveexec_b64 s[36:37], vcc"); A("s_cbranch_execz K1_NOPF")
            A("global_load_dword v69, v68, s[32:33]")
            if per<320:
                A.label("K1_NOPF"); A("s_mov_b64 exec, s[36:37]")
        else:
            A("s_lshr_b32 s34, s2, 3"); A(f"s_mul_i32 s34, s34, {320*128}")
            A("v_lshlrev_b32 v68, 7, v0"); A("v_add_u32 v68, s34, v68")
            for q in range(P.k1l2):
                A("global_load_dword v69, v68, s[32:33]")
                A(f"v_add_u32 v68, {10240*128}, v68")
            rem=80000-10240*P.k1l2; per=(rem+249)//250
            assert per<=320
            A(f"s_mul_i32 s34, s2, {per}"); A(f"s_add_u32 s34, s34, {10240*P.k1l2}")
            A("v_add_u32 v70, s34, v0")
            A(f"v_cmp_gt_u32 vcc, {per}, v0"); A(f"s_mov_b32 s35, 80000"); A("v_cmp_gt_u32 s[36:37], s35, v70"); A("s_and_b64 vcc, vcc, s[36:37]")
            A("v_lshlrev_b32 v70, 7, v70")
            A("s_and_saveexec_b64 s[36:37], vcc")
            A("s_cbranch_execz K1_NOPF")
            A("global_load_dword v71, v70, s[32:33]")
            A.label("K1_NOPF")
            A("s_mov_b64 exec, s[36:37]")
    if P.k1pf==1: k1pf()
    A(f"s_mul_i32 s15, s2, {CH*16}")
    A(f"s_add_u32 s18, s12, {WS_KEYS}"); A("s_addc_u32 s19, s13, 0")
    A("s_add_u32 s18, s18, s14"); A("s_addc_u32 s19, s19, 0")
    A(f"s_add_u32 s20, s12, {WS_PAY}"); A("s_addc_u32 s21, s13, 0")
    A("s_add_u32 s20, s20, s15"); A("s_addc_u32 s21, s21, 0")
    A("s_lshl_b32 s15, s2, 2")
    A(f"s_add_u32 s22, s12, {WS_CELL}"); A("s_addc_u32 s23, s13, 0")
    A("s_add_u32 s22, s22, s15"); A("s_addc_u32 s23, s23, 0")
    A("s_movk_i32 s24, -40")
    A("v_lshrrev_b32 v6, 6, v0")
    A("v_and_b32 v7, 63, v0")
    A("v_readfirstlane_b32 s25, v6")
    A("s_barrier")
    A(f"s_waitcnt vmcnt({5 if P.k1pf==1 else 4})")
    ST.mark("ld")
    for i in range(4):
        d=8+i; s=12+i
        A(f"v_mul_u32_u24 v44, 0xcccd, v{d}")
        A("v_lshrrev_b32 v44, 21, v44")
        A(f"v_mad_i32_i24 v45, v44, s24, v{d}")
        A(f"v_lshlrev_b32 v{36+i}, 2, v44")
        A(f"ds_add_rtn_u32 v{40+i}, v{36+i}, v5")
        A("v_mul_u32_u24 v46, 0xcd, v45")
        A("v_lshrrev_b32 v46, 10, v46")
        A("v_mad_i32_i24 v47, v46, -5, v45")
        A(f"v_mul_u32_u24 v48, {blkmul}, v{s}")
        A("v_lshrrev_b32 v48, 16, v48")
        if P.rot:
            A("v_mul_u32_u24 v49, 2098, v44"); A("v_lshrrev_b32 v49, 16, v49")
            A(f"v_mul_u32_u24 v49, {(B//8)*P.rot}, v49")
            A("v_add_u32 v48, v48, v49")
            A(f"v_and_b32 v48, {B-1}, v48")
        sh={16:4,32:5,64:6}[B]
        A(f"v_lshl_add_u32 v48, v46, {sh}, v48")
        A(f"v_lshl_or_b32 v{32+i}, v47, 14, v{s}")
        A(f"v_lshl_or_b32 v{32+i}, v48, 17, v{32+i}")
    A(f"s_waitcnt vmcnt({1 if P.k1pf==1 else 0})")
    A("v_swap_b32 v18, v24"); A("v_swap_b32 v19, v25"); A("v_swap_b32 v22, v28"); A("v_swap_b32 v23, v29")
    pay=[16,24,20,28]
    A("v_lshlrev_b32 v50, 4, v7")
    A("s_waitcnt lgkmcnt(0)")
    A("s_barrier")
    ST.mark("hist")
    if P.k1pf==2: k1pf()
    A("ds_read_b128 v[52:55], v50")
    A("s_waitcnt lgkmcnt(0)")
    A("v_add_u32 v56, v52, v53")
    A("v_add_u32 v57, v56, v54")
    A("v_add_u32 v58, v57, v55")
    A("v_mov_b32 v59, v58")
    dpp_scan(A,59)
    A("v_sub_u32 v60, v59, v58")
    A("v_add_u32 v61, v60, v52")
    A("v_add_u32 v62, v60, v56")
    A("v_add_u32 v63, v60, v57")
    A("ds_write_b128 v50, v[60:63] offset:1024")
    for i in range(4):
        A(f"s_cmp_lg_u32 s25, {i}")
        A(f"s_cbranch_scc1 K1_CS{i}")
        A(f"v_lshl_or_b32 v64, v{52+i}, 16, v{60+i}")
        A(f"v_lshlrev_b32 v65, 12, v7")
        if i: A(f"v_add_u32 v65, {i*1024}, v65")
        A(f"v_cmp_gt_u32 vcc, {(NB-i+3)//4}, v7")
        A("s_and_saveexec_b64 s[16:17], vcc")
        A("global_store_dword v65, v64, s[22:23]")
        A(f"s_cmp_ge_u32 s2, {256-NC}")
        A(f"s_cbranch_scc1 K1_CZ{i}")
        A(f"global_store_dword v65, v4, s[22:23] offset:{NC*4}")
        A.label(f"K1_CZ{i}")
        A("s_mov_b64 exec, s[16:17]")
        A.label(f"K1_CS{i}")
    A("s_waitcnt lgkmcnt(0)")
    for i in range(4): A(f"ds_read_b32 v{44+i}, v{36+i} offset:1024")
    if not P.k1stage:
        for i in range(4):
            A(f"s_waitcnt lgkmcnt({3-i})")
            A(f"v_add_u32 v{44+i}, v{44+i}, v{40+i}")
            A(f"v_lshlrev_b32 v48, 2, v{44+i}")
            A(f"v_lshlrev_b32 v49, 4, v{44+i}")
            A(f"global_store_dwordx4 v49, v[{pay[i]}:{pay[i]+3}], s[20:21]")
            A(f"global_store_dword v48, v{32+i}, s[18:19]")
            A("s_nop 1")
    else:
        KST=2048; PST=KST+CH*4
        fl={0:"",1:" sc1",2:" sc0 sc1",3:" nt"}[P.k1wt]
        for i in range(4):
            A(f"s_waitcnt lgkmcnt({3-i+2*i})")
            A(f"v_add_u32 v{44+i}, v{44+i}, v{40+i}")
            A(f"v_lshlrev_b32 v48, 2, v{44+i}")
            A(f"v_lshlrev_b32 v49, 4, v{44+i}")
            A(f"ds_write_b128 v49, v[{pay[i]}:{pay[i]+3}] offset:{PST}")
            A(f"ds_write_b32 v48, v{32+i} offset:{KST}")
        A("v_lshlrev_b32 v50, 4, v0")
        A("s_waitcnt lgkmcnt(0)")
        A("s_barrier")
        A(f"ds_read_b128 v[8:11], v50 offset:{KST}")
        for q in range(4): A(f"ds_read_b128 v[{12+4*q}:{15+4*q}], v50 offset:{PST+q*5120}")
        A("v_add_u32 v51, 5120, v50"); A("v_add_u32 v52, 10240, v50"); A("v_add_u32 v53, 15360, v50")
        A("s_waitcnt lgkmcnt(4)")
        A(f"global_store_dwordx4 v50, v[8:11], s[18:19]{fl}")
        for q in range(4):
            A(f"s_waitcnt lgkmcnt({3-q})")
            A(f"global_store_dwordx4 v{50+q}, v[{12+4*q}:{15+4*q}], s[20:21]{fl}")
    if P.k1pf==3: k1pf()
    if P.tl:
        A("s_waitcnt vmcnt(0)"); A("s_memrealtime s[34:35]"); A("s_waitcnt lgkmcnt(0)")
        A("s_cmp_lg_u32 s25, 0"); A("s_cbranch_scc1 K1_TLX")
        A("s_lshl_b32 s36, s2, 3"); A("s_add_u32 s36, s36, 0x7F0000")
        A("v_mov_b32 v68, s38"); A("v_mov_b32 v69, s34"); A("v_mov_b32 v70, s36")
        A("global_store_dwordx2 v70, v[68:69], s[12:13]")
        A.label("K1_TLX")
    ST.mark("iss")
    if P.stamps:
        A("s_waitcnt vmcnt(0)")
        ST.mark("done")
        ST.dump(12,0,2,25,66)
    A("s_endpgm")
    A.label("K1_CONST")
    A("s_load_dwordx2 s[26:27], s[0:1], 40")
    A("s_load_dwordx4 s[28:31], s[0:1], 48")
    A("v_lshrrev_b32 v6, 6, v0")
    A("s_nop 0")
    A("v_readfirstlane_b32 s25, v6")
    A(f"s_sub_u32 s14, s2, {NC}")
    A("v_and_b32 v7, 63, v0")
    A("s_waitcnt lgkmcnt(0)")
    A(f"s_add_u32 s18, s12, {WS_CONST}"); A("s_addc_u32 s19, s13, 0")
    A("s_cmp_eq_u32 s25, 4")
    A("s_cbranch_scc1 K1_CW4")
    A("s_and_b32 s15, s14, 1")
    A("s_lshr_b32 s16, s14, 1")
    A("s_lshl_b32 s16, s16, 5"); A("s_add_u32 s16, s16, s15")
    A("v_and_b32 v1, 15, v7"); A("v_lshlrev_b32 v1, 1, v1"); A("v_add_u32 v1, s16, v1")
    A("v_lshrrev_b32 v2, 4, v7"); A("v_lshlrev_b32 v2, 3, v2")
    A("s_lshl_b32 s17, s25, 5"); A("v_add_u32 v2, s17, v2")
    A("v_lshlrev_b32 v2, 7, v2"); A("v_add_u32 v2, v2, v1"); A("v_lshlrev_b32 v2, 1, v2")
    for r in range(8): A(f"global_load_ushort v{8+r}, v2, s[30:31] offset:{r*256}")
    A("s_lshl_b32 s17, s14, 12")
    A("v_lshlrev_b32 v3, 4, v0"); A("v_add_u32 v3, s17, v3"); A(f"v_add_u32 v3, {CONST_WM}, v3")
    A("s_waitcnt vmcnt(0)")
    for r in range(4): A(f"v_lshl_or_b32 v{16+r}, v{9+2*r}, 16, v{8+2*r}")
    A("global_store_dwordx4 v3, v[16:19], s[18:19]")
    A("s_endpgm")
    A.label("K1_CW4")
    A("s_cmp_eq_u32 s14, 0"); A("s_cbranch_scc1 K1_WF")
    A("s_cmp_eq_u32 s14, 1"); A("s_cbranch_scc1 K1_CG")
    if P.codepf&1:
        A("s_cmp_eq_u32 s14, 2"); A("s_cbranch_scc0 K1_CPX")
        A("s_getpc_b64 s[34:35]")
        A.label("K1_PC")
        A("s_add_u32 s34, s34, standalone__tensor_product_equiv_tfn__graph_kernel-K1_PC"); A("s_addc_u32 s35, s35, 0")
        A("v_lshlrev_b32 v1, 7, v7")
        for q in range(2):
            A(f"v_add_u32 v2, {q*8192}, v1")
            A(f"v_cmp_gt_u32 vcc, K2_CODE_END-standalone__tensor_product_equiv_tfn__graph_kernel, v2")
            A("s_and_saveexec_b64 s[36:37], vcc")
            A(f"s_cbranch_execz K1_CPS{q}")
            A(f"global_load_dword v{8+q}, v2, s[34:35]")
            A.label(f"K1_CPS{q}")
            A("s_mov_b64 exec, s[36:37]")
        A.label("K1_CPX")
    A("s_endpgm")
    A.label("K1_WF")
    A("v_lshlrev_b32 v1, 2, v7")
    for k in range(4): A(f"global_load_dword v{8+k}, v1, s[26:27] offset:{k*256}")
    A(f"s_mov_b32 s15, 0x{f2u(-LOG2E):08x}")
    A("s_mov_b32 s16, 0xffff0000")
    A("s_waitcnt vmcnt(0)")
    for k in range(4):
        A(f"v_lshlrev_b32 v{12+k}, 16, v{8+k}")
        A(f"v_and_b32 v{16+k}, s16, v{8+k}")
    for k in range(8): A(f"v_mul_f32 v{12+k}, s15, v{12+k}")
    A("v_cvt_pk_bf16_f32 v20, v12, v13"); A("v_cvt_pk_bf16_f32 v21, v14, v15")
    A("v_cvt_pk_bf16_f32 v22, v16, v17"); A("v_cvt_pk_bf16_f32 v23, v18, v19")
    for q in range(4):
        A(f"v_lshlrev_b32 v28, 16, v{20+q}")
        A(f"v_and_b32 v29, s16, v{20+q}")
        A(f"v_sub_f32 v28, v{12+2*q}, v28")
        A(f"v_sub_f32 v29, v{13+2*q}, v29")
        A(f"v_cvt_pk_bf16_f32 v{24+q}, v28, v29")
    A("v_lshlrev_b32 v3, 5, v7")
    A(f"global_store_dwordx4 v3, v[20:23], s[18:19] offset:{CONST_WF}")
    A(f"global_store_dwordx4 v3, v[24:27], s[18:19] offset:{CONST_WF+16}")
    A("s_endpgm")
    A.label("K1_CG")
    A("v_and_b32 v1, 3, v7"); A("v_lshlrev_b32 v1, 5, v1")
    for f in range(4): A(f"global_load_dwordx2 v[{8+2*f}:{9+2*f}], v1, s[28:29] offset:{f*8}")
    A("s_mov_b32 s15, 0x05040100"); A("s_mov_b32 s16, 0x07060302")
    A("s_waitcnt vmcnt(0)")
    for o in range(4):
        sel="s15" if o%2==0 else "s16"; h=o//2
        A(f"v_perm_b32 v{16+2*o}, v{10+h}, v{8+h}, {sel}")
        A(f"v_perm_b32 v{17+2*o}, v{14+h}, v{12+h}, {sel}")
    A("v_lshlrev_b32 v3, 5, v7"); A(f"v_add_u32 v3, {CONST_CG}, v3")
    A("global_store_dwordx4 v3, v[16:19], s[18:19]")
    A("global_store_dwordx4 v3, v[20:23], s[18:19] offset:16")
    A.label("K1_END")
    A("s_endpgm")


def gen_phase1(A,P,ST):
    B=P.B
    blkmul={32:209,16:104,64:419}[B]
    A("s_load_dwordx4 s[4:7], s[0:1], 8")
    A("s_load_dwordx4 s[8:11], s[0:1], 24")
    A("s_load_dwordx2 s[12:13], s[0:1], 80")
    A("s_load_dwordx2 s[26:27], s[0:1], 40")
    A("s_load_dwordx4 s[28:31], s[0:1], 48")
    A("s_load_dwordx2 s[32:33], s[0:1], 0")
    A("s_load_dwordx2 s[72:73], s[0:1], 72")
    A("v_lshrrev_b32 v6, 6, v0")
    A("v_and_b32 v7, 63, v0")
    A("v_readfirstlane_b32 s25, v6")
    A("s_nop 3")
    A("s_cmp_ge_u32 s25, 5")
    A("s_cbranch_scc1 F_OTHER")
    if P.nb256:
        A(f"s_cmp_ge_u32 s2, {NC}"); A("s_cbranch_scc1 F_OTHER")
    A(f"s_mul_i32 s14, s2, {CH*4}")
    A("v_lshlrev_b32 v1, 4, v0")
    A("v_add_u32 v1, s14, v1")
    A("v_lshlrev_b32 v2, 1, v1")
    A("v_lshlrev_b32 v3, 2, v0")
    A("v_mov_b32 v4, 0")
    A("v_mov_b32 v5, 1")
    A("v_cmp_gt_u32 vcc, 0x100, v0")
    A("s_and_saveexec_b64 s[16:17], vcc")
    A("s_cbranch_execz F_NOZ")
    A("ds_write_b32 v3, v4")
    A.label("F_NOZ")
    A("s_mov_b64 exec, s[16:17]")
    A("s_waitcnt lgkmcnt(0)")
    A("global_load_dwordx4 v[8:11], v1, s[6:7]")
    A("global_load_dwordx4 v[12:15], v1, s[4:5]")
    A("global_load_dwordx4 v[16:19], v2, s[8:9]")
    A("global_load_dwordx4 v[20:23], v2, s[8:9] offset:16")
    A("global_load_dwordx4 v[24:27], v2, s[10:11]")
    A("global_load_dwordx4 v[28:31], v2, s[10:11] offset:16")
    A(f"s_mul_i32 s15, s2, {CH*16}")
    A(f"s_add_u32 s18, s12, {WS_KEYS}"); A("s_addc_u32 s19, s13, 0")
    A("s_add_u32 s18, s18, s14"); A("s_addc_u32 s19, s19, 0")
    A(f"s_add_u32 s20, s12, {WS_PAY}"); A("s_addc_u32 s21, s13, 0")
    A("s_add_u32 s20, s20, s15"); A("s_addc_u32 s21, s21, 0")
    A(f"s_lshl_b32 s15, s2, {3 if P.gran else 10}")
    A(f"s_add_u32 s22, s12, {WS_GRAN if P.gran else WS_CELL}"); A("s_addc_u32 s23, s13, 0")
    A("s_add_u32 s22, s22, s15"); A("s_addc_u32 s23, s23, 0")
    A("s_movk_i32 s24, -40")
    A("s_barrier")
    A("s_waitcnt vmcnt(4)")
    for i in range(4):
        d=8+i; s=12+i
        if P.nb256:
            A(f"v_mul_u32_u24 v44, 429497, v{d}")
            A("v_lshrrev_b32 v44, 24, v44")
            A(f"v_lshlrev_b32 v{36+i}, 2, v44")
            A(f"ds_add_rtn_u32 v{40+i}, v{36+i}, v5")
            A("v_mul_u32_u24 v45, 625, v44"); A("v_add_u32 v45, 15, v45"); A("v_lshrrev_b32 v45, 4, v45")
            A(f"v_sub_u32 v45, v{d}, v45")
        else:
            A(f"v_mul_u32_u24 v44, 0xcccd, v{d}")
            A("v_lshrrev_b32 v44, 21, v44")
            A(f"v_mad_i32_i24 v45, v44, s24, v{d}")
            A(f"v_lshlrev_b32 v{36+i}, 2, v44")
            A(f"ds_add_rtn_u32 v{40+i}, v{36+i}, v5")
        A("v_mul_u32_u24 v46, 0xcd, v45")
        A("v_lshrrev_b32 v46, 10, v46")
        A("v_mad_i32_i24 v47, v46, -5, v45")
        A(f"v_mul_u32_u24 v48, {blkmul}, v{s}")
        A("v_lshrrev_b32 v48, 16, v48")
        sh={16:4,32:5,64:6}[B]
        A(f"v_lshl_add_u32 v48, v46, {sh}, v48")
        A(f"v_lshl_or_b32 v{32+i}, v47, 14, v{s}")
        A(f"v_lshl_or_b32 v{32+i}, v48, 17, v{32+i}")
    A("s_waitcnt vmcnt(0)")
    A("v_swap_b32 v18, v24"); A("v_swap_b32 v19, v25"); A("v_swap_b32 v22, v28"); A("v_swap_b32 v23, v29")
    pay=[16,24,20,28]
    A("v_lshlrev_b32 v50, 4, v7")
    A("s_waitcnt lgkmcnt(0)")
    A("s_barrier")
    ST.mark("hist")
    A("ds_read_b128 v[52:55], v50")
    A("s_waitcnt lgkmcnt(0)")
    A("v_add_u32 v56, v52, v53"); A("v_add_u32 v57, v56, v54"); A("v_add_u32 v58, v57, v55"); A("v_mov_b32 v59, v58")
    dpp_scan(A,59)
    A("v_sub_u32 v60, v59, v58"); A("v_add_u32 v61, v60, v52"); A("v_add_u32 v62, v60, v56"); A("v_add_u32 v63, v60, v57")
    A("ds_write_b128 v50, v[60:63] offset:1024")
    if P.gran:
        for i in range(4):
            A(f"s_cmp_lg_u32 s25, {i}"); A(f"s_cbranch_scc1 F_CG{i}")
            A(f"v_lshl_or_b32 v70, v{52+i}, 16, v{60+i}")
            A.label(f"F_CG{i}")
    else:
        A("s_cmp_lg_u32 s25, 0")
        A("s_cbranch_scc1 F_CS")
        for i in range(4): A(f"v_lshl_or_b32 v{64+i}, v{52+i}, 16, v{60+i}")
        A("global_store_dwordx4 v50, v[64:67], s[22:23] sc1")
        A.label("F_CS")
    A("s_waitcnt lgkmcnt(0)")
    for i in range(4): A(f"ds_read_b32 v{44+i}, v{36+i} offset:1024")
    KST=2048; PST=KST+CH*4
    for i in range(4):
        A(f"s_waitcnt lgkmcnt({3-i+2*i})")
        A(f"v_add_u32 v{44+i}, v{44+i}, v{40+i}")
        A(f"v_lshlrev_b32 v48, 2, v{44+i}")
        A(f"v_lshlrev_b32 v49, 4, v{44+i}")
        A(f"ds_write_b128 v49, v[{pay[i]}:{pay[i]+3}] offset:{PST}")
        A(f"ds_write_b32 v48, v{32+i} offset:{KST}")
    A("v_lshlrev_b32 v50, 4, v0")
    A("s_waitcnt lgkmcnt(0)")
    A("s_barrier")
    A(f"ds_read_b128 v[8:11], v50 offset:{KST}")
    for q in range(4): A(f"ds_read_b128 v[{12+4*q}:{15+4*q}], v50 offset:{PST+q*5120}")
    A("v_add_u32 v51, 5120, v50"); A("v_add_u32 v52, 10240, v50"); A("v_add_u32 v53, 15360, v50")
    A("s_waitcnt lgkmcnt(4)")
    A("global_store_dwordx4 v50, v[8:11], s[18:19] sc1")
    for q in range(4):
        A(f"s_waitcnt lgkmcnt({3-q})")
        A(f"global_store_dwordx4 v{50+q}, v[{12+4*q}:{15+4*q}], s[20:21] sc1")
    if P.flags:
        if P.gran: A("s_cmp_ge_u32 s25, 4"); A("s_cbranch_scc1 F_JOIN")
        else: A("s_cmp_lg_u32 s25, 0"); A("s_cbranch_scc1 F_JOIN")
        A("v_mov_b32 v66, 0"); A("global_load_dword v67, v66, s[72:73] sc1")
    ST.mark("iss1")
    A("s_branch F_JOIN")
    A.label("F_OTHER")
    A("s_waitcnt lgkmcnt(0)")
    A(f"s_add_u32 s18, s12, {WS_CONST}"); A("s_addc_u32 s19, s13, 0")
    if P.flags:
        A("s_cmp_lg_u32 s2, 0"); A("s_cbranch_scc1 F_NN"); A("s_cmp_lg_u32 s25, 9"); A("s_cbranch_scc1 F_NN")
        A("s_memrealtime s[38:39]"); A("s_waitcnt lgkmcnt(0)"); A("s_or_b32 s38, s38, 1")
        A("v_mov_b32 v1, 0"); A("v_mov_b32 v2, s38")
        A("v_cmp_eq_u32 vcc, 0, v7"); A("s_and_saveexec_b64 s[16:17], vcc")
        A("global_store_dword v1, v2, s[72:73] sc1")
        A("s_mov_b64 exec, s[16:17]")
        A.label("F_NN")
    A("s_mov_b32 s36, 0")
    A("s_cmp_ge_u32 s25, 9"); A("s_cbranch_scc1 F_R0")
    A("s_cmp_lt_u32 s2, 8"); A("s_cbranch_scc1 F_RW")
    A("s_cmp_lg_u32 s25, 5"); A("s_cbranch_scc1 F_R0")
    A("s_cmp_eq_u32 s2, 8"); A("s_cbranch_scc1 F_RF")
    A("s_cmp_eq_u32 s2, 9"); A("s_cbranch_scc1 F_RC")
    A("s_branch F_R0")
    A.label("F_RW")
    A("s_mov_b32 s36, 1")
    A("s_sub_u32 s14, s25, 5")
    A("s_and_b32 s15, s2, 1"); A("s_lshr_b32 s16, s2, 1"); A("s_lshl_b32 s16, s16, 5"); A("s_add_u32 s16, s16, s15")
    A("v_and_b32 v1, 15, v7"); A("v_lshlrev_b32 v1, 1, v1"); A("v_add_u32 v1, s16, v1")
    A("v_lshrrev_b32 v2, 4, v7"); A("v_lshlrev_b32 v2, 3, v2")
    A("s_lshl_b32 s17, s14, 5"); A("v_add_u32 v2, s17, v2")
    A("v_lshlrev_b32 v2, 7, v2"); A("v_add_u32 v2, v2, v1"); A("v_lshlrev_b32 v2, 1, v2")
    for r in range(8): A(f"global_load_ushort v{8+r}, v2, s[30:31] offset:{r*256}")
    A("s_branch F_R0")
    A.label("F_RF")
    A("s_mov_b32 s36, 2")
    A("v_lshlrev_b32 v1, 2, v7")
    for k in range(4): A(f"global_load_dword v{8+k}, v1, s[26:27] offset:{k*256}")
    A("s_branch F_R0")
    A.label("F_RC")
    A("s_mov_b32 s36, 3")
    A("v_and_b32 v1, 3, v7"); A("v_lshlrev_b32 v1, 5, v1")
    for f in range(4): A(f"global_load_dwordx2 v[{8+2*f}:{9+2*f}], v1, s[28:29] offset:{f*8}")
    A.label("F_R0")
    def fpfcode(lab):
        A("s_cmp_lt_u32 s25, 9"); A(f"s_cbranch_scc1 {lab}")
        A("s_cmp_ge_u32 s25, 14"); A(f"s_cbranch_scc1 {lab}")
        A(f"s_mul_i32 s14, s2, {320*128}"); A("s_sub_u32 s15, s25, 9"); A("s_lshl_b32 s15, s15, 13"); A("s_add_u32 s14, s14, s15")
        A("v_lshlrev_b32 v126, 7, v7"); A("v_add_u32 v126, s14, v126")
        A("global_load_dword v127, v126, s[32:33]")
        A.label(lab)
    if P.fpf==3: fpfcode("F_NPF3")
    A("s_barrier")
    if P.fpf==4: fpfcode("F_NPF4")
    A("s_barrier")
    if P.fpf==5: fpfcode("F_NPF5")
    A("s_cmp_eq_u32 s36, 0"); A("s_cbranch_scc1 F_RD")
    A("s_waitcnt vmcnt(0)")
    A("s_cmp_eq_u32 s36, 2"); A("s_cbranch_scc1 F_RF2")
    A("s_cmp_eq_u32 s36, 3"); A("s_cbranch_scc1 F_RC2")
    A("s_lshl_b32 s17, s2, 12"); A("s_lshl_b32 s15, s14, 10"); A("s_add_u32 s17, s17, s15"); A(f"s_add_u32 s17, s17, {CONST_WM}")
    A("v_lshlrev_b32 v3, 4, v7"); A("v_add_u32 v3, s17, v3")
    for r in range(4): A(f"v_lshl_or_b32 v{16+r}, v{9+2*r}, 16, v{8+2*r}")
    A("global_store_dwordx4 v3, v[16:19], s[18:19] sc1")
    A("s_branch F_RD")
    A.label("F_RF2")
    A(f"s_mov_b32 s15, 0x{f2u(-LOG2E):08x}"); A("s_mov_b32 s16, 0xffff0000")
    for k in range(4):
        A(f"v_lshlrev_b32 v{12+k}, 16, v{8+k}"); A(f"v_and_b32 v{16+k}, s16, v{8+k}")
    for k in range(8): A(f"v_mul_f32 v{12+k}, s15, v{12+k}")
    A("v_cvt_pk_bf16_f32 v20, v12, v13"); A("v_cvt_pk_bf16_f32 v21, v14, v15")
    A("v_cvt_pk_bf16_f32 v22, v16, v17"); A("v_cvt_pk_bf16_f32 v23, v18, v19")
    for q in range(4):
        A(f"v_lshlrev_b32 v28, 16, v{20+q}"); A(f"v_and_b32 v29, s16, v{20+q}")
        A(f"v_sub_f32 v28, v{12+2*q}, v28"); A(f"v_sub_f32 v29, v{13+2*q}, v29")
        A(f"v_cvt_pk_bf16_f32 v{24+q}, v28, v29")
    A("v_lshlrev_b32 v3, 5, v7")
    A(f"global_store_dwordx4 v3, v[20:23], s[18:19] offset:{CONST_WF} sc1")
    A(f"global_store_dwordx4 v3, v[24:27], s[18:19] offset:{CONST_WF+16} sc1")
    A("s_branch F_RD")
    A.label("F_RC2")
    A("s_mov_b32 s15, 0x05040100"); A("s_mov_b32 s16, 0x07060302")
    for o in range(4):
        sel="s15" if o%2==0 else "s16"; h=o//2
        A(f"v_perm_b32 v{16+2*o}, v{10+h}, v{8+h}, {sel}")
        A(f"v_perm_b32 v{17+2*o}, v{14+h}, v{12+h}, {sel}")
    A("v_lshlrev_b32 v3, 5, v7"); A(f"v_add_u32 v3, {CONST_CG}, v3")
    A("global_store_dwordx4 v3, v[16:19], s[18:19] sc1")
    A("global_store_dwordx4 v3, v[20:23], s[18:19] offset:16 sc1")
    A.label("F_RD")
    A("s_barrier")
    if P.fpf==1:
        A("s_cmp_lt_u32 s25, 9"); A("s_cbranch_scc1 F_JOIN")
        A("s_cmp_ge_u32 s25, 14"); A("s_cbranch_scc1 F_JOIN")
        A(f"s_mul_i32 s14, s2, {320*128}"); A("s_sub_u32 s15, s25, 9"); A("s_lshl_b32 s15, s15, 13"); A("s_add_u32 s14, s14, s15")
        A("v_lshlrev_b32 v126, 7, v7"); A("v_add_u32 v126, s14, v126")
        A("global_load_dword v127, v126, s[32:33]")
        A("s_branch F_JOIN2")
    A.label("F_JOIN")
    A("s_waitcnt vmcnt(0)")
    A.label("F_JOIN2")
    A("s_barrier")
    ST.mark("barD")
    if P.fpf==2:
        A("s_cmp_lt_u32 s25, 9"); A("s_cbranch_scc1 F_NPF2")
        A("s_cmp_ge_u32 s25, 14"); A("s_cbranch_scc1 F_NPF2")
        A(f"s_mul_i32 s14, s2, {320*128}"); A("s_sub_u32 s15, s25, 9"); A("s_lshl_b32 s15, s15, 13"); A("s_add_u32 s14, s14, s15")
        A("v_lshlrev_b32 v126, 7, v7"); A("v_add_u32 v126, s14, v126")
        A("global_load_dword v127, v126, s[32:33]")
        A.label("F_NPF2")
    if P.gran: A("s_cmp_ge_u32 s25, 4"); A("s_cbranch_scc1 F_WAIT")
    else: A("s_cmp_lg_u32 s25, 0"); A("s_cbranch_scc1 F_WAIT")
    if P.flags:
        A("s_mov_b32 s14, 0"); A("v_mov_b32 v1, 0")
        if P.nb256:
            A(f"s_cmp_ge_u32 s2, {NC}"); A("s_cbranch_scc1 F_GETN")
        A("v_readfirstlane_b32 s74, v67"); A("s_nop 3"); A("s_cmp_lg_u32 s74, 0"); A("s_cbranch_scc1 F_GOTN")
        A.label("F_GETN")
        A("global_load_dword v2, v1, s[72:73] sc1"); A("s_waitcnt vmcnt(0)")
        A("v_readfirstlane_b32 s74, v2"); A("s_add_u32 s14, s14, 1")
        A("s_cmp_ge_u32 s14, 0x100000"); A("s_cbranch_scc1 F_GOTN")
        A("s_cmp_eq_u32 s74, 0"); A("s_cbranch_scc1 F_GETN")
        A.label("F_GOTN")
        if P.gran:
            A("v_mov_b32 v71, s74")
            A("v_lshlrev_b32 v72, 2, v7"); A("v_add_u32 v72, s25, v72")
            A(f"v_cmp_gt_u32 vcc, {NB}, v72"); A("v_lshlrev_b32 v72, 11, v72")
            A("s_and_saveexec_b64 s[16:17], vcc")
            A("global_store_dwordx2 v72, v[70:71], s[22:23] sc1")
            A("s_mov_b64 exec, s[16:17]")
        else:
            if P.nb256:
                A(f"s_cmp_ge_u32 s2, {NC}"); A("s_cbranch_scc1 F_WAIT")
            A(f"s_add_u32 s76, s12, {WS_FLAG}"); A("s_addc_u32 s77, s13, 0")
            A("s_lshl_b32 s14, s2, 2"); A("v_lshlrev_b32 v1, 10, v7"); A("v_add_u32 v1, s14, v1"); A("v_mov_b32 v2, s74")
            A("v_cmp_gt_u32 vcc, 8, v7"); A("s_and_saveexec_b64 s[16:17], vcc")
            A("global_store_dword v1, v2, s[76:77] sc1")
            A("s_mov_b64 exec, s[16:17]")
    else:
        A("s_and_b32 s14, s2, 3"); A("s_lshl_b32 s14, s14, 6")
        A("v_mov_b32 v1, s14"); A("v_mov_b32 v2, 1")
        A("v_cmp_eq_u32 vcc, 0, v7"); A("s_and_saveexec_b64 s[16:17], vcc")
        A("global_atomic_add v1, v2, s[72:73]")
        A("s_mov_b64 exec, s[16:17]")
    A.label("F_WAIT")

NW=16; CAPW=160
LDS_IDX=0x0000
LDS_K=LDS_IDX+NW*CAPW*4
LDS_HIST=LDS_K+NW*CAPW
LDS_BASE=LDS_HIST+2048
LDS_FLAG=LDS_BASE+4096
LDS_MARK=LDS_FLAG+64
LDS_EF=LDS_MARK+8192+64
LDS_A=LDS_EF+NW*CAPW*8
LDS_CELL=LDS_A+NW*CAPW*32+1024
K2_LDS=LDS_CELL+1024
WINBIG=2048; WINSMALL=200; TOTMAX=CAPW-8
AGG_STRIDE=272
assert LDS_A%16==0 and LDS_EF%16==0 and LDS_MARK%4==0 and K2_LDS<=163840

def gen_k2(A,P):
    U=4; B=P.B
    SC=" sc1" if P.fused else ""
    nbins=8*B
    assert nbins*4<=2048 and nbins*8<=4096
    vTID=0; vLANE=1; vT0=2
    vAad=3; vEad=4; vIad=5; vKad=6; vK=7
    ACC=8
    WF=48
    PAIR=56
    X=64
    TP=80
    AOP=88; AOPN=90; EOP=92; EOPN=94
    UU=[96,104]; EE=112; RR=120
    NV=128
    REC0=64; CNT=68; BASEC=72; AT=64
    CG=80; KEY=88; RANK=90; PAY=92; AP=100; MK=116; BINA=118
    T=[2,3,4,5,6,7,120,121,122,123,124,125,126,127]
    WM=96
    sX=4; sOUT=6; sWS=8; sSRD=12; sW=16; sB=17; sT=18; sLO=19; sWIN=20; sNR=21; sKK=22; sH=23; sEX=24; sM=26; sG8=28; sWB=29
    sNN=30; sP3=68; sLV=43; sTH=46; sK=[32,33]; sN=34; sTOT=35; sTMP=36; sC=40; sLN2=44; sRG=46; sCGP=47; sKEY=48; sPAY=52; sCELL=56; sCONST=58; sRAW=60; sPFO=65; sPFT=66; sNB=67; sGB=68; sGM=69; sQ=70; sCHI=40
    name="standalone__tensor_product_equiv_tfn__graph_kernel"
    A(".p2align 8")
    A(f".type {name},@function")
    A.label(name)
    A(f"s_cmp_ge_u32 s2, {256 if P.nb256 else NB}")
    A("s_cbranch_scc1 K2_END")
    ST=Stamps(A,P.stamps,"K2")
    ST.mark("start")
    tlc=[0]
    def tl(off,inv=False):
        if not P.tl: return
        tlc[0]+=1
        A("s_memrealtime s[74:75]"); A("s_waitcnt lgkmcnt(0)")
        if inv: A("s_not_b32 s74, s74")
        A("v_mov_b32 v2, s74"); A("v_mov_b32 v3, 0")
        A("v_cmp_eq_u32 vcc, 0, v0"); A("s_and_saveexec_b64 s[76:77], vcc"); A(f"s_cbranch_execz K2_TL{tlc[0]}")
        A(f"global_atomic_umax v3, v2, s[72:73] offset:{off+(16 if P.fused else 0)}")
        A.label(f"K2_TL{tlc[0]}"); A("s_mov_b64 exec, s[76:77]")
    if P.tl:
        A("s_load_dwordx2 s[72:73], s[0:1], 72"); A("s_waitcnt lgkmcnt(0)")
        tl(0,True)
    if P.fused: gen_phase1(A,P,ST)
    A(f"s_load_dwordx2 s[{sX}:{sX+1}], s[0:1], 0")
    A(f"s_load_dwordx2 s[{sOUT}:{sOUT+1}], s[0:1], 64")
    A(f"s_load_dwordx2 s[{sWS}:{sWS+1}], s[0:1], 80")
    A(f"v_and_b32 v{vLANE}, 63, v0")
    A(f"v_lshrrev_b32 v{T[0]}, 6, v0")
    A(f"v_lshlrev_b32 v{PAIR+1}, 4, v{vLANE}")
    A(f"v_readfirstlane_b32 s{sW}, v{T[0]}")
    for p in (3,5,7): A(f"v_mov_b32 v{PAIR+p}, v{PAIR+1}")
    if P.nb256:
        A(f"s_and_b32 s{sTMP}, s2, 7"); A(f"s_lshl_b32 s{sB}, s{sTMP}, 5"); A(f"s_lshr_b32 s{sTMP}, s2, 3"); A(f"s_add_u32 s{sB}, s{sB}, s{sTMP}")
    elif P.xmap:
        A(f"s_and_b32 s{sTMP}, s2, 7"); A(f"s_mul_i32 s{sB}, s{sTMP}, 31"); A(f"s_min_u32 s{sTMP}, s{sTMP}, 2")
        A(f"s_add_u32 s{sB}, s{sB}, s{sTMP}"); A(f"s_lshr_b32 s{sTMP}, s2, 3"); A(f"s_add_u32 s{sB}, s{sB}, s{sTMP}")
    else:
        A(f"s_mov_b32 s{sB}, s2")
    A(f"s_lshr_b32 s{sG8}, s{sW}, 1"); A(f"s_and_b32 s{sH}, s{sW}, 1"); A(f"s_mul_i32 s{sWB}, s{sW}, {CAPW}")
    for i in range(40): A(f"v_mov_b32 v{ACC+i}, 0")
    A("s_waitcnt lgkmcnt(0)")
    A(f"s_lshl_b32 s{sTMP}, s{sB}, {2 if P.fused else 10}")
    A(f"s_add_u32 s{sCELL}, s{sWS}, {WS_CELL}"); A(f"s_addc_u32 s{sCELL+1}, s{sWS+1}, 0")
    A(f"s_add_u32 s{sCELL}, s{sCELL}, s{sTMP}"); A(f"s_addc_u32 s{sCELL+1}, s{sCELL+1}, 0")
    A(f"s_add_u32 s{sCONST}, s{sWS}, {WS_CONST}"); A(f"s_addc_u32 s{sCONST+1}, s{sWS+1}, 0")
    A(f"s_mov_b32 s{sLO}, 0")
    A(f"s_mov_b32 s{sWIN}, {WINBIG}")
    for i in range(3): A(f"s_mov_b32 s{sCHI+i}, {(i+1)*CH}")
    if not P.fused:
        A(f"v_lshlrev_b32 v{T[1]}, 5, v{vLANE}")
        if P.fused:
            A(f"v_mov_b32 v{T[2]}, 0")
            A(f"s_cmp_ge_u32 s{sW}, 4"); A("s_cbranch_scc1 K2_NOCL")
            A(f"v_lshlrev_b32 v{T[3]}, 10, v0")
            A(f"v_cmp_gt_u32 vcc, {NC}, v0"); A(f"s_and_saveexec_b64 s[{sEX}:{sEX+1}], vcc")
            A(f"global_load_dword v{T[2]}, v{T[3]}, s[{sCELL}:{sCELL+1}] sc1")
            A("s_mov_b64 exec, -1")
            A.label("K2_NOCL")
        else:
            A(f"global_load_dwordx4 v[{CNT}:{CNT+3}], v{PAIR+1}, s[{sCELL}:{sCELL+1}]"+SC)
        A(f"global_load_dwordx4 v[{WF}:{WF+3}], v{T[1]}, s[{sCONST}:{sCONST+1}] offset:{CONST_WF}"+SC)
        A(f"global_load_dwordx4 v[{WF+4}:{WF+7}], v{T[1]}, s[{sCONST}:{sCONST+1}] offset:{CONST_WF+16}"+SC)
        A(f"global_load_dwordx4 v[{CG}:{CG+3}], v{T[1]}, s[{sCONST}:{sCONST+1}] offset:{CONST_CG}"+SC)
        A(f"global_load_dwordx4 v[{CG+4}:{CG+7}], v{T[1]}, s[{sCONST}:{sCONST+1}] offset:{CONST_CG+16}"+SC)
    if P.codepf&2:
        A(f"s_cmp_eq_u32 s{sW}, 15"); A("s_cbranch_scc0 K2_CPX")
        A(f"s_getpc_b64 s[{sTMP}:{sTMP+1}]")
        A.label("K2_PC")
        A(f"s_sub_u32 s{sTMP}, s{sTMP}, K2_PC-standalone__tensor_product_equiv_tfn__graph_kernel"); A(f"s_subb_u32 s{sTMP+1}, s{sTMP+1}, 0")
        A(f"v_lshlrev_b32 v{T[8]}, 7, v{vLANE}")
        for q in range(2):
            A(f"v_add_u32 v{T[9]}, {q*8192}, v{T[8]}")
            A(f"v_cmp_gt_u32 vcc, K2_CODE_END-standalone__tensor_product_equiv_tfn__graph_kernel, v{T[9]}")
            A(f"s_and_saveexec_b64 s[{sEX}:{sEX+1}], vcc")
            A(f"s_cbranch_execz K2_CPS{q}")
            A(f"global_load_dword v{127-q}, v{T[9]}, s[{sTMP}:{sTMP+1}]")
            A.label(f"K2_CPS{q}")
            A("s_mov_b64 exec, -1")
        A.label("K2_CPX")
    A(f"s_mov_b32 s{sSRD}, s{sX}")
    A(f"s_and_b32 s{sSRD+1}, s{sX+1}, 0xffff")
    A(f"s_or_b32 s{sSRD+1}, s{sSRD+1}, {1024<<16}")
    A(f"s_mov_b32 s{sSRD+2}, {N}")
    A(f"s_mov_b32 s{sSRD+3}, 0x00020000")
    A(f"s_add_u32 s{sKEY}, s{sWS}, {WS_KEYS}"); A(f"s_addc_u32 s{sKEY+1}, s{sWS+1}, 0")
    A(f"s_and_b32 s{sKEY+1}, s{sKEY+1}, 0xffff"); A(f"s_mov_b32 s{sKEY+2}, {E*4}"); A(f"s_mov_b32 s{sKEY+3}, 0x00020000")
    A(f"s_add_u32 s{sPAY}, s{sWS}, {WS_PAY}"); A(f"s_addc_u32 s{sPAY+1}, s{sWS+1}, 0")
    A(f"s_and_b32 s{sPAY+1}, s{sPAY+1}, 0xffff"); A(f"s_mov_b32 s{sPAY+2}, {E*16}"); A(f"s_mov_b32 s{sPAY+3}, 0x00020000")
    A(f"s_mov_b32 s{sLN2}, 0x{f2u(-LN2):08x}"); A(f"s_mov_b32 s{sLN2+1}, 0x{f2u(-LN2):08x}")
    def burst(vaddr,vdst=2):
        for q in range(4):
            A(f"buffer_load_dword v{vdst}, v{vaddr}, s[{sRAW}:{sRAW+3}], s{sPFO} offen")
            if q<3: A(f"s_add_u32 s{sPFO}, s{sPFO}, 8192")
    def pf_row0(rnd_sreg,dst):
        A(f"s_lshr_b32 s{sTMP+2}, s2, 3")
        A(f"s_and_b32 s{sTMP+3}, s{sTMP+2}, 1"); A(f"s_lshl_b32 s{sTMP+3}, s{sTMP+3}, 9")
        A(f"s_lshr_b32 s{sTMP+2}, s{sTMP+2}, 1"); A(f"s_lshl_b32 s{sTMP+2}, s{sTMP+2}, 5")
        A(f"s_add_u32 s{sTMP+2}, s{sTMP+2}, s{sTMP+3}")
        A(f"s_lshl_b32 s{dst}, s{rnd_sreg}, 10"); A(f"s_add_u32 s{dst}, s{dst}, s{sTMP+2}"); A(f"s_lshl_b32 s{dst}, s{dst}, 10")
    if P.pf:
        A(f"s_mov_b32 s{sRAW}, s{sX}"); A(f"s_and_b32 s{sRAW+1}, s{sX+1}, 0xffff"); A(f"s_mov_b32 s{sRAW+2}, {N*1024}"); A(f"s_mov_b32 s{sRAW+3}, 0x00020000")
    def propf(part=0):
        if P.pf==3:
            r0=(P.k1rows if P.k1pf else 0) if part==0 else P.pfsplit
            r1=P.pfsplit if (part==0 and P.pfsplit) else N
            nwg=256 if P.nb256 else 250
            per=((r1-r0)*8+nwg-1)//nwg; nw=(per+63)//64
            lab=f"K2_NOPF{part}"
            A(f"s_cmp_ge_u32 s{sW}, {nw}")
            A(f"s_cbranch_scc1 {lab}")
            A(f"s_mul_i32 s{sPFO}, s2, {per*128}"); A(f"s_lshl_b32 s{sTMP+2}, s{sW}, 13"); A(f"s_add_u32 s{sPFO}, s{sPFO}, s{sTMP+2}")
            if r0: A(f"s_add_u32 s{sPFO}, s{sPFO}, {r0*1024}")
            A(f"v_lshlrev_b32 v126, 7, v{vLANE}")
            A(f"buffer_load_dword v127, v126, s[{sRAW}:{sRAW+3}], s{sPFO} offen")
            A.label(lab)
            return
        A(f"s_cmp_ge_u32 s{sW}, {P.npro}")
        A("s_cbranch_scc1 K2_NOPF0")
        pf_row0(sW,sPFO)
        A(f"v_lshlrev_b32 v126, 7, v{vLANE}")
        burst(126,127)
        A.label("K2_NOPF0")
    if P.fused:
        if P.gran:
            A(f"s_lshl_b32 s{sTMP}, s{sB}, 11"); A(f"s_add_u32 s76, s{sWS}, {WS_GRAN}"); A(f"s_addc_u32 s77, s{sWS+1}, 0")
            A(f"s_add_u32 s76, s76, s{sTMP}"); A("s_addc_u32 s77, s77, 0")
        elif P.flags:
            A(f"s_add_u32 s76, s{sWS}, {WS_FLAG}"); A(f"s_addc_u32 s77, s{sWS+1}, 0")
        A(f"s_cmp_lg_u32 s{sW}, 0"); A("s_cbranch_scc1 F_REL")
        A(f"s_mov_b32 s{sTMP}, 0")
        if P.gran:
            A(f"v_lshlrev_b32 v{T[1]}, 5, v{vLANE}")
            A(f"v_cmp_gt_u32 s[64:65], 63, v{vLANE}"); A(f"v_cmp_gt_u32 s[66:67], 62, v{vLANE}")
            A.label("F_POLL")
            A(f"global_load_dwordx4 v[{X}:{X+3}], v{T[1]}, s[76:77] sc1")
            A(f"global_load_dwordx4 v[{X+4}:{X+7}], v{T[1]}, s[76:77] offset:16 sc1")
            A("s_waitcnt vmcnt(0)")
            for q in range(4):
                A(f"v_cmp_eq_u32 vcc, s74, v{X+2*q+1}")
                m="s[64:65]" if q<2 else "s[66:67]"
                d=["s[68:69]","s[70:71]","s[32:33]","s[34:35]"][q]
                A(f"s_andn2_b64 {d}, {m}, vcc")
            A("s_or_b64 s[68:69], s[68:69], s[70:71]"); A("s_or_b64 s[32:33], s[32:33], s[34:35]"); A("s_or_b64 s[68:69], s[68:69], s[32:33]")
            A(f"s_add_u32 s{sTMP}, s{sTMP}, 1")
            A(f"s_cmp_ge_u32 s{sTMP}, 0x100000"); A("s_cbranch_scc1 F_GOT")
            A("s_cmp_eq_u64 s[68:69], 0"); A("s_cbranch_scc0 F_POLL")
            A.label("F_GOT")
            for q in range(4):
                m="s[64:65]" if q<2 else "s[66:67]"
                A(f"v_cndmask_b32 v{X+8+q}, 0, v{X+2*q}, {m}")
            A(f"v_add_u32 v{T[3]}, {LDS_CELL}, v{PAIR+1}")
            A(f"ds_write_b128 v{T[3]}, v[{X+8}:{X+11}]")
            A("s_waitcnt lgkmcnt(0)")
        elif P.flags:
            A(f"s_and_b32 s{sTMP+1}, s2, 7"); A(f"s_lshl_b32 s{sTMP+1}, s{sTMP+1}, 10"); A(f"v_add_u32 v{T[1]}, s{sTMP+1}, v{PAIR+1}")
            A(f"v_cmp_gt_u32 s[64:65], 63, v{vLANE}"); A(f"v_cmp_gt_u32 s[66:67], 62, v{vLANE}")
            A.label("F_POLL")
            A(f"global_load_dwordx4 v[{X}:{X+3}], v{T[1]}, s[76:77] sc1")
            A("s_waitcnt vmcnt(0)")
            for q in range(4):
                A(f"v_cmp_eq_u32 vcc, s74, v{X+q}")
                m="s[64:65]" if q<2 else "s[66:67]"
                d=["s[68:69]","s[70:71]","s[32:33]","s[34:35]"][q]
                A(f"s_andn2_b64 {d}, {m}, vcc")
            A("s_or_b64 s[68:69], s[68:69], s[70:71]"); A("s_or_b64 s[32:33], s[32:33], s[34:35]"); A("s_or_b64 s[68:69], s[68:69], s[32:33]")
            A(f"s_add_u32 s{sTMP}, s{sTMP}, 1")
            A(f"s_cmp_ge_u32 s{sTMP}, 0x100000"); A("s_cbranch_scc1 F_REL")
            A("s_cmp_eq_u64 s[68:69], 0"); A("s_cbranch_scc1 F_REL")
            if P.sleep>0: A(f"s_sleep {P.sleep}")
            A("s_branch F_POLL")
        else:
            A(f"v_lshlrev_b32 v{T[1]}, 6, v{vLANE}")
            A.label("F_POLL")
            A(f"v_mov_b32 v{T[2]}, 0")
            A(f"v_cmp_gt_u32 vcc, 4, v{vLANE}"); A(f"s_and_saveexec_b64 s[{sEX}:{sEX+1}], vcc")
            A(f"global_load_dword v{T[2]}, v{T[1]}, s[72:73] sc1")
            A("s_mov_b64 exec, -1")
            A("s_waitcnt vmcnt(0)")
            A("s_nop 1"); A(f"v_add_u32_dpp v{T[2]}, v{T[2]}, v{T[2]} row_shr:1 row_mask:0xf bank_mask:0xf bound_ctrl:1")
            A("s_nop 1"); A(f"v_add_u32_dpp v{T[2]}, v{T[2]}, v{T[2]} row_shr:2 row_mask:0xf bank_mask:0xf bound_ctrl:1")
            A("s_nop 1"); A(f"v_readlane_b32 s{sTMP+1}, v{T[2]}, 3")
            A(f"s_add_u32 s{sTMP}, s{sTMP}, 1")
            A(f"s_cmp_ge_u32 s{sTMP}, 0x100000"); A("s_cbranch_scc1 F_REL")
        if P.flags:
            pass
        elif P.sleep<0:
            A(f"s_cmp_ge_u32 s{sTMP+1}, {NB}"); A("s_cbranch_scc1 F_REL")
            A(f"s_cmp_ge_u32 s{sTMP+1}, {P.nfast}"); A("s_cbranch_scc1 F_FAST")
            A(f"s_sleep {-P.sleep}")
            A("s_branch F_POLL")
            A.label("F_FAST")
            A(f"s_sleep {P.sfast}")
            A("s_branch F_POLL")
        elif P.sleep:
            A(f"s_cmp_ge_u32 s{sTMP+1}, {NB}"); A("s_cbranch_scc1 F_REL")
            A(f"s_sleep {P.sleep}")
            A("s_branch F_POLL")
        else:
            A(f"s_cmp_lt_u32 s{sTMP+1}, {NB}"); A("s_cbranch_scc1 F_POLL")
        A.label("F_REL")
        A("s_barrier")
        ST.mark("rel")
        tl(16)
    A(f"v_lshlrev_b32 v{T[1]}, 5, v{vLANE}")
    if P.gran:
        pass
    elif P.fused:
        A(f"v_mov_b32 v{T[2]}, 0")
        A(f"s_cmp_ge_u32 s{sW}, 4"); A("s_cbranch_scc1 K2_NOCL")
        A(f"v_lshlrev_b32 v{T[3]}, 10, v0")
        A(f"v_cmp_gt_u32 vcc, {NC}, v0"); A(f"s_and_saveexec_b64 s[{sEX}:{sEX+1}], vcc")
        A(f"global_load_dword v{T[2]}, v{T[3]}, s[{sCELL}:{sCELL+1}] sc1")
        A("s_mov_b64 exec, -1")
        A.label("K2_NOCL")
    else:
        A(f"global_load_dwordx4 v[{CNT}:{CNT+3}], v{PAIR+1}, s[{sCELL}:{sCELL+1}]"+SC)
    A(f"global_load_dwordx4 v[{WF}:{WF+3}], v{T[1]}, s[{sCONST}:{sCONST+1}] offset:{CONST_WF}"+SC)
    A(f"global_load_dwordx4 v[{WF+4}:{WF+7}], v{T[1]}, s[{sCONST}:{sCONST+1}] offset:{CONST_WF+16}"+SC)
    A(f"global_load_dwordx4 v[{CG}:{CG+3}], v{T[1]}, s[{sCONST}:{sCONST+1}] offset:{CONST_CG}"+SC)
    A(f"global_load_dwordx4 v[{CG+4}:{CG+7}], v{T[1]}, s[{sCONST}:{sCONST+1}] offset:{CONST_CG+16}"+SC)
    if P.gran:
        A(f"v_add_u32 v{T[3]}, {LDS_CELL}, v{PAIR+1}")
        A(f"ds_read_b128 v[{CNT}:{CNT+3}], v{T[3]}")
    elif P.fused:
        A(f"s_cmp_ge_u32 s{sW}, 4"); A("s_cbranch_scc1 K2_NOCW")
        A("s_waitcnt vmcnt(4)")
        A(f"v_lshlrev_b32 v{T[3]}, 2, v0"); A(f"v_add_u32 v{T[3]}, {LDS_CELL}, v{T[3]}")
        A(f"ds_write_b32 v{T[3]}, v{T[2]}")
        A("s_waitcnt lgkmcnt(0)")
        A.label("K2_NOCW")
        A("s_barrier")
        A(f"v_add_u32 v{T[3]}, {LDS_CELL}, v{PAIR+1}")
        A(f"ds_read_b128 v[{CNT}:{CNT+3}], v{T[3]}")
    A("s_branch K2_ROUND1")
    A.label("K2_ROUND")
    A(f"v_lshlrev_b32 v{T[1]}, 5, v{vLANE}")
    if P.fused:
        A(f"v_add_u32 v{T[3]}, {LDS_CELL}, v{PAIR+1}")
        A(f"ds_read_b128 v[{CNT}:{CNT+3}], v{T[3]}")
    else:
        A(f"global_load_dwordx4 v[{CNT}:{CNT+3}], v{PAIR+1}, s[{sCELL}:{sCELL+1}]"+SC)
    A(f"global_load_dwordx4 v[{CG}:{CG+3}], v{T[1]}, s[{sCONST}:{sCONST+1}] offset:{CONST_CG}"+SC)
    A(f"global_load_dwordx4 v[{CG+4}:{CG+7}], v{T[1]}, s[{sCONST}:{sCONST+1}] offset:{CONST_CG+16}"+SC)
    A("s_waitcnt vmcnt(0)")
    A.label("K2_ROUND1")
    A(f"v_lshlrev_b32 v{T[0]}, 2, v0")
    A(f"v_mov_b32 v{T[1]}, 0")
    A(f"v_cmp_gt_u32 vcc, {nbins}, v0")
    A(f"s_and_saveexec_b64 s[{sEX}:{sEX+1}], vcc")
    A("s_cbranch_execz K2_NOZ")
    A(f"ds_write_b32 v{T[0]}, v{T[1]} offset:{LDS_HIST}")
    A.label("K2_NOZ")
    A(f"s_mov_b64 exec, -1")
    A("s_waitcnt lgkmcnt(0)" if P.fused else "s_waitcnt vmcnt(4)")
    ST.mark("cell")
    if P.pf and P.pfat=="cell": propf()
    A(f"v_mul_u32_u24 v{T[0]}, {4*CH}, v{vLANE}")
    for i in range(4):
        A(f"v_and_b32 v{REC0+i}, 0xffff, v{CNT+i}")
        A(f"v_lshrrev_b32 v{CNT+i}, 16, v{CNT+i}")
        if i: A(f"v_add3_u32 v{REC0+i}, v{REC0+i}, v{T[0]}, s{sCHI+i-1}")
        else: A(f"v_add_u32 v{REC0+i}, v{REC0+i}, v{T[0]}")
    A(f"v_add_u32 v{T[1]}, v{CNT}, v{CNT+1}")
    A(f"v_add_u32 v{T[2]}, v{T[1]}, v{CNT+2}")
    A(f"v_add_u32 v{T[3]}, v{T[2]}, v{CNT+3}")
    A(f"v_max3_u32 v{T[5]}, v{CNT}, v{CNT+1}, v{CNT+2}")
    A(f"v_mov_b32 v{T[4]}, v{T[3]}")
    A(f"v_max_u32 v{T[5]}, v{T[5]}, v{CNT+3}")
    dpp_scan(A,T[4])
    A(f"v_sub_u32 v{BASEC}, v{T[4]}, v{T[3]}")
    A(f"v_add_u32 v{BASEC+1}, v{BASEC}, v{CNT}")
    A(f"v_add_u32 v{BASEC+2}, v{BASEC}, v{T[1]}")
    A(f"v_add_u32 v{BASEC+3}, v{BASEC}, v{T[2]}")
    A(f"v_readlane_b32 s{sT}, v{T[4]}, 63")
    A(f"v_mov_b32 v{T[6]}, 8192")
    A(f"s_mov_b32 s{sKK}, s{sW}")
    A(f"s_cmp_eq_u32 s{sT}, 0")
    A("s_cbranch_scc1 K2_EPI")
    A.label("K2_EX")
    A(f"v_cmp_lt_u32 vcc, s{sKK}, v{T[5]}")
    A(f"s_cbranch_vccz K2_EXD")
    A(f"s_sub_u32 s{sTMP}, s{sKK}, s{sLO}")
    for i in range(4):
        A(f"v_add_u32 v{T[0]}, s{sTMP}, v{BASEC+i}")
        A(f"v_cmp_lt_u32 vcc, s{sKK}, v{CNT+i}")
        A(f"v_cmp_gt_u32 s[{sM}:{sM+1}], s{sWIN}, v{T[0]}")
        A(f"v_lshlrev_b32 v{T[0]}, 2, v{T[0]}")
        A(f"v_add_u32 v{T[1]}, s{sKK}, v{REC0+i}")
        A(f"s_and_b64 vcc, vcc, s[{sM}:{sM+1}]")
        A(f"v_cndmask_b32 v{T[0]}, v{T[6]}, v{T[0]}, vcc")
        A(f"ds_write_b32 v{T[0]}, v{T[1]} offset:{LDS_MARK}")
    A(f"s_add_u32 s{sKK}, s{sKK}, {NW}")
    A("s_branch K2_EX")
    A.label("K2_EXD")
    A("s_waitcnt lgkmcnt(0)")
    A("s_barrier")
    ST.mark("bar1")
    A(f"v_lshlrev_b32 v{T[0]}, 2, v0")
    for s in range(2): A(f"ds_read_b32 v{MK+s}, v{T[0]} offset:{LDS_MARK+s*4096}")
    A(f"v_mov_b32 v{T[2]}, 0"); A(f"v_mov_b32 v{T[3]}, 0"); A(f"v_mov_b32 v{T[1]}, {LDS_FLAG}")
    A(f"ds_write_b64 v{T[1]}, v[{T[2]}:{T[3]}]")
    A(f"s_sub_u32 s{sNR}, s{sT}, s{sLO}")
    A(f"s_min_u32 s{sNR}, s{sNR}, s{sWIN}")
    A(f"s_lshl_b32 s{sTMP}, s{sW}, 6")
    A("s_waitcnt lgkmcnt(1)")
    for s in range(2):
        A(f"s_add_u32 s{sTMP+1}, s{sTMP}, {s*1024}")
        A(f"s_cmp_ge_u32 s{sTMP+1}, s{sNR}")
        A(f"s_cbranch_scc1 K2_LD_DONE")
        A(f"v_add_u32 v{T[1]}, {s*1024}, v0")
        A(f"v_cmp_gt_u32 vcc, s{sNR}, v{T[1]}")
        A(f"v_lshlrev_b32 v{T[2]}, 2, v{MK+s}")
        A(f"v_lshlrev_b32 v{T[3]}, 4, v{MK+s}")
        A(f"s_and_saveexec_b64 s[{sEX}:{sEX+1}], vcc")
        A(f"buffer_load_dword v{KEY+s}, v{T[2]}, s[{sKEY}:{sKEY+3}], 0 offen"+SC)
        A(f"buffer_load_dwordx4 v[{PAY+4*s}:{PAY+4*s+3}], v{T[3]}, s[{sPAY}:{sPAY+3}], 0 offen"+SC)
        A(f"s_mov_b64 exec, -1")
    A.label("K2_LD_DONE")
    A(f"v_mov_b32 v{T[4]}, 1")
    A("s_waitcnt vmcnt(0)")
    ST.mark("recs")
    if P.pf and P.pfat=="recs": propf()
    for s in range(2):
        A(f"s_add_u32 s{sTMP+1}, s{sTMP}, {s*1024}")
        A(f"s_cmp_ge_u32 s{sTMP+1}, s{sNR}")
        A(f"s_cbranch_scc1 K2_H_DONE")
        A(f"v_add_u32 v{T[1]}, {s*1024}, v0")
        A(f"v_lshrrev_b32 v{BINA+s}, 17, v{KEY+s}")
        A(f"v_cmp_gt_u32 vcc, s{sNR}, v{T[1]}")
        A(f"v_lshlrev_b32 v{T[2]}, 2, v{BINA+s}")
        A(f"s_and_saveexec_b64 s[{sEX}:{sEX+1}], vcc")
        A(f"ds_add_rtn_u32 v{RANK+s}, v{T[2]}, v{T[4]} offset:{LDS_HIST}")
        A(f"s_mov_b64 exec, -1")
        for o in range(4):
            A(f"v_mfma_f32_4x4x4_16b_bf16 v[{AT+4*o}:{AT+4*o+3}], v[{CG+2*o}:{CG+2*o+1}], v[{PAY+4*s}:{PAY+4*s+1}], 0")
        A("s_nop 4")
        for o in range(4):
            A(f"v_cvt_pk_bf16_f32 v{AP+8*s+2*o}, v{AT+4*o}, v{AT+4*o+1}")
            A(f"v_cvt_pk_bf16_f32 v{AP+8*s+2*o+1}, v{AT+4*o+2}, v{AT+4*o+3}")
    A.label("K2_H_DONE")
    A("s_waitcnt lgkmcnt(0)")
    A("s_barrier")
    ST.mark("bar2")
    if P.pf and P.pfat=="bar2": propf()
    A(f"s_lshl_b32 s{sTMP+1}, s{sG8}, {(B*4).bit_length()-1}")
    A(f"v_lshlrev_b32 v{T[0]}, 2, v{vLANE}")
    A(f"v_add_u32 v{T[0]}, s{sTMP+1}, v{T[0]}")
    if B<64:
        A(f"v_mov_b32 v{T[1]}, 0")
        A(f"v_cmp_gt_u32 vcc, {B}, v{vLANE}")
        A(f"s_and_saveexec_b64 s[{sEX}:{sEX+1}], vcc")
    A(f"ds_read_b32 v{T[1]}, v{T[0]} offset:{LDS_HIST}")
    A(f"s_mov_b64 exec, -1")
    A(f"v_add_u32 v{T[2]}, s{sH}, v{vLANE}"); A(f"v_and_b32 v{T[2]}, 1, v{T[2]}")
    A(f"v_lshlrev_b32 v{T[0]}, 1, v{T[0]}"); A(f"s_lshl_b32 s{sTMP+2}, s{sH}, 2"); A(f"v_add_u32 v{T[0]}, s{sTMP+2}, v{T[0]}")
    A("s_waitcnt lgkmcnt(0)")
    A(f"v_sub_u32 v{T[1]}, v{T[1]}, v{T[2]}"); A(f"v_add_u32 v{T[1]}, 1, v{T[1]}"); A(f"v_lshrrev_b32 v{T[1]}, 1, v{T[1]}")
    A(f"v_mov_b32 v{T[2]}, v{T[1]}")
    dpp_scan(A,T[2],nrows={16:1,32:2,64:4}[B])
    A(f"s_nop 0")
    A(f"v_readlane_b32 s{sTOT}, v{T[2]}, {B-1}")
    A(f"v_sub_u32 v{T[2]}, v{T[2]}, v{T[1]}")
    A(f"v_add_u32 v{T[2]}, s{sWB}, v{T[2]}")
    if B<64:
        A(f"v_cmp_gt_u32 vcc, {B}, v{vLANE}")
        A(f"s_and_saveexec_b64 s[{sEX}:{sEX+1}], vcc")
    A(f"ds_write_b32 v{T[0]}, v{T[2]} offset:{LDS_BASE}")
    A(f"s_mov_b64 exec, -1")
    if P.bar:
        A(f"v_mov_b32 v{T[0]}, s{sTOT}"); A(f"v_mov_b32 v{T[1]}, {LDS_FLAG}")
        A(f"ds_max_u32 v{T[1]}, v{T[0]} offset:4")
    A(f"s_cmp_gt_u32 s{sTOT}, {TOTMAX}")
    A("s_cbranch_scc0 K2_NOOVF")
    A(f"v_mov_b32 v{T[0]}, 1"); A(f"v_mov_b32 v{T[1]}, {LDS_FLAG}")
    A(f"ds_write_b32 v{T[1]}, v{T[0]}")
    A("s_branch K2_PADDONE")
    A.label("K2_NOOVF")
    A.label("K2_PADDONE")
    A("s_waitcnt lgkmcnt(0)")
    A("s_barrier")
    ST.mark("bar3")
    if P.l2w:
        A(f"s_cmp_lt_u32 s{sW}, 8"); A("s_cbranch_scc1 K2_NOL2W"); A(f"s_cmp_ge_u32 s{sW}, {8+P.l2w}"); A("s_cbranch_scc1 K2_NOL2W")
        A(f"s_sub_u32 s{sQ}, s{sW}, 8")
        pf_row0(sQ,sPFO)
        A(f"v_lshlrev_b32 v125, 7, v{vLANE}")
        burst(125,124)
        A.label("K2_NOL2W")
    if P.pf and P.pfat=="bar3": propf()
    if P.pf==3 and P.pfsplit and P.pfat2=="bar3": propf(1)
    A(f"v_mov_b32 v{T[1]}, {LDS_FLAG}")
    A(f"ds_read_b32 v{T[0]}, v{T[1]}")
    if P.bar: A(f"ds_read_b32 v{T[5]}, v{T[1]} offset:4")
    for s in range(2):
        A(f"v_add_u32 v{T[2]}, v{RANK+s}, v{BINA+s}"); A(f"v_and_b32 v{T[2]}, 1, v{T[2]}")
        A(f"v_lshl_add_u32 v{T[2]}, v{BINA+s}, 1, v{T[2]}"); A(f"v_lshlrev_b32 v{T[2]}, 2, v{T[2]}")
        A(f"ds_read_b32 v{MK+s}, v{T[2]} offset:{LDS_BASE}")
    A("s_waitcnt lgkmcnt(0)")
    A(f"v_readfirstlane_b32 s{sTMP+1}, v{T[0]}")
    if P.bar:
        A(f"v_readfirstlane_b32 s{sGM}, v{T[5]}")
        A(f"s_add_u32 s{sGM}, s{sGM}, 15"); A(f"s_lshr_b32 s{sGM}, s{sGM}, 4"); A(f"s_mov_b32 s{sGB}, 0")
    A("s_nop 3")
    A(f"s_cmp_eq_u32 s{sTMP+1}, 0")
    A("s_cbranch_scc1 K2_PLACE")
    A(f"s_mov_b32 s{sWIN}, {WINSMALL}")
    A("s_branch K2_ROUND")
    A.label("K2_PLACE")
    A(f"s_add_u32 s{sTMP+2}, s{sWB}, s{sTOT}")
    A(f"v_add_u32 v{T[0]}, s{sTMP+2}, v{vLANE}")
    A(f"v_lshlrev_b32 v{T[1]}, 2, v{T[0]}")
    A(f"v_lshlrev_b32 v{T[2]}, 3, v{T[0]}")
    A(f"v_lshlrev_b32 v{T[3]}, 5, v{T[0]}"); A(f"v_add_u32 v{T[3]}, {LDS_A}, v{T[3]}")
    for q in range(4): A(f"v_mov_b32 v{T[6+q]}, 0")
    assert T[6]%2==0 and T[9]==T[6]+3
    A(f"v_cmp_gt_u32 vcc, 8, v{vLANE}")
    A(f"s_and_saveexec_b64 s[{sEX}:{sEX+1}], vcc")
    A(f"ds_write_b32 v{T[1]}, v{T[6]} offset:{LDS_IDX}")
    A(f"ds_write_b8 v{T[0]}, v{T[6]} offset:{LDS_K}")
    A(f"v_cmp_gt_u32 vcc, 4, v{vLANE}")
    A(f"s_and_b64 exec, exec, vcc")
    A(f"ds_write_b64 v{T[2]}, v[{T[6]}:{T[6]+1}] offset:{LDS_EF}")
    A(f"ds_write_b128 v{T[3]}, v[{T[6]}:{T[6]+3}]")
    A(f"ds_write_b128 v{T[3]}, v[{T[6]}:{T[6]+3}] offset:16")
    A(f"s_mov_b64 exec, -1")
    for s in range(2):
        A(f"s_add_u32 s{sTMP+1}, s{sTMP}, {s*1024}")
        A(f"s_cmp_ge_u32 s{sTMP+1}, s{sNR}")
        A(f"s_cbranch_scc1 K2_P_DONE")
        A(f"v_add_u32 v{T[1]}, {s*1024}, v0")
        A(f"v_cmp_gt_u32 vcc, s{sNR}, v{T[1]}")
        A(f"v_lshrrev_b32 v{T[0]}, 1, v{RANK+s}")
        A(f"v_add_u32 v{MK+s}, v{MK+s}, v{T[0]}")
        A(f"v_lshlrev_b32 v{T[0]}, 2, v{MK+s}")
        A(f"v_lshlrev_b32 v{T[1]}, 3, v{MK+s}")
        A(f"v_lshlrev_b32 v{T[2]}, 5, v{MK+s}")
        A(f"v_add_u32 v{T[2]}, {LDS_A}, v{T[2]}")
        A(f"v_and_b32 v{T[3]}, {hex(P.srcmask)}, v{KEY+s}")
        A(f"v_lshrrev_b32 v{T[4]}, 11, v{KEY+s}")
        A(f"v_and_b32 v{T[4]}, 0x38, v{T[4]}")
        A(f"s_and_saveexec_b64 s[{sEX}:{sEX+1}], vcc")
        A(f"ds_write_b128 v{T[2]}, v[{AP+8*s}:{AP+8*s+3}]")
        A(f"ds_write_b128 v{T[2]}, v[{AP+8*s+4}:{AP+8*s+7}] offset:16")
        A(f"ds_write_b64 v{T[1]}, v[{PAY+4*s+2}:{PAY+4*s+3}] offset:{LDS_EF}")
        A(f"ds_write_b32 v{T[0]}, v{T[3]} offset:{LDS_IDX}")
        A(f"ds_write_b8 v{MK+s}, v{T[4]} offset:{LDS_K}")
        A(f"s_mov_b64 exec, -1")
    A.label("K2_P_DONE")
    A("s_waitcnt lgkmcnt(0)")
    A("s_barrier")
    ST.mark("bar4")
    tl(4)
    if P.pf==3 and P.pfsplit and P.pfat2=="bar4": propf(1)
    ST.markc("c0")
    A(f"s_cmp_eq_u32 s{sTOT}, 0")
    A("s_cbranch_scc1 K2_MAIN_DONE")
    A(f"s_add_u32 s{sNB}, s{sTOT}, 3"); A(f"s_lshr_b32 s{sNB}, s{sNB}, 2"); A(f"s_sub_u32 s{sN}, 0, s{sNB}")
    A(f"s_lshl_b32 s{sTMP}, s{sWB}, 2"); A(f"v_mov_b32 v{vIad}, s{sTMP}")
    A(f"v_mov_b32 v{vKad}, s{sWB}")
    A(f"s_lshl_b32 s{sTMP}, s{sWB}, 5"); A(f"s_add_u32 s{sTMP}, s{sTMP}, {LDS_A}")
    A(f"v_lshlrev_b32 v{vT0}, 3, v{vLANE}")
    A(f"v_add_u32 v{vAad}, s{sTMP}, v{vT0}")
    A(f"s_lshl_b32 s{sTMP}, s{sWB}, 3"); A(f"s_add_u32 s{sTMP}, s{sTMP}, {LDS_EF}")
    A(f"v_add_u32 v{vEad}, s{sTMP}, v{vT0}")
    if P.pf and P.nrounds:
        pf_row0(sW,sPFO)
        A(f"s_lshl_b32 s{sTMP}, s{sW}, 10"); A(f"s_add_u32 s{sTMP}, s{sTMP}, s{sTMP+3}"); A(f"s_sub_i32 s{sTMP}, s{sTMP}, {P.lead}")
        A(f"s_max_i32 s{sTMP}, s{sTMP}, 0"); A(f"s_mul_i32 s{sTMP}, s{sTMP}, s{sNB}"); A(f"s_mul_i32 s{sTMP}, s{sTMP}, 6711"); A(f"s_lshr_b32 s{sTMP}, s{sTMP}, 26")
        A(f"s_sub_u32 s{sPFT}, s{sTMP}, s{sNB}")
        A(f"s_min_i32 s{sPFT}, s{sPFT}, -2")
        A(f"s_cmp_lt_u32 s{sW}, {P.npro}"); A(f"s_cselect_b32 s{sPFT}, 1, s{sPFT}")
        A(f"s_cmp_ge_u32 s{sW}, {P.nrounds}"); A(f"s_cselect_b32 s{sPFT}, 1, s{sPFT}")
        A(f"v_lshlrev_b32 v0, 7, v{vLANE}")
    def mf(d,a,b,abid,c="0"): return f"v_mfma_f32_4x4x4_16b_bf16 v[{d}:{d+3}], v[{a}:{a+1}], v[{b}:{b+1}], {c} cbsz:4 abid:{abid}"
    def xload(slot,pair): return f"buffer_load_dwordx4 v[{X+4*(slot%U)}:{X+4*(slot%U)+3}], v[{PAIR+2*pair}:{PAIR+2*pair+1}], s[{sSRD}:{sSRD+3}], 0 idxen offen"
    if P.prio in (4,5): A("s_setprio 3")
    if P.prio==5:
        A(f"s_lshr_b32 s{sQ}, s{sW}, 2"); A(f"s_lshl_b32 s{sQ}, s{sQ}, 1"); A(f"s_sub_i32 s{sQ}, s{sQ}, 3"); A(f"s_mul_i32 s{sQ}, s{sQ}, {P.pdelta}")
        for L,reg in ((2,sP3),(1,sP3+1),(0,sP3+2)):
            A(f"s_sub_i32 s{sQ+1}, {P.pth[L]}, s{sQ}"); A(f"s_mul_i32 s{sQ+1}, s{sQ+1}, s{sNB}"); A(f"s_ashr_i32 s{sQ+1}, s{sQ+1}, 6")
            A(f"s_max_i32 s{sQ+1}, s{sQ+1}, 1"); A(f"s_sub_i32 s{reg}, 0, s{sQ+1}")
        A(f"s_mov_b32 s{sLV}, 2"); A(f"s_mov_b32 s{sTH}, s{sP3}")
    for p in range(4): A(f"ds_read_b32 v{PAIR+2*p}, v{vIad} offset:{LDS_IDX+4*p}")
    A(f"ds_read_b64 v[{AOP}:{AOP+1}], v{vAad}")
    A(f"ds_read_b64 v[{EOP}:{EOP+1}], v{vEad}")
    A(f"ds_read_b32 v{vK}, v{vKad} offset:{LDS_K}")
    A("s_waitcnt lgkmcnt(3)")
    for p in range(4): A(xload(p,p))
    for p in range(4): A(f"ds_read_b32 v{PAIR+2*p}, v{vIad} offset:{LDS_IDX+4*(4+p)}")
    hi_e,hi_o,lo_e,lo_o=WF,WF+2,WF+4,WF+6
    A("s_waitcnt lgkmcnt(5)")
    for t in (0,1):
        u=UU[t]
        A(mf(u,EOP,hi_e,t)); A(mf(u+4,EOP,hi_o,t))
        A("s_nop 1")
        A(mf(u,EOP,lo_e,t,f"v[{u}:{u+3}]")); A(mf(u+4,EOP,lo_o,t,f"v[{u+4}:{u+7}]"))
    A("s_nop 2")
    u=UU[0]
    for q in range(8): A(f"v_exp_f32 v{EE+q}, v{u+q}")
    A("s_nop 0")
    for q in range(4): A(f"v_pk_add_f32 v[{EE+2*q}:{EE+2*q+1}], v[{EE+2*q}:{EE+2*q+1}], 1.0 op_sel_hi:[1,0]")
    for q in range(8): A(f"v_rcp_f32 v{EE+q}, v{EE+q}")
    A("s_nop 0")
    for q in range(2): A(f"v_pk_mul_f32 v[{RR+2*q}:{RR+2*q+1}], v[{u+2*q}:{u+2*q+1}], v[{EE+2*q}:{EE+2*q+1}]")
    body=[]
    for t in range(4):
        cur=t%2; nxt=(t+1)%2
        if P.prio==1: body.append(('s',f"s_setprio {3-t}"))
        body.append(('s',"s_waitcnt lgkmcnt(0)"))
        body.append(('s',f"v_readfirstlane_b32 s{sK[0]}, v{vK}"))
        if P.prio==5:
            body.append(('s',f"s_cmp_ge_i32 s{sN}, s{sTH}"))
            body.append(('s',f"s_cbranch_scc1 K2_PR{t}"))
            body.append(('l',f"K2_PRR{t}"))
        if P.pf and P.nrounds:
            body.append(('s',f"s_cmp_eq_u32 s{sN}, s{sPFT}"))
            body.append(('s',f"s_cbranch_scc1 K2_PF{t}"))
            body.append(('l',f"K2_PFR{t}"))
        body.append(('s',f"ds_read_b32 v{vK}, v{vKad} offset:{LDS_K+4*(t+1)}"))
        if t==0:
            body.append(('s',f"ds_read_b64 v[{EOPN}:{EOPN+1}], v{vEad} offset:128"))
            body.append(('s',f"ds_read_b64 v[{AOPN}:{AOPN+1}], v{vAad} offset:512"))
        for i in range(4):
            j=4*t+i
            x=X+4*(j%U)
            if P.prio==2 and i%2==0: body.append(('s',f"s_setprio {3-(j//2)%4}"))
            if P.prio==3: body.append(('s',f"s_setprio {3-i}"))
            un=UU[nxt]; uw=UU[cur]
            if i==0: TR=[f"v_exp_f32 v{EE+q}, v{un+q}" for q in range(4)]
            if i==1: TR=[f"v_exp_f32 v{EE+4+q}, v{un+4+q}" for q in range(4)]
            if i==2: TR=[f"v_rcp_f32 v{EE+q}, v{EE+q}" for q in range(4)]
            if i==3: TR=[f"v_rcp_f32 v{EE+4+q}, v{EE+4+q}" for q in range(4)]
            PKpre=[];PKpost=[]
            if i==0: PKpre=[f"v_pk_mul_f32 v[{RR+4+2*q}:{RR+4+2*q+1}], v[{uw+4+2*q}:{uw+4+2*q+1}], v[{EE+4+2*q}:{EE+4+2*q+1}]" for q in range(2)]
            if i==1: PKpre=[f"v_pk_add_f32 v[{EE+2*q}:{EE+2*q+1}], v[{EE+2*q}:{EE+2*q+1}], 1.0 op_sel_hi:[1,0]" for q in range(2)]
            if i==2: PKpre=[f"v_pk_add_f32 v[{EE+4+2*q}:{EE+4+2*q+1}], v[{EE+4+2*q}:{EE+4+2*q+1}], 1.0 op_sel_hi:[1,0]" for q in range(2)]
            if i==3: PKpost=[f"v_pk_mul_f32 v[{RR+2*q}:{RR+2*q+1}], v[{un+2*q}:{un+2*q+1}], v[{EE+2*q}:{EE+2*q+1}]" for q in range(2)]
            eop,ab=(EOP,t+2) if t<2 else (EOPN,t-2)
            if i==0: UM=mf(uw,eop,hi_e,ab)
            if i==1: UM=mf(uw+4,eop,hi_o,ab)
            if i==2: UM=mf(uw,eop,lo_e,ab,f"v[{uw}:{uw+3}]")
            if i==3: UM=mf(uw+4,eop,lo_o,ab,f"v[{uw+4}:{uw+7}]")
            body.append(('s',f"s_waitcnt vmcnt({U-1})"))
            body.append(('s',mf(TP,AOP,x,j)))
            body.append(('s',TR[0]))
            body.append(('s',mf(TP+4,AOP,x+2,j)))
            body.append(('s',TR[1]))
            body.append(('s',xload(j,i)))
            body.append(('s',f"ds_read_b32 v{PAIR+2*i}, v{vIad} offset:{LDS_IDX+4*(j+2*U)}"))
            body.append(('s',UM))
            body.append(('s',TR[2])); body.append(('s',TR[3]))
            for q in PKpre: body.append(('s',q))
            body.append(('s',f"s_set_gpr_idx_on s{sK[0]}, gpr_idx(SRC2,DST)"))
            sel=i%2; pr=i//2
            for h in range(4):
                R=RR+(0 if h<2 else 4)+2*pr
                a=ACC+2*h; tp=TP+2*h
                mod = "op_sel_hi:[1,0,1]" if sel==0 else "op_sel:[0,1,0] op_sel_hi:[1,1,1]"
                body.append(('s',f"v_pk_fma_f32 v[{a}:{a+1}], v[{tp}:{tp+1}], v[{R}:{R+1}], v[{a}:{a+1}] {mod}"))
            body.append(('s',"s_set_gpr_idx_off"))
            for q in PKpost: body.append(('s',q))
            if i<3: body.append(('s',f"s_lshr_b32 s{sK[0]}, s{sK[0]}, 8"))
        body.append(('s',f"s_add_u32 s{sN}, s{sN}, 1"))
        body.append(('s',"s_cbranch_scc1 K2_MAIN_DONE"))
    if P.bar:
        body.append(('s',"s_barrier")); body.append(('s',f"s_add_u32 s{sGB}, s{sGB}, 1"))
    if P.prio==4:
        body.append(('s',f"s_sub_u32 s{sQ}, 0, s{sN}")); body.append(('s',f"s_lshl_b32 s{sQ}, s{sQ}, 2"))
        for lv in (3,2,1):
            pass
        body.append(('s',f"s_mul_i32 s{sQ+1}, s{sNB}, 3")); body.append(('s',f"s_cmp_ge_u32 s{sQ}, s{sQ+1}")); body.append(('s',"s_cbranch_scc1 K2_LOOPB"))
        body.append(('s',"s_setprio 2")); body.append(('s',f"s_lshl_b32 s{sQ+1}, s{sNB}, 1")); body.append(('s',f"s_cmp_ge_u32 s{sQ}, s{sQ+1}")); body.append(('s',"s_cbranch_scc1 K2_LOOPB"))
        body.append(('s',"s_setprio 1")); body.append(('s',f"s_cmp_ge_u32 s{sQ}, s{sNB}")); body.append(('s',"s_cbranch_scc1 K2_LOOPB"))
        body.append(('s',"s_setprio 0")); body.append(('l',"K2_LOOPB"))
    body.append(('s',f"v_mov_b32 v{AOP}, v{AOPN}")); body.append(('s',f"v_mov_b32 v{AOP+1}, v{AOPN+1}"))
    body.append(('s',f"v_mov_b32 v{EOP}, v{EOPN}")); body.append(('s',f"v_mov_b32 v{EOP+1}, v{EOPN+1}"))
    body.append(('s',f"v_add_u32 v{vAad}, 512, v{vAad}")); body.append(('s',f"v_add_u32 v{vEad}, 128, v{vEad}"))
    body.append(('s',f"v_add_u32 v{vIad}, 64, v{vIad}")); body.append(('s',f"v_add_u32 v{vKad}, 16, v{vKad}"))
    body.append(('s',"s_branch K2_LOOP"))
    if "noload" in P.dbg: body=[b for b in body if not (b[0]=='s' and (b[1].startswith("buffer_load") or b[1].startswith("s_waitcnt vmcnt")))]
    if "noidx" in P.dbg: body=[b for b in body if not (b[0]=='s' and b[1].startswith("s_set_gpr"))]
    if "notrans" in P.dbg: body=[b for b in body if not (b[0]=='s' and (b[1].startswith("v_exp") or b[1].startswith("v_rcp")))]
    if "nofma" in P.dbg: body=[b for b in body if not (b[0]=='s' and b[1].startswith("v_pk_fma"))]
    if "nolo" in P.dbg: body=[b for b in body if not (b[0]=='s' and b[1].startswith("v_mfma") and (f"v[{WF+4}:{WF+5}]" in b[1] or f"v[{WF+6}:{WF+7}]" in b[1]))]
    if "nomfma" in P.dbg: body=[b for b in body if not (b[0]=='s' and b[1].startswith("v_mfma"))]
    A.label("K2_LOOP")
    for i,b in enumerate(body):
        if b[0]=='s': A(b[1])
        elif b[0]=='l': A.label(b[1])
        elif b[0]=='lds': A(b[2])
        else:
            cnt=0; found=False
            for step in range(len(body)):
                kk=(i-1-step)%len(body)
                if body[kk][0]=='lds':
                    if body[kk][1]==b[1]: found=True; break
                    cnt+=1
            assert found,b
            A(f"s_waitcnt lgkmcnt({min(cnt,15)})")
    if P.pf and P.nrounds:
        for t in range(4):
            A.label(f"K2_PF{t}")
            burst(0)
            A(f"s_branch K2_PFR{t}")
    if P.prio==5:
        for t in range(4):
            A.label(f"K2_PR{t}")
            A(f"s_cmp_eq_u32 s{sLV}, 2"); A(f"s_cbranch_scc0 K2_PRA{t}")
            A("s_setprio 2"); A(f"s_mov_b32 s{sLV}, 1"); A(f"s_mov_b32 s{sTH}, s{sP3+1}"); A(f"s_branch K2_PRR{t}")
            A.label(f"K2_PRA{t}")
            A(f"s_cmp_eq_u32 s{sLV}, 1"); A(f"s_cbranch_scc0 K2_PRB{t}")
            A("s_setprio 1"); A(f"s_mov_b32 s{sLV}, 0"); A(f"s_mov_b32 s{sTH}, s{sP3+2}"); A(f"s_branch K2_PRR{t}")
            A.label(f"K2_PRB{t}")
            A("s_setprio 0"); A(f"s_mov_b32 s{sTH}, 0x7fffffff"); A(f"s_branch K2_PRR{t}")
    A.label("K2_MAIN_DONE")
    if P.prio: A("s_setprio 0")
    if P.bar:
        A.label("K2_BARL")
        A(f"s_cmp_ge_u32 s{sGB}, s{sGM}"); A("s_cbranch_scc1 K2_BARD")
        A("s_barrier"); A(f"s_add_u32 s{sGB}, s{sGB}, 1"); A("s_branch K2_BARL")
        A.label("K2_BARD")
    if P.pf and P.nrounds:
        A(f"s_lshl_b32 s{sTMP}, s{sW}, 6"); A(f"v_add_u32 v0, s{sTMP}, v{vLANE}")
    A(f"s_add_u32 s{sLO}, s{sLO}, s{sWIN}")
    A(f"s_cmp_lt_u32 s{sLO}, s{sT}")
    A("s_cbranch_scc0 K2_EPI")
    A("s_waitcnt vmcnt(0) lgkmcnt(0)")
    A("s_branch K2_ROUND")
    A.label("K2_EPI")
    A("s_waitcnt lgkmcnt(0)")
    ST.mark("main")
    tl(8)
    ST.markc("c1")
    A(f"s_and_b32 s{sCGP}, s{sW}, 3"); A(f"s_lshr_b32 s{sRG}, s{sW}, 2")
    A(f"s_lshl_b32 s{sTMP}, s{sCGP}, 13"); A(f"s_add_u32 s{sTMP}, s{sTMP}, {CONST_WM}")
    A(f"v_add_u32 v{2}, s{sTMP}, v{PAIR+1}")
    A(f"v_add_u32 v{3}, 4096, v{2}")
    for f in range(8):
        base=2 if f<4 else 3
        A(f"global_load_dwordx4 v[{WM+4*f}:{WM+4*f+3}], v{base}, s[{sCONST}:{sCONST+1}] offset:{(f%4)*1024}"+SC)
    RSZ=CAPW*32
    A(f"s_mul_i32 s{sTMP}, s{sW}, {RSZ}"); A(f"s_add_u32 s{sTMP}, s{sTMP}, {LDS_A}")
    A(f"s_xor_b32 s{sTMP+1}, s{sW}, 1"); A(f"s_mul_i32 s{sTMP+1}, s{sTMP+1}, {RSZ}"); A(f"s_add_u32 s{sTMP+1}, s{sTMP+1}, {LDS_A}")
    A(f"v_lshlrev_b32 v4, 3, v{vLANE}")
    A(f"v_add_u32 v5, s{sTMP}, v4"); A(f"v_add_u32 v6, 2048, v5"); A(f"v_add_u32 v7, 4096, v5")
    EX=64
    def xaddr(k,regs):
        r=regs[k//2]; o=(k%2)*128
        return r,o,o+64
    A(f"s_cmp_eq_u32 s{sH}, 0")
    A("s_cbranch_scc0 K2_EXW1")
    for k in range(5):
        r,o0,o1=xaddr(k,[5,6,7]); a=ACC+8*k
        A(f"ds_write2_b64 v{r}, v[{a+2}:{a+3}], v[{a+6}:{a+7}] offset0:{o0} offset1:{o1}")
    A("s_branch K2_EXW2")
    A.label("K2_EXW1")
    for k in range(5):
        r,o0,o1=xaddr(k,[5,6,7]); a=ACC+8*k
        A(f"ds_write2_b64 v{r}, v[{a}:{a+1}], v[{a+4}:{a+5}] offset0:{o0} offset1:{o1}")
    A.label("K2_EXW2")
    pr0,pr1,pr2,vRW=PAIR,PAIR+2,PAIR+4,PAIR+6
    A(f"v_add_u32 v{pr0}, s{sTMP+1}, v4"); A(f"v_add_u32 v{pr1}, 2048, v{pr0}"); A(f"v_add_u32 v{pr2}, 4096, v{pr0}")
    A(f"s_mul_i32 s{sTMP+2}, s{sG8}, 20"); A(f"s_lshl_b32 s{sTMP+3}, s{sH}, 1"); A(f"s_add_u32 s{sTMP+2}, s{sTMP+2}, s{sTMP+3}"); A(f"s_mul_i32 s{sTMP+2}, s{sTMP+2}, {AGG_STRIDE}")
    A(f"v_lshlrev_b32 v4, 2, v{vLANE}"); A(f"v_add_u32 v{vRW}, s{sTMP+2}, v4")
    A(f"s_mul_i32 s{sTMP}, s{sRG}, 3"); A(f"s_lshl_b32 s{sTMP+1}, s{sRG}, 1"); A(f"s_add_u32 s{sTMP+1}, s{sTMP+1}, 2")
    A(f"s_cmp_lt_u32 s{sRG}, 2"); A(f"s_cselect_b32 s{sTMP}, s{sTMP}, s{sTMP+1}")
    A(f"s_mul_i32 s{sTMP+1}, s{sTMP}, {16*AGG_STRIDE}")
    A(f"v_and_b32 v3, 15, v{vLANE}"); A(f"v_lshrrev_b32 v4, 4, v{vLANE}")
    A(f"v_mul_u32_u24 v7, {AGG_STRIDE}, v3"); A(f"v_lshl_add_u32 v7, v4, 4, v7"); A(f"v_add_u32 v{PAIR+1}, s{sTMP+1}, v7")
    vMR=PAIR+1; vOUT=PAIR+3
    A(f"v_lshlrev_b32 v3, 4, v3"); A(f"v_lshl_add_u32 v{vOUT}, v4, 10, v3")
    A(f"s_lshl_b32 s{sTMP}, s{sTMP}, 2")
    if P.nb256:
        A(f"s_mul_i32 s{sTMP+1}, s{sB}, 625"); A(f"s_add_u32 s{sTMP+2}, s{sTMP+1}, {625+15}"); A(f"s_add_u32 s{sTMP+1}, s{sTMP+1}, 15")
        A(f"s_lshr_b32 s{sTMP+1}, s{sTMP+1}, 4"); A(f"s_lshr_b32 s{sTMP+2}, s{sTMP+2}, 4"); A(f"s_sub_u32 s{sNN}, s{sTMP+2}, s{sTMP+1}")
        A(f"s_add_u32 s{sTMP+1}, s{sTMP+1}, s{sTMP}")
    else:
        A(f"s_mul_i32 s{sTMP+1}, s{sB}, {NPB}"); A(f"s_add_u32 s{sTMP+1}, s{sTMP+1}, s{sTMP}")
    A(f"s_lshl_b32 s{sTMP+1}, s{sTMP+1}, 10"); A(f"s_lshl_b32 s{sTMP+2}, s{sCGP}, 8"); A(f"s_add_u32 s{sTMP+1}, s{sTMP+1}, s{sTMP+2}")
    A(f"s_add_u32 s{sOUT}, s{sOUT}, s{sTMP+1}"); A(f"s_addc_u32 s{sOUT+1}, s{sOUT+1}, 0")
    A("s_waitcnt vmcnt(8) lgkmcnt(0)")
    A("s_barrier")
    ST.mark("barY")
    for k in range(5):
        r,o0,o1=xaddr(k,[pr0,pr1,pr2])
        A(f"ds_read2_b64 v[{EX+4*k}:{EX+4*k+3}], v{r} offset0:{o0} offset1:{o1}")
    A(f"s_cmp_eq_u32 s{sH}, 0")
    A("s_cbranch_scc0 K2_CB1")
    for hh in range(2):
        if hh==1: A.label("K2_CB1")
        off=0 if hh==0 else 2
        for k in range(5):
            a=ACC+8*k+off; e=EX+4*k
            A(f"s_waitcnt lgkmcnt({min(4-k+2*k,15)})")
            A(f"v_pk_add_f32 v[{a}:{a+1}], v[{a}:{a+1}], v[{e}:{e+1}]")
            A(f"v_pk_add_f32 v[{a+4}:{a+5}], v[{a+4}:{a+5}], v[{e+2}:{e+3}]")
            A(f"v_pk_mul_f32 v[{a}:{a+1}], v[{a}:{a+1}], s[{sLN2}:{sLN2+1}]")
            A(f"v_pk_mul_f32 v[{a+4}:{a+5}], v[{a+4}:{a+5}], s[{sLN2}:{sLN2+1}]")
            A(f"v_cvt_pk_bf16_f32 v{2+2*(k%2)}, v{a}, v{a+4}")
            A(f"v_cvt_pk_bf16_f32 v{3+2*(k%2)}, v{a+1}, v{a+5}")
            A(f"ds_write_b32 v{vRW}, v{2+2*(k%2)} offset:{(4*k)*AGG_STRIDE}")
            A(f"ds_write_b32 v{vRW}, v{3+2*(k%2)} offset:{(4*k+1)*AGG_STRIDE}")
        if hh==0: A("s_branch K2_CB2")
    A.label("K2_CB2")
    A("s_waitcnt lgkmcnt(0)")
    A("s_barrier")
    ST.mark("barZ")
    D=ACC; FR=64
    fl={0:"",1:" sc1",2:" sc0 sc1",3:" nt"}[P.outwt]
    def rd(q):
        for ks in range(4): A(f"ds_read_b128 v[{FR+16*(q%2)+4*ks}:{FR+16*(q%2)+4*ks+3}], v{vMR} offset:{q*16*AGG_STRIDE+ks*64}")
    def mm(q):
        for ks in range(4):
            for p in range(2):
                d=D+8*q+4*p; f=FR+16*(q%2)+4*ks; w=WM+4*(4*p+ks)
                c="0" if ks==0 else f"v[{d}:{d+3}]"
                A(f"v_mfma_f32_16x16x32_bf16 v[{d}:{d+3}], v[{f}:{f+3}], v[{w}:{w+3}], {c}")
    def st(q):
        d=D+8*q; o=D+24+4*q
        A(f"v_cvt_pk_bf16_f32 v{o}, v{d}, v{d+1}"); A(f"v_cvt_pk_bf16_f32 v{o+1}, v{d+2}, v{d+3}")
        A(f"v_cvt_pk_bf16_f32 v{o+2}, v{d+4}, v{d+5}"); A(f"v_cvt_pk_bf16_f32 v{o+3}, v{d+6}, v{d+7}")
        if q: A(f"v_add_u32 v{vOUT}, 4096, v{vOUT}")
        A(f"global_store_dwordx4 v{vOUT}, v[{o}:{o+3}], s[{sOUT}:{sOUT+1}]"+fl)
    rd(0); rd(1)
    A("s_waitcnt vmcnt(0) lgkmcnt(4)")
    mm(0)
    A(f"s_cmp_lt_u32 s{sRG}, 2")
    A("s_cbranch_scc0 K2_MIX2")
    rd(2)
    A("s_waitcnt lgkmcnt(4)")
    mm(1)
    st(0)
    A("s_waitcnt lgkmcnt(0)")
    mm(2)
    st(1)
    A("s_nop 4")
    st(2)
    A("s_branch K2_MIXD")
    A.label("K2_MIX2")
    A("s_waitcnt lgkmcnt(0)")
    mm(1)
    st(0)
    A("s_nop 4")
    if P.nb256:
        A(f"s_mov_b64 s[{sEX}:{sEX+1}], -1")
        A(f"s_cmp_eq_u32 s{sRG}, 3"); A("s_cbranch_scc0 K2_M9")
        A(f"s_cmp_eq_u32 s{sNN}, 40"); A("s_cbranch_scc1 K2_M9")
        A(f"s_mov_b32 s{sEX+1}, 0xffff")
        A.label("K2_M9")
        d=D+8; o=D+28
        A(f"v_cvt_pk_bf16_f32 v{o}, v{d}, v{d+1}"); A(f"v_cvt_pk_bf16_f32 v{o+1}, v{d+2}, v{d+3}")
        A(f"v_cvt_pk_bf16_f32 v{o+2}, v{d+4}, v{d+5}"); A(f"v_cvt_pk_bf16_f32 v{o+3}, v{d+6}, v{d+7}")
        A(f"v_add_u32 v{vOUT}, 4096, v{vOUT}")
        A(f"s_mov_b64 exec, s[{sEX}:{sEX+1}]")
        A(f"global_store_dwordx4 v{vOUT}, v[{o}:{o+3}], s[{sOUT}:{sOUT+1}]"+fl)
        A("s_mov_b64 exec, -1")
    else:
        st(1)
    A.label("K2_MIXD")
    if P.tl:
        A("s_waitcnt vmcnt(0)"); tl(12)
        if not P.fused:
            A(f"s_lshl_b32 s74, s2, 3"); A("s_add_u32 s74, s74, 0x7F0000"); A("v_mov_b32 v4, s74")
            A("v_cmp_eq_u32 vcc, 0, v0"); A("s_and_saveexec_b64 s[76:77], vcc"); A("s_cbranch_execz K2_TLZ")
            A(f"global_load_dwordx2 v[6:7], v4, s[{sWS}:{sWS+1}]"); A("s_waitcnt vmcnt(0)")
            A("v_not_b32 v6, v6"); A("v_mov_b32 v3, 0")
            A("global_atomic_umax v3, v6, s[72:73] offset:16"); A("global_atomic_umax v3, v7, s[72:73] offset:20")
            A.label("K2_TLZ"); A("s_mov_b64 exec, s[76:77]")
    ST.mark("iss")
    if P.stamps:
        A("s_waitcnt vmcnt(0)")
        ST.mark("done")
        ST.dump(sWS,1,2,sW,2)
    A.label("K2_END")
    A("s_endpgm")
    A.label("K2_CODE_END")
    return NV

def kd(name,nv,ns):
    nv8=(nv+3)//4*4
    return f""".amdhsa_kernel {name}
  .amdhsa_next_free_vgpr {nv8}
  .amdhsa_next_free_sgpr {ns}
  .amdhsa_accum_offset {nv8}
  .amdhsa_group_segment_fixed_size 0
  .amdhsa_kernarg_size 88
  .amdhsa_user_sgpr_count 2
  .amdhsa_user_sgpr_kernarg_segment_ptr 1
  .amdhsa_system_sgpr_workgroup_id_x 1
  .amdhsa_float_denorm_mode_32 3
.end_amdhsa_kernel
"""

def main():
    ap=argparse.ArgumentParser()
    ap.add_argument("-o",default="standalone__tensor_product_equiv_tfn__graph.s")
    ap.add_argument("--U",type=int,default=8)
    ap.add_argument("--B",type=int,default=32)
    ap.add_argument("--rot",type=int,default=0)
    ap.add_argument("--stamps",type=int,default=0)
    ap.add_argument("--srcmask",type=lambda x:int(x,0),default=0x3fff)
    ap.add_argument("--dbg",default="")
    ap.add_argument("--xmap",type=int,default=1)
    ap.add_argument("--prio",type=int,default=5)
    ap.add_argument("--pf",type=int,default=3)
    ap.add_argument("--npro",type=int,default=2)
    ap.add_argument("--lead",type=int,default=1500)
    ap.add_argument("--nrounds",type=int,default=0)
    ap.add_argument("--bar",type=int,default=0)
    ap.add_argument("--k1stage",type=int,default=1)
    ap.add_argument("--k1wt",type=int,default=1)
    ap.add_argument("--k1pf",type=int,default=0)
    ap.add_argument("--pfat",default="recs")
    ap.add_argument("--k1l2",type=int,default=0)
    ap.add_argument("--outwt",type=int,default=1)
    ap.add_argument("--codepf",type=int,default=1)
    ap.add_argument("--k1rows",type=int,default=10000)
    ap.add_argument("--fused",type=int,default=1)
    ap.add_argument("--fpf",type=int,default=0)
    ap.add_argument("--sleep",type=int,default=0)
    ap.add_argument("--nfast",type=int,default=245)
    ap.add_argument("--pfsplit",type=int,default=0)
    ap.add_argument("--tl",type=int,default=0)
    ap.add_argument("--nb256",type=int,default=0)
    ap.add_argument("--gran",type=int,default=0)
    ap.add_argument("--pdelta",type=int,default=3)
    ap.add_argument("--pth",type=lambda x:[int(v) for v in x.split(",")],default=[16,32,48])
    ap.add_argument("--l2w",type=int,default=0)
    ap.add_argument("--flags",type=int,default=1)
    ap.add_argument("--pfat2",default="bar4")
    ap.add_argument("--sfast",type=int,default=8)
    P=ap.parse_args()
    hdr=open("standalone__tensor_product_equiv_tfn__graph.s.ref").read().split("; Override")[0]
    A=Asm()
    A.L.append(hdr.rstrip("\n"))
    if P.fused:
        A.L.append(f"; @launch grid=({256 if P.nb256 else NB},1,1) block=(1024,1,1) lds={K2_LDS}")
    else:
        A.L.append(f"; @launch kernel=tfn_bin_kernel grid=({NC+K1_CONST_WGS},1,1) block=({K1_THREADS},1,1) lds={2048+CH*20 if P.k1stage else 2048}")
        A.L.append(f"; @launch kernel=standalone__tensor_product_equiv_tfn__graph_kernel grid=({NB},1,1) block=(1024,1,1) lds={K2_LDS}")
    A('.amdgcn_target "amdgcn-amd-amdhsa--gfx950"')
    A(".text")
    if not P.fused: A(".globl tfn_bin_kernel")
    A(".globl standalone__tensor_product_equiv_tfn__graph_kernel")
    if not P.fused: gen_k1(A,P)
    nv=gen_k2(A,P)
    A('.section .rodata,"a"')
    A(".p2align 6")
    s=A.text()+("" if P.fused else kd("tfn_bin_kernel",72,102 if P.stamps else 40)+".p2align 6\n")+kd("standalone__tensor_product_equiv_tfn__graph_kernel",nv,102 if P.stamps else 80)
    open(P.o,"w").write(s)
    print("wrote",P.o,len(s),"bytes")
main()
```
